```python
import torch

def _softmax(x, axis=-1):
    return torch.softmax(x, dim=axis)
def _gelu(x):
    return torch.nn.functional.gelu(x, approximate="tanh")
def _silu(x):
    return torch.nn.functional.silu(x)
def _sigmoid(x):
    return torch.sigmoid(x)
def _layernorm(x, axis=-1, eps=1e-5):
    m = x.mean(dim=axis, keepdim=True)
    v = x.var(dim=axis, keepdim=True, unbiased=False)
    return (x - m) / torch.sqrt(v + eps)
def _scatter_add(tgt, idx, src, axis=0):
    return tgt.clone().index_add_(axis, idx, src)
def _segment_sum(src, seg, n):
    out = torch.zeros((n,) + src.shape[1:], dtype=src.dtype)
    return out.index_add_(0, seg, src)
def _pad(x, pw):
    flat = tuple(v for pair in reversed(pw) for v in pair)
    return torch.nn.functional.pad(x, flat)

kernel_name = 'recurrent_scan__mha_block_cached__glu_gated_glu__prompt'

def setup_inputs():

    _w = (lambda a: (lambda t: t.to(torch.bfloat16) if t.is_floating_point() else t)(torch.as_tensor(a)))
    def _A_setup():
        B, Sq, D = 1, 2048, 448
        H, Sk, Dh = 16, 2048, 256
        return {
            "x": _w((lambda *s: torch.randn(*s, dtype=torch.bfloat16) * 0.05)(B, Sq, D)),
            "k_cache": _w((lambda *s: torch.randn(*s, dtype=torch.bfloat16) * 1.6)(B, H, Sk, Dh)),
            "v_cache": _w((lambda *s: torch.randn(*s, dtype=torch.bfloat16) * 0.2)(B, H, Sk, Dh)),
            "wq": _w((lambda *s: torch.randn(*s, dtype=torch.bfloat16) * 1.6)(D, H * Dh) * (D ** -0.5)),
            "wo": _w((lambda *s: torch.randn(*s, dtype=torch.bfloat16) * 0.2)(H * Dh, D) * ((H * Dh) ** -0.5)),
        }
    _A_in = _A_setup()

    def _B_setup():
        B, S, D, F = 1, 2048, 448, 1792
        return {
            "x": _w((lambda *s: torch.randn(*s, dtype=torch.bfloat16) * 0.05)(B, S, D)),
            "w_gate": _w((lambda *s: torch.randn(*s, dtype=torch.bfloat16) * 0.2)(D, F)),
            "w_up": _w((lambda *s: torch.randn(*s, dtype=torch.bfloat16) * 0.1)(D, F)),
            "w_down": _w((lambda *s: torch.randn(*s, dtype=torch.bfloat16) * 0.1)(F, D)),
        }
    _B_in = _B_setup()

    return {
        "A_x": _A_in["x"],
        "A_k_cache": _A_in["k_cache"],
        "A_v_cache": _A_in["v_cache"],
        "A_wq": _A_in["wq"],
        "A_wo": _A_in["wo"],
        "B_x": _B_in["x"],
        "B_w_gate": _B_in["w_gate"],
        "B_w_up": _B_in["w_up"],
        "B_w_down": _B_in["w_down"],
    }

def reference(A_x, A_k_cache, A_v_cache, A_wq, A_wo, B_x, B_w_gate, B_w_up, B_w_down):
    def _A_ref(x, k_cache, v_cache, wq, wo):
        B, Sq, D = x.shape
        H, Dh = 16, 256
        q = (lambda x, *d: x.permute(*d))((x @ wq).reshape(B, Sq, H, Dh), 0, 2, 1, 3)
        scores = torch.einsum("bhqd,bhkd->bhqk", q, k_cache) * (Dh ** -0.5)
        p = _softmax(scores, axis=-1)
        o = torch.einsum("bhqk,bhkd->bhqd", p, v_cache)
        return (lambda x, *d: x.permute(*d))(o, 0, 2, 1, 3).reshape(B, Sq, H * Dh) @ wo

    def _B_ref(x, w_gate, w_up, w_down):
        g = torch.einsum("bsd,df->bsf", x, w_gate)
        u = torch.einsum("bsd,df->bsf", x, w_up)
        h = _sigmoid(g) * u
        return torch.einsum("bsf,fd->bsd", h, w_down)

    x = A_x
    xn = _layernorm(x, axis=-1)
    s = _A_ref(xn, A_k_cache, A_v_cache, A_wq, A_wo)
    g = _silu(_B_ref(xn, B_w_gate, B_w_up, B_w_down))
    return x + s * g
```

```python
import re

_RNG = re.compile(r'^-?\|?(?:abs\()?([vsa])\[(\d+):(\d+)\]')
_ONE = re.compile(r'^-?\|?(?:abs\()?([vsa])(\d+)\b')
TRANS = ('v_exp_f32', 'v_log_f32', 'v_rcp_f32', 'v_rsq_f32', 'v_sqrt_f32', 'v_sin_f32', 'v_cos_f32')

def regs_of(tok):
    tok = tok.strip()
    m = _RNG.match(tok)
    if m: return {f"{m.group(1)}{i}" for i in range(int(m.group(2)), int(m.group(3)) + 1)}
    m = _ONE.match(tok)
    if m: return {f"{m.group(1)}{m.group(2)}"}
    if tok in ('vcc', 'exec', 'm0'): return {tok}
    if tok in ('vcc_lo', 'vcc_hi'): return {'vcc'}
    if tok in ('exec_lo', 'exec_hi'): return {'exec'}
    return set()

_INL_F = {'0.5', '-0.5', '1.0', '-1.0', '2.0', '-2.0', '4.0', '-4.0'}
def is_literal(tok):
    tok = tok.strip()
    if regs_of(tok) or tok in _INL_F or tok in ('off', 'scc', 'null'): return False
    try:
        v = int(tok, 0)
        return not (-16 <= v <= 64)
    except ValueError:
        pass
    try:
        float(tok); return True
    except ValueError:
        return True

VOP3_ONLY = ('v_fma_f32', 'v_max3_f32', 'v_min3_f32', 'v_med3_f32', 'v_cvt_pk_bf16_f32', 'v_mul_lo_u32', 'v_mul_hi_u32', 'v_bfe_u32',
             'v_lshl_add_u32', 'v_add_lshl_u32', 'v_add3_u32', 'v_and_or_b32', 'v_or3_b32', 'v_lshl_or_b32', 'v_mad_u32_u24', 'v_perm_b32', 'v_bfi_b32',
             'v_readlane_b32', 'v_writelane_b32', 'v_mbcnt_lo_u32_b32', 'v_mbcnt_hi_u32_b32', 'v_dot2_f32_bf16', 'v_alignbit_b32', 'v_lshlrev_b64')

class Ins:
    def __init__(self, text, tag=None, extra_rd=None, tags=None):
        self.text = text.strip()
        self.tag = tag
        self.tags = tags
        self.extra_rd = set(extra_rd or ())
        self.pre_nop = 0
        self.pre_lgkm = None
        self.pre_vm = None
        self.vmN = None
        self.label = self.text.endswith(':')
        self.raw = self.text.startswith('.') or self.text.startswith(';')
        self.rd = set(); self.wr = set(); self.kind = 'other'; self.srcc = set(); self.ab = set()
        if self.label or self.raw: self.kind = 'none'; self.op = ''; return
        sp = self.text.split(None, 1)
        op = sp[0]; self.op = op
        base = op.replace('_e32', '').replace('_e64', '')
        self.base = base
        rest = sp[1] if len(sp) > 1 else ''
        toks = [t.strip() for t in rest.split(',')] if rest else []
        mods = ''
        if toks:
            last = toks[-1].split(None, 1)
            toks[-1] = last[0]
            mods = last[1] if len(last) > 1 else ''
        self.toks = toks; self.mods = mods
        R = [regs_of(t) for t in toks]
        allr = set().union(*R) if R else set()
        if op == 'WAITVM': self.kind = 'waitvm'
        elif op.startswith('v_mfma'):
            self.kind = 'mfma'; self.wr = R[0]; self.ab = R[1] | R[2]; self.srcc = R[3]; self.rd = self.ab | self.srcc
        elif op.startswith('v_'):
            self.kind = 'valu'
            self.wr = set(R[0]); self.rd = set().union(*R[1:]) if len(R) > 1 else set()
            if base.startswith(('v_fmac', 'v_dot2c', 'v_pk_fmac')): self.rd |= R[0]
            if base.startswith('v_permlane'): self.rd |= R[0]; self.wr |= R[1]
            if base.startswith(('v_add_co', 'v_sub_co', 'v_addc_co')): self.wr |= R[1]
            if base.startswith('v_cmpx'): self.wr |= {'exec'}
        elif op.startswith('ds_read') or op.startswith('ds_bpermute') or op.startswith('ds_swizzle'):
            self.kind = 'ds'; self.wr = R[0]; self.rd = set().union(*R[1:])
        elif op.startswith('ds_'):
            self.kind = 'ds'; self.rd = allr
        elif op.startswith(('buffer_load', 'global_load')):
            self.kind = 'vmem'
            if re.search(r'\blds\b', mods) or 'load_lds' in op: self.rd = allr | {'m0'}; self.dma = True
            else: self.wr = R[0]; self.rd = set().union(*R[1:])
        elif op.startswith(('buffer_', 'global_')):
            self.kind = 'vmem'; self.rd = allr
            if 'atomic' in op and re.search(r'\bsc0\b', mods):
                self.wr = R[0]
        elif op.startswith('s_load') or op.startswith('s_memtime') or op.startswith('s_memrealtime'):
            self.kind = 'smem'; self.wr = R[0]; self.rd = set().union(*R[1:]) if len(R) > 1 else set()
        elif op in ('s_waitcnt', 's_nop', 's_barrier', 's_setprio', 's_sleep', 's_endpgm', 's_branch') or op.startswith('s_cbranch'):
            self.kind = 'sopp'
        elif op.startswith('s_cmp') or op.startswith('s_bitcmp'):
            self.kind = 'salu'; self.rd = allr
        elif op.startswith('s_'):
            self.kind = 'salu'; self.wr = set(R[0]) if R else set(); self.rd = set().union(*R[1:]) if len(R) > 1 else set()
            if 'saveexec' in op: self.wr |= {'exec'}; self.rd |= {'exec'}
        else:
            raise ValueError(text)
    def size(self):
        k = self.kind
        if k in ('none',): return 0
        if k == 'waitvm': return 0 if self.vmN is None else 4
        if k in ('mfma', 'ds', 'vmem', 'smem'): return 8
        if k == 'sopp': return 4
        if k == 'salu':
            if self.op.startswith(('s_movk', 's_addk', 's_mulk', 's_cmpk', 's_getreg')): return 4
            return 8 if any(is_literal(t) for t in self.toks) else 4
        if k == 'valu':
            if self.op.endswith('_e64') or self.base in VOP3_ONLY or self.base.startswith('v_pk_') or 'dpp' in self.op or 'sdwa' in self.op: return 8
            if self.mods: return 8
            if any(t.startswith('-') and regs_of(t) for t in self.toks) or any('abs(' in t or t.startswith('|') for t in self.toks): return 8
            if any(is_literal(t) for t in self.toks[1:]): return 8
            if self.base.startswith('v_cmp') and self.toks[0] != 'vcc': return 8
            if self.base.startswith('v_cndmask') and self.toks[-1] != 'vcc': return 8
            if len(self.toks) >= 3 and not self.base.startswith(('v_cmp',)) and not self.toks[2].startswith('v') : return 8
            if self.base.startswith('v_cmp') and not self.toks[2].startswith('v'): return 8
            return 4
        raise ValueError(self.text)
    def promotable(self):
        return self.kind == 'valu' and self.size() == 4 and not self.base.startswith(('v_readfirstlane', 'v_permlane', 'v_dot2c', 'v_nop', 'v_accvgpr'))
    def states(self):
        if self.kind == 'none': return 0
        if self.kind == 'waitvm': return 0 if self.vmN is None else 1
        if self.op == 's_nop': return int(self.toks[0], 0) + 1
        return 1

def need_states(p, c):
    n = 0
    pv = {r for r in p.wr if r[0] in 'va' and r != 'vcc'}
    ps = {r for r in p.wr if r[0] == 's' or r == 'vcc'}
    if p.kind == 'mfma':
        small = '16x16' in p.op
        full, ovl, war = (8, 6, 3) if small else (12, 10, 7)
        if c.kind == 'mfma':
            if pv & c.ab: n = max(n, full)
            if pv & c.srcc and not (c.srcc == p.wr and c.op == p.op): n = max(n, ovl)
            if pv & c.wr and not (c.wr == p.wr): n = max(n, ovl)
        elif c.kind in ('valu', 'ds', 'vmem'):
            if pv & (c.rd | c.wr): n = max(n, full)
            if c.kind == 'valu' and (p.srcc & c.wr): n = max(n, war)
    elif p.kind == 'valu':
        if c.kind == 'mfma' and pv & c.rd: n = max(n, 2)
        if c.kind == 'mfma' and 'exec' in p.wr: n = max(n, 4)
        if c.kind == 'valu':
            if p.base in TRANS and pv & c.rd and c.base not in TRANS: n = max(n, 1)
            if p.base in TRANS and pv & c.rd: n = max(n, 1)
            if c.base.startswith('v_permlane') and pv & c.rd: n = max(n, 2)
            if 'dpp' in c.op and pv & c.rd: n = max(n, 2)
            if c.base.startswith(('v_readlane', 'v_readfirstlane')) and pv & c.rd: n = max(n, 1)
            if ps & c.rd: n = max(n, 4 if c.base.startswith(('v_readlane', 'v_writelane')) else 2)
            if p.base.startswith('v_dot') and pv & (c.rd | c.wr):
                if not (c.base == p.base and not (pv & set().union(*[regs_of(t) for t in c.toks[1:3]]))): n = max(n, 3)
            if 'sdwa' in p.op and pv & (c.rd | c.wr): n = max(n, 1)
        if c.kind in ('mfma', 'ds', 'vmem') and p.base.startswith('v_dot') and pv & (c.rd | c.wr): n = max(n, 3)
        if c.kind == 'vmem' and ps & c.rd: n = max(n, 5)
        if c.kind in ('ds', 'vmem') and p.base in TRANS and pv & c.rd: n = max(n, 1)
    elif p.kind == 'salu':
        if 'm0' in p.wr and c.kind == 'vmem' and 'm0' in c.rd: n = max(n, 1)
    elif p.kind == 'vmem':
        if ('store' in p.op) and p.op.endswith(('x3', 'x4')):
            data = regs_of(p.toks[0]) if p.op.startswith('buffer') else regs_of(p.toks[1])
            if data & c.wr: n = max(n, 2)
    return n

def simulate(trace):
    changed = False
    lg = []
    vm = []
    hist = []
    pos = 0
    for I in trace:
        if I.kind == 'none': continue
        touched = I.rd | I.wr | I.extra_rd
        k = -1
        for idx, o in enumerate(lg):
            if o.wr & touched: k = idx
        if k >= 0:
            N = min(len(lg) - 1 - k, 15)
            if I.pre_lgkm is None or N < I.pre_lgkm: I.pre_lgkm = N; changed = True
        if I.pre_lgkm is not None and len(lg) > I.pre_lgkm: lg = lg[len(lg) - I.pre_lgkm:] if I.pre_lgkm else []
        k = -1
        for idx, o in enumerate(vm):
            if o.wr & touched and I.tag not in ('touch', 'code'): k = idx
        if k >= 0:
            N = min(len(vm) - 1 - k, 63)
            if I.pre_vm is None or N < I.pre_vm: I.pre_vm = N; changed = True
        if I.pre_vm is not None and len(vm) > I.pre_vm: vm = vm[len(vm) - I.pre_vm:] if I.pre_vm else []
        if I.pre_lgkm is not None or I.pre_vm is not None: pos += 1
        if I.kind == 'waitvm':
            k = -1
            for idx, o in enumerate(vm):
                if o.tag in I.tags: k = idx
            if k >= 0:
                N = min(len(vm) - 1 - k, 63)
                if I.vmN is None or N < I.vmN: I.vmN = N; changed = True
            if I.vmN is not None and len(vm) > I.vmN: vm = vm[len(vm) - I.vmN:] if I.vmN else []
            pos += I.states()
            continue
        if I.op == 's_waitcnt':
            m = re.search(r'lgkmcnt\((\d+)\)', I.text)
            if m:
                n = int(m.group(1))
                if len(lg) > n: lg = lg[len(lg) - n:] if n else []
            m = re.search(r'vmcnt\((\d+)\)', I.text)
            if m:
                n = int(m.group(1))
                if len(vm) > n: vm = vm[len(vm) - n:] if n else []
        need = 0
        for (p, ppos) in hist:
            req = need_states(p, I)
            if req:
                have = pos - ppos
                if have < req: need = max(need, req - have)
        if need > I.pre_nop: I.pre_nop = need; changed = True
        pos += I.pre_nop
        if I.kind == 'ds': lg.append(I)
        if I.kind == 'vmem': vm.append(I)
        pos += I.states()
        hist.append((I, pos))
        if len(hist) > 24: hist.pop(0)
    return changed

def resolve(traces):
    for _ in range(20):
        ch = False
        for t in traces: ch |= simulate(t)
        if not ch: return
    raise RuntimeError("no fixpoint")

def expand(prog):
    out = []
    for I in prog:
        if I.kind != 'none':
            w = []
            if I.pre_vm is not None: w.append(f"vmcnt({I.pre_vm})")
            if I.pre_lgkm is not None: w.append(f"lgkmcnt({I.pre_lgkm})")
            if w: out.append(Ins("s_waitcnt " + " ".join(w)))
            n = I.pre_nop
            while n > 0:
                k = min(n, 16); out.append(Ins(f"s_nop {k-1}")); n -= k
        if I.kind == 'waitvm':
            if I.vmN is not None: out.append(Ins(f"s_waitcnt vmcnt({I.vmN})"))
            continue
        out.append(I)
    return out

def align8(prog):
    off = 0; run = []; mis = 0
    for I in prog:
        if I.kind == 'none':
            if I.text.startswith('.p2align'): off = 0; run = []
            continue
        s = I.size()
        if s == 4:
            run.append(I); off += 4
        else:
            if off % 8:
                cand = [x for x in run if x.promotable()]
                start = off - 4 * len(run)
                ok = [x for i, x in enumerate(run) if x.promotable() and (start + 4 * i) % 8 == 0]
                pick = ok[-1] if ok else (cand[-1] if cand else None)
                if pick is not None:
                    pick.op = pick.base + '_e64'
                    pick.text = pick.op + ' ' + pick.text.split(None, 1)[1]
                    off += 4
                else:
                    mis += 1
            run = []; off += 8
    return mis

class Prog:
    def __init__(self): self.L = []
    def e(self, text, **kw):
        I = Ins(text, **kw); self.L.append(I); return I
    def waitvm(self, *tags):
        I = Ins("WAITVM", tags=set(tags)); self.L.append(I); return I
    def mark(self): return len(self.L)
    def since(self, m): return self.L[m:]
```

```python
import struct, sys
from asmlib import *

NAME = "recurrent_scan__mha_block_cached__glu_gated_glu__prompt"
def f2u(x): return struct.unpack('<I', struct.pack('<f', x))[0]
LOG2E = 1.4426950408889634
SLOT = 16896
GLUB = 8 * SLOT
GLUS = 8448
LDS_BYTES = GLUB + 3 * GLUS
TTHR = 16.0
GP_OFF = 0x2000000

sHEAD, sQB, sWV, sSUB = 's3', 's4', 's5', 's6'
SX, SK, SV, SWQ, SWO, SWG, SWU, SWD, SP, ST = [f"s[{8+4*i}:{11+4*i}]" for i in range(10)]
sC = 's72'; sONES = 's73'; sHI = 's74'; sTRIP = 's75'
sLK, sLV, sL1K = 's76', 's77', 's78'
sT0, sT1, sT2, sT3 = 's80', 's81', 's82', 's83'
sGW = 's84'
def srd(i): return 8 + 4 * i

def vr(a, n): return f"v[{a}:{a+n-1}]"
MF = "v_mfma_f32_32x32x16_bf16"

class Cfg:
    glu = True
    touch = True
    prio = True
    stamps = False

def stream(P, items, bufs, lead, gapfill=None, group=2, pre_issued=0):
    n = len(items)
    buf = [bufs[i % len(bufs)] for i in range(n)]
    def reads(i):
        it = items[i]
        if it.get('hook'): it['hook']()
        for (op, addr, imm, sub, w) in it['reads']:
            P.e(f"{op} {vr(buf[i]+sub, w)}, {addr} offset:{imm}")
    for i in range(pre_issued, min(lead, n)): reads(i)
    for i in range(n):
        it = items[i]
        extra = set()
        if group and i % group == 0:
            for k in range(1, group):
                if i + k < n: extra |= regs_of(vr(buf[i+k], 4))
        c = '0' if it['c0'] else vr(it['acc'], 16)
        P.e(f"{MF} {vr(it['acc'],16)}, {vr(buf[i],4)}, {vr(it['b'],4)}, {c}", extra_rd=extra)
        if i + lead < n: reads(i + lead)
        if gapfill: gapfill(i)

def tr_reads(addr, imm0, imm1):
    return [("ds_read_b64_tr_b16", addr, imm0, 0, 2), ("ds_read_b64_tr_b16", addr, imm1, 2, 2)]

class Filler:
    def __init__(self, P): self.P = P; self.q = []
    def add(self, *texts, **kw): self.q.append((texts, kw))
    def emit(self, k=1):
        for _ in range(k):
            if not self.q: return
            texts, kw = self.q.pop(0)
            for t in texts[:-1]: self.P.e(t)
            self.P.e(texts[-1], **kw)
    def flush(self): self.emit(len(self.q))

def dma_kv(F, which, tile, slot):
    sr, sl = (SK, sLK) if which == 'K' else (SV, sLV)
    for p in range(4):
        lo = slot * SLOT + (p * 16 if which == 'K' else (p >> 1) * 64 + (p & 1) * 64)
        pre = [f"s_mov_b32 {sT0 if which=='K' else sT1}, {tile*16384}"] if p == 0 else []
        F.add(*pre, f"s_add_u32 m0, {sl}, {lo}",
              f"buffer_load_dwordx4 v240, {sr}, {sT0 if which=='K' else sT1} offen offset:{p*1024} lds", tag=(which, tile))
def dma_wq(F, tile, slot):
    for p in range(4):
        lo = slot * SLOT + (p >> 1) * 2112 + (p & 1) * 1088
        F.add(f"s_mov_b32 {sT0}, {(32*tile + 2*p) * 8192}", f"s_add_u32 m0, {sLV}, {lo}",
              f"buffer_load_dwordx4 v248, {SWQ}, {sT0} offen lds", tag=('WQ', tile))
def dma_wo(F, nt, slot):
    for p in range(4):
        F.add(f"s_add_u32 {sT0}, s85, {p*14336 + nt*64}", f"s_add_u32 m0, {sL1K}, {slot*SLOT + p*1024}",
              f"buffer_load_dwordx4 v242, {SWO}, {sT0} offen lds", tag=('WO', nt))
def dma_gu(F, c):
    base = GLUB + (c % 3) * GLUS
    F.add(f"s_mov_b32 {sT2}, {16*c*3584}", f"s_add_u32 m0, s86, {base}",
          f"buffer_load_dwordx4 v241, {SWG}, {sT2} offen lds", tag=('G', c))
    F.add(f"s_add_u32 m0, s86, {base + 4224}",
          f"buffer_load_dwordx4 v241, {SWU}, {sT2} offen lds", tag=('G', c))
def dma_wd(F, c, nt):
    base = GLUB + (c % 3) * GLUS
    for p in range(2):
        F.add(f"s_add_u32 {sT2}, s87, {p*14336 + nt*64}", f"s_add_u32 m0, s88, {base + p*1024}",
              f"buffer_load_dwordx4 v242, {SWD}, {sT2} offen lds", tag=('G', c))

WQ_SLOT = {0: 7, 1: 8, 2: 5, 3: 3, 4: 6, 5: 0, 6: 1, 7: 4, 8: 2, 9: 7, 10: 8, 11: 5, 12: 3, 13: 6}
WO_SLOT = {0: 8, 1: 0, 2: 1, 3: 2, 4: 4, 5: 3, 6: 5, 7: 6, 8: 7, 9: 8, 10: 0, 11: 1, 12: 2, 13: 4}

def stamp(P, cfg, idx):
    if not cfg.stamps: return
    P.e(f"s_memtime s[{90}:{91}]"); P.e("s_waitcnt lgkmcnt(0)")
    P.e(f"v_writelane_b32 v254, s90, {idx}")

def gen_entry(P, cfg):
    e = P.e
    e("s_cmp_ge_u32 s2, 256"); e("s_cbranch_scc1 L_end")
    e("s_load_dwordx16 s[48:63], s[0:1], 0"); e("s_load_dwordx8 s[64:71], s[0:1], 64")
    e("s_getpc_b64 s[92:93]")
    e("v_lshlrev_b32 v1, 7, v0")
    e("v_min_u32 v1, CODE_SPAN, v1")
    e("global_load_dword v253, v1, s[92:93]", tag='code')
    e("v_lshrrev_b32 v1, 6, v0")
    e("v_and_b32 v255, 63, v0")
    e(f"v_readfirstlane_b32 {sWV}, v1")
    e(f"s_and_b32 {sHEAD}, s2, 7"); e(f"s_lshl_b32 {sHEAD}, {sHEAD}, 1"); e("s_bfe_u32 s7, s2, 0x10003"); e(f"s_add_u32 {sHEAD}, {sHEAD}, s7")
    e(f"s_lshr_b32 {sQB}, s2, 4")
    e(f"s_and_b32 {sSUB}, {sWV}, 3")
    e(f"s_mov_b32 {sC}, {f2u(LOG2E/16):#x}"); e(f"s_mov_b32 {sONES}, 0x3f803f80"); e(f"s_mov_b32 {sHI}, 0xffff0000")
    for i in range(10): e(f"s_mov_b32 s{srd(i)+3}, 0x20000")
    e("v_lshlrev_b32 v1, 4, v255")
    e(f"s_lshl_b32 s7, {sQB}, 3"); e(f"s_add_u32 s7, s7, {sWV}"); e(f"s_mul_i32 {sT0}, s7, {16*896}")
    e(f"s_mul_i32 {sT1}, {sWV}, {16*912}")
    e("s_waitcnt lgkmcnt(0)")
    e("s_mov_b32 s8, s48"); e("s_mov_b32 s9, s49"); e(f"s_mov_b32 s10, {2048*896}")
    e("s_mov_b64 exec, 0x00ffffffffffffff" if False else "s_mov_b32 exec_hi, 0x00ffffff")
    for i in range(16):
        e(f"s_add_u32 m0, {sT1}, {i*912}")
        e(f"s_add_u32 {sT2}, {sT0}, {i*896}")
        e(f"buffer_load_dwordx4 v1, {SX}, {sT2} offen lds", tag='X')
    e("s_mov_b32 exec_hi, -1")
    def mk(i, plo, mul, total, exact=None):
        b = srd(i)
        e(f"s_mul_i32 s7, {sHEAD}, {mul}")
        e(f"s_add_u32 s{b}, s{plo}, s7"); e(f"s_addc_u32 s{b+1}, s{plo+1}, 0")
        if exact is not None: e(f"s_mov_b32 s{b+2}, {exact}")
        else: e(f"s_sub_u32 s{b+2}, {total}, s7")
    mk(1, 50, 1 << 20, 0, 1 << 20)
    mk(2, 52, 1 << 20, 0, 1 << 20)
    mk(3, 54, 512, 448 * 8192)
    mk(4, 56, 256 * 896, 0, 256 * 896)
    mk(5, 60, 224, 448 * 3584)
    mk(6, 62, 224, 448 * 3584)
    mk(7, 64, 112 * 896, 0, 112 * 896)
    e(f"s_lshl_b32 s7, {sQB}, 4"); e(f"s_add_u32 s7, s7, {sHEAD}"); e("s_lshl_b32 s7, s7, 2"); e(f"s_add_u32 s7, s7, {sSUB}")
    e("s_mul_i32 s7, s7, 28672")
    e(f"s_lshr_b32 {sT2}, {sWV}, 2"); e(f"s_mul_i32 {sT2}, {sT2}, {GP_OFF}"); e(f"s_add_u32 s7, s7, {sT2}")
    e(f"s_add_u32 s{srd(8)}, s70, s7"); e(f"s_addc_u32 s{srd(8)+1}, s71, 0"); e(f"s_mov_b32 s{srd(8)+2}, 28672")
    e(f"s_cmp_lt_u32 {sSUB}, 2")
    e(f"s_cselect_b32 s{srd(9)}, s{srd(1)}, s{srd(2)}"); e(f"s_cselect_b32 s{srd(9)+1}, s{srd(1)+1}, s{srd(2)+1}"); e(f"s_mov_b32 s{srd(9)+2}, {1<<20}")
    e(f"s_lshl_b32 s89, {sQB}, 12"); e(f"s_and_b32 s7, {sSUB}, 1"); e("s_lshl_b32 s7, s7, 11"); e("s_add_u32 s89, s89, s7")
    e(f"s_cmp_ge_u32 {sWV}, 4"); e("s_cbranch_scc1 L_helper")

def lane_fields(P):
    e = P.e
    e("v_lshrrev_b32 v112, 5, v255"); e("v_bfe_u32 v113, v255, 4, 1"); e("v_bfe_u32 v114, v255, 2, 2"); e("v_and_b32 v115, 3, v255")

def mad(P, dst, src, mul, acc=None):
    P.e(f"s_mov_b32 s7, {mul}")
    if acc is None: P.e(f"v_mul_u32_u24 {dst}, s7, {src}")
    else: P.e(f"v_mad_u32_u24 {dst}, {src}, s7, {acc}")

def swapped_col(P, dst, tmp):
    e = P.e
    e(f"v_lshlrev_b32 {dst}, 5, v113"); e(f"v_and_b32 {tmp}, 1, v115"); e(f"v_lshl_add_u32 {dst}, {tmp}, 4, {dst}")
    e(f"v_lshrrev_b32 {tmp}, 1, v115"); e(f"v_lshl_add_u32 {dst}, {tmp}, 3, {dst}")

def gen_ln_qproj(P, cfg, helper):
    e = P.e
    F = Filler(P)
    lane_fields(P)
    swapped_col(P, 'v224', 'v116')
    mad(P, 'v224', 'v112', 4224, 'v224')
    e("v_lshrrev_b32 v116, 1, v114"); mad(P, 'v224', 'v116', 1088, 'v224')
    e("v_and_b32 v116, 1, v114"); e("v_lshl_add_u32 v224, v116, 7, v224")
    if helper: e("v_add_u32 v224, 512, v224")
    e(f"v_add_u32 v225, {3*SLOT}, v224"); e(f"v_add_u32 v226, {6*SLOT}, v224")
    e("v_and_b32 v116, 31, v255"); e(f"s_lshl_b32 {sT3}, {sSUB}, 5"); e(f"v_add_u32 v116, {sT3}, v116")
    e("v_lshlrev_b32 v227, 4, v112"); mad(P, 'v227', 'v116', 912, 'v227')
    if helper:
        e("v_lshrrev_b32 v116, 4, v255"); e("v_lshlrev_b32 v240, 7, v116")
        e("v_and_b32 v116, 7, v255"); e("v_lshl_add_u32 v240, v116, 4, v240")
        e("v_bfe_u32 v116, v255, 3, 1")
        e("v_lshl_add_u32 v248, v116, 13, v240")
        e("v_lshl_add_u32 v240, v116, 9, v240")
        e(f"s_lshl_b32 s7, {sSUB}, 12"); e("v_add_u32 v240, s7, v240")
        e(f"s_lshl_b32 s7, {sSUB}, 16"); e("v_add_u32 v248, s7, v248")
        e(f"s_mul_i32 {sLK}, {sSUB}, 4160"); e(f"s_mul_i32 {sLV}, {sSUB}, 4224"); e(f"s_lshl_b32 {sL1K}, {sSUB}, 12")
        dma_wq(F, 0, WQ_SLOT[0]); dma_wq(F, 1, WQ_SLOT[1]); F.flush()
        e("v_lshrrev_b32 v116, 2, v255"); e("v_lshlrev_b32 v242, 4, v115"); mad(P, 'v242', 'v116', 896, 'v242')
        e("v_mul_u32_u24 v116, 37, v255"); e("v_lshrrev_b32 v116, 9, v116")
        e("v_mul_u32_u24 v117, 14, v116"); e("v_sub_u32 v117, v255, v117"); e("v_lshlrev_b32 v241, 4, v117")
        mad(P, 'v241', 'v116', 3584, 'v241')
        e(f"s_mul_i32 s7, {sSUB}, {4*3584}"); e("v_add_u32 v241, s7, v241")
        e("v_mov_b32 v117, 0x7fffffff"); e("v_cmp_lt_u32 vcc, 55, v255"); e("v_cndmask_b32 v241, v241, v117, vcc")
        e("v_lshlrev_b32 v243, 5, v255")
        e("v_lshlrev_b32 v247, 4, v255")
        e(f"s_mul_i32 s85, {sSUB}, {4*14336}"); e(f"s_lshl_b32 s86, {sSUB}, 10"); e(f"s_mul_i32 s87, {sSUB}, {2*14336}"); e(f"s_lshl_b32 s88, {sSUB}, 11")
        e("v_lshlrev_b32 v245, 3, v115"); mad(P, 'v245', 'v113', 4224, 'v245'); e("v_lshl_add_u32 v245, v112, 11, v245")
        mad(P, 'v245', 'v114', 224, 'v245'); e(f"v_add_u32 v245, {GLUB}, v245")
        swapped_col(P, 'v246', 'v116'); e("v_lshl_add_u32 v246, v112, 8, v246"); e("v_lshl_add_u32 v246, v114, 6, v246"); e(f"v_add_u32 v246, {GLUB}, v246")
        P.waitvm('X')
    else:
        if cfg.touch:
            e("v_lshrrev_b32 v116, 3, v255"); e("v_lshlrev_b32 v116, 13, v116"); e("v_and_b32 v117, 7, v255"); e("v_lshl_add_u32 v116, v117, 6, v116")
            e(f"s_lshl_b32 s7, {sQB}, 2"); e(f"s_add_u32 s7, s7, {sSUB}"); e(f"s_mul_i32 s7, s7, {7*8192}")
            e(f"buffer_load_dword v253, v116, {SWQ}, s7 offen", tag='touch')
            e("v_lshrrev_b32 v116, 4, v255"); e("v_lshlrev_b32 v116, 16, v116"); e("v_and_b32 v117, 15, v255"); e("v_lshl_add_u32 v116, v117, 7, v116")
            e(f"buffer_load_dword v253, v116, {ST}, s89 offen", tag='touch')
            if cfg.glu:
                e("v_lshrrev_b32 v116, 2, v255"); e("v_mul_u32_u24 v117, 72, v115"); mad(P, 'v116', 'v116', 3584, 'v117')
                e(f"s_lshl_b32 s7, {sQB}, 1"); e(f"s_and_b32 {sT2}, {sSUB}, 1"); e(f"s_add_u32 s7, s7, {sT2}"); e(f"s_mul_i32 s7, s7, {14*3584}")
                e(f"s_cmp_lt_u32 {sSUB}, 2")
                e(f"s_cselect_b32 s{srd(9)}, s{srd(5)}, s{srd(6)}"); e(f"s_cselect_b32 s{srd(9)+1}, s{srd(5)+1}, s{srd(6)+1}"); e(f"s_mov_b32 s{srd(9)+2}, s{srd(5)+2}")
                e(f"buffer_load_dword v253, v116, {ST}, s7 offen", tag='touch')
        e("v_bfe_u32 v116, v255, 1, 4"); e("v_lshlrev_b32 v248, 4, v112"); mad(P, 'v248', 'v116', 1040, 'v248')
        e("v_and_b32 v116, 1, v255"); e("v_lshl_add_u32 v248, v116, 7, v248")
        e("v_lshlrev_b32 v249, 3, v115"); e("v_lshl_add_u32 v249, v113, 5, v249"); mad(P, 'v249', 'v112', 2112, 'v249')
        e("v_lshrrev_b32 v116, 1, v114"); mad(P, 'v249', 'v116', 1088, 'v249')
        e("v_and_b32 v116, 1, v114"); e("v_lshl_add_u32 v249, v116, 7, v249"); e(f"v_add_u32 v249, {4*SLOT}, v249")
        P.waitvm('X')
    stamp(P, cfg, 1)
    e("s_barrier")
    for kk in range(28): e(f"ds_read_b128 {vr(4*kk,4)}, v227 offset:{kk*32}")
    for i in range(4): e(f"v_mov_b32 v{112+i}, 0")
    for d in range(112):
        if d == 96:
            e("s_waitcnt lgkmcnt(0)"); e("s_barrier")
            if helper:
                for T in range(2, 9): dma_wq(F, T, WQ_SLOT[T])
        e(f"v_dot2c_f32_bf16 v{112+(d&1)}, {sONES}, v{d}")
        e(f"v_dot2c_f32_bf16 v{114+(d&1)}, v{d}, v{d}")
        if d > 96 and d % 4 == 0: F.emit()
    e("v_add_f32 v112, v112, v113"); e("v_add_f32 v114, v114, v115")
    e("v_mov_b32 v113, v112"); e("v_mov_b32 v115, v114")
    e("v_permlane32_swap_b32 v112, v113"); e("v_permlane32_swap_b32 v114, v115")
    e("v_add_f32 v112, v112, v113"); e("v_add_f32 v114, v114, v115")
    e(f"s_mov_b32 s7, {f2u(1.0/448):#x}")
    e("v_mul_f32 v112, s7, v112")
    e("v_mul_f32 v113, v112, v112")
    e("v_fma_f32 v114, v114, s7, -v113")
    e("v_max_f32 v114, 0, v114")
    e("v_cvt_pk_bf16_f32 v113, v112, v114")
    e("v_lshlrev_b32 v112, 16, v113")
    e(f"v_and_b32 v114, {sHI}, v113")
    e(f"v_add_f32 v114, {f2u(1e-5):#x}, v114")
    e("v_cvt_pk_bf16_f32 v114, v114, v114"); e(f"v_and_b32 v114, {sHI}, v114")
    e("v_sqrt_f32 v114, v114")
    e("v_cvt_pk_bf16_f32 v114, v114, v114"); e(f"v_and_b32 v114, {sHI}, v114")
    e("v_rcp_f32 v114, v114")
    e("v_mul_f32 v116, v112, v114"); e("v_sub_f32 v116, 0, v116")
    for d in range(112):
        t = 118 + 2 * (d % 4)
        e(f"v_lshlrev_b32 v{t}, 16, v{d}"); e(f"v_and_b32 v{t+1}, {sHI}, v{d}")
        e(f"v_pk_fma_f32 {vr(t,2)}, {vr(t,2)}, v[114:115], v[116:117] op_sel_hi:[1,0,0]")
        if d >= 1:
            tp = 118 + 2 * ((d - 1) % 4)
            e(f"v_cvt_pk_bf16_f32 v{d-1}, v{tp}, v{tp+1}")
        if d % 4 == 0: F.emit()
    tp = 118 + 2 * (111 % 4)
    e(f"v_cvt_pk_bf16_f32 v111, v{tp}, v{tp+1}")
    F.flush()
    stamp(P, cfg, 2)
    items = []
    after = {1: [('WQ', 9)], 2: [('WQ', 10), ('WQ', 11)], 3: [('WQ', 12), ('WQ', 13)], 4: [('K', 0), ('K', 1)], 5: [('V', 0), ('K', 2)], 6: []}
    def mkhook(k):
        def hook():
            if helper:
                F.flush()
                P.waitvm(('WQ', 2*k), ('WQ', 2*k+1))
            e("s_barrier")
            if helper:
                for (w, t) in after.get(k, []):
                    if w == 'WQ': dma_wq(F, t, WQ_SLOT[t])
                    else: dma_kv(F, w, t, (t & 3) + (4 if w == 'V' else 0))
        return hook
    for T in range(14):
        sl = WQ_SLOT[T]; base = f"v{224 + sl // 3}"; so = (sl % 3) * SLOT
        for kk in range(2):
            for t in range(4):
                imm = so + kk * 4 * 2112 + (t >> 1) * 256 + (t & 1) * 64
                items.append(dict(acc=128 + 16 * t, b=4 * (2 * T + kk), c0=(T == 0 and kk == 0), reads=tr_reads(base, imm, imm + 2112),
                                  hook=mkhook(T // 2) if (T % 2 == 0 and kk == 0 and t == 0) else None))
    def gap(i):
        if helper:
            F.emit()
        else:
            if i % 4 == 3:
                k = i // 4
                e(f"v_mov_b64 {vr(4*k,2)}, 0"); e(f"v_mov_b64 {vr(4*k+2,2)}, 0")
            elif i < 32 and i % 4 == 1:
                k = i // 4
                e(f"v_mov_b64 {vr(112+2*k,2)}, 0")
    stream(P, items, [192 + 4 * i for i in range(8)], 6, gap)
    F.flush()
    for j in range(32): e(f"v_cvt_pk_bf16_f32 v{128+j}, v{128+2*j}, v{129+2*j}")
    e(f"s_lshr_b32 s7, {sSUB}, 1"); e(f"s_mul_i32 s7, s7, {SLOT}"); e(f"s_and_b32 {sT3}, {sSUB}, 1"); e(f"s_lshl_b32 {sT3}, {sT3}, 13")
    e(f"s_add_u32 s7, s7, {sT3}"); e(f"s_add_u32 s7, s7, {7*SLOT}")
    e("v_lshlrev_b32 v227, 4, v255"); e("v_add_u32 v227, s7, v227")
    if helper:
        for k in range(8): e(f"ds_write_b128 v227, {vr(128+4*k,4)} offset:{k*1024}")
        P.waitvm(('K', 0))
        e("s_waitcnt lgkmcnt(0)")
    stamp(P, cfg, 3)
    e("s_barrier")
    return F

PAT = [0,1,2,3,4,5, 0,1,2,3,4, 0,1,2,3,4, 0,1,2,3,4,5, 0,1,2,3,4, 0,1,2,3,4]
LEAD = 5
def fbuf(s): return 224 + 4 * PAT[s % 32]
def k_read(P, s, slot):
    P.e(f"ds_read_b128 {vr(fbuf(s),4)}, v248 offset:{slot*SLOT + (s>>2)*256 + (s&3)*32}")
def v_read(P, s, slot):
    kk, t = (s - 16) >> 3, (s - 16) & 7
    imm = slot * SLOT + kk * 4 * 2112 + (t >> 1) * 256 + (t & 1) * 64
    P.e(f"ds_read_b64_tr_b16 {vr(fbuf(s),2)}, v249 offset:{imm}")
    P.e(f"ds_read_b64_tr_b16 {vr(fbuf(s)+2,2)}, v249 offset:{imm + 2*2112}")

def softmax_ops(cur):
    g = {i: [] for i in range(32)}
    for i in range(16):
        g[i].append(f"v_exp_f32 v{cur+i}, v{cur+i}")
        g[i+1].append(f"v_add_f32 v251, v251, v{cur+i}")
    for pz in range(8):
        dst = cur + (pz if pz < 4 else 4 + pz)
        at = min(2 * pz + 3, 17) if pz < 5 else {5: 16, 6: 17, 7: 17}[pz]
        g[at].append(f"v_cvt_pk_bf16_f32 v{dst}, v{cur+2*pz}, v{cur+2*pz+1}")
    return g

def premax_ops(nxt):
    ops = []
    for i in range(16):
        ops.append(f"v_fma_f32 v{nxt+i}, v{nxt+i}, {sC}, -v250")
        if i == 3: ops.append(f"v_max3_f32 v252, v{nxt}, v{nxt+1}, v{nxt+2}")
        elif i > 3 and i % 2 == 1: ops.append(f"v_max3_f32 v252, v252, v{nxt+i-2}, v{nxt+i-1}")
    ops.append(f"v_max_f32 v252, v252, v{nxt+15}")
    ops.append("v_cmp_lt_f32 vcc, 0, v252")
    return ops

def gen_iter(P, j, tailjump=False, loopback=False):
    e = P.e
    cur = 192 + 16 * (j & 1); nxt = 192 + 16 * ((j + 1) & 1)
    g = softmax_ops(cur)
    pm = premax_ops(nxt)
    cnt = {18: 2, 19: 2, 20: 2, 21: 2, 22: 2, 23: 2, 24: 2, 25: 2, 26: 2, 27: 1, 28: 2, 29: 2, 30: 2, 31: 0}
    for gi, c in cnt.items():
        for _ in range(c): g[gi].append(pm.pop(0))
    assert not pm
    for s in range(32):
        extra = regs_of(vr(fbuf(s + 1), 4)) if s % 2 == 0 else set()
        if s < 16:
            c = '0' if s == 0 else vr(nxt, 16)
            e(f"{MF} {vr(nxt,16)}, {vr(fbuf(s),4)}, {vr(128+4*s,4)}, {c}", extra_rd=extra)
        else:
            kk, t = (s - 16) >> 3, (s - 16) & 7
            e(f"{MF} {vr(16*t,16)}, {vr(fbuf(s),4)}, {vr(cur+8*kk,4)}, {vr(16*t,16)}", extra_rd=extra)
        n = s + LEAD
        if n == 32: e("s_barrier")
        if n < 16: k_read(P, n, (j + 1) & 3)
        elif n < 32: v_read(P, n, j & 3)
        else: k_read(P, n - 32, (j + 2) & 3)
        ops = [Ins(t) for t in g[s]]
        for I in ops: P.L.append(I)
    e(f"s_cbranch_vccnz L_rare{j}")
    e(f"L_ret{j}:")
    if tailjump:
        e(f"s_cmp_eq_u32 {sTRIP}, 15"); e("s_cbranch_scc1 L_tail")
    if loopback:
        e(f"s_add_u32 {sTRIP}, {sTRIP}, 1"); e("s_branch L_loop")

def gen_rare(P, j):
    e = P.e
    nxt = 192 + 16 * ((j + 1) & 1)
    e(f"L_rare{j}:")
    e("s_nop 15")
    e("v_mov_b32 v253, v252")
    e("v_permlane32_swap_b32 v252, v253")
    e("v_max_f32 v252, v252, v253")
    e(f"v_add_f32 v252, {f2u(TTHR):#x}, v252")
    e("v_max_f32 v252, 0, v252")
    e("v_exp_f32 v253, -v252")
    e("v_add_f32 v250, v250, v252")
    for i in range(16): e(f"v_sub_f32 v{nxt+i}, v{nxt+i}, v252")
    e("v_mul_f32 v251, v251, v253")
    for i in range(128): e(f"v_mul_f32 v{i}, v{i}, v253")
    e("s_nop 1")
    e(f"s_branch L_ret{j}")

def gen_compute(P, cfg):
    e = P.e
    m0 = P.mark()
    if cfg.prio: e("s_setprio 2")
    gen_ln_qproj(P, cfg, False)
    for k in range(8): e(f"ds_read_b128 {vr(160+4*k,4)}, v227 offset:{k*1024}")
    items = [dict(acc=192, b=128 + 4 * s, c0=(s == 0), reads=[("ds_read_b128", "v248", (s >> 2) * 256 + (s & 3) * 32, 0, 4)]) for s in range(16)]
    stream(P, items, [224 + 4 * i for i in range(6)], 6)
    e("s_barrier")
    for s in range(LEAD): k_read(P, s, 1)
    e("v_max3_f32 v252, v192, v193, v194")
    for i in range(3, 15, 2): e(f"v_max3_f32 v252, v252, v{192+i}, v{193+i}")
    e("v_max_f32 v252, v252, v207")
    e("v_mov_b32 v253, v252")
    e("v_permlane32_swap_b32 v252, v253")
    e("v_max_f32 v252, v252, v253")
    e(f"v_mov_b32 v250, {f2u(TTHR):#x}")
    e(f"v_fmac_f32 v250, {sC}, v252")
    for i in range(16): e(f"v_fma_f32 v{192+i}, v{192+i}, {sC}, -v250")
    e("v_mov_b32 v251, 0")
    e(f"s_mov_b32 {sTRIP}, 0")
    stamp(P, cfg, 4)
    pro = P.since(m0)
    e(".p2align 6")
    e("L_loop:")
    its = []
    for j in range(4):
        m = P.mark(); gen_iter(P, j, tailjump=(j == 2), loopback=(j == 3)); its.append(P.since(m))
    m1 = P.mark()
    e(".p2align 3")
    e("L_tail:")
    stamp(P, cfg, 5)
    cur = 208
    g = softmax_ops(cur)
    for s in range(16, 16 + LEAD): v_read(P, s, 3)
    for i in range(10):
        for t in g[i]: e(t)
    rest = [t for i in range(10, 18) for t in g[i]]
    for s in range(16, 32):
        kk, t = (s - 16) >> 3, (s - 16) & 7
        extra = regs_of(vr(fbuf(s + 1), 4)) if s % 2 == 0 else set()
        e(f"{MF} {vr(16*t,16)}, {vr(fbuf(s),4)}, {vr(cur+8*kk,4)}, {vr(16*t,16)}", extra_rd=extra)
        if s + LEAD < 32: v_read(P, s + LEAD, 3)
        for _ in range(3):
            if rest: e(rest.pop(0))
    e("v_mbcnt_lo_u32_b32 v255, -1, 0"); e("v_mbcnt_hi_u32_b32 v255, -1, v255")
    e("v_mov_b32 v253, v251")
    e("v_permlane32_swap_b32 v251, v253")
    e("v_add_f32 v251, v251, v253")
    e("v_rcp_f32 v252, v251")
    e("v_lshrrev_b32 v224, 5, v255"); e("v_bfe_u32 v225, v255, 4, 1"); e("v_bfe_u32 v226, v255, 2, 2"); e("v_and_b32 v227, 3, v255")
    e("v_lshlrev_b32 v248, 5, v225"); e("v_and_b32 v228, 1, v227"); e("v_lshl_add_u32 v248, v228, 4, v248")
    e("v_lshrrev_b32 v228, 1, v227"); e("v_lshl_add_u32 v248, v228, 3, v248")
    e("v_lshl_add_u32 v248, v224, 8, v248"); e("v_lshl_add_u32 v248, v226, 6, v248")
    e(f"v_add_u32 v250, {3*SLOT}, v248"); e(f"v_add_u32 v251, {6*SLOT}, v248")
    e("v_lshlrev_b32 v249, 4, v255")
    for i in range(64):
        e(f"v_pk_mul_f32 {vr(2*i,2)}, {vr(2*i,2)}, v[252:253] op_sel_hi:[1,0]")
        if i >= 1: e(f"v_cvt_pk_bf16_f32 v{128+i-1}, v{2*i-2}, v{2*i-1}")
    e("v_cvt_pk_bf16_f32 v191, v126, v127")
    stamp(P, cfg, 6)
    items = []
    F = Filler(P)
    for nt in range(14):
        sl = WO_SLOT[nt]; base = ['v248', 'v250', 'v251'][sl // 3]; so = (sl % 3) * SLOT
        for kk in range(16):
            imm = so + kk * 1024
            items.append(dict(acc=192 + 16 * (nt & 1), b=128 + 4 * kk, c0=(kk == 0), reads=tr_reads(base, imm, imm + 512),
                              hook=(lambda: e("s_barrier")) if (nt % 2 == 0 and kk == 0) else None))
    def out_ops(nt):
        a = 192 + 16 * (nt & 1); o = 8 * (nt & 3)
        for i in range(8): F.add(f"v_cvt_pk_bf16_f32 v{o+i}, v{a+2*i}, v{a+2*i+1}")
        F.add(f"s_movk_i32 {sT0}, {nt*2048}", f"buffer_store_dwordx4 {vr(o,4)}, v249, {SP}, {sT0} offen")
        F.add(f"buffer_store_dwordx4 {vr(o+4,4)}, v249, {SP}, {sT0} offen offset:1024")
    def gap(i):
        nt, kk = divmod(i, 16)
        if kk == 3 and nt >= 1: out_ops(nt - 1)
        F.emit(1)
    stream(P, items, [32 + 4 * i for i in range(8)], 6, gap)
    out_ops(13); F.flush()
    if cfg.stamps:
        stamp(P, cfg, 7)
        e("s_waitcnt vmcnt(0)")
        stamp(P, cfg, 8)
        dump_stamps(P)
    e("s_endpgm")
    post = P.since(m1)
    rares = []
    for j in range(4):
        m = P.mark(); gen_rare(P, j); rares.append(P.since(m))
    trace = pro + sum(its, []) * 2 + its[0] + its[1] + its[2] + post
    return trace, rares

def dump_stamps(P):
    e = P.e
    e(f"s_lshl_b32 s7, s2, 3"); e(f"s_add_u32 s7, s7, {sWV}"); e("s_lshl_b32 s7, s7, 8"); e("s_add_u32 s7, s7, 0x8000000")
    e("s_add_u32 s92, s70, s7"); e("s_addc_u32 s93, s71, 0")
    e("v_mbcnt_lo_u32_b32 v255, -1, 0"); e("v_mbcnt_hi_u32_b32 v255, -1, v255"); e("v_lshlrev_b32 v255, 2, v255")
    e("global_store_dword v255, v254, s[92:93]")

def gen_helper(P, cfg):
    e = P.e
    m0 = P.mark()
    e("L_helper:")
    F = gen_ln_qproj(P, cfg, True)
    dma_kv(F, 'V', 1, 5); dma_kv(F, 'K', 3, 3); dma_kv(F, 'V', 2, 6); F.flush()
    P.waitvm(('K', 1), ('V', 0))
    e("s_barrier")
    GU0 = 2
    ACT0 = GU0 + 28
    NACT = 4
    DN0 = ACT0 + NACT
    act = []
    for t in range(7):
        a = 112 + 16 * t
        seq = []
        for i in range(8): seq.append(f"v_mul_f32 v{a+i}, {f2u(-LOG2E):#x}, v{a+i}")
        for i in range(8): seq.append(f"v_exp_f32 v{a+i}, v{a+i}")
        for i in range(8): seq.append(f"v_add_f32 v{a+i}, 1.0, v{a+i}")
        for i in range(8): seq.append(f"v_rcp_f32 v{a+i}, v{a+i}")
        for i in range(8): seq.append(f"v_mul_f32 v{a+i}, v{a+i}, v{a+8+i}")
        for i in range(4): seq.append(f"v_cvt_pk_bf16_f32 v{4*t+i}, v{a+2*i}, v{a+2*i+1}")
        act += seq
    per_act = -(-len(act) // NACT)
    def out_ops(nt):
        a = 112 + 16 * (nt & 1); o = 144 + 8 * (nt & 1)
        for i in range(8): e(f"v_cvt_pk_bf16_f32 v{o+i}, v{a+2*i}, v{a+2*i+1}")
        e(f"s_movk_i32 {sT3}, {nt*2048}"); e(f"buffer_store_dwordx4 {vr(o,4)}, v247, {SP}, {sT3} offen", tag='st')
        e(f"buffer_store_dwordx4 {vr(o+4,4)}, v247, {SP}, {sT3} offen offset:1024", tag='st')
    for ep in range(0, 63):
        j = ep - 1
        if j == -1: dma_kv(F, 'V', 3, 7)
        elif j >= 1 and j + 3 < 64: dma_kv(F, 'V', j + 3, 4 + ((j + 3) & 3))
        if cfg.glu:
            c = ep + 2 - GU0
            if 0 <= c < 28: dma_gu(F, c)
            nt = ep + 2 - DN0
            if 0 <= nt < 14: dma_wd(F, 28 + nt, nt)
        if j + 5 < 64: dma_kv(F, 'K', j + 5, (j + 5) & 3)
        wo_at = {56: [0], 60: [1], 61: [2], 62: [3, 4]}
        for nt in wo_at.get(ep, []): dma_wo(F, nt, WO_SLOT[nt])
        if cfg.touch:
            if ep % 4 == 1 and ep // 4 + 4 < 16:
                F.add(f"s_add_u32 {sT3}, s89, {(ep//4+4)*65536}", f"buffer_load_dword v244, v243, {ST}, {sT3} offen", tag='touch')
            if ep == 11 and cfg.glu:
                F.add(f"s_mul_i32 {sT3}, {sQB}, 6272", f"s_add_u32 {sT3}, {sT3}, s88", f"buffer_load_dword v244, v243, {SWD}, {sT3} offen", tag='touch')
            if ep in (39, 43):
                F.add(f"s_mul_i32 {sT3}, {sQB}, 14336", f"s_add_u32 {sT3}, {sT3}, s88", f"s_add_u32 {sT3}, {sT3}, {0 if ep==39 else 8192}", f"buffer_load_dword v244, v243, {SWO}, {sT3} offen", tag='touch')
        if cfg.glu and GU0 <= ep < GU0 + 28:
            c = ep - GU0; so = (c % 3) * GLUS
            items = [dict(acc=112 + 16 * t, b=4 * c, c0=(c == 0), reads=tr_reads('v245', so + t * 32, so + t * 32 + 1024)) for t in range(7)]
            F.emit(2)
            stream(P, items, [224 + 4 * i for i in range(4)], 4, lambda i: F.emit(2), group=0)
        elif cfg.glu and ACT0 <= ep < DN0:
            seq = act[(ep - ACT0) * per_act:(ep - ACT0 + 1) * per_act]
            for i, t in enumerate(seq):
                if i % 6 == 0: F.emit()
                e(t)
        elif cfg.glu and DN0 <= ep < DN0 + 14:
            nt = ep - DN0; c = 28 + nt; so = (c % 3) * GLUS
            items = [dict(acc=112 + 16 * (nt & 1), b=4 * kk, c0=(kk == 0), reads=tr_reads('v246', so + kk * 1024, so + kk * 1024 + 512)) for kk in range(7)]
            F.emit(2)
            stream(P, items, [224 + 4 * i for i in range(4)], 4, lambda i: F.emit(2), group=0)
        F.flush()
        if cfg.glu and DN0 + 1 <= ep <= DN0 + 14: out_ops(ep - DN0 - 1)
        need = [('K', ep + 2), ('V', ep + 1)]
        if cfg.glu:
            need += [('G', ep + 1 - GU0)] if ep + 1 < ACT0 else [('G', 28 + ep + 1 - DN0)]
        P.waitvm(*need)
        e("s_barrier")
    dma_wo(F, 5, WO_SLOT[5]); dma_wo(F, 6, WO_SLOT[6]); F.flush()
    after = {0: [7, 8], 1: [9], 2: [10, 11], 3: [12, 13]}
    for k in range(7):
        P.waitvm(('WO', 2 * k), ('WO', 2 * k + 1))
        e("s_barrier")
        for nt in after.get(k, []): dma_wo(F, nt, WO_SLOT[nt])
        F.flush()
    if cfg.stamps: dump_stamps(P)
    e("s_endpgm")
    return P.since(m0)

def gen_k2(P, cfg):
    e = P.e
    m0 = P.mark()
    e("s_cmp_ge_u32 s2, 28"); e("s_cbranch_scc1 L2_end")
    e("s_load_dwordx2 s[4:5], s[0:1], 0"); e("s_load_dwordx2 s[6:7], s[0:1], 72"); e("s_load_dwordx2 s[20:21], s[0:1], 88")
    e("v_lshlrev_b32 v1, 4, v0")
    e("s_mul_i32 s22, s3, 1835008"); e("s_lshl_b32 s23, s2, 12"); e("s_add_u32 s22, s22, s23")
    e("s_mul_i32 s24, s2, 37"); e("s_lshr_b32 s24, s24, 8"); e("s_mul_i32 s25, s24, 7"); e("s_sub_u32 s25, s2, s25")
    e("s_lshl_b32 s26, s3, 2"); e("s_add_u32 s26, s26, s24"); e(f"s_mul_i32 s26, s26, {32*896}"); e("s_lshl_b32 s25, s25, 7"); e("s_add_u32 s26, s26, s25")
    e("v_and_b32 v2, 31, v0"); e("v_mul_u32_u24 v2, 896, v2"); e("v_lshrrev_b32 v3, 5, v0"); e("v_lshl_add_u32 v2, v3, 4, v2")
    e("s_mov_b32 s28, 0x3f80"); e("s_mov_b32 s29, 0x3f800000"); e("s_mov_b32 s30, 0xffff0000")
    e("s_waitcnt lgkmcnt(0)")
    e("s_mov_b32 s8, s4"); e("s_mov_b32 s9, s5"); e(f"s_mov_b32 s10, {2048*896}"); e("s_mov_b32 s11, 0x20000")
    e("s_mov_b32 s12, s6"); e("s_mov_b32 s13, s7"); e(f"s_mov_b32 s14, {2048*896}"); e("s_mov_b32 s15, 0x20000")
    e("s_mov_b32 s16, s20"); e("s_mov_b32 s17, s21"); e(f"s_mov_b32 s18, {2*GP_OFF}"); e("s_mov_b32 s19, 0x20000")
    nset = 2 if cfg.glu else 1
    for st in range(nset):
        for h in range(16):
            e(f"s_add_u32 s27, s22, {(GP_OFF if (st == 0 and cfg.glu) else 0) + h*114688}")
            e(f"buffer_load_dwordx4 {vr(32 + 64*st + 4*h, 4)}, v1, s[16:19], s27 offen")
    e("buffer_load_dwordx4 v[4:7], v2, s[8:11], s26 offen")
    for i in range(16): e(f"v_mov_b32 v{8+i}, 0")
    for st in range(nset):
        acc = 16 if (st == 0 and cfg.glu) else 8
        for h in range(16):
            for d in range(4):
                r = 32 + 64 * st + 4 * h + d
                e(f"v_dot2c_f32_bf16 v{acc+2*d}, s28, v{r}"); e(f"v_dot2c_f32_bf16 v{acc+2*d+1}, s29, v{r}")
        if st == 0 and cfg.glu:
            for d in range(4): e(f"v_cvt_pk_bf16_f32 v{24+d}, v{16+2*d}, v{17+2*d}")
            for d in range(4): e(f"v_lshlrev_b32 v{16+2*d}, 16, v{24+d}"); e(f"v_and_b32 v{17+2*d}, s30, v{24+d}")
            for i in range(8): e(f"v_mul_f32 v{24+i}, {f2u(-LOG2E):#x}, v{16+i}")
            for i in range(8): e(f"v_exp_f32 v{24+i}, v{24+i}")
            for i in range(8): e(f"v_add_f32 v{24+i}, 1.0, v{24+i}")
            for i in range(8): e(f"v_rcp_f32 v{24+i}, v{24+i}")
            for i in range(8): e(f"v_mul_f32 v{16+i}, v{16+i}, v{24+i}")
            for d in range(4): e(f"v_cvt_pk_bf16_f32 v{24+d}, v{16+2*d}, v{17+2*d}")
            for d in range(4): e(f"v_lshlrev_b32 v{16+2*d}, 16, v{24+d}"); e(f"v_and_b32 v{17+2*d}, s30, v{24+d}")
    for d in range(4): e(f"v_cvt_pk_bf16_f32 v{24+d}, v{8+2*d}, v{9+2*d}")
    if cfg.glu:
        for d in range(4): e(f"v_lshlrev_b32 v{8+2*d}, 16, v{24+d}"); e(f"v_and_b32 v{9+2*d}, s30, v{24+d}")
        for i in range(8): e(f"v_mul_f32 v{8+i}, v{8+i}, v{16+i}")
        for d in range(4): e(f"v_cvt_pk_bf16_f32 v{24+d}, v{8+2*d}, v{9+2*d}")
        for d in range(4): e(f"v_lshlrev_b32 v{8+2*d}, 16, v{24+d}"); e(f"v_and_b32 v{9+2*d}, s30, v{24+d}")
        for d in range(4): e(f"v_lshlrev_b32 v{16+2*d}, 16, v{4+d}"); e(f"v_and_b32 v{17+2*d}, s30, v{4+d}")
        for i in range(8): e(f"v_add_f32 v{8+i}, v{8+i}, v{16+i}")
        for d in range(4): e(f"v_cvt_pk_bf16_f32 v{24+d}, v{8+2*d}, v{9+2*d}")
    e("buffer_store_dwordx4 v[24:27], v2, s[12:15], s26 offen")
    e("L2_end:")
    e("s_endpgm")
    return P.since(m0)

def kd(name, vgpr, ydim=False):
    return "\n".join([f".amdhsa_kernel {name}", f"  .amdhsa_next_free_vgpr {vgpr}", "  .amdhsa_next_free_sgpr 102",
        f"  .amdhsa_accum_offset {vgpr}", "  .amdhsa_group_segment_fixed_size 0", "  .amdhsa_kernarg_size 96",
        "  .amdhsa_user_sgpr_count 2", "  .amdhsa_user_sgpr_kernarg_segment_ptr 1", "  .amdhsa_system_sgpr_workgroup_id_x 1"]
        + (["  .amdhsa_system_sgpr_workgroup_id_y 1"] if ydim else []) + [".end_amdhsa_kernel"])

def generate(cfg=None):
    cfg = cfg or Cfg()
    P = Prog()
    K1 = NAME + "_kernel"; K2 = "reduce_final_kernel"
    P.e(".p2align 8"); P.e(f"{K1}:")
    m = P.mark(); gen_entry(P, cfg); entry = P.since(m)
    if cfg.stamps:
        pass
    ctrace, rares = gen_compute(P, cfg)
    htrace = gen_helper(P, cfg)
    P.e("L_end:"); P.e("s_endpgm")
    P.e("L_code_end:")
    P.e(".p2align 8"); P.e(f"{K2}:")
    k2 = gen_k2(P, cfg)
    resolve([entry + ctrace, entry + htrace, k2] + rares)
    out = expand(P.L)
    mis = align8(out)
    head = [f"; @launch kernel={K1} grid=(256,1,1) block=(512,1,1) lds={LDS_BYTES}",
            f"; @launch kernel={K2} grid=(28,16,1) block=(256,1,1) lds=0",
            '.amdgcn_target "amdgcn-amd-amdhsa--gfx950"', ".text",
            f".globl {K1}", f".type {K1},@function", f".globl {K2}", f".type {K2},@function",
            ]
    span = 0
    for I in out:
        if I.text == "L_code_end:": break
        if I.text.startswith(".p2align"):
            a = 1 << int(I.text.split()[1]); span = -(-span // a) * a
        span += I.size()
    body = [I.text.replace("CODE_SPAN", str((span - 64) & ~3)) for I in out]
    print("code bytes K1", span)
    tail = ['.section .rodata,"a"', ".p2align 6", kd(K1, 256), ".p2align 6", kd(K2, 160, True)]
    return "\n".join(head + body + tail) + "\n", mis

if __name__ == "__main__":
    cfg = Cfg()
    for a in sys.argv[2:]:
        k, v = a.split('='); setattr(cfg, k, int(v))
    s, mis = generate(cfg)
    open(sys.argv[1], "w").write(s)
    print("bytes", len(s), "lines", s.count("\n"), "misaligned", mis)
```

```python
LEAD = 6
def plan(verbose=False, wait_group=3, bar_gap=16):
    cap = [2] * 64
    fixed = {g: [] for g in range(64)}
    for p in range(32):
        f = p + LEAD
        two = 16 <= f < 32
        g = 2 * p + 1
        fixed[g].append(('read', f)); cap[g] -= 2 if two else 1
    fixed[bar_gap].append(('barrier',)); cap[bar_gap] = 0
    fixed[63].append(('branch',)); cap[63] -= 1
    fixed[18].append(('ctl',)); cap[18] -= 1
    waits = {}
    for f in range(0, 32, wait_group):
        g = (2 * f - 1) % 64
        while cap[g] == 0: g = (g - 1) % 64
        cap[g] -= 1
        waits[(g + 1) % 64] = [x for x in range(f, min(f + wait_group, 32))]
    tasks = []
    order = [('a', q, i) for i in range(4) for q in range(2)]
    order = [('a', 0, 0), ('a', 0, 1), ('a', 1, 0), ('a', 1, 1), ('a', 0, 2), ('a', 0, 3), ('a', 1, 2), ('a', 1, 3)]
    order += [('b',) + o[1:] for o in order]
    done = {}
    exps = list(order)
    small = []
    for o in order: small.append((('add',) + o, [('exp',) + o]))
    for q in range(2):
        small.append((('cvt', q, 0), [('add', 'a', q, 0), ('exp', 'a', q, 1)]))
        small.append((('cvt', q, 1), [('cvt', q, 0), ('add', 'a', q, 1), ('exp', 'a', q, 2), ('exp', 'a', q, 3)]))
        small.append((('cvt', q, 2), [('cvt', q, 1), ('add', 'a', q, 2), ('exp', 'b', q, 0), ('exp', 'b', q, 1)]))
        small.append((('cvt', q, 3), [('cvt', q, 1), ('add', 'a', q, 3), ('exp', 'b', q, 2), ('exp', 'b', q, 3)]))
    place = {g: [] for g in range(18, 64 + 18)}
    for g in range(18, 64 + 16):
        c = cap[g % 64]
        def ready():
            return [s for s in small if all(d in done and (done[d] < g or (done[d] == g and d[0] != 'exp')) for d in s[1])]
        r = ready()
        rel_ok = exps and g >= (20 if exps[0][0] == 'a' else 36)
        singles_next = sum(1 for k in range(1, 4) if cap[(g + k) % 64] == 1)
        if c == 2 and rel_ok and len(r) - singles_next < 2:
            o = exps.pop(0); done[('exp',) + o] = g; place[g].append(('exp',) + o); continue
        while c > 0:
            r = ready()
            if not r: break
            s = r[0]; small.remove(s); done[s[0]] = g; place[g].append(s[0]); c -= 1
    assert not exps and not small, (exps, small)
    if verbose:
        for g in range(64):
            cur = place.get(g + 64, []); nx = place.get(g, [])
            print(g, 'W' if (g + 1) % 64 in waits else ' ', fixed[g], 'cur:', cur, 'nxt:', nx)
    return fixed, waits, place
if __name__ == "__main__":
    plan(True)
```

```python
import struct, sys
from asmlib import *
import sched

NAME = "recurrent_scan__mha_block_cached__glu_gated_glu__prompt"
def f2u(x): return struct.unpack('<I', struct.pack('<f', x))[0]
LOG2E = 1.4426950408889634
SLOT = 16896
GLUB = 8 * SLOT
GLUS = 7168
FLAG = GLUB - 32
LDS_BYTES = GLUB + 4 * GLUS
GP_OFF = 0x2000000
FL_OFF = 0x4000000
SPIN = 400000

sHEAD, sQB, sWV, sSUB = 's3', 's4', 's5', 's6'
SX, SK, SV, SWQ, SWO, SWG, SWU, SWD, SP, ST = [f"s[{8+4*i}:{11+4*i}]" for i in range(10)]
sC = 's72'; sHI = 's74'; sTRIP = 's75'
sLK, sLV, sL1K = 's76', 's77', 's78'
sMODE = 's79'
sSH = 's91'
sT0, sT1, sT2, sT3 = 's80', 's81', 's82', 's83'
sKO, sVO = 's96', 's97'
def srd(i): return 8 + 4 * i
def vr(a, n): return f"v[{a}:{a+n-1}]"
MF = "v_mfma_f32_16x16x32_bf16"
TR = "ds_read_b64_tr_b16"

class Cfg:
    glu = 1
    touch = 1
    prio = 2
    stamps = 0
    thr = 2.0 ** 64
    wq_at = 29
    xpar = 0
    pe = 20
    hack = 0
    plo = 0
    hx = 1
    t_at = 27
    ktr = 2
    gtouch = 1
    tq0 = 8
    phi = 2
    nact = 5
    wg = 3
    ltouch = 1
    etouch = 1

def stream(P, items, bufs, lead, gapfill=None, group=2, start=None):
    n = len(items)
    buf = [bufs[i % len(bufs)] for i in range(n)]
    def reads(i):
        it = items[i]
        if it.get('hook'): it['hook']()
        for (op, addr, imm, sub, w) in it['reads']:
            P.e(f"{op} {vr(buf[i]+sub, w)}, {addr} offset:{imm}")
    for i in range(min(lead, n)): reads(i)
    if start: start()
    for i in range(n):
        it = items[i]
        for k, (acc, b, c) in enumerate(it['mf']):
            extra = set()
            if group and k == len(it['mf']) - 1 and (i + 1) % group == 0:
                for z in range(1, group + 1):
                    if i + z < n: extra |= regs_of(vr(buf[i+z], 4))
            P.e(f"{MF} {vr(acc,4)}, {vr(buf[i],4)}, {vr(b,4)}, {c if c is not None else vr(acc,4)}", extra_rd=extra)
            if k == len(it['mf']) - 1 and i + lead < n: reads(i + lead)
            elif gapfill: gapfill(i, k)

def tr_reads(addr, imm0, imm1): return [(TR, addr, imm0, 0, 2), (TR, addr, imm1, 2, 2)]

class Filler:
    def __init__(self, P): self.P = P; self.q = []
    def add(self, *texts, **kw): self.q.append((texts, kw))
    def emit(self, k=1):
        for _ in range(k):
            if not self.q: return
            texts, kw = self.q.pop(0)
            for t in texts:
                if isinstance(t, tuple): self.P.waitvm(*t)
                elif t.startswith(('buffer_', 'global_')): self.P.e(t, **kw)
                else: self.P.e(t)
    def flush(self): self.emit(len(self.q))
    def wait(self, *tags):
        assert not any(kw.get('tag') in tags for _, kw in self.q), tags
        self.P.waitvm(*tags)

def dma_kv(F, which, tile, slot):
    sr, sl, so = (SK, sLK, sKO) if which == 'K' else (SV, sLV, sVO)
    ld = lambda off: f"buffer_load_dwordx4 v240, {sr}, {so} offen" + (f" offset:{off}" if off else "") + " lds"
    tag = (which, tile)
    F.add(f"s_add_u32 m0, {sl}, {slot*SLOT}", f"s_addk_i32 {so}, 8192", ld(0), tag=tag)
    F.add("s_addk_i32 m0, 32", ld(1024), tag=tag)
    F.add(f"s_addk_i32 m0, {8448-32}", f"s_addk_i32 {so}, 8192", ld(0), tag=tag)
    F.add("s_addk_i32 m0, 32", ld(1024), tag=tag)
def dma_wq(F, tile, slot):
    ld = f"buffer_load_dwordx4 v248, {SWQ}, {sT0} offen lds"
    tag = ('WQ', tile)
    F.add(f"s_add_u32 m0, {sLV}, {slot*SLOT}", f"s_mov_b32 {sT0}, {32*tile*8192}", ld, tag=tag)
    for d in (1056, 7392, 1056):
        F.add(f"s_addk_i32 m0, {d}", f"s_addk_i32 {sT0}, 16384", ld, tag=tag)
def dma_wo(F, nt, slot):
    ld = f"buffer_load_dwordx4 v242, {SWO}, {sT0} offen lds"
    tag = ('WO', nt)
    F.add(f"s_add_u32 m0, {sL1K}, {slot*SLOT}", f"s_add_u32 {sT0}, s85, {nt*64}", ld, tag=tag)
    for p in range(3): F.add("s_addk_i32 m0, 1024", f"s_addk_i32 {sT0}, 14336", ld, tag=tag)
def dma_gu(F, c):
    base = GLUB + (c % 4) * GLUS
    ld = f"buffer_load_dwordx4 v241, {SWU if c & 1 else SWG}, {sT2} offen lds"
    F.add("s_mov_b32 exec_hi, 0xffffff", f"s_add_u32 m0, s86, {base}", f"s_mov_b32 {sT2}, {32*(c>>1)*3584}", ld,
          "s_addk_i32 m0, 3584", f"s_addk_i32 {sT2}, {4*3584}", ld, "s_mov_b32 exec_hi, -1", tag=('G', c))
def dma_wd(F, c, nt):
    base = GLUB + (c % 4) * GLUS
    ld = f"buffer_load_dwordx4 v242, {SWD}, {sT2} offen lds"
    F.add(f"s_add_u32 m0, s88, {base}", f"s_add_u32 {sT2}, s87, {nt*64}", ld, tag=('G', c))
    F.add("s_add_u32 m0, m0, s98", f"s_add_u32 {sT2}, {sT2}, s99", ld, tag=('G', c))

WQ_SLOT = {0: 7, 1: 8, 2: 5, 3: 3, 4: 6, 5: 4, 6: 0, 7: 1, 8: 2, 9: 7, 10: 8, 11: 5, 12: 3, 13: 6}
WO_SLOT = {0: 8, 1: 0, 2: 1, 3: 4, 4: 2, 5: 5, 6: 3, 7: 6, 8: 7, 9: 8, 10: 0, 11: 1, 12: 4, 13: 2}

def streg(idx): return {0: 's94', 10: 's95'}.get(idx, f"s{48+idx}")
def stamp(P, cfg, idx, real=False):
    if not cfg.stamps: return
    P.e(f"{'s_memrealtime' if real else 's_memtime'} s[64:65]"); P.e("s_waitcnt lgkmcnt(0)")
    P.e(f"s_mov_b32 {streg(idx)}, s64")
def dump_stamps(P):
    e = P.e
    for i in range(16): e(f"v_writelane_b32 v254, {streg(i)}, {i}")
    e(f"s_lshl_b32 s7, s2, 3"); e(f"s_add_u32 s7, s7, {sWV}"); e("s_lshl_b32 s7, s7, 8"); e("s_add_u32 s7, s7, 0x8000000")
    e("s_add_u32 s92, s70, s7"); e("s_addc_u32 s93, s71, 0")
    e("v_mbcnt_lo_u32_b32 v255, -1, 0"); e("v_mbcnt_hi_u32_b32 v255, -1, v255"); e("v_lshlrev_b32 v255, 2, v255")
    e("global_store_dword v255, v254, s[92:93]")

def mad(P, dst, src, mul, acc=None):
    P.e(f"s_movk_i32 s7, {mul}" if mul < 32768 else f"s_mov_b32 s7, {mul}")
    if acc is None: P.e(f"v_mul_u32_u24 {dst}, s7, {src}")
    else: P.e(f"v_mad_u32_u24 {dst}, {src}, s7, {acc}")

def gen_entry(P, cfg):
    e = P.e
    e("s_cmp_ge_u32 s2, 256"); e("s_cbranch_scc1 L_end")
    e(f"s_mov_b32 {sMODE}, 0")
    e("L_restart:")
    stamp(P, cfg, 0); stamp(P, cfg, 10, True)
    e("s_load_dwordx16 s[48:63], s[0:1], 0"); e("s_load_dwordx8 s[64:71], s[0:1], 64")
    e("s_getpc_b64 s[92:93]")
    e("v_lshrrev_b32 v1, 6, v0")
    e("v_and_b32 v255, 63, v0")
    e(f"v_readfirstlane_b32 {sWV}, v1")
    hx = cfg.hx; lm = hx - 1; M = 1 << lm
    e(f"s_and_b32 {sHEAD}, s2, {(16 >> hx) - 1}"); e(f"s_lshl_b32 {sHEAD}, {sHEAD}, {hx}"); e(f"s_bfe_u32 s7, s2, {(hx << 16) | 3:#x}"); e(f"s_add_u32 {sHEAD}, {sHEAD}, s7")
    e(f"s_lshr_b32 {sSH}, s2, {3 + hx}")
    if hx > 1: e(f"s_bfe_u32 s7, s2, {(lm << 16) | (4 - hx):#x}"); e(f"s_lshl_b32 s7, s7, {5 - hx}"); e(f"s_add_u32 {sQB}, {sSH}, s7")
    else: e(f"s_mov_b32 {sQB}, {sSH}")
    e(f"s_and_b32 {sSUB}, {sWV}, 3")
    e("s_mov_b32 s11, 0x20000"); e(f"s_mov_b32 s10, {2048*896}")
    e("v_lshrrev_b32 v186, 3, v255"); e("v_and_b32 v185, 7, v255"); e("v_lshlrev_b32 v184, 4, v185"); mad(P, 'v184', 'v186', 896, 'v184')
    e(f"s_lshl_b32 s84, {sSUB}, 1"); e(f"s_lshr_b32 s7, {sWV}, 2")
    if cfg.xpar: e(f"s_xor_b32 s7, s7, {sHEAD}"); e("s_and_b32 s7, s7, 1")
    e("s_add_u32 s84, s84, s7")
    e(f"s_lshl_b32 s7, {sQB}, 3"); e("s_add_u32 s7, s7, s84"); e(f"s_mul_i32 {sT0}, s7, {16*896}")
    e("s_waitcnt lgkmcnt(0)")
    if cfg.hack & 16: e("s_memtime s[98:99]")
    e("s_mov_b32 s8, s48"); e("s_mov_b32 s9, s49")
    e(f"s_add_u32 {sT1}, {sT0}, {8*896}")
    for kp in range(7): e(f"buffer_load_dwordx4 {vr(128+4*kp,4)}, v184, {SX}, {sT0} offen offset:{kp*128}")
    for i in range(1, 10): e(f"s_mov_b32 s{srd(i)+3}, 0x20000")
    def mk(i, plo, mul, total, exact=None):
        b = srd(i)
        e(f"s_mul_i32 s7, {sHEAD}, {mul}")
        e(f"s_add_u32 s{b}, s{plo}, s7"); e(f"s_addc_u32 s{b+1}, s{plo+1}, 0")
        if exact is not None: e(f"s_mov_b32 s{b+2}, {exact}")
        else: e(f"s_sub_u32 s{b+2}, {total}, s7")
    mk(3, 54, 512, 448 * 8192)
    if cfg.touch and cfg.etouch:
        e(f"v_lshrrev_b32 v250, {4-lm}, v0"); e("v_lshlrev_b32 v250, 13, v250"); e(f"v_and_b32 v2, {(16>>lm)-1}, v0"); e(f"v_lshl_add_u32 v250, v2, {5+lm}, v250")
        e(f"s_mul_i32 s90, {sSH}, {28*M*8192}")
        e("s_lshr_b32 s7, s2, 3"); e("s_lshl_b32 s7, s7, 11"); e("v_lshl_add_u32 v189, v0, 2, s7"); e("v_min_u32 v189, CODE_SPAN, v189")
    mk(1, 50, 1 << 20, 0, 1 << 20)
    mk(2, 52, 1 << 20, 0, 1 << 20)
    mk(4, 56, 256 * 896, 0, 256 * 896)
    mk(5, 60, 224, 448 * 3584)
    mk(6, 62, 224, 448 * 3584)
    mk(7, 64, 112 * 896, 0, 112 * 896)
    e(f"s_lshl_b32 s7, {sQB}, 4"); e(f"s_add_u32 s7, s7, {sHEAD}"); e("s_lshl_b32 s7, s7, 2"); e(f"s_add_u32 s7, s7, {sSUB}")
    e("s_mul_i32 s7, s7, 28672")
    e(f"s_lshr_b32 {sT2}, {sWV}, 2"); e(f"s_mul_i32 {sT2}, {sT2}, {GP_OFF}"); e(f"s_add_u32 s7, s7, {sT2}")
    e(f"s_add_u32 s{srd(8)}, s70, s7"); e(f"s_addc_u32 s{srd(8)+1}, s71, 0"); e(f"s_mov_b32 s{srd(8)+2}, 28672")
    e(f"s_lshl_b32 s7, {sQB}, 2"); e(f"s_add_u32 s7, s7, {sSUB}"); e("s_lshl_b32 s7, s7, 5"); e(f"s_add_u32 s7, s7, {sHEAD}"); e("s_lshl_b32 s7, s7, 2")
    e(f"s_lshr_b32 {sT2}, {sWV}, 2"); e(f"s_lshl_b32 {sT2}, {sT2}, 16"); e(f"s_add_u32 s7, s7, {sT2}"); e(f"s_add_u32 s7, s7, {FL_OFF}")
    e("s_add_u32 s100, s70, s7"); e("s_addc_u32 s101, s71, 0")
    e(f"s_cmp_lt_u32 {sSUB}, 2")
    e(f"s_cselect_b32 s{srd(9)}, s{srd(1)}, s{srd(2)}"); e(f"s_cselect_b32 s{srd(9)+1}, s{srd(1)+1}, s{srd(2)+1}"); e(f"s_mov_b32 s{srd(9)+2}, {1<<20}")
    e(f"s_lshl_b32 s89, {sSH}, {12+lm}"); e(f"s_and_b32 s7, {sSUB}, 1"); e(f"s_lshl_b32 s7, s7, {11+lm}"); e("s_add_u32 s89, s89, s7")
    e(f"s_mov_b32 {sC}, {f2u(LOG2E/16):#x}"); e(f"s_mov_b32 {sHI}, 0xffff0000")
    e("v_lshrrev_b32 v112, 4, v255"); e("v_bfe_u32 v114, v255, 2, 2"); e("v_and_b32 v115, 3, v255")
    e("v_lshrrev_b32 v116, 1, v114"); e("v_lshl_add_u32 v116, v112, 1, v116"); e("v_lshlrev_b32 v224, 3, v115"); mad(P, 'v224', 'v116', 1056, 'v224')
    e("v_and_b32 v116, 1, v114"); e("v_lshl_add_u32 v224, v116, 7, v224")
    e("v_bfe_u32 v117, v255, 2, 1"); e("v_lshl_add_u32 v116, v115, 1, v117"); e("v_xor_b32 v116, v116, v186"); e("v_lshlrev_b32 v187, 4, v116")
    e("v_lshl_add_u32 v187, v115, 8, v187"); e("v_xor_b32 v117, 1, v117"); e("v_lshl_add_u32 v187, v117, 13, v187")
    e("s_lshl_b32 s7, s84, 10"); e("v_add_u32 v187, s7, v187"); e("v_add_u32 v188, 0x10000, v187")
    e("v_lshlrev_b32 v116, 1, v112"); e("v_and_b32 v117, 15, v255"); e("v_xor_b32 v116, v116, v117"); e("v_lshlrev_b32 v227, 4, v116"); e("v_lshl_add_u32 v227, v112, 8, v227")
    e(f"s_lshl_b32 s7, {sSUB}, 11"); e("v_add_u32 v227, s7, v227"); e("v_add_u32 v228, 0x10000, v227")
    e("v_xor_b32 v229, 16, v227"); e("v_xor_b32 v230, 16, v228")
    e("v_lshrrev_b32 v185, 2, v255")
    if cfg.hack & 16: e("s_waitcnt lgkmcnt(0)"); e("s_mov_b32 s57, s98"); cfg.pe = -5
    e(f"s_cmp_ge_u32 {sWV}, 4"); e("s_cbranch_scc1 L_helper")

def wdo_read_bases(P, d0, d1, G, r, c, tmp, add=0):
    e = P.e
    e(f"v_lshlrev_b32 {d0}, 3, {c}"); e(f"v_lshl_add_u32 {d0}, {G}, 8, {d0}"); e(f"v_lshl_add_u32 {d0}, {r}, 6, {d0}")
    e(f"v_and_b32 {tmp}, 1, {G}"); e(f"v_lshl_add_u32 {d0}, {tmp}, 5, {d0}")
    if add: e(f"v_add_u32 {d0}, {add}, {d0}")
    e(f"v_xor_b32 {d1}, 32, {d0}")

def gen_ln_qproj(P, cfg, helper):
    e = P.e
    F = Filler(P)
    lm = cfg.hx - 1; M = 1 << lm
    def xa(kk, lo, hi, add=0):
        o = (13 - kk) * 8192
        return f"{hi if o >= 65536 else lo} offset:{(o & 0xffff) + add}"
    if helper:
        e("v_lshlrev_b32 v240, 7, v112")
        e("v_and_b32 v116, 7, v255"); e("v_lshl_add_u32 v240, v116, 4, v240")
        e("v_bfe_u32 v116, v255, 3, 1")
        e("v_lshl_add_u32 v248, v116, 13, v240")
        e("v_lshl_add_u32 v240, v116, 9, v240")
        e(f"s_lshl_b32 s88, {sSUB}, 11"); e("v_add_u32 v240, s88, v240")
        e(f"s_lshl_b32 s7, {sSUB}, 16"); e("v_add_u32 v248, s7, v248")
        e(f"s_mul_i32 {sLV}, {sSUB}, 2112")
        dma_wq(F, 0, WQ_SLOT[0]); dma_wq(F, 1, WQ_SLOT[1])
        e(f"s_lshl_b32 s7, {sSUB}, 3"); e(f"s_lshr_b32 {sLK}, 0xc0703000, s7"); e(f"s_and_b32 {sLK}, {sLK}, 0xff"); e(f"s_add_u32 {sLK}, {sLK}, s88")
        e(f"s_lshl_b32 {sL1K}, {sSUB}, 12")
        e(f"s_movk_i32 {sKO}, -8192"); e(f"s_movk_i32 {sVO}, -8192")
        e("v_and_b32 v116, 1, v112"); e("v_lshlrev_b32 v116, 1, v116"); e("v_xor_b32 v116, v116, v115"); e("v_lshlrev_b32 v242, 4, v116")
        mad(P, 'v242', 'v185', 896, 'v242')
        e("v_mul_u32_u24 v116, 37, v255"); e("v_lshrrev_b32 v116, 9, v116")
        e("v_mul_u32_u24 v117, 14, v116"); e("v_sub_u32 v117, v255, v117"); e("v_lshlrev_b32 v241, 4, v117")
        mad(P, 'v241', 'v116', 3584, 'v241')
        e(f"s_mul_i32 s7, {sSUB}, {8*3584}"); e("v_add_u32 v241, s7, v241")
        e(f"v_lshlrev_b32 v243, {5+lm}, v255")
        e("v_lshlrev_b32 v249, 4, v255")
        e(f"s_mul_i32 s85, {sSUB}, {4*14336}"); e(f"s_mul_i32 s86, {sSUB}, 896"); e(f"s_mul_i32 s87, {sSUB}, {2*14336}")
        e("v_lshlrev_b32 v245, 3, v115"); mad(P, 'v245', 'v112', 896, 'v245'); mad(P, 'v245', 'v114', 224, 'v245'); e(f"v_add_u32 v245, {GLUB}, v245")
        wdo_read_bases(P, 'v246', 'v247', 'v112', 'v114', 'v115', 'v116', GLUB)
        e("v_add_u32 v224, 512, v224")
        e(f"s_cmp_eq_u32 {sSUB}, 3"); e("s_cselect_b32 s98, 0, 1024"); e("s_cselect_b32 s99, 0, 14336")
    else:
        e(f"v_lshlrev_b32 v252, {5+lm}, v255")
        if cfg.touch:
            for tr in range(cfg.ktr):
                F.add(f"s_add_u32 {sT3}, s89, {tr*65536}", f"buffer_load_dword v251, v252, {ST}, {sT3} offen", tag='touch')
            e("v_mul_u32_u24 v253, 72, v115"); mad(P, 'v253', 'v185', 3584, 'v253')
        if cfg.touch and cfg.gtouch:
            F.add(f"s_lshl_b32 s7, {sSH}, 1", f"s_and_b32 {sT2}, {sSUB}, 1", f"s_add_u32 s7, s7, {sT2}", f"s_mul_i32 {sT3}, s7, {14*M*3584}",
                  f"s_cmp_lt_u32 {sSUB}, 2", f"s_cselect_b32 s{srd(9)}, s{srd(5)}, s{srd(6)}", f"s_cselect_b32 s{srd(9)+1}, s{srd(5)+1}, s{srd(6)+1}",
                  f"s_mov_b32 s{srd(9)+2}, s{srd(5)+2}", f"buffer_load_dword v251, v253, {ST}, {sT3} offen", tag='touch')
            for _ in range(M - 1): F.add(f"s_add_u32 {sT3}, {sT3}, {14*3584}", f"buffer_load_dword v251, v253, {ST}, {sT3} offen", tag='touch')
        e("v_bfe_u32 v116, v255, 1, 3"); e("v_lshlrev_b32 v117, 2, v116"); e("s_mov_b32 s7, 0xec975320"); e("v_bfe_u32 v117, s7, v117, 4")
        e("v_lshlrev_b32 v248, 10, v116"); e("v_lshl_add_u32 v248, v117, 4, v248")
        e("v_and_b32 v116, 1, v255"); e("v_lshl_add_u32 v248, v116, 7, v248")
        e("v_and_b32 v116, 1, v112"); e("v_lshl_add_u32 v248, v116, 5, v248"); e("v_lshrrev_b32 v116, 1, v112"); e("v_lshl_add_u32 v248, v116, 4, v248")
        e(f"v_add_u32 v249, {4*SLOT}, v224")
        e(f"v_mov_b32 v116, {FLAG}"); e("v_mov_b32 v117, 0"); e("ds_write_b32 v116, v117")
    e(f"v_add_u32 v225, {3*SLOT}, v224"); e(f"v_add_u32 v226, {6*SLOT}, v224")
    if cfg.hack & 16: stamp(P, cfg, 13)
    for kp in range(7): e(f"buffer_load_dwordx4 {vr(156+4*kp,4)}, v184, {SX}, {sT1} offen offset:{kp*128}")
    if cfg.hack & 16: stamp(P, cfg, 14)
    role = 'h' if helper else 'c'
    for hh in range(2):
        m, t, v, u = "v118", "v119", "v120", "v121"
        for d in range(28 * hh, 28 * hh + 28):
            e(f"v_lshlrev_b32 v{2*d}, 16, v{128+d}"); e(f"v_and_b32 v{2*d+1}, {sHI}, v{128+d}")
            if d % 28 == 0:
                e(f"v_mov_b32 {m}, v{2*d}"); e(f"v_mov_b32 {t}, v{2*d+1}"); e(f"v_mul_f32 {v}, v{2*d}, v{2*d}"); e(f"v_mul_f32 {u}, v{2*d+1}, v{2*d+1}")
            else:
                e(f"v_add_f32 {m}, {m}, v{2*d}"); e(f"v_add_f32 {t}, {t}, v{2*d+1}")
                e(f"v_fmac_f32 {v}, v{2*d}, v{2*d}"); e(f"v_fmac_f32 {u}, v{2*d+1}, v{2*d+1}")
            if d == cfg.t_at and cfg.touch:
                e("global_load_dword v251, v189, s[92:93]", tag='touch')
                e(f"buffer_load_dword v251, v250, {SWQ}, s90 offen", tag='touch')
            if helper and d >= cfg.wq_at and d % 2 == 1: F.emit()
        if hh == 1: stamp(P, cfg, 1)
        e(f"v_add_f32 {m}, {m}, {t}"); e(f"v_add_f32 {v}, {v}, {u}")
        for qp in ("quad_perm:[1,0,3,2]", "quad_perm:[2,3,0,1]", "row_half_mirror"):
            e(f"v_add_f32_dpp {m}, {m}, {m} {qp} row_mask:0xf bank_mask:0xf")
            e(f"v_add_f32_dpp {v}, {v}, {v} {qp} row_mask:0xf bank_mask:0xf")
        e(f"s_mov_b32 s7, {f2u(1.0/448):#x}")
        e(f"v_mul_f32 {m}, s7, {m}")
        e(f"v_mul_f32 {t}, {m}, {m}")
        e(f"v_fma_f32 {v}, {v}, s7, -{t}")
        e(f"v_max_f32 {v}, 0, {v}")
        e(f"v_cvt_pk_bf16_f32 {t}, {m}, {v}")
        e(f"v_lshlrev_b32 {m}, 16, {t}")
        e(f"v_and_b32 {v}, {sHI}, {t}")
        e(f"v_add_f32 {v}, {f2u(1e-5):#x}, {v}")
        e(f"v_cvt_pk_bf16_f32 {v}, {v}, {v}"); e(f"v_and_b32 {v}, {sHI}, {v}")
        e(f"v_sqrt_f32 {v}, {v}")
        e(f"v_cvt_pk_bf16_f32 {v}, {v}, {v}"); e(f"v_and_b32 {v}, {sHI}, {v}")
        e(f"v_rcp_f32 {v}, {v}")
        e(f"v_mul_f32 {m}, {m}, {v}")
        for kp in range(7):
            z = 7 * hh + kp
            for d in range(4 * z, 4 * z + 4):
                e(f"v_fma_f32 v{2*d}, v{2*d}, {v}, -{m}"); e(f"v_fma_f32 v{2*d+1}, v{2*d+1}, {v}, -{m}")
            for d in range(4 * z, 4 * z + 4):
                e(f"v_cvt_pk_bf16_f32 v{128+d}, v{2*d}, v{2*d+1}")
            ad = xa(2 * kp + 1, 'v187', 'v188', hh * 128).split()
            e(f"ds_write_b128 {ad[0]}, {vr(128+4*z,4)} {ad[1]}")
            if helper and hh == 1: F.emit(2)
        if hh == 0:
            if cfg.hack & 16: stamp(P, cfg, 15)
            e("v_mov_b32 v122, 0")
            e(f"s_cmp_lg_u32 {sMODE}, 0"); e(f"s_cbranch_scc1 L_norst{role}")
            e("s_mov_b64 exec, 1"); e("global_store_dword v122, v122, s[100:101] sc1", tag='opt'); e("s_mov_b64 exec, -1")
            e(f"L_norst{role}:")
    if helper: F.wait(('WQ', 0), ('WQ', 1))
    e("s_waitcnt lgkmcnt(0)")
    stamp(P, cfg, 12)
    e("s_barrier")
    xr = [f"ds_read_b128 {vr((2*kk+qt)*4,4)}, {xa(kk, *(('v229', 'v230') if kk & 1 else ('v227', 'v228')), qt*1024)}" for kk in range(14) for qt in range(2)]
    for t in xr[:16]: e(t)
    xr = xr[16:]
    def start():
        e("s_barrier", extra_rd=regs_of("v[0:63]"))
        if helper:
            for T in range(2, 6): dma_wq(F, T, WQ_SLOT[T])
            F.emit(4)
        stamp(P, cfg, 2)
    items = []
    after = {1: [('WQ', 6), ('WQ', 7), ('WQ', 8), ('WQ', 9)], 2: [('WQ', 10), ('WQ', 11)], 3: [('WQ', 12), ('WQ', 13)], 4: [('K', 0), ('V', 0)], 5: [('K', 1), ('K', 2)], 6: []}
    def mkhook(k):
        def hook():
            if helper:
                F.wait(('WQ', 2*k), ('WQ', 2*k+1), *([('K', 0)] if k == 6 else []))
            if k == 1: P.waitvm('opt')
            e("s_barrier", extra_rd=regs_of("v[64:111]") if k == 1 else None)
            if helper:
                for (w, t) in after.get(k, []):
                    if w == 'WQ': dma_wq(F, t, WQ_SLOT[t])
                    else: dma_kv(F, w, t, (t & 3) + (4 if w == 'V' else 0))
            elif k == 1:
                e(f"s_or_b32 s7, {sMODE}, {sSUB}"); e("s_cbranch_scc1 L_noarr")
                e(f"s_lshl_b32 s7, {sQB}, 4"); e("v_mov_b32 v228, s7"); e("v_mov_b32 v229, 1")
                e("s_mov_b64 exec, 1"); e("global_atomic_add v228, v229, s[68:69] sc1", tag='opt'); e("s_mov_b64 exec, -1")
                e("L_noarr:")
        return hook
    for T in range(14):
        sl = WQ_SLOT[T]; base = f"v{224 + sl // 3}"; so = (sl % 3) * SLOT
        for t in range(8):
            imm = so + (t >> 2) * 256 + (t & 3) * 32
            mf = [(128 + ((t >> 1) * 2 + qt) * 8 + (t & 1) * 4, (2 * T + qt) * 4, '0' if T == 0 else None) for qt in range(2)]
            items.append(dict(mf=mf, reads=tr_reads(base, imm, imm + 8448), hook=mkhook(T // 2) if (T % 2 == 0 and T > 0 and t == 0) else None))
    def gap(i, k):
        T, t = divmod(i, 8)
        for _ in range(2):
            if xr: e(xr.pop(0))
        if helper: F.emit()
        else:
            if T >= 1 and t < 4: e(f"v_mov_b64 {vr(8*(T-1)+2*t,2)}, 0")
            elif 1 <= T < 5 and t in (4, 5): e(f"v_mov_b64 {vr(112+4*(T-1)+2*(t-4),2)}, 0")
            elif t == 6 and T >= cfg.tq0: F.emit()
    stream(P, items, [192 + 4 * i for i in range(6)], 6, gap, group=3, start=start)
    assert not F.q or not helper
    F.flush()
    e(f"s_lshr_b32 s7, {sSUB}, 1"); e(f"s_mul_i32 s7, s7, {SLOT}"); e(f"s_and_b32 {sT3}, {sSUB}, 1"); e(f"s_lshl_b32 {sT3}, {sT3}, 13")
    e(f"s_add_u32 s7, s7, {sT3}"); e(f"s_add_u32 s7, s7, {7*SLOT}")
    e("v_lshlrev_b32 v254, 4, v255"); e("v_add_u32 v254, s7, v254")
    if helper:
        for g in range(8):
            for t in qfin(g): e(t)
            if g: e(f"ds_write_b128 v254, {vr(128+4*(g-1),4)} offset:{(g-1)*1024}")
        e(f"ds_write_b128 v254, {vr(156,4)} offset:{7*1024}")
        P.waitvm(('K', 1))
        e("s_waitcnt lgkmcnt(0)")
        stamp(P, cfg, 3)
        e("s_barrier")
    return F

def qfin(g):
    r = [f"v_mul_f32 v{128+8*g+i}, {sC}, v{128+8*g+i}" for i in range(8)]
    r += [f"v_cvt_pk_bf16_f32 v{128+4*g+i}, v{128+8*g+2*i}, v{129+8*g+2*i}" for i in (0, 2, 1, 3)] if g else \
         [f"v_cvt_pk_bf16_f32 v{128+i}, v{128+2*i}, v{129+2*i}" for i in range(4)]
    r += [f"v_permlane16_swap_b32 v{128+4*g}, v{130+4*g}", f"v_permlane16_swap_b32 v{129+4*g}, v{131+4*g}"]
    return r

BUFS = [224, 228, 232, 236, 240, 244, 252]
PAT = list(range(7)) + list(range(6)) + list(range(6)) + list(range(7)) + list(range(6))
LEAD = sched.LEAD
SA = [192, 200]; SB = 208; NEGM = 216; LR = [250, 251]
def fbuf(f): return BUFS[PAT[f % 32]]
def oacc(t, qt): return ((t >> 1) * 2 + qt) * 8 + (t & 1) * 4
def k_imm(f): return (f >> 3) * 8448 + ((f & 7) >> 1) * 256 + (f & 1) * 64
def k_read(P, f, slot): P.e(f"ds_read_b128 {vr(fbuf(f),4)}, v248 offset:{slot*SLOT + k_imm(f)}")
def v_read(P, f, slot):
    t = f - 16
    imm = slot * SLOT + (t >> 2) * 256 + (t & 3) * 32
    P.e(f"{TR} {vr(fbuf(f),2)}, v249 offset:{imm}")
    P.e(f"{TR} {vr(fbuf(f)+2,2)}, v249 offset:{imm + 8448}")

def sm_text(task, sa):
    if task[0] in ('exp', 'add'):
        _, blk, q, i = task
        r = (sa if blk == 'a' else SB) + 4 * q + i
        return f"v_exp_f32 v{r}, v{r}" if task[0] == 'exp' else f"v_add_f32 v{LR[q]}, v{LR[q]}, v{r}"
    _, q, k = task
    src = (sa if k < 2 else SB) + 4 * q + 2 * (k & 1)
    return f"v_cvt_pk_bf16_f32 v{sa+4*q+k}, v{src}, v{src+1}"

FIXED = WAITS = PLACE = None

def gen_iter(P, j, ctl=False):
    e = P.e
    cur = SA[j & 1]; nxt = SA[(j + 1) & 1]
    for g in range(64):
        f, qt = g >> 1, g & 1
        extra = set()
        for z in WAITS.get(g, []): extra |= regs_of(vr(fbuf(z), 4))
        if f < 16:
            acc = (nxt if f < 8 else SB) + 4 * qt
            c = vr(NEGM + 4 * qt, 4) if (f & 7) == 0 else vr(acc, 4)
            e(f"{MF} {vr(acc,4)}, {vr(fbuf(f),4)}, {vr(128 + ((f&7)*2+qt)*4,4)}, {c}", extra_rd=extra)
        else:
            a = oacc(f - 16, qt)
            e(f"{MF} {vr(a,4)}, {vr(fbuf(f),4)}, {vr(cur+4*qt,4)}, {vr(a,4)}", extra_rd=extra)
        late = []
        for it in FIXED[g]:
            if it[0] == 'read':
                n = it[1]
                if n < 16: k_read(P, n, (j + 1) & 3)
                elif n < 32: v_read(P, n, j & 3)
                else: k_read(P, n - 32, (j + 2) & 3)
            elif it[0] == 'barrier': late.append("s_barrier")
            elif it[0] == 'ctl' and ctl: late.append(f"s_sub_u32 {sTRIP}, {sTRIP}, 1")
            elif it[0] == 'branch' and ctl: late.append("s_cbranch_scc0 L_loop")
        for t in PLACE.get(g + 64, []): e(sm_text(t, cur))
        for t in PLACE.get(g, []): e(sm_text(t, nxt))
        for t in late: e(t)

def xgroup(P, op, r, t):
    e = P.e
    e(f"v_mov_b32 {t}, {r}"); e(f"v_permlane16_swap_b32 {r}, {t}"); e(f"{op} {r}, {r}, {t}")
    e(f"v_mov_b32 {t}, {r}"); e(f"v_permlane32_swap_b32 {r}, {t}"); e(f"{op} {r}, {r}, {t}")

def gen_compute(P, cfg):
    e = P.e
    m0 = P.mark()
    if cfg.prio == 1: e("s_setprio 2")
    gen_ln_qproj(P, cfg, False)
    stamp(P, cfg, 3)
    order = [f for kk in range(8) for f in (kk, 8 + kk)]
    items = [dict(mf=[((SA[0] if f < 8 else SB) + 4 * qt, 128 + ((f & 7) * 2 + qt) * 4, '0' if (f & 7) == 0 else None) for qt in range(2)],
                  reads=[("ds_read_b128", "v248", k_imm(f), 0, 4)]) for f in order]
    def start():
        for t in range(4): e(f"v_mov_b64 {vr(104+2*t,2)}, 0")
        for t in qfin(0) + qfin(1): e(t)
    def gap0(i, k):
        if i < 6:
            for t in qfin(i + 2): e(t)
            if i == 2: e("s_barrier")
            if i >= 2:
                for z in (2 * (i - 2), 2 * (i - 2) + 1): e(f"ds_read_b128 {vr(160+4*z,4)}, v254 offset:{z*1024}")
    stream(P, items, BUFS[:6], 6, gap0, group=2, start=start)
    e("s_waitcnt vmcnt(0)")
    for f in range(LEAD): k_read(P, f, 1)
    e(f"s_cmp_lg_u32 {sMODE}, 0"); e("s_cbranch_scc1 L_havem")
    mm = P.mark()
    for q in range(2):
        a, b, m = SA[0] + 4 * q, SB + 4 * q, NEGM + 4 * q
        e(f"v_max3_f32 v{m}, v{a}, v{a+1}, v{a+2}"); e(f"v_max3_f32 v{m}, v{m}, v{a+3}, v{b}"); e(f"v_max3_f32 v{m}, v{m}, v{b+1}, v{b+2}"); e(f"v_max_f32 v{m}, v{m}, v{b+3}")
    xgroup(P, "v_max_f32", f"v{NEGM}", f"v{NEGM+1}"); xgroup(P, "v_max_f32", f"v{NEGM+4}", f"v{NEGM+5}")
    for q in range(2):
        m = NEGM + 4 * q
        for i in (1, 2, 3, 0): e(f"v_sub_f32 v{m+i}, 0, v{m}")
    minit = P.since(mm)
    e("L_havem:")
    for q in range(2):
        for i in range(4):
            e(f"v_add_f32 v{SA[0]+4*q+i}, v{SA[0]+4*q+i}, v{NEGM+4*q}"); e(f"v_add_f32 v{SB+4*q+i}, v{SB+4*q+i}, v{NEGM+4*q}")
    e(f"v_mov_b32 v{LR[0]}, 0"); e(f"v_mov_b32 v{LR[1]}, 0")
    for g in range(18, 64):
        for t in PLACE[g]: e(sm_text(t, SA[0]))
    e(f"s_mov_b32 {sTRIP}, 15")
    stamp(P, cfg, 4)
    e("s_waitcnt lgkmcnt(0)")
    e("s_branch L_it0")
    pro = P.since(m0)
    e(".p2align 6")
    e("L_loop:")
    its = {}
    for j in (3, 0, 1, 2):
        if j == 0: e("L_it0:")
        m = P.mark(); gen_iter(P, j, ctl=(j == 2)); its[j] = P.since(m)
    m1 = P.mark()
    stamp(P, cfg, 5)
    cur = SA[1]
    e("s_barrier")
    for f in range(16, 16 + LEAD): v_read(P, f, 3)
    for g in range(64, 82):
        for t in PLACE[g]: e(sm_text(t, cur))
    post_ops = []
    Q = Prog()
    xgroup(Q, "v_add_f32", f"v{LR[0]}", "v208"); xgroup(Q, "v_add_f32", f"v{LR[1]}", "v209")
    Q.e(f"v_max_f32 v208, v{LR[0]}, v{LR[1]}"); Q.e(f"v_add_f32 v209, v{LR[0]}, v{LR[1]}")
    Q.e(f"v_rcp_f32 v{LR[0]}, v{LR[0]}"); Q.e(f"v_rcp_f32 v{LR[1]}, v{LR[1]}")
    Q.e("v_mbcnt_lo_u32_b32 v210, -1, 0"); Q.e("v_mbcnt_hi_u32_b32 v210, -1, v210")
    Q.e("v_lshrrev_b32 v211, 4, v210"); Q.e("v_bfe_u32 v212, v210, 2, 2"); Q.e("v_and_b32 v213, 3, v210")
    wdo_read_bases(Q, 'v192', 'v193', 'v211', 'v212', 'v213', 'v214')
    for k in (1, 2): Q.e(f"v_add_u32 v{192+2*k}, {3*k*SLOT}, v192"); Q.e(f"v_add_u32 v{193+2*k}, {3*k*SLOT}, v193")
    Q.e("v_lshlrev_b32 v248, 4, v210")
    Q.e(f"v_mov_b32 v214, {FLAG}"); Q.e("v_mov_b32 v215, 1")
    rest = Q.L
    for g in range(32, 64):
        f, qt = g >> 1, g & 1
        extra = set()
        for z in WAITS.get(g, []):
            if 16 <= z < 32: extra |= regs_of(vr(fbuf(z), 4))
        a = oacc(f - 16, qt)
        e(f"{MF} {vr(a,4)}, {vr(fbuf(f),4)}, {vr(cur+4*qt,4)}, {vr(a,4)}", extra_rd=extra)
        if qt == 1 and f + LEAD < 32: v_read(P, f + LEAD, 3)
        else:
            for _ in range(2):
                if rest: P.L.append(rest.pop(0))
    P.L.extend(rest)
    e(f"v_cmp_ngt_f32 vcc, {f2u(cfg.thr):#x}, v209")
    e("s_cbranch_vccz L_noflag")
    e("ds_write_b32 v214, v215")
    e("s_waitcnt lgkmcnt(0)")
    e("L_noflag:")
    e("s_barrier")
    e("ds_read_b32 v215, v214")
    for g in range(16):
        qt = g & 1
        for i in range(8): e(f"v_mul_f32 v{8*g+i}, v{8*g+i}, v{LR[qt]}")
        for i in range(4): e(f"v_cvt_pk_bf16_f32 v{4*g+i}, v{8*g+2*i}, v{8*g+2*i+1}")
    e("v_readfirstlane_b32 s7, v215")
    e(f"s_andn2_b32 s7, s7, {sMODE}"); e("s_cbranch_scc1 L_maxpass")
    stamp(P, cfg, 6)
    items = []
    F = Filler(P)
    def acc_o(nt, ee, qt): return 64 + 16 * (nt & 1) + (qt * 2 + ee) * 4
    for nt in range(14):
        sl = WO_SLOT[nt]; so = (sl % 3) * SLOT
        for kk in range(8):
            for ee in range(2):
                base = f"v{192 + 2 * (sl // 3) + ee}"
                imm = so + kk * 2048
                items.append(dict(mf=[(acc_o(nt, ee, qt), (kk * 2 + qt) * 4, '0' if kk == 0 else None) for qt in range(2)],
                                  reads=tr_reads(base, imm, imm + 1024),
                                  hook=(lambda: e("s_barrier")) if (nt in (2, 4, 6, 8) and kk == 0 and ee == 0) else None))
    def out_ops(nt):
        o = 96 + 8 * (nt & 3)
        for qt in range(2):
            a = acc_o(nt, 0, qt)
            F.add(f"v_cvt_pk_bf16_f32 v{o+4*qt}, v{a}, v{a+1}", f"v_cvt_pk_bf16_f32 v{o+4*qt+1}, v{a+2}, v{a+3}")
            F.add(f"v_cvt_pk_bf16_f32 v{o+4*qt+2}, v{a+4}, v{a+5}", f"v_cvt_pk_bf16_f32 v{o+4*qt+3}, v{a+6}, v{a+7}")
        F.add(f"s_movk_i32 {sT0}, {nt*2048}", f"buffer_store_dwordx4 {vr(o,4)}, v248, {SP}, {sT0} offen sc1", tag=('S', nt >> 1))
        F.add(f"buffer_store_dwordx4 {vr(o+4,4)}, v248, {SP}, {sT0} offen offset:1024 sc1", tag=('S', nt >> 1))
    def publish(s):
        F.add(f"v_mov_b32 v{198 + (s & 1)}, {s+1}", (('S', s),))
        F.add("s_mov_b64 exec, 1", f"global_store_dword v249, v{198 + (s & 1)}, s[100:101] sc1", "s_mov_b64 exec, -1", tag='fl')
    def gap(i, k):
        nt, r = divmod(i, 16)
        if r == 1 and nt >= 1: out_ops(nt - 1)
        if r == 1 and nt >= 4 and nt % 2 == 0 and not cfg.hack & 1: publish(nt // 2 - 2)
        if (i + 1) % 3: F.emit(1)
    e("v_mov_b32 v249, 0")
    stream(P, items, [216 + 4 * i for i in range(8)], 7, gap, group=3)
    st = (lambda i: None) if cfg.hack & 16 else (lambda i: stamp(P, cfg, i))
    st(13); out_ops(13); F.flush(); st(14); publish(5); F.flush(); st(15); publish(6); F.flush()
    if cfg.stamps:
        stamp(P, cfg, 7); e("s_waitcnt vmcnt(0)"); stamp(P, cfg, 8); stamp(P, cfg, 11, True); dump_stamps(P)
    e("s_endpgm")
    post = P.since(m1)
    m2 = P.mark()
    e("L_maxpass:")
    e("s_waitcnt vmcnt(0) lgkmcnt(0)")
    e("v_and_b32 v0, 15, v210"); e("v_lshlrev_b32 v0, 9, v0"); e("v_and_b32 v1, 1, v211"); e("v_lshl_add_u32 v0, v1, 5, v0")
    e("v_lshrrev_b32 v1, 1, v211"); e("v_lshl_add_u32 v0, v1, 4, v0")
    e(f"v_mov_b32 v{NEGM}, 0xff800000"); e(f"v_mov_b32 v{NEGM+4}, 0xff800000")
    e(f"s_mov_b32 {sT0}, 0")
    e("L_mp_loop:")
    for kk in range(8): e(f"buffer_load_dwordx4 {vr(16+4*kk,4)}, v0, {SK}, {sT0} offen offset:{kk*64}")
    e("s_waitcnt vmcnt(0)")
    for kk in range(8):
        for qt in range(2): e(f"{MF} {vr(8+4*qt,4)}, {vr(16+4*kk,4)}, {vr(128+(kk*2+qt)*4,4)}, {'0' if kk == 0 else vr(8+4*qt,4)}")
    e("s_nop 15")
    for qt in range(2):
        m = NEGM + 4 * qt; a = 8 + 4 * qt
        e(f"v_max3_f32 v{m}, v{m}, v{a}, v{a+1}"); e(f"v_max3_f32 v{m}, v{m}, v{a+2}, v{a+3}")
    e(f"s_add_u32 {sT0}, {sT0}, 8192"); e(f"s_cmp_lt_u32 {sT0}, {1<<20}"); e("s_cbranch_scc1 L_mp_loop")
    xgroup(P, "v_max_f32", f"v{NEGM}", f"v{NEGM+1}"); xgroup(P, "v_max_f32", f"v{NEGM+4}", f"v{NEGM+5}")
    for q in range(2):
        m = NEGM + 4 * q
        for i in (1, 2, 3, 0): e(f"v_sub_f32 v{m+i}, 0, v{m}")
    e("L_again:")
    e("s_waitcnt vmcnt(0) lgkmcnt(0)")
    e("v_mbcnt_lo_u32_b32 v0, -1, 0"); e("v_mbcnt_hi_u32_b32 v0, -1, v0"); e(f"s_lshl_b32 s7, {sWV}, 6"); e("v_add_u32 v0, s7, v0")
    e(f"s_mov_b32 {sMODE}, 1")
    e("s_barrier")
    e("s_branch L_restart")
    mp = P.since(m2)
    body = its[0] + its[1] + its[2] + its[3]
    trace = pro + body * 2 + its[0] + its[1] + its[2] + post
    skip = set(id(x) for x in minit)
    trace2 = [x for x in pro if id(x) not in skip] + body
    return [trace, trace2], [mp]

def poll(P, name, load, cmp, pre_issued=False):
    e = P.e
    if not pre_issued: e(load)
    e(cmp); e("s_cmp_eq_u64 vcc, -1"); e(f"s_cbranch_scc1 {name}_ok")
    m = P.mark()
    e(f"s_mov_b32 s7, {SPIN}")
    e(f"{name}_lp:")
    e("s_sleep 2")
    e(load, tag='opt'); e("s_waitcnt vmcnt(0)")
    e(cmp); e("s_cmp_eq_u64 vcc, -1"); e(f"s_cbranch_scc1 {name}_ok")
    e("s_sub_u32 s7, s7, 1"); e(f"s_cbranch_scc0 {name}_lp")
    slow = P.since(m)
    e(f"{name}_ok:")
    return slow

def rnd8(P, r, t):
    for d in range(4): P.e(f"v_cvt_pk_bf16_f32 v{t+d}, v{r+2*d}, v{r+2*d+1}")
    for d in range(4): P.e(f"v_lshlrev_b32 v{r+2*d}, 16, v{t+d}"); P.e(f"v_and_b32 v{r+2*d+1}, {sHI}, v{t+d}")

def gen_helper(P, cfg):
    e = P.e
    m0 = P.mark()
    e("L_helper:")
    e("s_setprio 2")
    F = gen_ln_qproj(P, cfg, True)
    dma_kv(F, 'V', 1, 5); dma_kv(F, 'K', 3, 3); dma_kv(F, 'V', 2, 6); F.flush()
    e(f"s_mov_b32 s73, {f2u(-LOG2E):#x}")
    lo, hi = cfg.plo, cfg.phi
    if lo != 2: e(f"s_setprio {lo}")
    P.waitvm(('V', 0), ('K', 2))
    e("s_barrier")
    GU0 = 3; ACT0 = GU0 + 28; NACT = cfg.nact; DN0 = ACT0 + NACT; GPUB = DN0 + 16; GPOLL = GPUB + 3
    slows = []
    act = []
    for t in range(7):
        regs = [112 + (t * 2 + qt) * 8 + i for qt in range(2) for i in range(4)]
        for r in regs: act.append(f"v_mul_f32 v{r}, s73, v{r}")
        for r in regs: act.append(f"v_exp_f32 v{r}, v{r}")
        for r in regs: act.append(f"v_add_f32 v{r}, 1.0, v{r}")
        for r in regs: act.append(f"v_rcp_f32 v{r}, v{r}")
        for r in regs: act.append(f"v_mul_f32 v{r}, v{r}, v{r+4}")
        for qt in range(2):
            a = 112 + (t * 2 + qt) * 8; d = ((t >> 1) * 2 + qt) * 4 + (t & 1) * 2
            act.append(f"v_cvt_pk_bf16_f32 v{d}, v{a}, v{a+1}"); act.append(f"v_cvt_pk_bf16_f32 v{d+1}, v{a+2}, v{a+3}")
    act += ["v_mov_b64 v[26:27], 0", "v_mov_b64 v[30:31], 0"]
    per_act = -(-len(act) // NACT)
    def acc_d(nt, ee, qt): return 48 + 16 * (nt & 1) + (qt * 2 + ee) * 4
    def out_ops(nt):
        o = 80 + 8 * (nt & 1)
        for qt in range(2):
            a = acc_d(nt, 0, qt)
            for i in range(4): e(f"v_cvt_pk_bf16_f32 v{o+4*qt+i}, v{a+2*i}, v{a+2*i+1}")
        e(f"s_movk_i32 {sT3}, {nt*2048}"); e(f"buffer_store_dwordx4 {vr(o,4)}, v249, {SP}, {sT3} offen sc1", tag='st')
        e(f"buffer_store_dwordx4 {vr(o+4,4)}, v249, {SP}, {sT3} offen offset:1024 sc1", tag='st')
    hb = [224 + 4 * i for i in range(4)]
    gu_items = []
    for c in range(28):
        so = (c % 4) * GLUS; T = c >> 1
        gu_items += [dict(mf=[(112 + (t * 2 + qt) * 8 + (c & 1) * 4, (2 * T + qt) * 4, '0' if T == 0 else None) for qt in range(2)],
                          reads=tr_reads('v245', so + t * 32, so + t * 32 + 3584)) for t in range(7)]
    dn_items = []
    for nt in range(14):
        so = ((28 + nt) % 4) * GLUS
        dn_items += [dict(mf=[(acc_d(nt, ee, qt), (kk * 2 + qt) * 4, '0' if kk == 0 else None) for qt in range(2)],
                          reads=tr_reads(f"v{246+ee}", so + kk * 2048, so + kk * 2048 + (1024 if kk < 3 else 0))) for kk in range(4) for ee in range(2)]
    def rd(items, i):
        if i < len(items):
            for (op, addr, imm, sub, w) in items[i]['reads']: e(f"{op} {vr(hb[i % 4]+sub, w)}, {addr} offset:{imm}")
    def burst(items, a, b):
        if hi != lo: e(f"s_setprio {hi}")
        for i in range(a, b):
            for k, (acc, bb, c) in enumerate(items[i]['mf']):
                extra = regs_of(vr(hb[(i + 1) % 4], 4)) if (k == 1 and i + 1 < b) else set()
                e(f"{MF} {vr(acc,4)}, {vr(hb[i % 4],4)}, {vr(bb,4)}, {c if c is not None else vr(acc,4)}", extra_rd=extra)
            rd(items, i + 4)
        if hi != lo: e(f"s_setprio {lo}")
    SR, SO, SF = SWQ, SWG, SWU
    for j in range(64):
        if j in (3, ACT0, DN0, DN0 + 14, 62): stamp(P, cfg, {3: 4, ACT0: 5, DN0: 6, DN0 + 14: 7, 62: 8}[j])
        if j == GPOLL - 1: e("global_load_dword v253, v252, s[68:69] sc1")
        if j == GPOLL: e(f"buffer_load_dword v253, v252, {SF}, s84 offen sc1")
        if j + 4 < 64: dma_kv(F, 'K', j + 4, j & 3)
        if j < 28: dma_gu(F, j)
        if 0 <= j + 3 - DN0 < 14: dma_wd(F, 28 + j + 3 - DN0, j + 3 - DN0)
        if j + 3 < 64: dma_kv(F, 'V', j + 3, 4 + ((j + 3) & 3))
        for nt in {56: [0], 60: [1], 61: [2, 3], 62: [4, 5], 63: [6, 7]}.get(j, []): dma_wo(F, nt, WO_SLOT[nt])
        if cfg.touch:
            if cfg.ltouch and j % 4 == 0 and j // 4 + cfg.ktr < 16:
                F.add(f"s_add_u32 {sT3}, s89, {(j//4+cfg.ktr)*65536}", f"buffer_load_dword v244, v243, {ST}, {sT3} offen", tag='touch')
            if j == 10:
                F.add(f"s_mul_i32 {sT3}, {sSH}, 6272", f"s_add_u32 {sT3}, {sT3}, s88", f"s_lshl_b32 {sT3}, {sT3}, {cfg.hx-1}", f"buffer_load_dword v244, v243, {SWD}, {sT3} offen", tag='touch')
            if j in (38, 42):
                F.add(f"s_mul_i32 {sT3}, {sSH}, 14336", f"s_add_u32 {sT3}, {sT3}, s88", f"s_add_u32 {sT3}, {sT3}, {0 if j==38 else 8192}", f"s_lshl_b32 {sT3}, {sT3}, {cfg.hx-1}", f"buffer_load_dword v244, v243, {SWO}, {sT3} offen", tag='touch')
        if j == GU0 - 1:
            for i in range(4): rd(gu_items, i)
        if GU0 <= j < ACT0: burst(gu_items, 7 * (j - GU0), 7 * (j - GU0 + 1))
        if DN0 <= j < DN0 + 14: burst(dn_items, 8 * (j - DN0), 8 * (j - DN0 + 1))
        if ACT0 <= j < DN0:
            seq = act[(j - ACT0) * per_act:(j - ACT0 + 1) * per_act]
            for i, t in enumerate(seq):
                if i % 6 == 0: F.emit()
                e(t)
            if j == DN0 - 1:
                for i in range(4): rd(dn_items, i)
        if j == GPOLL - 2:
            e(f"s_lshr_b32 s7, {sHEAD}, 2"); e(f"s_mul_i32 {sT3}, s7, 28672"); e(f"s_mul_i32 {sT2}, {sQB}, {16*114688}"); e(f"s_add_u32 {sT3}, {sT3}, {sT2}")
            e(f"s_and_b32 {sT2}, {sHEAD}, 3"); e(f"s_lshl_b32 {sT2}, {sT2}, 10"); e(f"s_add_u32 {sT3}, {sT3}, {sT2}"); e(f"s_add_u32 {sT3}, {sT3}, {sL1K}")
            e(f"s_add_u32 s{srd(3)}, s70, {sT3}"); e(f"s_addc_u32 s{srd(3)+1}, s71, 0"); e(f"s_mov_b32 s{srd(3)+2}, {GP_OFF + 16*114688}")
            e(f"s_mov_b32 s{srd(5)}, s66"); e(f"s_mov_b32 s{srd(5)+1}, s67"); e(f"s_mov_b32 s{srd(5)+2}, {2048*896}")
            e(f"s_lshl_b32 {sT2}, {sQB}, 2"); e(f"s_add_u32 s7, s7, {sT2}")
            e(f"s_lshl_b32 {sT2}, s7, 7"); e(f"s_add_u32 {sT2}, {sT2}, {FL_OFF}")
            e(f"s_add_u32 s{srd(6)}, s70, {sT2}"); e(f"s_addc_u32 s{srd(6)+1}, s71, 0"); e(f"s_mov_b32 s{srd(6)+2}, 0x10040"); e("s_mov_b32 s84, 0x10000")
            e("s_lshl_b32 s7, s7, 1"); e(f"s_and_b32 {sT2}, {sHEAD}, 1"); e(f"s_add_u32 s7, s7, {sT2}"); e(f"s_mul_i32 s86, s7, {16*896}")
            e(f"s_lshl_b32 {sT2}, {sSUB}, 7"); e(f"s_add_u32 s86, s86, {sT2}"); e(f"s_bfe_u32 {sT2}, {sHEAD}, 0x10001"); e(f"s_lshl_b32 {sT2}, {sT2}, 6"); e(f"s_add_u32 s86, s86, {sT2}")
            F.emit(4)
            e("v_and_b32 v224, 15, v255"); e("v_lshrrev_b32 v225, 4, v255")
            e("v_mul_u32_u24 v251, 896, v224"); e("v_lshl_add_u32 v251, v225, 4, v251")
            e(f"s_lshl_b32 s7, {sQB}, 4"); e("v_mov_b32 v252, s7")
            e("v_bfe_u32 v226, v224, 2, 1"); e("v_lshlrev_b32 v226, 3, v226")
            e("v_lshrrev_b32 v227, 3, v224"); e("v_lshl_add_u32 v226, v227, 1, v226")
            e("v_bfe_u32 v227, v224, 1, 1"); e("v_add_u32 v226, v226, v227")
            e("v_lshlrev_b32 v227, 2, v225"); e("v_sub_u32 v226, v226, v227")
            e("v_and_b32 v227, 1, v224"); e("v_lshlrev_b32 v227, 4, v227"); e("v_mov_b32 v228, 0x3f80"); e("v_lshlrev_b32 v227, v227, v228")
            for ee in range(2):
                for i in range(4):
                    e(f"v_cmp_eq_u32 vcc, {i - 4 * ee}, v226"); e(f"v_cndmask_b32 v{192+4*ee+i}, 0, v227, vcc")
        F.flush()
        if DN0 + 1 <= j <= DN0 + 14: out_ops(j - DN0 - 1)
        if j == GPUB:
            e("v_mov_b32 v0, 0"); e("v_mov_b32 v1, 1"); P.waitvm('st')
            e("s_mov_b64 exec, 1"); e("global_store_dword v0, v1, s[100:101] sc1", tag='fl'); e("s_mov_b64 exec, -1")
        if j == GPOLL - 1:
            slows.append(poll(P, "L_pa", "global_load_dword v253, v252, s[68:69] sc1", "v_cmp_le_u32 vcc, 16, v253", True))
            e("v_lshlrev_b32 v252, 2, v224")
        if j == GPOLL:
            slows.append(poll(P, "L_pg", f"buffer_load_dword v253, v252, {SF}, s84 offen sc1", "v_cmp_le_u32 vcc, 1, v253", True))
        if GPOLL + 1 <= j <= GPOLL + 4:
            k = j - GPOLL - 1; r = k >> 1
            for h in range(8 * (k & 1), 8 * (k & 1) + 8):
                e(f"s_mov_b32 {sT3}, {GP_OFF + h*114688 + r*16384}")
                e(f"buffer_load_dwordx4 {vr(64*r+4*h,4)}, v249, {SR}, {sT3} offen sc1")
            if k & 1: e(f"buffer_load_dwordx4 {vr(216+4*r,4)}, v251, {SX}, s86 offen offset:{r*512}")
        if j == cfg.pe: stamp(P, cfg, 13)
        if j < 63:
            need = [('K', j + 3), ('V', j + 1), ('G', j - 1)]
            if 0 <= j + 2 - DN0 < 14: need.append(('G', 28 + j + 2 - DN0))
        else:
            need = [('WO', 0), ('WO', 1)]
            e(f"v_mov_b32 v128, {FLAG}")
        P.waitvm(*need)
        if j == cfg.pe: stamp(P, cfg, 14)
        e("s_barrier")
        if j == cfg.pe - 1: stamp(P, cfg, 9)
        if j == cfg.pe: stamp(P, cfg, 15)
    e("ds_read_b32 v129, v128")
    after = {0: [8], 1: [9], 2: [10, 11], 3: [12, 13]}
    for k in range(4):
        for nt in after[k]: dma_wo(F, nt, WO_SLOT[nt])
        F.flush()
        if k == 0:
            e("v_readfirstlane_b32 s7, v129")
            e(f"s_andn2_b32 s7, s7, {sMODE}"); e("s_cbranch_scc1 L_again")
        P.waitvm(*[('WO', t) for t in (range(2 * k + 2, 2 * k + 4) if k < 3 else range(8, 14))])
        e("s_barrier")
    e("s_setprio 0")
    if cfg.hack & 4: e("s_branch L_hdone")
    def msum(acc, src):
        for h in range(16):
            for ee in range(2): e(f"{MF} {vr(acc+4*ee,4)}, {vr(192+4*ee,4)}, {vr(src+4*h,4)}, {'0' if h == 0 else vr(acc+4*ee,4)}")
    msum(200, 0); msum(208, 64)
    for r in range(2):
        a = 200 + 8 * r
        rnd8(P, a, 224)
        for i in range(8): e(f"v_mul_f32 v{224+i}, s73, v{a+i}")
        for i in range(8): e(f"v_exp_f32 v{224+i}, v{224+i}")
        for i in range(8): e(f"v_add_f32 v{224+i}, 1.0, v{224+i}")
        for i in range(8): e(f"v_rcp_f32 v{224+i}, v{224+i}")
        for i in range(8): e(f"v_mul_f32 v{a+i}, v{a+i}, v{224+i}")
        rnd8(P, a, 224)
    for r in range(2):
        if r == 1: e(f"s_cmp_eq_u32 {sSUB}, 3"); e("s_cbranch_scc1 L_hdone")
        e(f"s_add_u32 s84, {sSUB}, {1 + 4*r}")
        slows.append(poll(P, f"L_ps{r}", f"buffer_load_dword v253, v252, {SF}, 0 offen sc1", "v_cmp_le_u32 vcc, s84, v253"))
        for h in range(16):
            e(f"s_mov_b32 {sT3}, {h*114688 + r*16384}")
            e(f"buffer_load_dwordx4 {vr(64*r+4*h,4)}, v249, {SR}, {sT3} offen sc1")
        a = 128 + 24 * r
        for d in range(4): e(f"v_lshlrev_b32 v{a+8+2*d}, 16, v{216+4*r+d}"); e(f"v_and_b32 v{a+9+2*d}, {sHI}, v{216+4*r+d}")
        msum(a, 64 * r)
        rnd8(P, a, 224)
        for i in range(8): e(f"v_mul_f32 v{a+i}, v{a+i}, v{200+8*r+i}")
        rnd8(P, a, 224)
        for i in range(8): e(f"v_add_f32 v{a+i}, v{a+i}, v{a+8+i}")
        for d in range(4): e(f"v_cvt_pk_bf16_f32 v{a+16+d}, v{a+2*d}, v{a+2*d+1}")
        e(f"buffer_store_dwordx4 {vr(a+16,4)}, v251, {SO}, s86 offen offset:{r*512}")
    e("L_hdone:")
    if cfg.stamps:
        e("s_waitcnt vmcnt(0)"); stamp(P, cfg, 11, True); dump_stamps(P)
    e("s_endpgm")
    sk = set(id(x) for s in slows for x in s)
    return [x for x in P.since(m0) if id(x) not in sk], slows

def kd(name, vgpr, ydim=False):
    return "\n".join([f".amdhsa_kernel {name}", f"  .amdhsa_next_free_vgpr {vgpr}", "  .amdhsa_next_free_sgpr 102",
        f"  .amdhsa_accum_offset {vgpr}", "  .amdhsa_group_segment_fixed_size 0", "  .amdhsa_kernarg_size 96",
        "  .amdhsa_user_sgpr_count 2", "  .amdhsa_user_sgpr_kernarg_segment_ptr 1", "  .amdhsa_system_sgpr_workgroup_id_x 1"]
        + (["  .amdhsa_system_sgpr_workgroup_id_y 1"] if ydim else []) + [".end_amdhsa_kernel"])

def generate(cfg=None):
    cfg = cfg or Cfg()
    global FIXED, WAITS, PLACE
    FIXED, WAITS, PLACE = sched.plan(wait_group=cfg.wg)
    P = Prog()
    K1 = NAME + "_kernel"
    P.e(".p2align 8"); P.e(f"{K1}:")
    m = P.mark(); gen_entry(P, cfg); entry = P.since(m)
    ctraces, other = gen_compute(P, cfg)
    htrace, hother = gen_helper(P, cfg)
    P.e("L_end:"); P.e("s_endpgm")
    P.e("L_code_end:")
    full = [entry + t for t in ctraces] + [entry + htrace]
    resolve(full + [[x for x in t if x.tag != 'opt'] for t in full] + other + hother)
    nb = lambda t: sum(1 for x in t if x.kind != 'none' and x.op == 's_barrier')
    print("barriers compute", nb(ctraces[0]) + 13 * 4, "helper", nb(htrace))
    if cfg.hack & 2:
        for I in P.L:
            if I.text.startswith("buffer_store_dwordx4"): I.text = I.text.replace(" sc1", "")
    if cfg.hack & 8:
        for I in P.L:
            if I.text.startswith("buffer_store_dwordx4"): I.text = I.text.replace(" sc1", " sc0 sc1")
    out = expand(P.L)
    mis = align8(out)
    head = [f"; @launch grid=(256,1,1) block=(512,1,1) lds={LDS_BYTES}",
            '.amdgcn_target "amdgcn-amd-amdhsa--gfx950"', ".text",
            f".globl {K1}", f".type {K1},@function"]
    span = 0
    for I in out:
        if I.text == "L_code_end:": break
        if I.text.startswith(".p2align"):
            a = 1 << int(I.text.split()[1]); span = -(-span // a) * a
        span += I.size()
    body = [I.text.replace("CODE_SPAN", str((span - 128) & ~3)) for I in out]
    print("code bytes K1", span)
    tail = ['.section .rodata,"a"', ".p2align 6", kd(K1, 256)]
    return "\n".join(head + body + tail) + "\n", mis

if __name__ == "__main__":
    cfg = Cfg()
    for a in sys.argv[2:]:
        k, v = a.split('='); setattr(cfg, k, float(v) if k == 'thr' else int(v))
    s, mis = generate(cfg)
    open(sys.argv[1], "w").write(s)
    print("bytes", len(s), "lines", s.count("\n"), "misaligned", mis)
```

```python
import re

_RNG = re.compile(r'^-?\|?(?:abs\()?([vsa])\[(\d+):(\d+)\]')
_ONE = re.compile(r'^-?\|?(?:abs\()?([vsa])(\d+)\b')
TRANS = ('v_exp_f32', 'v_log_f32', 'v_rcp_f32', 'v_rsq_f32', 'v_sqrt_f32', 'v_sin_f32', 'v_cos_f32')

def regs_of(tok):
    tok = tok.strip()
    m = _RNG.match(tok)
    if m: return {f"{m.group(1)}{i}" for i in range(int(m.group(2)), int(m.group(3)) + 1)}
    m = _ONE.match(tok)
    if m: return {f"{m.group(1)}{m.group(2)}"}
    if tok in ('vcc', 'exec', 'm0'): return {tok}
    if tok in ('vcc_lo', 'vcc_hi'): return {'vcc'}
    if tok in ('exec_lo', 'exec_hi'): return {'exec'}
    return set()

_INL_F = {'0.5', '-0.5', '1.0', '-1.0', '2.0', '-2.0', '4.0', '-4.0'}
def is_literal(tok):
    tok = tok.strip()
    if regs_of(tok) or tok in _INL_F or tok in ('off', 'scc', 'null'): return False
    try:
        v = int(tok, 0)
        return not (-16 <= v <= 64)
    except ValueError:
        pass
    try:
        float(tok); return True
    except ValueError:
        return True

VOP3_ONLY = ('v_fma_f32', 'v_max3_f32', 'v_min3_f32', 'v_med3_f32', 'v_cvt_pk_bf16_f32', 'v_mul_lo_u32', 'v_mul_hi_u32', 'v_bfe_u32',
             'v_lshl_add_u32', 'v_add_lshl_u32', 'v_add3_u32', 'v_and_or_b32', 'v_or3_b32', 'v_lshl_or_b32', 'v_mad_u32_u24', 'v_perm_b32', 'v_bfi_b32',
             'v_readlane_b32', 'v_writelane_b32', 'v_mbcnt_lo_u32_b32', 'v_mbcnt_hi_u32_b32', 'v_dot2_f32_bf16', 'v_alignbit_b32', 'v_lshlrev_b64')

class Ins:
    def __init__(self, text, tag=None, extra_rd=None, tags=None):
        self.text = text.strip()
        self.tag = tag
        self.tags = tags
        self.extra_rd = set(extra_rd or ())
        self.pre_nop = 0
        self.pre_lgkm = None
        self.pre_vm = None
        self.vmN = None
        self.label = self.text.endswith(':')
        self.raw = self.text.startswith('.') or self.text.startswith(';')
        self.rd = set(); self.wr = set(); self.kind = 'other'; self.srcc = set(); self.ab = set()
        if self.label or self.raw: self.kind = 'none'; self.op = ''; return
        sp = self.text.split(None, 1)
        op = sp[0]; self.op = op
        base = op.replace('_e32', '').replace('_e64', '')
        self.base = base
        rest = sp[1] if len(sp) > 1 else ''
        toks = [t.strip() for t in rest.split(',')] if rest else []
        mods = ''
        if toks:
            last = toks[-1].split(None, 1)
            toks[-1] = last[0]
            mods = last[1] if len(last) > 1 else ''
        self.toks = toks; self.mods = mods
        R = [regs_of(t) for t in toks]
        allr = set().union(*R) if R else set()
        if op == 'WAITVM': self.kind = 'waitvm'
        elif op.startswith('v_mfma'):
            self.kind = 'mfma'; self.wr = R[0]; self.ab = R[1] | R[2]; self.srcc = R[3]; self.rd = self.ab | self.srcc
        elif op.startswith('v_'):
            self.kind = 'valu'
            self.wr = set(R[0]); self.rd = set().union(*R[1:]) if len(R) > 1 else set()
            if base.startswith(('v_fmac', 'v_dot2c', 'v_pk_fmac')): self.rd |= R[0]
            if base.startswith('v_permlane'): self.rd |= R[0]; self.wr |= R[1]
            if base.startswith(('v_add_co', 'v_sub_co', 'v_addc_co')): self.wr |= R[1]
            if base.startswith('v_cmpx'): self.wr |= {'exec'}
        elif op.startswith('ds_read') or op.startswith('ds_bpermute') or op.startswith('ds_swizzle'):
            self.kind = 'ds'; self.wr = R[0]; self.rd = set().union(*R[1:])
        elif op.startswith('ds_'):
            self.kind = 'ds'; self.rd = allr
        elif op.startswith(('buffer_load', 'global_load')):
            self.kind = 'vmem'
            if re.search(r'\blds\b', mods) or 'load_lds' in op: self.rd = allr | {'m0'}; self.dma = True
            else: self.wr = R[0]; self.rd = set().union(*R[1:])
        elif op.startswith(('buffer_', 'global_')):
            self.kind = 'vmem'; self.rd = allr
            if 'atomic' in op and re.search(r'\bsc0\b', mods):
                self.wr = R[0]
        elif op.startswith('s_load') or op.startswith('s_memtime') or op.startswith('s_memrealtime'):
            self.kind = 'smem'; self.wr = R[0]; self.rd = set().union(*R[1:]) if len(R) > 1 else set()
        elif op in ('s_waitcnt', 's_nop', 's_barrier', 's_setprio', 's_sleep', 's_endpgm', 's_branch') or op.startswith('s_cbranch'):
            self.kind = 'sopp'
        elif op.startswith('s_cmp') or op.startswith('s_bitcmp'):
            self.kind = 'salu'; self.rd = allr
        elif op.startswith('s_'):
            self.kind = 'salu'; self.wr = set(R[0]) if R else set(); self.rd = set().union(*R[1:]) if len(R) > 1 else set()
            if 'saveexec' in op: self.wr |= {'exec'}; self.rd |= {'exec'}
        else:
            raise ValueError(text)
    def size(self):
        k = self.kind
        if k in ('none',): return 0
        if k == 'waitvm': return 0 if self.vmN is None else 4
        if k in ('mfma', 'ds', 'vmem', 'smem'): return 8
        if k == 'sopp': return 4
        if k == 'salu':
            if self.op.startswith(('s_movk', 's_addk', 's_mulk', 's_cmpk', 's_getreg')): return 4
            return 8 if any(is_literal(t) for t in self.toks) else 4
        if k == 'valu':
            if self.op.endswith('_e64') or self.base in VOP3_ONLY or self.base.startswith('v_pk_') or 'dpp' in self.op or 'sdwa' in self.op: return 8
            if self.mods: return 8
            if any(t.startswith('-') and regs_of(t) for t in self.toks) or any('abs(' in t or t.startswith('|') for t in self.toks): return 8
            if any(is_literal(t) for t in self.toks[1:]): return 8
            if self.base.startswith('v_cmp') and self.toks[0] != 'vcc': return 8
            if self.base.startswith('v_cndmask') and self.toks[-1] != 'vcc': return 8
            if len(self.toks) >= 3 and not self.base.startswith(('v_cmp',)) and not self.toks[2].startswith('v') : return 8
            if self.base.startswith('v_cmp') and not self.toks[2].startswith('v'): return 8
            return 4
        raise ValueError(self.text)
    def promotable(self):
        return self.kind == 'valu' and self.size() == 4 and not self.base.startswith(('v_readfirstlane', 'v_permlane', 'v_dot2c', 'v_nop', 'v_accvgpr'))
    def states(self):
        if self.kind == 'none': return 0
        if self.kind == 'waitvm': return 0 if self.vmN is None else 1
        if self.op == 's_nop': return int(self.toks[0], 0) + 1
        return 1

def need_states(p, c):
    n = 0
    pv = {r for r in p.wr if r[0] in 'va' and r != 'vcc'}
    ps = {r for r in p.wr if (r[0] == 's' and r != 'stage') or r == 'vcc'}
    if p.kind == 'mfma':
        small = '16x16' in p.op
        full, ovl, war = (8, 6, 3) if small else (12, 10, 7)
        if c.kind == 'mfma':
            if pv & c.ab: n = max(n, full)
            if pv & c.srcc and not (c.srcc == p.wr and c.op == p.op): n = max(n, ovl)
            if pv & c.wr and not (c.wr == p.wr): n = max(n, ovl)
        elif c.kind in ('valu', 'ds', 'vmem'):
            if pv & (c.rd | c.wr): n = max(n, full)
            if c.kind == 'valu' and (p.srcc & c.wr): n = max(n, war)
    elif p.kind == 'valu':
        if c.kind == 'mfma' and pv & c.rd: n = max(n, 2)
        if c.kind == 'mfma' and 'exec' in p.wr: n = max(n, 4)
        if c.kind == 'valu':
            if p.base in TRANS and pv & c.rd and c.base not in TRANS: n = max(n, 1)
            if p.base in TRANS and pv & c.rd: n = max(n, 1)
            if c.base.startswith('v_permlane') and pv & c.rd: n = max(n, 2)
            if 'dpp' in c.op and pv & c.rd: n = max(n, 2)
            if c.base.startswith(('v_readlane', 'v_readfirstlane')) and pv & c.rd: n = max(n, 1)
            if ps & c.rd: n = max(n, 4 if c.base.startswith(('v_readlane', 'v_writelane')) else 2)
            if p.base.startswith('v_dot') and pv & (c.rd | c.wr):
                if not (c.base == p.base and not (pv & set().union(*[regs_of(t) for t in c.toks[1:3]]))): n = max(n, 3)
            if 'sdwa' in p.op and pv & (c.rd | c.wr): n = max(n, 1)
        if c.kind in ('mfma', 'ds', 'vmem') and p.base.startswith('v_dot') and pv & (c.rd | c.wr): n = max(n, 3)
        if c.kind == 'vmem' and ps & c.rd: n = max(n, 5)
        if c.kind in ('ds', 'vmem') and p.base in TRANS and pv & c.rd: n = max(n, 1)
    elif p.kind == 'salu':
        if 'm0' in p.wr and c.kind == 'vmem' and 'm0' in c.rd: n = max(n, 1)
    elif p.kind == 'vmem':
        if ('store' in p.op) and p.op.endswith(('x3', 'x4')):
            data = regs_of(p.toks[0]) if p.op.startswith('buffer') else regs_of(p.toks[1])
            if data & c.wr: n = max(n, 2)
    return n

def simulate(trace):
    changed = False
    lg = []
    vm = []
    hist = []
    pos = 0
    for I in trace:
        if I.kind == 'none': continue
        touched = I.rd | (I.wr - {'stage'}) | I.extra_rd
        k = -1
        for idx, o in enumerate(lg):
            if o.wr & touched: k = idx
        if k >= 0:
            N = min(len(lg) - 1 - k, 15)
            if I.pre_lgkm is None or N < I.pre_lgkm: I.pre_lgkm = N; changed = True
        if I.pre_lgkm is not None and len(lg) > I.pre_lgkm: lg = lg[len(lg) - I.pre_lgkm:] if I.pre_lgkm else []
        k = -1
        for idx, o in enumerate(vm):
            if o.wr & touched and I.tag not in ('touch', 'code'): k = idx
        if k >= 0:
            N = min(len(vm) - 1 - k, 63)
            if I.pre_vm is None or N < I.pre_vm: I.pre_vm = N; changed = True
        if I.pre_vm is not None and len(vm) > I.pre_vm: vm = vm[len(vm) - I.pre_vm:] if I.pre_vm else []
        if I.pre_lgkm is not None or I.pre_vm is not None: pos += 1
        if I.kind == 'waitvm':
            k = -1
            for idx, o in enumerate(vm):
                if o.tag in I.tags: k = idx
            if k >= 0:
                N = min(len(vm) - 1 - k, 63)
                if I.vmN is None or N < I.vmN: I.vmN = N; changed = True
            if I.vmN is not None and len(vm) > I.vmN: vm = vm[len(vm) - I.vmN:] if I.vmN else []
            pos += I.states()
            continue
        if I.op == 's_waitcnt':
            m = re.search(r'lgkmcnt\((\d+)\)', I.text)
            if m:
                n = int(m.group(1))
                if len(lg) > n: lg = lg[len(lg) - n:] if n else []
            m = re.search(r'vmcnt\((\d+)\)', I.text)
            if m:
                n = int(m.group(1))
                if len(vm) > n: vm = vm[len(vm) - n:] if n else []
        need = 0
        for (p, ppos) in hist:
            req = need_states(p, I)
            if req:
                have = pos - ppos
                if have < req: need = max(need, req - have)
        if need > I.pre_nop: I.pre_nop = need; changed = True
        pos += I.pre_nop
        if I.kind == 'ds': lg.append(I)
        if I.kind == 'vmem': vm.append(I)
        pos += I.states()
        hist.append((I, pos))
        if len(hist) > 24: hist.pop(0)
    return changed

def resolve(traces):
    for _ in range(20):
        ch = False
        for t in traces: ch |= simulate(t)
        if not ch: return
    raise RuntimeError("no fixpoint")

def expand(prog):
    out = []
    for I in prog:
        if I.kind != 'none':
            w = []
            if I.pre_vm is not None: w.append(f"vmcnt({I.pre_vm})")
            if I.pre_lgkm is not None: w.append(f"lgkmcnt({I.pre_lgkm})")
            if w: out.append(Ins("s_waitcnt " + " ".join(w)))
            n = I.pre_nop
            while n > 0:
                k = min(n, 16); out.append(Ins(f"s_nop {k-1}")); n -= k
        if I.kind == 'waitvm':
            if I.vmN is not None: out.append(Ins(f"s_waitcnt vmcnt({I.vmN})"))
            continue
        out.append(I)
    return out

def align8(prog):
    off = 0; run = []; mis = 0; prev8 = None; ins = []
    for idx, I in enumerate(prog):
        if I.kind == 'none':
            if I.text.startswith('.p2align'): off = 0; run = []
            continue
        s = I.size()
        if s == 4:
            run.append(I); off += 4
        else:
            if off % 8:
                cand = [x for x in run if x.promotable()]
                start = off - 4 * len(run)
                ok = [x for i, x in enumerate(run) if x.promotable() and (start + 4 * i) % 8 == 0]
                pick = ok[-1] if ok else (cand[-1] if cand else None)
                if pick is not None:
                    pick.op = pick.base + '_e64'
                    pick.text = pick.op + ' ' + pick.text.split(None, 1)[1]
                    off += 4
                elif I.kind == 'mfma' and prev8 is not None and prev8.kind == 'mfma' and len(run) <= 1 and not (run and run[0].op in ('s_nop', 's_barrier')):
                    ins.append(idx); off += 4
                else:
                    mis += 1
            run = []; off += 8; prev8 = I
    for idx in reversed(ins): prog.insert(idx, Ins("s_nop 0"))
    return mis

class Prog:
    def __init__(self): self.L = []
    def e(self, text, **kw):
        I = Ins(text, **kw); self.L.append(I); return I
    def waitvm(self, *tags):
        I = Ins("WAITVM", tags=set(tags)); self.L.append(I); return I
    def mark(self): return len(self.L)
    def since(self, m): return self.L[m:]
```

```python
import struct, sys
from asmlib import *
import sched

NAME = "recurrent_scan__mha_block_cached__glu_gated_glu__prompt"
def f2u(x): return struct.unpack('<I', struct.pack('<f', x))[0]
LOG2E = 1.4426950408889634
SLOT = 16896
GLUB = 8 * SLOT
GLUS = 7168
FLAG = GLUB - 32
LDS_BYTES = GLUB + 4 * GLUS
GP_OFF = 0x2000000
FL_OFF = 0x4000000
SPIN = 400000

sHEAD, sQB, sWV, sSUB = 's3', 's4', 's5', 's6'
SX, SK, SV, SWQ, SWO, SWG, SWU, SWD, SP, ST = [f"s[{8+4*i}:{11+4*i}]" for i in range(10)]
sC = 's72'; sHI = 's74'; sTRIP = 's75'
sLK, sLV, sL1K = 's76', 's77', 's78'
sMODE = 's79'
sSH = 's91'
sT0, sT1, sT2, sT3 = 's80', 's81', 's82', 's83'
sKO, sVO = 's96', 's97'
def srd(i): return 8 + 4 * i
def vr(a, n): return f"v[{a}:{a+n-1}]"
MF = "v_mfma_f32_16x16x32_bf16"
TR = "ds_read_b64_tr_b16"

class Cfg:
    glu = 1
    touch = 1
    prio = 2
    stamps = 0
    thr = 2.0 ** 64
    wq_at = 29
    xpar = 0
    pe = 20
    hack = 0
    plo = 0
    hx = 1
    t_at = 27
    ktr = 2
    klead = 6
    gtouch = 1
    tq0 = 8
    phi = 2
    nact = 4
    pep = 0
    pd = 2
    lastb = 9
    pubr = 29
    xat = 157
    ssp = 8
    fo = 1
    sn = -1
    wot = 53
    pl = 4
    slp = 8
    wg = 3
    ltouch = 1
    etouch = 1

def stream(P, items, bufs, lead, gapfill=None, group=2, start=None):
    n = len(items)
    buf = [bufs[i % len(bufs)] for i in range(n)]
    def reads(i):
        it = items[i]
        if it.get('hook'): it['hook']()
        for (op, addr, imm, sub, w) in it['reads']:
            P.e(f"{op} {vr(buf[i]+sub, w)}, {addr} offset:{imm}")
    for i in range(min(lead, n)): reads(i)
    if start: start()
    for i in range(n):
        it = items[i]
        for k, (acc, b, c) in enumerate(it['mf']):
            extra = set()
            if group and k == len(it['mf']) - 1 and (i + 1) % group == 0:
                for z in range(1, group + 1):
                    if i + z < n: extra |= regs_of(vr(buf[i+z], 4))
            P.e(f"{MF} {vr(acc,4)}, {vr(buf[i],4)}, {vr(b,4)}, {c if c is not None else vr(acc,4)}", extra_rd=extra)
            if k == len(it['mf']) - 1 and i + lead < n: reads(i + lead)
            elif gapfill: gapfill(i, k)

def tr_reads(addr, imm0, imm1): return [(TR, addr, imm0, 0, 2), (TR, addr, imm1, 2, 2)]

class Filler:
    def __init__(self, P): self.P = P; self.q = []
    def add(self, *texts, **kw): self.q.append((texts, kw))
    def emit(self, k=1):
        for _ in range(k):
            if not self.q: return
            texts, kw = self.q.pop(0)
            for t in texts:
                if isinstance(t, tuple): self.P.waitvm(*t)
                elif t.startswith(('buffer_', 'global_')): self.P.e(t, **kw)
                else: self.P.e(t)
    def flush(self): self.emit(len(self.q))
    def wait(self, *tags):
        assert not any(kw.get('tag') in tags for _, kw in self.q), tags
        self.P.waitvm(*tags)

def dma_kv(F, which, tile, slot):
    sr, sl, so = (SK, sLK, sKO) if which == 'K' else (SV, sLV, sVO)
    ld = lambda off: f"buffer_load_dwordx4 v240, {sr}, {so} offen" + (f" offset:{off}" if off else "") + " lds"
    tag = (which, tile)
    F.add(f"s_add_u32 m0, {sl}, {slot*SLOT}", f"s_addk_i32 {so}, 8192", ld(0), tag=tag)
    F.add("s_addk_i32 m0, 32", ld(1024), tag=tag)
    F.add(f"s_addk_i32 m0, {8448-32}", f"s_addk_i32 {so}, 8192", ld(0), tag=tag)
    F.add("s_addk_i32 m0, 32", ld(1024), tag=tag)
def dma_wq(F, tile, slot):
    ld = f"buffer_load_dwordx4 v248, {SWQ}, {sT0} offen lds"
    tag = ('WQ', tile)
    F.add(f"s_add_u32 m0, {sLV}, {slot*SLOT}", f"s_mov_b32 {sT0}, {32*tile*8192}", ld, tag=tag)
    for d in (1056, 7392, 1056):
        F.add(f"s_addk_i32 m0, {d}", f"s_addk_i32 {sT0}, 16384", ld, tag=tag)
def dma_wo(F, t, slot):
    ld = f"buffer_load_dwordx4 v248, {SWO}, {sT0} offen lds"
    tag = ('WO', t)
    F.add(f"s_add_u32 m0, {sL1K}, {slot*SLOT}", f"s_add_u32 {sT0}, s87, {(t & 1)*128*896 + (t >> 1)*128}", ld, tag=tag)
    for p in range(3): F.add("s_addk_i32 m0, 1024", f"s_addk_i32 {sT0}, {8*896}", ld, tag=tag)
def dma_gu(F, c):
    base = GLUB + (c % 4) * GLUS
    ld = f"buffer_load_dwordx4 v241, {SWU if c & 1 else SWG}, {sT2} offen lds"
    F.add("s_mov_b32 exec_hi, 0xffffff", f"s_add_u32 m0, s86, {base}", f"s_mov_b32 {sT2}, {32*(c>>1)*3584}", ld,
          "s_addk_i32 m0, 3584", f"s_addk_i32 {sT2}, {4*3584}", ld, "s_mov_b32 exec_hi, -1", tag=('G', c))
def dma_wd(F, c, nt):
    base = GLUB + (c % 4) * GLUS
    ld = f"buffer_load_dwordx4 v242, {SWD}, {sT2} offen lds"
    F.add(f"s_add_u32 m0, s88, {base}", f"s_add_u32 {sT2}, s87, {nt*64}", ld, tag=('G', c))
    F.add("s_add_u32 m0, m0, s98", f"s_add_u32 {sT2}, {sT2}, s99", ld, tag=('G', c))

WQ_SLOT = {0: 7, 1: 8, 2: 5, 3: 3, 4: 6, 5: 4, 6: 0, 7: 1, 8: 2, 9: 7, 10: 8, 11: 5, 12: 3, 13: 6}
WO_SLOT = {0: 8, 1: 0, 2: 1, 3: 4, 4: 2, 5: 5, 6: 3, 7: 6, 8: 7, 9: 8, 10: 0, 11: 1, 12: 4, 13: 2}

def streg(idx): return {0: 's94', 10: 's95'}.get(idx, f"s{48+idx}") if not H32 else f"s{48+idx}"
H32 = False
def stamp(P, cfg, idx, real=False):
    if not cfg.stamps: return
    P.e(f"{'s_memrealtime' if real else 's_memtime'} s[64:65]"); P.e("s_waitcnt lgkmcnt(0)")
    P.e(f"s_mov_b32 {streg(idx)}, s64")
def dump_stamps(P):
    e = P.e
    global H32
    H32 = bool(CFG.hack & 32)
    for i in range(16): e(f"v_writelane_b32 v254, {streg(i)}, {i}")
    e(f"s_lshl_b32 s7, s2, 3"); e(f"s_add_u32 s7, s7, {sWV}"); e("s_lshl_b32 s7, s7, 8"); e("s_add_u32 s7, s7, 0x8000000")
    e("s_add_u32 s92, s70, s7"); e("s_addc_u32 s93, s71, 0")
    e("v_mbcnt_lo_u32_b32 v255, -1, 0"); e("v_mbcnt_hi_u32_b32 v255, -1, v255"); e("v_lshlrev_b32 v255, 2, v255")
    e("global_store_dword v255, v254, s[92:93]")

def mad(P, dst, src, mul, acc=None):
    P.e(f"s_movk_i32 s7, {mul}" if mul < 32768 else f"s_mov_b32 s7, {mul}")
    if acc is None: P.e(f"v_mul_u32_u24 {dst}, s7, {src}")
    else: P.e(f"v_mad_u32_u24 {dst}, {src}, s7, {acc}")

def gen_entry(P, cfg):
    e = P.e
    e("s_cmp_ge_u32 s2, 256"); e("s_cbranch_scc1 L_end")
    e(f"s_mov_b32 {sMODE}, 0")
    e("L_restart:")
    stamp(P, cfg, 0); stamp(P, cfg, 10, True)
    e("s_load_dwordx16 s[48:63], s[0:1], 0"); e("s_load_dwordx8 s[64:71], s[0:1], 64")
    e("s_getpc_b64 s[92:93]")
    e("v_lshrrev_b32 v1, 6, v0")
    e("v_and_b32 v255, 63, v0")
    e(f"v_readfirstlane_b32 {sWV}, v1")
    hx = cfg.hx; lm = hx - 1; M = 1 << lm
    e(f"s_and_b32 {sHEAD}, s2, {(16 >> hx) - 1}"); e(f"s_lshl_b32 {sHEAD}, {sHEAD}, {hx}"); e(f"s_bfe_u32 s7, s2, {(hx << 16) | 3:#x}"); e(f"s_add_u32 {sHEAD}, {sHEAD}, s7")
    e(f"s_lshr_b32 {sSH}, s2, {3 + hx}")
    if hx > 1: e(f"s_bfe_u32 s7, s2, {(lm << 16) | (4 - hx):#x}"); e(f"s_lshl_b32 s7, s7, {5 - hx}"); e(f"s_add_u32 {sQB}, {sSH}, s7")
    else: e(f"s_mov_b32 {sQB}, {sSH}")
    e(f"s_and_b32 {sSUB}, {sWV}, 3")
    e("s_mov_b32 s11, 0x20000"); e(f"s_mov_b32 s10, {2048*896}")
    e("v_lshrrev_b32 v186, 3, v255"); e("v_and_b32 v185, 7, v255"); e("v_lshlrev_b32 v184, 4, v185"); mad(P, 'v184', 'v186', 896, 'v184')
    e(f"s_lshl_b32 s84, {sSUB}, 1"); e(f"s_lshr_b32 s7, {sWV}, 2")
    if cfg.xpar: e(f"s_xor_b32 s7, s7, {sHEAD}"); e("s_and_b32 s7, s7, 1")
    e("s_add_u32 s84, s84, s7")
    e(f"s_lshl_b32 s7, {sQB}, 3"); e("s_add_u32 s7, s7, s84"); e(f"s_mul_i32 {sT0}, s7, {16*896}")
    e("s_waitcnt lgkmcnt(0)")
    if cfg.hack & 16: e("s_memtime s[98:99]")
    e("s_mov_b32 s8, s48"); e("s_mov_b32 s9, s49")
    e(f"s_add_u32 {sT1}, {sT0}, {8*896}")
    for kp in range(7): e(f"buffer_load_dwordx4 {vr(128+4*kp,4)}, v184, {SX}, {sT0} offen offset:{kp*128}")
    for i in range(1, 10): e(f"s_mov_b32 s{srd(i)+3}, 0x20000")
    def mk(i, plo, mul, total, exact=None):
        b = srd(i)
        e(f"s_mul_i32 s7, {sHEAD}, {mul}")
        e(f"s_add_u32 s{b}, s{plo}, s7"); e(f"s_addc_u32 s{b+1}, s{plo+1}, 0")
        if exact is not None: e(f"s_mov_b32 s{b+2}, {exact}")
        else: e(f"s_sub_u32 s{b+2}, {total}, s7")
    mk(3, 54, 512, 448 * 8192)
    if cfg.touch and cfg.etouch:
        e(f"v_lshrrev_b32 v250, {4-lm}, v0"); e("v_lshlrev_b32 v250, 13, v250"); e(f"v_and_b32 v2, {(16>>lm)-1}, v0"); e(f"v_lshl_add_u32 v250, v2, {5+lm}, v250")
        e(f"s_mul_i32 s90, {sSH}, {28*M*8192}")
        e("s_lshr_b32 s7, s2, 3"); e("s_lshl_b32 s7, s7, 12"); e("v_lshl_add_u32 v189, v0, 3, s7"); e("v_min_u32 v189, CODE_SPAN, v189")
    mk(1, 50, 1 << 20, 0, 1 << 20)
    mk(2, 52, 1 << 20, 0, 1 << 20)
    mk(4, 56, 256 * 896, 0, 256 * 896)
    mk(5, 60, 224, 448 * 3584)
    mk(6, 62, 224, 448 * 3584)
    mk(7, 64, 112 * 896, 0, 112 * 896)
    e(f"s_lshl_b32 s7, {sQB}, 4"); e(f"s_add_u32 s7, s7, {sHEAD}"); e("s_lshl_b32 s7, s7, 2"); e(f"s_add_u32 s7, s7, {sSUB}")
    e("s_mul_i32 s7, s7, 28672")
    e(f"s_lshr_b32 {sT2}, {sWV}, 2"); e(f"s_mul_i32 {sT2}, {sT2}, {GP_OFF}"); e(f"s_add_u32 s7, s7, {sT2}")
    e(f"s_add_u32 s{srd(8)}, s70, s7"); e(f"s_addc_u32 s{srd(8)+1}, s71, 0"); e(f"s_mov_b32 s{srd(8)+2}, 28672")
    e(f"s_lshl_b32 s7, {sQB}, 2"); e(f"s_add_u32 s7, s7, {sSUB}"); e("s_lshl_b32 s7, s7, 8"); e(f"s_add_u32 s7, s7, {sHEAD}"); e("s_lshl_b32 s7, s7, 2")
    e(f"s_lshr_b32 {sT2}, {sWV}, 2"); e(f"s_lshl_b32 {sT2}, {sT2}, 16"); e(f"s_add_u32 s7, s7, {sT2}"); e(f"s_add_u32 s7, s7, {FL_OFF}")
    e("s_add_u32 s100, s70, s7"); e("s_addc_u32 s101, s71, 0")
    e(f"s_cmp_lt_u32 {sSUB}, 2")
    e(f"s_cselect_b32 s{srd(9)}, s{srd(1)}, s{srd(2)}"); e(f"s_cselect_b32 s{srd(9)+1}, s{srd(1)+1}, s{srd(2)+1}"); e(f"s_mov_b32 s{srd(9)+2}, {1<<20}")
    e(f"s_lshl_b32 s89, {sSH}, {12+lm}"); e(f"s_and_b32 s7, {sSUB}, 1"); e(f"s_lshl_b32 s7, s7, {11+lm}"); e("s_add_u32 s89, s89, s7")
    e(f"s_mov_b32 {sC}, {f2u(LOG2E/16):#x}"); e(f"s_mov_b32 {sHI}, 0xffff0000")
    e("v_lshrrev_b32 v112, 4, v255"); e("v_bfe_u32 v114, v255, 2, 2"); e("v_and_b32 v115, 3, v255")
    e("v_lshrrev_b32 v116, 1, v114"); e("v_lshl_add_u32 v116, v112, 1, v116"); e("v_lshlrev_b32 v224, 3, v115"); mad(P, 'v224', 'v116', 1056, 'v224')
    e("v_and_b32 v116, 1, v114"); e("v_lshl_add_u32 v224, v116, 7, v224")
    e("v_bfe_u32 v117, v255, 2, 1"); e("v_lshl_add_u32 v116, v115, 1, v117"); e("v_xor_b32 v116, v116, v186"); e("v_lshlrev_b32 v187, 4, v116")
    e("v_lshl_add_u32 v187, v115, 8, v187"); e("v_xor_b32 v117, 1, v117"); e("v_lshl_add_u32 v187, v117, 13, v187")
    e("s_lshl_b32 s7, s84, 10"); e("v_add_u32 v187, s7, v187"); e("v_add_u32 v188, 0x10000, v187")
    e("v_lshlrev_b32 v116, 1, v112"); e("v_and_b32 v117, 15, v255"); e("v_xor_b32 v116, v116, v117"); e("v_lshlrev_b32 v227, 4, v116"); e("v_lshl_add_u32 v227, v112, 8, v227")
    e(f"s_lshl_b32 s7, {sSUB}, 11"); e("v_add_u32 v227, s7, v227"); e("v_add_u32 v228, 0x10000, v227")
    e("v_xor_b32 v229, 16, v227"); e("v_xor_b32 v230, 16, v228")
    e("v_lshrrev_b32 v185, 2, v255")
    if cfg.hack & 16: e("s_waitcnt lgkmcnt(0)"); e("s_mov_b32 s57, s98"); cfg.pe = -5
    e(f"s_cmp_ge_u32 {sWV}, 4"); e("s_cbranch_scc1 L_helper")

def wdo_read_bases(P, d0, d1, G, r, c, tmp, add=0):
    e = P.e
    e(f"v_lshlrev_b32 {d0}, 3, {c}"); e(f"v_lshl_add_u32 {d0}, {G}, 8, {d0}"); e(f"v_lshl_add_u32 {d0}, {r}, 6, {d0}")
    e(f"v_and_b32 {tmp}, 1, {G}"); e(f"v_lshl_add_u32 {d0}, {tmp}, 5, {d0}")
    if add: e(f"v_add_u32 {d0}, {add}, {d0}")
    e(f"v_xor_b32 {d1}, 32, {d0}")

def final_salu():
    R = []; e = R.append
    e(f"s_lshr_b32 s7, {sHEAD}, 2"); e(f"s_mul_i32 {sT3}, s7, 28672"); e(f"s_mul_i32 {sT2}, {sQB}, {16*114688}"); e(f"s_add_u32 {sT3}, {sT3}, {sT2}")
    e(f"s_and_b32 {sT2}, {sHEAD}, 3"); e(f"s_lshl_b32 {sT2}, {sT2}, 10"); e(f"s_add_u32 {sT3}, {sT3}, {sT2}"); e(f"s_lshl_b32 {sT2}, {sSUB}, 12"); e(f"s_add_u32 {sT3}, {sT3}, {sT2}")
    e(f"s_add_u32 s{srd(3)}, s70, {sT3}"); e(f"s_addc_u32 s{srd(3)+1}, s71, 0"); e(f"s_mov_b32 s{srd(3)+2}, {GP_OFF + 16*114688}")
    e(f"s_mov_b32 s{srd(5)}, s66"); e(f"s_mov_b32 s{srd(5)+1}, s67"); e(f"s_mov_b32 s{srd(5)+2}, {2048*896}")
    e(f"s_lshl_b32 {sT2}, {sQB}, 2"); e(f"s_add_u32 s7, s7, {sT2}")
    e(f"s_lshl_b32 {sT2}, s7, 10"); e(f"s_add_u32 {sT2}, {sT2}, {FL_OFF}")
    e(f"s_add_u32 s{srd(6)}, s70, {sT2}"); e(f"s_addc_u32 s{srd(6)+1}, s71, 0"); e(f"s_mov_b32 s{srd(6)+2}, 0x10400"); e("s_mov_b32 s84, 0x10000")
    e("s_lshl_b32 s7, s7, 1"); e(f"s_and_b32 {sT2}, {sHEAD}, 1"); e(f"s_add_u32 s7, s7, {sT2}"); e(f"s_mul_i32 s86, s7, {16*896}")
    e(f"s_lshl_b32 {sT2}, {sSUB}, 7"); e(f"s_add_u32 s86, s86, {sT2}"); e(f"s_bfe_u32 {sT2}, {sHEAD}, 0x10001"); e(f"s_lshl_b32 {sT2}, {sT2}, 6"); e(f"s_add_u32 s86, s86, {sT2}")
    return R

def xch_salu():
    return [f"s_lshl_b32 s7, {sSUB}, 2", "s_lshr_b32 s7, 0x635, s7", "s_and_b32 s7, s7, 15", f"s_mul_i32 s85, s7, {SLOT}",
            f"s_lshl_b32 s90, {sSUB}, 12", f"s_add_u32 s90, s90, {GLUB + 16384}"]

def gen_ln_qproj(P, cfg, helper):
    e = P.e
    F = Filler(P)
    lm = cfg.hx - 1; M = 1 << lm
    def xa(kk, lo, hi, add=0):
        o = (13 - kk) * 8192
        return f"{hi if o >= 65536 else lo} offset:{(o & 0xffff) + add}"
    if helper:
        e("v_lshlrev_b32 v240, 7, v112")
        e("v_and_b32 v116, 7, v255"); e("v_lshl_add_u32 v240, v116, 4, v240")
        e("v_bfe_u32 v116, v255, 3, 1")
        e("v_lshl_add_u32 v248, v116, 13, v240")
        e("v_lshl_add_u32 v240, v116, 9, v240")
        e(f"s_lshl_b32 s88, {sSUB}, 11"); e("v_add_u32 v240, s88, v240")
        e(f"s_lshl_b32 s7, {sSUB}, 16"); e("v_add_u32 v248, s7, v248")
        e(f"s_mul_i32 {sLV}, {sSUB}, 2112")
        dma_wq(F, 0, WQ_SLOT[0]); dma_wq(F, 1, WQ_SLOT[1])
        e(f"s_lshl_b32 s7, {sSUB}, 3"); e(f"s_lshr_b32 {sLK}, 0xc0703000, s7"); e(f"s_and_b32 {sLK}, {sLK}, 0xff"); e(f"s_add_u32 {sLK}, {sLK}, s88")
        e(f"s_lshl_b32 {sL1K}, {sSUB}, 12")
        e(f"s_movk_i32 {sKO}, -8192"); e(f"s_movk_i32 {sVO}, -8192")
        e("v_and_b32 v116, 1, v112"); e("v_lshlrev_b32 v116, 1, v116"); e("v_xor_b32 v116, v116, v115"); e("v_lshlrev_b32 v242, 4, v116")
        mad(P, 'v242', 'v185', 896, 'v242')
        e("v_mul_u32_u24 v116, 37, v255"); e("v_lshrrev_b32 v116, 9, v116")
        e("v_mul_u32_u24 v117, 14, v116"); e("v_sub_u32 v117, v255, v117"); e("v_lshlrev_b32 v241, 4, v117")
        mad(P, 'v241', 'v116', 3584, 'v241')
        e(f"s_mul_i32 s7, {sSUB}, {8*3584}"); e("v_add_u32 v241, s7, v241")
        e(f"v_lshlrev_b32 v243, {5+lm}, v255")
        e("v_lshlrev_b32 v249, 4, v255")
        e(f"s_mul_i32 s85, {sSUB}, {4*14336}"); e(f"s_mul_i32 s86, {sSUB}, 896"); e(f"s_mul_i32 s87, {sSUB}, {2*14336}")
        e("v_lshlrev_b32 v245, 3, v115"); mad(P, 'v245', 'v112', 896, 'v245'); mad(P, 'v245', 'v114', 224, 'v245'); e(f"v_add_u32 v245, {GLUB}, v245")
        wdo_read_bases(P, 'v246', 'v247', 'v112', 'v114', 'v115', 'v116', GLUB)
        e("v_add_u32 v224, 512, v224")
        e(f"s_cmp_eq_u32 {sSUB}, 3"); e("s_cselect_b32 s98, 0, 1024"); e("s_cselect_b32 s99, 0, 14336")
    else:
        e(f"v_lshlrev_b32 v252, {5+lm}, v255")
        if cfg.touch:
            for tr in range(cfg.ktr):
                F.add(f"s_add_u32 {sT3}, s89, {tr*65536}", f"buffer_load_dword v251, v252, {ST}, {sT3} offen", tag='touch')
            e("v_mul_u32_u24 v253, 72, v115"); mad(P, 'v253', 'v185', 3584, 'v253')
        if cfg.touch and cfg.gtouch:
            F.add(f"s_lshl_b32 s7, {sSH}, 1", f"s_and_b32 {sT2}, {sSUB}, 1", f"s_add_u32 s7, s7, {sT2}", f"s_mul_i32 {sT3}, s7, {14*M*3584}",
                  f"s_cmp_lt_u32 {sSUB}, 2", f"s_cselect_b32 s{srd(9)}, s{srd(5)}, s{srd(6)}", f"s_cselect_b32 s{srd(9)+1}, s{srd(5)+1}, s{srd(6)+1}",
                  f"s_mov_b32 s{srd(9)+2}, s{srd(5)+2}", f"buffer_load_dword v251, v253, {ST}, {sT3} offen", tag='touch')
            for _ in range(M - 1): F.add(f"s_add_u32 {sT3}, {sT3}, {14*3584}", f"buffer_load_dword v251, v253, {ST}, {sT3} offen", tag='touch')
        F.add(*final_salu()); F.add(f"s_mov_b32 s73, {f2u(-LOG2E):#x}", *xch_salu())
        e("v_bfe_u32 v116, v255, 1, 3"); e("v_lshlrev_b32 v117, 2, v116"); e("s_mov_b32 s7, 0xec975320"); e("v_bfe_u32 v117, s7, v117, 4")
        e("v_lshlrev_b32 v248, 10, v116"); e("v_lshl_add_u32 v248, v117, 4, v248")
        e("v_and_b32 v116, 1, v255"); e("v_lshl_add_u32 v248, v116, 7, v248")
        e("v_and_b32 v116, 1, v112"); e("v_lshl_add_u32 v248, v116, 5, v248"); e("v_lshrrev_b32 v116, 1, v112"); e("v_lshl_add_u32 v248, v116, 4, v248")
        e(f"v_add_u32 v249, {4*SLOT}, v224")
        e(f"v_mov_b32 v116, {FLAG}"); e("v_mov_b32 v117, 0"); e("ds_write_b32 v116, v117")
    e(f"v_add_u32 v225, {3*SLOT}, v224"); e(f"v_add_u32 v226, {6*SLOT}, v224")
    if cfg.hack & 16: stamp(P, cfg, 13)
    for kp in range(7): e(f"buffer_load_dwordx4 {vr(156+4*kp,4)}, v184, {SX}, {sT1} offen offset:{kp*128}")
    if cfg.hack & 16: stamp(P, cfg, 14)
    role = 'h' if helper else 'c'
    for hh in range(2):
        m, t, v, u = "v118", "v119", "v120", "v121"
        for d in range(28 * hh, 28 * hh + 28):
            e(f"v_lshlrev_b32 v{2*d}, 16, v{128+d}"); e(f"v_and_b32 v{2*d+1}, {sHI}, v{128+d}")
            if d % 28 == 0:
                e(f"v_mov_b32 {m}, v{2*d}"); e(f"v_mov_b32 {t}, v{2*d+1}"); e(f"v_mul_f32 {v}, v{2*d}, v{2*d}"); e(f"v_mul_f32 {u}, v{2*d+1}, v{2*d+1}")
            else:
                e(f"v_add_f32 {m}, {m}, v{2*d}"); e(f"v_add_f32 {t}, {t}, v{2*d+1}")
                e(f"v_fmac_f32 {v}, v{2*d}, v{2*d}"); e(f"v_fmac_f32 {u}, v{2*d+1}, v{2*d+1}")
            if d == cfg.t_at and cfg.touch:
                e("global_load_dword v251, v189, s[92:93]", tag='touch')
                e(f"buffer_load_dword v251, v250, {SWQ}, s90 offen", tag='touch')
            if helper and d >= cfg.wq_at and d % 2 == 1: F.emit()
        if hh == 1: stamp(P, cfg, 1)
        e(f"v_add_f32 {m}, {m}, {t}"); e(f"v_add_f32 {v}, {v}, {u}")
        for qp in ("quad_perm:[1,0,3,2]", "quad_perm:[2,3,0,1]", "row_half_mirror"):
            e(f"v_add_f32_dpp {m}, {m}, {m} {qp} row_mask:0xf bank_mask:0xf")
            e(f"v_add_f32_dpp {v}, {v}, {v} {qp} row_mask:0xf bank_mask:0xf")
        e(f"s_mov_b32 s7, {f2u(1.0/448):#x}")
        e(f"v_mul_f32 {m}, s7, {m}")
        e(f"v_mul_f32 {t}, {m}, {m}")
        e(f"v_fma_f32 {v}, {v}, s7, -{t}")
        e(f"v_max_f32 {v}, 0, {v}")
        e(f"v_cvt_pk_bf16_f32 {t}, {m}, {v}")
        e(f"v_lshlrev_b32 {m}, 16, {t}")
        e(f"v_and_b32 {v}, {sHI}, {t}")
        e(f"v_add_f32 {v}, {f2u(1e-5):#x}, {v}")
        e(f"v_cvt_pk_bf16_f32 {v}, {v}, {v}"); e(f"v_and_b32 {v}, {sHI}, {v}")
        e(f"v_sqrt_f32 {v}, {v}")
        e(f"v_cvt_pk_bf16_f32 {v}, {v}, {v}"); e(f"v_and_b32 {v}, {sHI}, {v}")
        e(f"v_rcp_f32 {v}, {v}")
        e(f"v_mul_f32 {m}, {m}, {v}")
        for kp in range(7):
            z = 7 * hh + kp
            for d in range(4 * z, 4 * z + 4):
                e(f"v_fma_f32 v{2*d}, v{2*d}, {v}, -{m}"); e(f"v_fma_f32 v{2*d+1}, v{2*d+1}, {v}, -{m}")
            for d in range(4 * z, 4 * z + 4):
                e(f"v_cvt_pk_bf16_f32 v{128+d}, v{2*d}, v{2*d+1}")
            ad = xa(2 * kp + 1, 'v187', 'v188', hh * 128).split()
            e(f"ds_write_b128 {ad[0]}, {vr(128+4*z,4)} {ad[1]}")
            if helper and hh == 1: F.emit(2)
        if hh == 0:
            if cfg.hack & 16: stamp(P, cfg, 15)
            e("v_mov_b32 v122, 0"); e("v_lshlrev_b32 v123, 7, v255")
            e(f"s_cmp_lg_u32 {sMODE}, 0"); e(f"s_cbranch_scc1 L_norst{role}")
            e(f"s_mov_b64 exec, {3 if helper else 0x7f}"); e("global_store_dword v123, v122, s[100:101] sc1", tag='opt'); e("s_mov_b64 exec, -1")
            e(f"L_norst{role}:")
    if helper: F.wait(('WQ', 0), ('WQ', 1))
    e("s_waitcnt lgkmcnt(0)")
    stamp(P, cfg, 12)
    e("s_barrier")
    xr = [f"ds_read_b128 {vr((2*kk+qt)*4,4)}, {xa(kk, *(('v229', 'v230') if kk & 1 else ('v227', 'v228')), qt*1024)}" for kk in range(14) for qt in range(2)]
    for t in xr[:16]: e(t)
    xr = xr[16:]
    def start():
        e("s_barrier", extra_rd=regs_of("v[0:63]"))
        if helper:
            for T in range(2, 6): dma_wq(F, T, WQ_SLOT[T])
            F.emit(4)
        stamp(P, cfg, 2)
    items = []
    after = {1: [('WQ', 6), ('WQ', 7), ('WQ', 8), ('WQ', 9)], 2: [('WQ', 10), ('WQ', 11)], 3: [('WQ', 12), ('WQ', 13)], 4: [('K', 0), ('V', 0)], 5: [('K', 1), ('K', 2)], 6: []}
    def mkhook(k):
        def hook():
            if helper:
                F.wait(('WQ', 2*k), ('WQ', 2*k+1), *([('K', 0)] if k == 6 else []))
            if k == 1: P.waitvm('opt')
            e("s_barrier", extra_rd=regs_of("v[64:111]") if k == 1 else None)
            if helper:
                for (w, t) in after.get(k, []):
                    if w == 'WQ': dma_wq(F, t, WQ_SLOT[t])
                    else: dma_kv(F, w, t, (t & 3) + (4 if w == 'V' else 0))
            elif k == 1:
                e(f"s_or_b32 s7, {sMODE}, {sSUB}"); e("s_cbranch_scc1 L_noarr")
                e(f"s_lshl_b32 s7, {sQB}, 4"); e("v_mov_b32 v228, s7"); e("v_mov_b32 v229, 1")
                e("s_mov_b64 exec, 1"); e("global_atomic_add v228, v229, s[68:69] sc1", tag='opt'); e("s_mov_b64 exec, -1")
                e("L_noarr:")
        return hook
    for T in range(14):
        sl = WQ_SLOT[T]; base = f"v{224 + sl // 3}"; so = (sl % 3) * SLOT
        for t in range(8):
            imm = so + (t >> 2) * 256 + (t & 3) * 32
            mf = [(128 + ((t >> 1) * 2 + qt) * 8 + (t & 1) * 4, (2 * T + qt) * 4, '0' if T == 0 else None) for qt in range(2)]
            items.append(dict(mf=mf, reads=tr_reads(base, imm, imm + 8448), hook=mkhook(T // 2) if (T % 2 == 0 and T > 0 and t == 0) else None))
    def gap(i, k):
        T, t = divmod(i, 8)
        for _ in range(2):
            if xr: e(xr.pop(0))
        if helper: F.emit()
        else:
            if T >= 1 and t < 4: e(f"v_mov_b64 {vr(8*(T-1)+2*t,2)}, 0")
            elif 1 <= T < 5 and t in (4, 5): e(f"v_mov_b64 {vr(112+4*(T-1)+2*(t-4),2)}, 0")
            elif t == 6 and T >= cfg.tq0: F.emit()
    stream(P, items, [192 + 4 * i for i in range(6)], 6, gap, group=3, start=start)
    assert not F.q or not helper
    F.flush()
    e(f"s_lshr_b32 s7, {sSUB}, 1"); e(f"s_mul_i32 s7, s7, {SLOT}"); e(f"s_and_b32 {sT3}, {sSUB}, 1"); e(f"s_lshl_b32 {sT3}, {sT3}, 13")
    e(f"s_add_u32 s7, s7, {sT3}"); e(f"s_add_u32 s7, s7, {7*SLOT}")
    e("v_lshlrev_b32 v254, 4, v255"); e("v_add_u32 v254, s7, v254")
    if helper:
        for g in range(8):
            for t in qfin(g): e(t)
            if g: e(f"ds_write_b128 v254, {vr(128+4*(g-1),4)} offset:{(g-1)*1024}")
        e(f"ds_write_b128 v254, {vr(156,4)} offset:{7*1024}")
        P.waitvm(('K', 1))
        e("s_waitcnt lgkmcnt(0)")
        stamp(P, cfg, 3)
        e("s_barrier")
    return F

def qfin(g):
    r = [f"v_mul_f32 v{128+8*g+i}, {sC}, v{128+8*g+i}" for i in range(8)]
    r += [f"v_cvt_pk_bf16_f32 v{128+4*g+i}, v{128+8*g+2*i}, v{129+8*g+2*i}" for i in (0, 2, 1, 3)] if g else \
         [f"v_cvt_pk_bf16_f32 v{128+i}, v{128+2*i}, v{129+2*i}" for i in range(4)]
    r += [f"v_permlane16_swap_b32 v{128+4*g}, v{130+4*g}", f"v_permlane16_swap_b32 v{129+4*g}, v{131+4*g}"]
    return r

BUFS = [224, 228, 232, 236, 240, 244, 252]
PAT = list(range(7)) + list(range(6)) + list(range(6)) + list(range(7)) + list(range(6))
LEAD = sched.LEAD
SA = [192, 200]; SB = 208; NEGM = 216; LR = [250, 251]
def fbuf(f): return BUFS[PAT[f % 32]]
def oacc(t, qt): return ((t >> 1) * 2 + qt) * 8 + (t & 1) * 4
def k_imm(f): return (f >> 3) * 8448 + ((f & 7) >> 1) * 256 + (f & 1) * 64
def k_read(P, f, slot): P.e(f"ds_read_b128 {vr(fbuf(f),4)}, v248 offset:{slot*SLOT + k_imm(f)}")
def v_read(P, f, slot):
    t = f - 16
    imm = slot * SLOT + (t >> 2) * 256 + (t & 3) * 32
    P.e(f"{TR} {vr(fbuf(f),2)}, v249 offset:{imm}")
    P.e(f"{TR} {vr(fbuf(f)+2,2)}, v249 offset:{imm + 8448}")

def sm_text(task, sa):
    if task[0] in ('exp', 'add'):
        _, blk, q, i = task
        r = (sa if blk == 'a' else SB) + 4 * q + i
        return f"v_exp_f32 v{r}, v{r}" if task[0] == 'exp' else f"v_add_f32 v{LR[q]}, v{LR[q]}, v{r}"
    _, q, k = task
    src = (sa if k < 2 else SB) + 4 * q + 2 * (k & 1)
    return f"v_cvt_pk_bf16_f32 v{sa+4*q+k}, v{src}, v{src+1}"

FIXED = WAITS = PLACE = None

def gen_iter(P, j, ctl=False):
    e = P.e
    cur = SA[j & 1]; nxt = SA[(j + 1) & 1]
    for g in range(64):
        f, qt = g >> 1, g & 1
        extra = set()
        for z in WAITS.get(g, []): extra |= regs_of(vr(fbuf(z), 4))
        if f < 16:
            acc = (nxt if f < 8 else SB) + 4 * qt
            c = vr(NEGM + 4 * qt, 4) if (f & 7) == 0 else vr(acc, 4)
            e(f"{MF} {vr(acc,4)}, {vr(fbuf(f),4)}, {vr(128 + ((f&7)*2+qt)*4,4)}, {c}", extra_rd=extra)
        else:
            a = oacc(f - 16, qt)
            e(f"{MF} {vr(a,4)}, {vr(fbuf(f),4)}, {vr(cur+4*qt,4)}, {vr(a,4)}", extra_rd=extra)
        late = []
        for it in FIXED[g]:
            if it[0] == 'read':
                n = it[1]
                if n < 16: k_read(P, n, (j + 1) & 3)
                elif n < 32: v_read(P, n, j & 3)
                else: k_read(P, n - 32, (j + 2) & 3)
            elif it[0] == 'barrier': late.append("s_barrier")
            elif it[0] == 'ctl' and ctl: late.append(f"s_sub_u32 {sTRIP}, {sTRIP}, 1")
            elif it[0] == 'branch' and ctl: late.append("s_cbranch_scc0 L_loop")
        for t in PLACE.get(g + 64, []): e(sm_text(t, cur))
        for t in PLACE.get(g, []): e(sm_text(t, nxt))
        for t in late: e(t)

def xgroup(P, op, r, t):
    e = P.e
    e(f"v_mov_b32 {t}, {r}"); e(f"v_permlane16_swap_b32 {r}, {t}"); e(f"{op} {r}, {r}, {t}")
    e(f"v_mov_b32 {t}, {r}"); e(f"v_permlane32_swap_b32 {r}, {t}"); e(f"{op} {r}, {r}, {t}")

SR, SO, SF = SWQ, SWG, SWU
def msum(Q, acc, src):
    for h in range(16):
        for ee in range(2): Q.e(f"{MF} {vr(acc+4*ee,4)}, {vr(192+4*ee,4)}, {vr(src+4*h,4)}, {'0' if h == 0 else vr(acc+4*ee,4)}")
def silu8(Q, a):
    rnd8(Q, a, 224)
    for i in range(8): Q.e(f"v_mul_f32 v{224+i}, s73, v{a+i}")
    for i in range(8): Q.e(f"v_exp_f32 v{224+i}, v{224+i}")
    for i in range(8): Q.e(f"v_add_f32 v{224+i}, 1.0, v{224+i}")
    for i in range(8): Q.e(f"v_rcp_f32 v{224+i}, v{224+i}")
    for i in range(8): Q.e(f"v_mul_f32 v{a+i}, v{a+i}, v{224+i}")
    rnd8(Q, a, 224)
def fetch(P, cfg, r, dst, voff, between):
    e = P.e
    e(f"s_lshl_b32 s84, {sSUB}, 7"); e(f"s_mov_b32 {sT1}, 0"); e(f"s_mov_b32 {sTRIP}, {SPIN}")
    if cfg.hack & 64: stamp(P, cfg, 1, True)
    def onepass(nm):
        e(f"buffer_load_dword v253, v252, {SF}, s84 offen offset:{512*r} sc1"); e("s_waitcnt vmcnt(0)")
        e("v_cmp_le_u32 vcc, 1, v253")
        e(f"s_andn2_b32 {sT2}, vcc_lo, {sT1}"); e(f"s_or_b32 {sT1}, {sT1}, vcc_lo")
        for h in range(16):
            e(f"s_bitcmp1_b32 {sT2}, {h}"); e(f"s_cbranch_scc0 {nm}_{h}")
            e(f"s_mov_b32 {sT3}, {h*114688 + r*16384}")
            e(f"buffer_load_dwordx4 {vr(dst+4*h,4)}, {voff}, {SR}, {sT3} offen sc1", tag='touch')
            e(f"{nm}_{h}:")
    onepass(f"L_fa{r}")
    if cfg.hack & 64: stamp(P, cfg, 2, True)
    between()
    e(f"s_cmp_eq_u32 {sT1}, -1"); e(f"s_cbranch_scc1 L_fd{r}")
    e(f"L_fl{r}:")
    onepass(f"L_fb{r}")
    e(f"s_cmp_eq_u32 {sT1}, -1"); e(f"s_cbranch_scc1 L_fd{r}")
    e(f"s_sleep {cfg.slp}")
    e(f"s_sub_u32 {sTRIP}, {sTRIP}, 1"); e(f"s_cbranch_scc0 L_fl{r}")
    e(f"L_fd{r}:")
    if cfg.hack & 64: stamp(P, cfg, 3, True)
def fin(P, cfg, r, src, xr):
    e = P.e; a = 208
    for d in range(4): e(f"v_lshlrev_b32 v{232+2*d}, 16, v{xr+d}"); e(f"v_and_b32 v{233+2*d}, {sHI}, v{xr+d}")
    e("s_waitcnt vmcnt(0)")
    if cfg.hack & 64: stamp(P, cfg, 4, True)
    msum(P, a, src)
    rnd8(P, a, 224)
    for i in range(8): e(f"v_mul_f32 v{a+i}, v{a+i}, v{200+i}")
    rnd8(P, a, 224)
    for i in range(8): e(f"v_add_f32 v{a+i}, v{a+i}, v{232+i}")
    for d in range(4): e(f"v_cvt_pk_bf16_f32 v{240+d}, v{a+2*d}, v{a+2*d+1}")
    e(f"buffer_store_dwordx4 v[240:243], v251, {SO}, s86 offen offset:{r*512}")

def gen_compute(P, cfg):
    e = P.e
    m0 = P.mark()
    if cfg.prio == 1: e("s_setprio 2")
    gen_ln_qproj(P, cfg, False)
    stamp(P, cfg, 3)
    order = [f for kk in range(8) for f in (kk, 8 + kk)]
    items = [dict(mf=[((SA[0] if f < 8 else SB) + 4 * qt, 128 + ((f & 7) * 2 + qt) * 4, '0' if (f & 7) == 0 else None) for qt in range(2)],
                  reads=[("ds_read_b128", "v248", k_imm(f), 0, 4)]) for f in order]
    def start():
        for t in range(4): e(f"v_mov_b64 {vr(104+2*t,2)}, 0")
        for t in qfin(0) + qfin(1): e(t)
    def gap0(i, k):
        if i < 6:
            for t in qfin(i + 2): e(t)
            if i == 2: e("s_barrier")
            if i >= 2:
                for z in (2 * (i - 2), 2 * (i - 2) + 1): e(f"ds_read_b128 {vr(160+4*z,4)}, v254 offset:{z*1024}")
    stream(P, items, BUFS[:6], 6, gap0, group=2, start=start)
    e("s_waitcnt vmcnt(0)")
    for f in range(LEAD): k_read(P, f, 1)
    e(f"s_cmp_lg_u32 {sMODE}, 0"); e("s_cbranch_scc1 L_havem")
    mm = P.mark()
    for q in range(2):
        a, b, m = SA[0] + 4 * q, SB + 4 * q, NEGM + 4 * q
        e(f"v_max3_f32 v{m}, v{a}, v{a+1}, v{a+2}"); e(f"v_max3_f32 v{m}, v{m}, v{a+3}, v{b}"); e(f"v_max3_f32 v{m}, v{m}, v{b+1}, v{b+2}"); e(f"v_max_f32 v{m}, v{m}, v{b+3}")
    xgroup(P, "v_max_f32", f"v{NEGM}", f"v{NEGM+1}"); xgroup(P, "v_max_f32", f"v{NEGM+4}", f"v{NEGM+5}")
    for q in range(2):
        m = NEGM + 4 * q
        for i in (1, 2, 3, 0): e(f"v_sub_f32 v{m+i}, 0, v{m}")
    minit = P.since(mm)
    e("L_havem:")
    for q in range(2):
        for i in range(4):
            e(f"v_add_f32 v{SA[0]+4*q+i}, v{SA[0]+4*q+i}, v{NEGM+4*q}"); e(f"v_add_f32 v{SB+4*q+i}, v{SB+4*q+i}, v{NEGM+4*q}")
    e(f"v_mov_b32 v{LR[0]}, 0"); e(f"v_mov_b32 v{LR[1]}, 0")
    for g in range(18, 64):
        for t in PLACE[g]: e(sm_text(t, SA[0]))
    e(f"s_mov_b32 {sTRIP}, 15")
    stamp(P, cfg, 4)
    e("s_waitcnt lgkmcnt(0)")
    e("s_branch L_it0")
    pro = P.since(m0)
    e(".p2align 6")
    e("L_loop:")
    its = {}
    for j in (3, 0, 1, 2):
        if j == 0: e("L_it0:")
        m = P.mark(); gen_iter(P, j, ctl=(j == 2)); its[j] = P.since(m)
    m1 = P.mark()
    stamp(P, cfg, 5)
    cur = SA[1]
    e("s_barrier")
    for f in range(16, 16 + LEAD): v_read(P, f, 3)
    for g in range(64, 82):
        for t in PLACE[g]: e(sm_text(t, cur))
    post_ops = []
    Q = Prog()
    xgroup(Q, "v_add_f32", f"v{LR[0]}", "v208"); xgroup(Q, "v_add_f32", f"v{LR[1]}", "v209")
    Q.e(f"v_max_f32 v208, v{LR[0]}, v{LR[1]}"); Q.e(f"v_add_f32 v209, v{LR[0]}, v{LR[1]}")
    Q.e(f"v_rcp_f32 v{LR[0]}, v{LR[0]}"); Q.e(f"v_rcp_f32 v{LR[1]}, v{LR[1]}")
    Q.e("v_mbcnt_lo_u32_b32 v210, -1, 0"); Q.e("v_mbcnt_hi_u32_b32 v210, -1, v210")
    Q.e("v_lshrrev_b32 v211, 4, v210"); Q.e("v_bfe_u32 v212, v210, 2, 2"); Q.e("v_and_b32 v213, 3, v210")
    Q.e("v_lshrrev_b32 v212, 2, v210"); Q.e("v_lshlrev_b32 v192, 7, v212"); Q.e("v_lshl_add_u32 v192, v213, 3, v192")
    Q.e("v_bfe_u32 v212, v210, 3, 2"); Q.e("v_lshl_add_u32 v192, v212, 5, v192")
    for ee in (1, 2, 3): Q.e(f"v_xor_b32 v{192+ee}, {32*ee}, v192")
    for ee in range(4): Q.e(f"v_add_u32 v{196+ee}, {6*SLOT}, v{192+ee}")
    Q.e("v_lshlrev_b32 v248, 4, v210")
    Q.e(f"v_mov_b32 v214, {FLAG}"); Q.e("v_mov_b32 v215, 1")
    rest = Q.L
    for g in range(32, 64):
        f, qt = g >> 1, g & 1
        extra = set()
        for z in WAITS.get(g, []):
            if 16 <= z < 32: extra |= regs_of(vr(fbuf(z), 4))
        a = oacc(f - 16, qt)
        e(f"{MF} {vr(a,4)}, {vr(fbuf(f),4)}, {vr(cur+4*qt,4)}, {vr(a,4)}", extra_rd=extra)
        if qt == 1 and f + LEAD < 32: v_read(P, f + LEAD, 3)
        else:
            for _ in range(2):
                if rest: P.L.append(rest.pop(0))
    P.L.extend(rest)
    e(f"v_cmp_ngt_f32 vcc, {f2u(cfg.thr):#x}, v209")
    e("s_cbranch_vccz L_noflag")
    e("ds_write_b32 v214, v215")
    e("s_waitcnt lgkmcnt(0)")
    e("L_noflag:")
    e("s_barrier")
    e("ds_read_b32 v215, v214")
    def onorm(g):
        return [f"v_mul_f32 v{8*g+i}, v{8*g+i}, v{LR[g & 1]}" for i in range(8)] + [f"v_cvt_pk_bf16_f32 v{4*g+i}, v{8*g+2*i}, v{8*g+2*i+1}" for i in range(4)]
    items = []
    F = Filler(P)
    def ehook(t):
        def h():
            if cfg.hack & 32 and t % 2 == 0: e(f"s_memtime s[{48+t}:{49+t}]")
            if t in (2, 3, 4, 5, 6, cfg.lastb): e("s_barrier")
        return h
    def acc_o(s, ee, qt): return (64 if s & 1 else 128) + ((ee >> 1) * 2 + qt) * 8 + (ee & 1) * 4
    for t in range(14):
        sl = WO_SLOT[t]; so = (sl % 3) * SLOT; s, hf = t >> 1, t & 1
        for k4 in range(4):
            for ee in range(4):
                base = f"v{[192, 200, 196][sl // 3] + ee}"
                imm = so + k4 * 4096; kk = 4 * hf + k4
                items.append(dict(mf=[(acc_o(s, ee, qt), (kk * 2 + qt) * 4, '0' if kk == 0 else None) for qt in range(2)],
                                  reads=tr_reads(base, imm, imm + 2048),
                                  hook=ehook(t) if (t > 0 and k4 == 0 and ee == 0) else None))
    def cv(s, u, hf):
        o = 160 + 16 * (s & 1) + 4 * u + 2 * hf; a = acc_o(s, 0, 0) + 8 * u + 4 * hf
        F.add(f"v_cvt_pk_bf16_f32 v{o}, v{a}, v{a+1}", f"v_cvt_pk_bf16_f32 v{o+1}, v{a+2}, v{a+3}")
    def sto(s, u):
        o = 160 + 16 * (s & 1) + 4 * u
        F.add(f"s_movk_i32 {sT0}, {s*4096 + u*1024}", f"buffer_store_dwordx4 {vr(o,4)}, v248, {SP}, {sT0} offen sc1", tag=('S', s))
    def publish(r):
        F.add((('S', r),), "s_mov_b64 exec, 1", f"global_store_dword v249, v254, s[100:101] offset:{128*r} sc1", "s_mov_b64 exec, -1", tag='fl')
    nrm = [t for g in range(2, 16) for t in onorm(g)]
    def start():
        for ee in range(4): e(f"v_add_u32 v{200+ee}, {3*SLOT}, v{192+ee}")
        e("v_mov_b32 v249, 0"); e("v_mov_b32 v254, 1"); e("v_add_u32 v204, s85, v248"); e("v_add_u32 v205, s90, v248")
        for t in onorm(0) + onorm(1): e(t)
        e("v_readfirstlane_b32 s7, v215")
        e(f"s_andn2_b32 s7, s7, {sMODE}"); e("s_cbranch_scc1 L_maxpass")
        stamp(P, cfg, 6)
        if cfg.hack & 32: stamp(P, cfg, 1)
        if cfg.hack & 64: stamp(P, cfg, 12, True)
    def gap(i, k):
        s, r = divmod(i, 32)
        if k: return
        for _ in range(6):
            if nrm: e(nrm.pop(0))
        if s >= 1:
            u, z = divmod(r, cfg.ssp)
            if u < 4:
                if z == 0: cv(s - 1, u, 0)
                if z == 1: cv(s - 1, u, 1)
                if z == 2: sto(s - 1, u)
        if s >= 2 and r == cfg.pubr: publish(s - 2)
        if i == cfg.xat: e('s_barrier')
        F.flush()
    stream(P, items, [216 + 4 * i for i in range(8)], 7, gap, group=4, start=start)
    if cfg.hack & 32: e('s_memtime s[62:63]'); e('s_waitcnt lgkmcnt(0)'); dump_stamps(P); e('s_endpgm')
    st = (lambda i: None) if cfg.hack & 16 else (lambda i: stamp(P, cfg, i, bool(cfg.hack & 64)))
    st(13)
    for u in range(4): cv(6, u, 0); cv(6, u, 1); sto(6, u)
    F.flush()
    if cfg.xat >= 224: e("s_barrier")
    st(14)
    for k, r0 in enumerate((192, 196, 244, 250)): e(f"ds_read_b128 {vr(r0,4)}, v205 offset:{k*1024}")
    for h in range(16): e(f"ds_read_b128 {vr(64+4*h,4)}, v204 offset:{h*1024}")
    publish(5); F.flush()
    msum(P, 200, 64)
    st(15); publish(6); F.flush()
    if cfg.hack & 64: stamp(P, cfg, 9, True)
    e(f"s_cmp_eq_u32 {sSUB}, 3"); e("s_cbranch_scc1 L_cdone")
    cslow = []
    fetch(P, cfg, 1, 0, "v248", lambda: silu8(P, 200))
    fin(P, cfg, 1, 0, 244)
    e("L_cdone:")
    if cfg.stamps:
        stamp(P, cfg, 7); e("s_waitcnt vmcnt(0)"); stamp(P, cfg, 8); stamp(P, cfg, 11, True); dump_stamps(P)
    e("s_endpgm")
    post = [x for x in P.since(m1) if not any(x is y for y in cslow)]
    m2 = P.mark()
    e("L_maxpass:")
    e("s_waitcnt vmcnt(0) lgkmcnt(0)")
    e("v_and_b32 v0, 15, v210"); e("v_lshlrev_b32 v0, 9, v0"); e("v_and_b32 v1, 1, v211"); e("v_lshl_add_u32 v0, v1, 5, v0")
    e("v_lshrrev_b32 v1, 1, v211"); e("v_lshl_add_u32 v0, v1, 4, v0")
    e(f"v_mov_b32 v{NEGM}, 0xff800000"); e(f"v_mov_b32 v{NEGM+4}, 0xff800000")
    e(f"s_mov_b32 {sT0}, 0")
    e("L_mp_loop:")
    for kk in range(8): e(f"buffer_load_dwordx4 {vr(16+4*kk,4)}, v0, {SK}, {sT0} offen offset:{kk*64}")
    e("s_waitcnt vmcnt(0)")
    for kk in range(8):
        for qt in range(2): e(f"{MF} {vr(8+4*qt,4)}, {vr(16+4*kk,4)}, {vr(128+(kk*2+qt)*4,4)}, {'0' if kk == 0 else vr(8+4*qt,4)}")
    e("s_nop 15")
    for qt in range(2):
        m = NEGM + 4 * qt; a = 8 + 4 * qt
        e(f"v_max3_f32 v{m}, v{m}, v{a}, v{a+1}"); e(f"v_max3_f32 v{m}, v{m}, v{a+2}, v{a+3}")
    e(f"s_add_u32 {sT0}, {sT0}, 8192"); e(f"s_cmp_lt_u32 {sT0}, {1<<20}"); e("s_cbranch_scc1 L_mp_loop")
    xgroup(P, "v_max_f32", f"v{NEGM}", f"v{NEGM+1}"); xgroup(P, "v_max_f32", f"v{NEGM+4}", f"v{NEGM+5}")
    for q in range(2):
        m = NEGM + 4 * q
        for i in (1, 2, 3, 0): e(f"v_sub_f32 v{m+i}, 0, v{m}")
    e("L_again:")
    e("s_waitcnt vmcnt(0) lgkmcnt(0)")
    e("v_mbcnt_lo_u32_b32 v0, -1, 0"); e("v_mbcnt_hi_u32_b32 v0, -1, v0"); e(f"s_lshl_b32 s7, {sWV}, 6"); e("v_add_u32 v0, s7, v0")
    e(f"s_mov_b32 {sMODE}, 1")
    e("s_barrier")
    e("s_branch L_restart")
    mp = P.since(m2)
    body = its[0] + its[1] + its[2] + its[3]
    trace = pro + body * 2 + its[0] + its[1] + its[2] + post
    skip = set(id(x) for x in minit)
    trace2 = [x for x in pro if id(x) not in skip] + body
    return [trace, trace2], [mp, cslow]

def poll(P, name, load, cmp, pre_issued=False):
    e = P.e
    if not pre_issued: e(load)
    e(cmp); e("s_cmp_eq_u64 vcc, -1"); e(f"s_cbranch_scc1 {name}_ok")
    m = P.mark()
    e(f"s_mov_b32 s7, {SPIN}")
    e(f"{name}_lp:")
    e(f"s_sleep {CFG.slp}")
    e(load, tag='opt'); e("s_waitcnt vmcnt(0)")
    e(cmp); e("s_cmp_eq_u64 vcc, -1"); e(f"s_cbranch_scc1 {name}_ok")
    e("s_sub_u32 s7, s7, 1"); e(f"s_cbranch_scc0 {name}_lp")
    slow = P.since(m)
    e(f"{name}_ok:")
    return slow

def rnd8(P, r, t):
    for d in range(4): P.e(f"v_cvt_pk_bf16_f32 v{t+d}, v{r+2*d}, v{r+2*d+1}")
    for d in range(4): P.e(f"v_lshlrev_b32 v{r+2*d}, 16, v{t+d}"); P.e(f"v_and_b32 v{r+2*d+1}, {sHI}, v{t+d}")

def gen_helper(P, cfg):
    e = P.e
    m0 = P.mark()
    e("L_helper:")
    e("s_setprio 2")
    F = gen_ln_qproj(P, cfg, True)
    dma_kv(F, 'V', 1, 5); dma_kv(F, 'K', 3, 3); dma_kv(F, 'V', 2, 6); F.flush()
    e(f"s_mov_b32 s73, {f2u(-LOG2E):#x}")
    lo, hi = cfg.plo, cfg.phi
    if lo != 2: e(f"s_setprio {lo}")
    P.waitvm(('V', 0), ('K', 2))
    e("s_barrier")
    GU0 = 3; ACT0 = GU0 + 28; NACT = cfg.nact; DN0 = ACT0 + NACT
    GPUB = [DN0 + 10, DN0 + 16]; GPOLL = [DN0 + 12, DN0 + 20]; GSRC = [112, 0]; GSET = DN0 + 2
    slows = []
    ntr = [cfg.ktr]
    act = []
    for t in range(7):
        regs = [112 + (t * 2 + qt) * 8 + i for qt in range(2) for i in range(4)]
        for r in regs: act.append(f"v_mul_f32 v{r}, s73, v{r}")
        for r in regs: act.append(f"v_exp_f32 v{r}, v{r}")
        for r in regs: act.append(f"v_add_f32 v{r}, 1.0, v{r}")
        for r in regs: act.append(f"v_rcp_f32 v{r}, v{r}")
        for r in regs: act.append(f"v_mul_f32 v{r}, v{r}, v{r+4}")
        for qt in range(2):
            a = 112 + (t * 2 + qt) * 8; d = ((t >> 1) * 2 + qt) * 4 + (t & 1) * 2
            act.append(f"v_cvt_pk_bf16_f32 v{d}, v{a}, v{a+1}"); act.append(f"v_cvt_pk_bf16_f32 v{d+1}, v{a+2}, v{a+3}")
    act += ["v_mov_b64 v[26:27], 0", "v_mov_b64 v[30:31], 0"]
    per_act = -(-len(act) // NACT)
    def acc_d(nt, ee, qt): return 48 + 16 * (nt & 1) + (qt * 2 + ee) * 4
    def out_ops(nt):
        o = 80 + 8 * (nt & 1)
        for qt in range(2):
            a = acc_d(nt, 0, qt)
            for i in range(4): e(f"v_cvt_pk_bf16_f32 v{o+4*qt+i}, v{a+2*i}, v{a+2*i+1}")
        e(f"s_movk_i32 {sT3}, {nt*2048}"); e(f"buffer_store_dwordx4 {vr(o,4)}, v249, {SP}, {sT3} offen sc1", tag=('st', nt // 8))
        e(f"buffer_store_dwordx4 {vr(o+4,4)}, v249, {SP}, {sT3} offen offset:1024 sc1", tag=('st', nt // 8))
    hb = [224 + 4 * i for i in range(4)]
    gu_items = []
    for c in range(28):
        so = (c % 4) * GLUS; T = c >> 1
        gu_items += [dict(mf=[(112 + (t * 2 + qt) * 8 + (c & 1) * 4, (2 * T + qt) * 4, '0' if T == 0 else None) for qt in range(2)],
                          reads=tr_reads('v245', so + t * 32, so + t * 32 + 3584)) for t in range(7)]
    dn_items = []
    for nt in range(14):
        so = ((28 + nt) % 4) * GLUS
        dn_items += [dict(mf=[(acc_d(nt, ee, qt), (kk * 2 + qt) * 4, '0' if kk == 0 else None) for qt in range(2)],
                          reads=tr_reads(f"v{246+ee}", so + kk * 2048, so + kk * 2048 + (1024 if kk < 3 else 0))) for kk in range(4) for ee in range(2)]
    def rd(items, i):
        if i < len(items):
            for (op, addr, imm, sub, w) in items[i]['reads']: e(f"{op} {vr(hb[i % 4]+sub, w)}, {addr} offset:{imm}")
    def burst(items, a, b):
        if hi != lo: e(f"s_setprio {hi}")
        for i in range(a, b):
            for k, (acc, bb, c) in enumerate(items[i]['mf']):
                extra = regs_of(vr(hb[(i + 1) % 4], 4)) if (k == 1 and i + 1 < b) else set()
                e(f"{MF} {vr(acc,4)}, {vr(hb[i % 4],4)}, {vr(bb,4)}, {c if c is not None else vr(acc,4)}", extra_rd=extra)
            rd(items, i + 4)
        if hi != lo: e(f"s_setprio {lo}")
    for j in range(64):
        if j in (3, ACT0, DN0, DN0 + 14, 62): stamp(P, cfg, {3: 4, ACT0: 5, DN0: 6, DN0 + 14: 7, 62: 8}[j])
        if j == GSET + 1: e("global_load_dword v253, v252, s[68:69] sc1")
        if j in GPOLL: e(f"buffer_load_dword v253, v252, {SF}, s84 offen offset:{128*GPOLL.index(j)} sc1")
        if j + 4 < 64: dma_kv(F, 'K', j + 4, j & 3)
        if j < 28: dma_gu(F, j)
        if 0 <= j + 3 - DN0 < 14: dma_wd(F, 28 + j + 3 - DN0, j + 3 - DN0)
        if j + 3 < 64: dma_kv(F, 'V', j + 3, 4 + ((j + 3) & 3))
        for nt in {59: [0], 60: [1], 61: [2, 3], 62: [4, 5], 63: [6, 7]}.get(j, []): dma_wo(F, nt, WO_SLOT[nt])
        if cfg.touch:
            if cfg.ltouch and j % 2 == 0 and ntr[0] < min(16, j // 4 + cfg.klead + 1):
                ntr[0] += 1
                F.add(f"s_add_u32 {sT3}, s89, {(ntr[0]-1)*65536}", f"buffer_load_dword v244, v243, {ST}, {sT3} offen", tag='touch')
            if j == 10:
                F.add(f"s_mul_i32 {sT3}, {sSH}, 6272", f"s_add_u32 {sT3}, {sT3}, s88", f"s_lshl_b32 {sT3}, {sT3}, {cfg.hx-1}", f"buffer_load_dword v244, v243, {SWD}, {sT3} offen", tag='touch')
            if j in (cfg.wot, cfg.wot + 2):
                F.add(f"s_mul_i32 {sT3}, {sSH}, 14336", f"s_add_u32 {sT3}, {sT3}, s88", f"s_add_u32 {sT3}, {sT3}, {0 if j==cfg.wot else 8192}", f"s_lshl_b32 {sT3}, {sT3}, {cfg.hx-1}", f"buffer_load_dword v244, v243, {SWO}, {sT3} offen", tag='touch')
        if j == GU0 - 1:
            for i in range(4): rd(gu_items, i)
        if GU0 <= j < ACT0: burst(gu_items, 7 * (j - GU0), 7 * (j - GU0 + 1))
        if DN0 <= j < DN0 + 14: burst(dn_items, 8 * (j - DN0), 8 * (j - DN0 + 1))
        if ACT0 <= j < DN0:
            seq = act[(j - ACT0) * per_act:(j - ACT0 + 1) * per_act]
            for i, t in enumerate(seq):
                if i % 6 == 0: F.emit()
                e(t)
            if j == DN0 - 1:
                for i in range(4): rd(dn_items, i)
        if j == GSET:
            for t in final_salu(): e(t)
            F.emit(4)
            e("v_and_b32 v176, 15, v255"); e("v_lshrrev_b32 v177, 4, v255")
            e("v_mul_u32_u24 v251, 896, v176"); e("v_lshl_add_u32 v251, v177, 4, v251")
            e(f"s_lshl_b32 s7, {sQB}, 4"); e("v_mov_b32 v252, s7")
            e("v_lshrrev_b32 v178, 3, v255"); e("v_lshlrev_b32 v179, 1, v177"); e("v_and_b32 v180, 7, v255"); e("v_xor_b32 v179, v179, v180")
            e("v_mul_u32_u24 v248, 896, v178"); e("v_lshl_add_u32 v248, v179, 4, v248")
            e("v_bfe_u32 v178, v176, 2, 1"); e("v_lshlrev_b32 v178, 3, v178")
            e("v_lshrrev_b32 v179, 3, v176"); e("v_lshl_add_u32 v178, v179, 1, v178")
            e("v_bfe_u32 v179, v176, 1, 1"); e("v_add_u32 v178, v178, v179")
            e("v_lshlrev_b32 v179, 2, v177"); e("v_sub_u32 v178, v178, v179")
            e("v_and_b32 v179, 1, v176"); e("v_lshlrev_b32 v179, 4, v179"); e("v_mov_b32 v180, 0x3f80"); e("v_lshlrev_b32 v179, v179, v180")
            for ee in range(2):
                for i in range(4):
                    e(f"v_cmp_eq_u32 vcc, {i - 4 * ee}, v178"); e(f"v_cndmask_b32 v{192+4*ee+i}, 0, v179, vcc")
        F.flush()
        if DN0 + 1 <= j <= DN0 + 14: out_ops(j - DN0 - 1)
        if j in GPUB:
            r = GPUB.index(j)
            e("v_mov_b32 v182, 0"); e(f"v_mov_b32 v{183+r}, 1"); P.waitvm(('st', r))
            e("s_mov_b64 exec, 1"); e(f"global_store_dword v182, v{183+r}, s[100:101] offset:{128*r} sc1", tag='fl'); e("s_mov_b64 exec, -1")
        if j == GSET + 1:
            slows.append(poll(P, "L_pa", "global_load_dword v253, v252, s[68:69] sc1", "v_cmp_le_u32 vcc, 16, v253", True))
            e("v_lshlrev_b32 v252, 2, v176")
        if j in GPOLL:
            r = GPOLL.index(j)
            slows.append(poll(P, f"L_pg{r}", f"buffer_load_dword v253, v252, {SF}, s84 offen offset:{128*r} sc1", "v_cmp_le_u32 vcc, 1, v253", True))
        for r in range(2):
            k = j - GPOLL[r] - 1
            if 0 <= k < 8:
                for h in (2 * k, 2 * k + 1):
                    e(f"s_mov_b32 {sT3}, {GP_OFF + h*114688 + r*16384}")
                    e(f"buffer_load_dwordx4 {vr(GSRC[r]+4*h,4)}, v249, {SR}, {sT3} offen sc1")
                if k == 0: e(f"buffer_load_dwordx4 {vr(216+4*r,4)}, v251, {SX}, s86 offen offset:{r*512}")
        if j == cfg.pe: stamp(P, cfg, 13)
        if j < 63:
            need = [('K', j + 3), ('V', j + 1), ('G', j - 1)]
            if 0 <= j + 2 - DN0 < 14: need.append(('G', 28 + j + 2 - DN0))
        else:
            need = [('WO', 0), ('WO', 1)]
            e(f"v_mov_b32 v176, {FLAG}")
        P.waitvm(*need)
        if j == cfg.pe: stamp(P, cfg, 14)
        e("s_barrier")
        if j == cfg.pe - 1: stamp(P, cfg, 9)
        if j == cfg.pe: stamp(P, cfg, 15)
    e("ds_read_b32 v177, v176")
    for k in range(6):
        if cfg.hack & 32 and k >= 2: stamp(P, cfg, 1 + 3 * (k - 2))
        dma_wo(F, 8 + k, WO_SLOT[8 + k]); F.flush()
        if cfg.hack & 32 and k >= 2: stamp(P, cfg, 2 + 3 * (k - 2))
        if k == 0:
            e("v_readfirstlane_b32 s7, v177")
            e(f"s_andn2_b32 s7, s7, {sMODE}"); e("s_cbranch_scc1 L_again")
        P.waitvm(*[('WO', t) for t in ([k + 2] if k < 4 else range(6, cfg.lastb) if k == 4 else range(cfg.lastb, 14))])
        if cfg.hack & 32 and k >= 2: stamp(P, cfg, 3 + 3 * (k - 2))
        e("s_barrier")
    if cfg.hack & 32: stamp(P, cfg, 13); dump_stamps(P); e("s_endpgm")
    e(f"s_setprio {cfg.pep}")
    if cfg.hack & 4: e("s_branch L_hdone")
    e(f"s_cmp_eq_u32 {sSUB}, 3"); e("s_cbranch_scc1 L_hskip")
    for t in xch_salu(): e(t)
    e("v_add_u32 v176, s85, v249"); e("v_add_u32 v177, s90, v249"); e("v_mov_b32 v250, v249")
    for h in range(16): e(f"ds_write_b128 v176, {vr(4*h,4)} offset:{h*1024}")
    for k, r0 in enumerate((192, 196, 220, 250)): e(f"ds_write_b128 v177, {vr(r0,4)} offset:{k*1024}")
    e("L_hskip:")
    e("s_waitcnt vmcnt(0) lgkmcnt(0)")
    e("s_barrier")
    fetch(P, cfg, 0, 0, "v249", lambda: (msum(P, 200, 112), silu8(P, 200)))
    fin(P, cfg, 0, 0, 216)
    e("L_hdone:")
    if cfg.stamps:
        e("s_waitcnt vmcnt(0)"); stamp(P, cfg, 11, True); dump_stamps(P)
    e("s_endpgm")
    sk = set(id(x) for s in slows for x in s)
    return [x for x in P.since(m0) if id(x) not in sk], slows

def kd(name, vgpr, ydim=False):
    return "\n".join([f".amdhsa_kernel {name}", f"  .amdhsa_next_free_vgpr {vgpr}", "  .amdhsa_next_free_sgpr 102",
        f"  .amdhsa_accum_offset {vgpr}", "  .amdhsa_group_segment_fixed_size 0", "  .amdhsa_kernarg_size 96",
        "  .amdhsa_user_sgpr_count 2", "  .amdhsa_user_sgpr_kernarg_segment_ptr 1", "  .amdhsa_system_sgpr_workgroup_id_x 1"]
        + (["  .amdhsa_system_sgpr_workgroup_id_y 1"] if ydim else []) + [".end_amdhsa_kernel"])

def generate(cfg=None):
    cfg = cfg or Cfg()
    global FIXED, WAITS, PLACE, CFG
    CFG = cfg
    FIXED, WAITS, PLACE = sched.plan(wait_group=cfg.wg)
    P = Prog()
    K1 = NAME + "_kernel"
    P.e(".p2align 8"); P.e(f"{K1}:")
    m = P.mark(); gen_entry(P, cfg); entry = P.since(m)
    ctraces, other = gen_compute(P, cfg)
    htrace, hother = gen_helper(P, cfg)
    P.e("L_end:"); P.e("s_endpgm")
    P.e("L_code_end:")
    full = [entry + t for t in ctraces] + [entry + htrace]
    resolve(full + [[x for x in t if x.tag != 'opt'] for t in full] + other + hother)
    nb = lambda t: sum(1 for x in t if x.kind != 'none' and x.op == 's_barrier')
    print("barriers compute", nb(ctraces[0]) + 13 * 4, "helper", nb(htrace))
    if cfg.hack & 2:
        for I in P.L:
            if I.text.startswith("buffer_store_dwordx4"): I.text = I.text.replace(" sc1", "")
    if cfg.hack & 8:
        for I in P.L:
            if I.text.startswith("buffer_store_dwordx4"): I.text = I.text.replace(" sc1", " sc0 sc1")
    out = expand(P.L)
    mis = align8(out)
    head = [f"; @launch grid=(256,1,1) block=(512,1,1) lds={LDS_BYTES}",
            '.amdgcn_target "amdgcn-amd-amdhsa--gfx950"', ".text",
            f".globl {K1}", f".type {K1},@function"]
    span = 0
    for I in out:
        if I.text == "L_code_end:": break
        if I.text.startswith(".p2align"):
            a = 1 << int(I.text.split()[1]); span = -(-span // a) * a
        span += I.size()
    body = [I.text.replace("CODE_SPAN", str((span - 128) & ~3)) for I in out]
    print("code bytes K1", span)
    tail = ['.section .rodata,"a"', ".p2align 6", kd(K1, 256)]
    return "\n".join(head + body + tail) + "\n", mis

if __name__ == "__main__":
    cfg = Cfg()
    for a in sys.argv[2:]:
        k, v = a.split('='); setattr(cfg, k, float(v) if k == 'thr' else int(v))
    s, mis = generate(cfg)
    open(sys.argv[1], "w").write(s)
    print("bytes", len(s), "lines", s.count("\n"), "misaligned", mis)
```

```python
import struct, sys
from asmlib import *
import sched

NAME = "recurrent_scan__mha_block_cached__glu_gated_glu__prompt"
def f2u(x): return struct.unpack('<I', struct.pack('<f', x))[0]
LOG2E = 1.4426950408889634
SLOT = 16896
GLUB = 8 * SLOT
GLUS = 8192
FLAG = GLUB - 32
LDS_BYTES = 163840
GP_OFF = 0x2000000
STG = 262144
FL_OFF = 0x4000000
SPIN = 400000

sHEAD, sQB, sWV, sSUB = 's3', 's4', 's5', 's6'
SX, SK, SV, SWQ, SWO, SWG, SWU, SWD, SP, ST = [f"s[{8+4*i}:{11+4*i}]" for i in range(10)]
sC = 's72'; sHI = 's74'; sTRIP = 's75'
sLK, sLV, sL1K = 's76', 's77', 's78'
sMODE = 's79'
sSH = 's91'
sT0, sT1, sT2, sT3 = 's80', 's81', 's82', 's83'
sKO, sVO = 's96', 's97'
def srd(i): return 8 + 4 * i
def vr(a, n): return f"v[{a}:{a+n-1}]"
MF = "v_mfma_f32_16x16x32_bf16"
TR = "ds_read_b64_tr_b16"

class Cfg:
    glu = 1
    touch = 1
    prio = 2
    stamps = 0
    thr = 2.0 ** 64
    wq_at = 29
    xpar = 0
    pe = 20
    hack = 0
    plo = 0
    hx = 1
    t_at = 27
    ktr = 2
    klead = 6
    gtouch = 1
    tq0 = 8
    phi = 2
    nact = 2
    flip = 0
    x = 0
    snake = 7
    otouch = 0
    dflag = 0
    vbit = -1
    bara = 15
    barb = 15
    pep = 0
    pd = 2
    lastb = 9
    pubr = 13
    ctop = 1
    xat = 157
    ssp = 4
    fo = 1
    sn = -1
    wot = 53
    pl = 4
    slp = 8
    wg = 3
    ltouch = 1
    etouch = 1

def stream(P, items, bufs, lead, gapfill=None, group=2, start=None):
    n = len(items)
    buf = [bufs[i % len(bufs)] for i in range(n)]
    def reads(i):
        it = items[i]
        if it.get('hook'): it['hook']()
        for (op, addr, imm, sub, w) in it['reads']:
            P.e(f"{op} {vr(buf[i]+sub, w)}, {addr} offset:{imm}")
    for i in range(min(lead, n)): reads(i)
    if start: start()
    for i in range(n):
        it = items[i]
        for k, (acc, b, c) in enumerate(it['mf'][::-1] if (CFG.snake & 4 and i & 1) else it['mf']):
            extra = set()
            if group and k == len(it['mf']) - 1 and (i + 1) % group == 0:
                for z in range(1, group + 1):
                    if i + z < n: extra |= regs_of(vr(buf[i+z], 4))
            P.e(f"{MF} {vr(acc,4)}, {vr(buf[i],4)}, {vr(b,4)}, {c if c is not None else vr(acc,4)}", extra_rd=extra)
            if k == len(it['mf']) - 1 and i + lead < n: reads(i + lead)
            elif gapfill: gapfill(i, k)

def tr_reads(addr, imm0, imm1): return [(TR, addr, imm0, 0, 2), (TR, addr, imm1, 2, 2)]

class Filler:
    def __init__(self, P): self.P = P; self.q = []
    def add(self, *texts, **kw): self.q.append((texts, kw))
    def emit(self, k=1):
        for _ in range(k):
            if not self.q: return
            texts, kw = self.q.pop(0)
            for t in texts:
                if isinstance(t, tuple): self.P.waitvm(*t)
                elif t.startswith(('buffer_', 'global_')): self.P.e(t, **kw)
                else: self.P.e(t)
    def flush(self): self.emit(len(self.q))
    def wait(self, *tags):
        assert not any(kw.get('tag') in tags for _, kw in self.q), tags
        self.P.waitvm(*tags)

def dma_kv(F, which, tile, slot):
    sr, sl, so = (SK, sLK, sKO) if which == 'K' else (SV, sLV, sVO)
    ld = lambda off: f"buffer_load_dwordx4 v240, {sr}, {so} offen" + (f" offset:{off}" if off else "") + " lds"
    tag = (which, tile)
    F.add(f"s_add_u32 m0, {sl}, {slot*SLOT}", f"s_addk_i32 {so}, 8192", ld(0), tag=tag)
    F.add("s_addk_i32 m0, 32", ld(1024), tag=tag)
    F.add(f"s_addk_i32 m0, {8448-32}", f"s_addk_i32 {so}, 8192", ld(0), tag=tag)
    F.add("s_addk_i32 m0, 32", ld(1024), tag=tag)
def dma_wq(F, tile, slot):
    ld = f"buffer_load_dwordx4 v248, {SWQ}, {sT0} offen lds"
    tag = ('WQ', tile)
    F.add(f"s_add_u32 m0, {sLV}, {slot*SLOT}", f"s_mov_b32 {sT0}, {32*tile*8192}", ld, tag=tag)
    for d in (1056, 7392, 1056):
        F.add(f"s_addk_i32 m0, {d}", f"s_addk_i32 {sT0}, 16384", ld, tag=tag)
def dma_wo(F, t, slot):
    ld = f"buffer_load_dwordx4 v248, {SWO}, {sT0} offen lds"
    tag = ('WO', t)
    F.add(f"s_add_u32 m0, {sL1K}, {slot*SLOT}", f"s_add_u32 {sT0}, s87, {(t & 1)*128*896 + (t >> 1)*128}", ld, tag=tag)
    for p in range(3): F.add("s_addk_i32 m0, 1024", f"s_addk_i32 {sT0}, {8*896}", ld, tag=tag)
def dma_gu(F, c):
    base = GLUB + (c % 3) * GLUS; m, s = divmod(c, 7)
    ld = f"buffer_load_dwordx4 v241, {SWG}, {sT2} offen lds"
    F.add(f"s_add_u32 m0, s88, {base}", f"s_mov_b32 {sT2}, {64*s*3584 + m*64}", ld, tag=('G', c))
    F.add("s_addk_i32 m0, 1024", f"s_addk_i32 {sT2}, {4*3584}", ld, tag=('G', c))
def dma_wd(F, c, nt):
    base = GLUB + (c % 3) * GLUS
    ld = f"buffer_load_dwordx4 v242, {SWD}, {sT2} offen lds"
    F.add(f"s_add_u32 m0, s88, {base}", f"s_add_u32 {sT2}, s87, {nt*64}", ld, tag=('G', c))
    F.add("s_addk_i32 m0, 1024", f"s_addk_i32 {sT2}, 14336", ld, tag=('G', c))

WQ_SLOT = {0: 7, 1: 8, 2: 5, 3: 3, 4: 6, 5: 4, 6: 0, 7: 1, 8: 2, 9: 7, 10: 8, 11: 5, 12: 3, 13: 6}
WO_SLOT = {0: 8, 1: 0, 2: 1, 3: 4, 4: 2, 5: 5, 6: 3, 7: 6, 8: 7, 9: 8, 10: 0, 11: 1, 12: 4, 13: 2}

def streg(idx): return {0: 's94', 10: 's95'}.get(idx, f"s{48+idx}") if not H32 else f"s{48+idx}"
H32 = False
NLAB = 0
def stamp(P, cfg, idx, real=False):
    if not cfg.stamps: return
    P.e(f"{'s_memrealtime' if real else 's_memtime'} s[64:65]"); P.e("s_waitcnt lgkmcnt(0)")
    P.e(f"s_mov_b32 {streg(idx)}, s64")
def dump_stamps(P):
    e = P.e
    global H32
    H32 = bool(CFG.hack & 32)
    if CFG.hack & 128:
        global NLAB
        NLAB += 1
        e("s_mov_b64 exec, 1")
        e("v_mov_b32 v0, 0"); e(f"v_mov_b32 v1, {streg(11)}"); e(f"s_not_b32 s7, {streg(10)}"); e("v_mov_b32 v2, s7")
        e("global_atomic_umax v0, v1, s[68:69] offset:4"); e("global_atomic_umax v0, v2, s[68:69] offset:8")
        e(f"s_lshl_b32 s7, s2, 3"); e(f"s_add_u32 s7, s7, {sWV}"); e(f"s_cmp_lg_u32 s7, {37*8}"); e(f"s_cbranch_scc1 L_nd{NLAB}")
        for w, (x, y) in zip((3, 5, 6, 7, 9, 10, 11, 13, 14), ((1, 0), (2, 1), (3, 2), (4, 3), (5, 4), (6, 5), (13, 6), (8, 13), (11, 10))):
            e(f"s_sub_u32 s7, {streg(x)}, {streg(y)}"); e(f"v_mov_b32 v{w+4}, s7"); e(f"global_store_dword v0, v{w+4}, s[68:69] offset:{4*w}")
        e(f"L_nd{NLAB}:")
        return
    for i in range(16): e(f"v_writelane_b32 v254, {streg(i)}, {i}")
    e(f"s_lshl_b32 s7, s2, 3"); e(f"s_add_u32 s7, s7, {sWV}"); e("s_lshl_b32 s7, s7, 8"); e("s_add_u32 s7, s7, 0x8000000")
    e("s_add_u32 s92, s70, s7"); e("s_addc_u32 s93, s71, 0")
    e("v_mbcnt_lo_u32_b32 v255, -1, 0"); e("v_mbcnt_hi_u32_b32 v255, -1, v255"); e("v_lshlrev_b32 v255, 2, v255")
    e("global_store_dword v255, v254, s[92:93]")

def mad(P, dst, src, mul, acc=None):
    P.e(f"s_movk_i32 s7, {mul}" if mul < 32768 else f"s_mov_b32 s7, {mul}")
    if acc is None: P.e(f"v_mul_u32_u24 {dst}, s7, {src}")
    else: P.e(f"v_mad_u32_u24 {dst}, {src}, s7, {acc}")

def gen_entry(P, cfg):
    e = P.e
    e("s_cmp_ge_u32 s2, 256"); e("s_cbranch_scc1 L_end")
    e(f"s_mov_b32 {sMODE}, 0")
    e("L_restart:")
    stamp(P, cfg, 0); stamp(P, cfg, 10, True)
    e("s_load_dwordx16 s[48:63], s[0:1], 0"); e("s_load_dwordx8 s[64:71], s[0:1], 64")
    e("s_getpc_b64 s[92:93]")
    if cfg.ctop:
        e("s_lshr_b32 s7, s2, 3"); e("s_lshl_b32 s7, s7, 12"); e("v_lshl_add_u32 v189, v0, 3, s7"); e("v_min_u32 v189, CODE_SPAN, v189")
        e("global_load_dword v251, v189, s[92:93]", tag='touch')
    e("v_lshrrev_b32 v1, 6, v0")
    e("v_and_b32 v255, 63, v0")
    e(f"v_readfirstlane_b32 {sWV}, v1")
    hx = cfg.hx; lm = hx - 1; M = 1 << lm
    e(f"s_and_b32 {sHEAD}, s2, {(16 >> hx) - 1}"); e(f"s_lshl_b32 {sHEAD}, {sHEAD}, {hx}"); e(f"s_bfe_u32 s7, s2, {(hx << 16) | 3:#x}"); e(f"s_add_u32 {sHEAD}, {sHEAD}, s7")
    e(f"s_lshr_b32 {sSH}, s2, {3 + hx}")
    if hx > 1: e(f"s_bfe_u32 s7, s2, {(lm << 16) | (4 - hx):#x}"); e(f"s_lshl_b32 s7, s7, {5 - hx}"); e(f"s_add_u32 {sQB}, {sSH}, s7")
    else: e(f"s_mov_b32 {sQB}, {sSH}")
    e(f"s_and_b32 {sSUB}, {sWV}, 3")
    e("s_mov_b32 s11, 0x20000"); e(f"s_mov_b32 s10, {2048*896}")
    e("v_lshrrev_b32 v186, 3, v255"); e("v_and_b32 v185, 7, v255"); e("v_lshlrev_b32 v184, 4, v185"); mad(P, 'v184', 'v186', 896, 'v184')
    e(f"s_lshl_b32 s84, {sSUB}, 1"); e(f"s_lshr_b32 s7, {sWV}, 2")
    if cfg.xpar: e(f"s_xor_b32 s7, s7, {sHEAD}"); e("s_and_b32 s7, s7, 1")
    e("s_add_u32 s84, s84, s7")
    e(f"s_lshl_b32 s7, {sQB}, 3"); e("s_add_u32 s7, s7, s84"); e(f"s_mul_i32 {sT0}, s7, {16*896}")
    e("s_waitcnt lgkmcnt(0)")
    if cfg.hack & 16: e("s_memtime s[98:99]")
    e("s_mov_b32 s8, s48"); e("s_mov_b32 s9, s49")
    e(f"s_add_u32 {sT1}, {sT0}, {8*896}")
    for kp in range(7): e(f"buffer_load_dwordx4 {vr(128+4*kp,4)}, v184, {SX}, {sT0} offen offset:{kp*128}")
    for i in range(1, 10): e(f"s_mov_b32 s{srd(i)+3}, 0x20000")
    def mk(i, plo, mul, total, exact=None, idx=sHEAD):
        b = srd(i)
        e(f"s_mul_i32 s7, {idx}, {mul}")
        e(f"s_add_u32 s{b}, s{plo}, s7"); e(f"s_addc_u32 s{b+1}, s{plo+1}, 0")
        if exact is not None: e(f"s_mov_b32 s{b+2}, {exact}")
        else: e(f"s_sub_u32 s{b+2}, {total}, s7")
    mk(3, 54, 512, 448 * 8192)
    if cfg.touch and cfg.etouch:
        e(f"v_lshrrev_b32 v250, {4-lm}, v0"); e("v_lshlrev_b32 v250, 13, v250"); e(f"v_and_b32 v2, {(16>>lm)-1}, v0"); e(f"v_lshl_add_u32 v250, v2, {5+lm}, v250")
        e(f"s_mul_i32 s90, {sSH}, {28*M*8192}")
        e("s_lshr_b32 s7, s2, 3"); e("s_lshl_b32 s7, s7, 12"); e("v_lshl_add_u32 v189, v0, 3, s7"); e("v_min_u32 v189, CODE_SPAN, v189")
    mk(1, 50, 1 << 20, 0, 1 << 20)
    mk(2, 52, 1 << 20, 0, 1 << 20)
    mk(4, 56, 256 * 896, 0, 256 * 896)
    assert hx == 1
    e("s_and_b32 s98, s2, 6"); e("s_bfe_u32 s7, s2, 0x10003"); e("s_add_u32 s98, s98, s7"); e("s_mul_i32 s98, s98, 7")
    e("s_and_b32 s99, s2, 1")
    if cfg.flip: e("s_mul_i32 s7, s99, 3"); e("s_xor_b32 s99, s99, 1")
    else: e("s_lshl_b32 s7, s99, 2")
    e("s_add_u32 s98, s98, s7")
    mk(5, 60, 64, 448 * 3584, idx='s98')
    mk(6, 62, 64, 448 * 3584, idx='s98')
    mk(7, 64, 32 * 896, 1792 * 896, idx='s98')
    e(f"s_mul_i32 s7, {sQB}, {7*STG}"); e(f"s_lshl_b32 {sT2}, {sSUB}, 16"); e(f"s_add_u32 s7, s7, {sT2}"); e(f"s_lshl_b32 {sT2}, {sHEAD}, 10"); e(f"s_add_u32 s7, s7, {sT2}")
    e(f"s_lshr_b32 {sT2}, {sWV}, 2"); e(f"s_mul_i32 {sT2}, {sT2}, {GP_OFF}"); e(f"s_add_u32 s7, s7, {sT2}")
    e(f"s_add_u32 s{srd(8)}, s70, s7"); e(f"s_addc_u32 s{srd(8)+1}, s71, 0"); e(f"s_mov_b32 s{srd(8)+2}, {7*STG}")
    e(f"s_lshl_b32 s7, {sQB}, 2"); e(f"s_add_u32 s7, s7, {sSUB}"); e("s_lshl_b32 s7, s7, 8"); e(f"s_add_u32 s7, s7, {sHEAD}"); e("s_lshl_b32 s7, s7, 2")
    e(f"s_lshr_b32 {sT2}, {sWV}, 2"); e(f"s_lshl_b32 {sT2}, {sT2}, 16"); e(f"s_add_u32 s7, s7, {sT2}"); e(f"s_add_u32 s7, s7, {FL_OFF}")
    e("s_add_u32 s100, s70, s7"); e("s_addc_u32 s101, s71, 0")
    e(f"s_cmp_lt_u32 {sSUB}, 2")
    e(f"s_cselect_b32 s{srd(9)}, s{srd(1)}, s{srd(2)}"); e(f"s_cselect_b32 s{srd(9)+1}, s{srd(1)+1}, s{srd(2)+1}"); e(f"s_mov_b32 s{srd(9)+2}, {1<<20}")
    e(f"s_lshl_b32 s89, {sSH}, {12+lm}"); e(f"s_and_b32 s7, {sSUB}, 1"); e(f"s_lshl_b32 s7, s7, {11+lm}"); e("s_add_u32 s89, s89, s7")
    e(f"s_mov_b32 {sC}, {f2u(LOG2E/16):#x}"); e(f"s_mov_b32 {sHI}, 0xffff0000")
    e("v_lshrrev_b32 v112, 4, v255"); e("v_bfe_u32 v114, v255, 2, 2"); e("v_and_b32 v115, 3, v255")
    e("v_lshrrev_b32 v116, 1, v114"); e("v_lshl_add_u32 v116, v112, 1, v116"); e("v_lshlrev_b32 v224, 3, v115"); mad(P, 'v224', 'v116', 1056, 'v224')
    e("v_and_b32 v116, 1, v114"); e("v_lshl_add_u32 v224, v116, 7, v224")
    e("v_bfe_u32 v117, v255, 2, 1"); e("v_lshl_add_u32 v116, v115, 1, v117"); e("v_xor_b32 v116, v116, v186"); e("v_lshlrev_b32 v187, 4, v116")
    e("v_lshl_add_u32 v187, v115, 8, v187"); e("v_xor_b32 v117, 1, v117"); e("v_lshl_add_u32 v187, v117, 13, v187")
    e("s_lshl_b32 s7, s84, 10"); e("v_add_u32 v187, s7, v187"); e("v_add_u32 v188, 0x10000, v187")
    e("v_lshlrev_b32 v116, 1, v112"); e("v_and_b32 v117, 15, v255"); e("v_xor_b32 v116, v116, v117"); e("v_lshlrev_b32 v227, 4, v116"); e("v_lshl_add_u32 v227, v112, 8, v227")
    e(f"s_lshl_b32 s7, {sSUB}, 11"); e("v_add_u32 v227, s7, v227"); e("v_add_u32 v228, 0x10000, v227")
    e("v_xor_b32 v229, 16, v227"); e("v_xor_b32 v230, 16, v228")
    e("v_lshrrev_b32 v185, 2, v255")
    if cfg.hack & 16: e("s_waitcnt lgkmcnt(0)"); e("s_mov_b32 s57, s98"); cfg.pe = -5
    e(f"s_cmp_ge_u32 {sWV}, 4"); e("s_cbranch_scc1 L_helper")

def wdo_read_bases(P, d0, d1, G, r, c, tmp, add=0):
    e = P.e
    e(f"v_lshlrev_b32 {d0}, 3, {c}"); e(f"v_lshl_add_u32 {d0}, {G}, 8, {d0}"); e(f"v_lshl_add_u32 {d0}, {r}, 6, {d0}")
    e(f"v_and_b32 {tmp}, 1, {G}"); e(f"v_lshl_add_u32 {d0}, {tmp}, 5, {d0}")
    if add: e(f"v_add_u32 {d0}, {add}, {d0}")
    e(f"v_xor_b32 {d1}, 32, {d0}")

def final_salu():
    R = []; e = R.append
    e(f"s_lshr_b32 s7, {sHEAD}, 2"); e(f"s_mul_i32 {sT3}, {sQB}, {7*STG}"); e(f"s_lshl_b32 {sT2}, {sHEAD}, 14"); e(f"s_add_u32 {sT3}, {sT3}, {sT2}")
    e(f"s_lshl_b32 {sT2}, {sSUB}, 18"); e(f"s_add_u32 {sT3}, {sT3}, {sT2}")
    e(f"s_add_u32 s{srd(3)}, s70, {sT3}"); e(f"s_addc_u32 s{srd(3)+1}, s71, 0"); e(f"s_mov_b32 s{srd(3)+2}, {GP_OFF + 5*STG}")
    e(f"s_mov_b32 s{srd(5)}, s66"); e(f"s_mov_b32 s{srd(5)+1}, s67"); e(f"s_mov_b32 s{srd(5)+2}, {2048*896}")
    e(f"s_lshl_b32 {sT2}, {sQB}, 2"); e(f"s_add_u32 s7, s7, {sT2}")
    e(f"s_lshl_b32 {sT2}, s7, 10"); e(f"s_add_u32 {sT2}, {sT2}, {FL_OFF}")
    e(f"s_add_u32 s{srd(6)}, s70, {sT2}"); e(f"s_addc_u32 s{srd(6)+1}, s71, 0"); e(f"s_mov_b32 s{srd(6)+2}, 0x10400"); e("s_mov_b32 s84, 0x10000")
    e("s_lshl_b32 s7, s7, 1"); e(f"s_and_b32 {sT2}, {sHEAD}, 1"); e(f"s_add_u32 s7, s7, {sT2}"); e(f"s_mul_i32 s86, s7, {16*896}")
    e(f"s_lshl_b32 {sT2}, {sSUB}, 7"); e(f"s_add_u32 s86, s86, {sT2}"); e(f"s_bfe_u32 {sT2}, {sHEAD}, 0x10001"); e(f"s_lshl_b32 {sT2}, {sT2}, 6"); e(f"s_add_u32 s86, s86, {sT2}")
    return R

def xch_salu():
    return [f"s_lshl_b32 s7, {sSUB}, 2", "s_lshr_b32 s7, 0x635, s7", "s_and_b32 s7, s7, 15", f"s_mul_i32 s85, s7, {SLOT}",
            f"s_lshl_b32 s90, {sSUB}, 12", f"s_add_u32 s90, s90, {GLUB + 16384}"]

def gen_ln_qproj(P, cfg, helper):
    e = P.e
    F = Filler(P)
    lm = cfg.hx - 1; M = 1 << lm
    def xa(kk, lo, hi, add=0):
        o = (13 - kk) * 8192
        return f"{hi if o >= 65536 else lo} offset:{(o & 0xffff) + add}"
    if helper:
        e("v_lshlrev_b32 v240, 7, v112")
        e("v_and_b32 v116, 7, v255"); e("v_lshl_add_u32 v240, v116, 4, v240")
        e("v_bfe_u32 v116, v255, 3, 1")
        e("v_lshl_add_u32 v248, v116, 13, v240")
        e("v_lshl_add_u32 v240, v116, 9, v240")
        e(f"s_lshl_b32 s88, {sSUB}, 11"); e("v_add_u32 v240, s88, v240")
        e(f"s_lshl_b32 s7, {sSUB}, 16"); e("v_add_u32 v248, s7, v248")
        e(f"s_mul_i32 {sLV}, {sSUB}, 2112")
        dma_wq(F, 0, WQ_SLOT[0]); dma_wq(F, 1, WQ_SLOT[1])
        e(f"s_lshl_b32 s7, {sSUB}, 3"); e(f"s_lshr_b32 {sLK}, 0xc0703000, s7"); e(f"s_and_b32 {sLK}, {sLK}, 0xff"); e(f"s_add_u32 {sLK}, {sLK}, s88")
        e(f"s_lshl_b32 {sL1K}, {sSUB}, 12")
        e(f"s_movk_i32 {sKO}, -8192"); e(f"s_movk_i32 {sVO}, -8192")
        e("v_and_b32 v116, 1, v112"); e("v_lshlrev_b32 v116, 1, v116"); e("v_xor_b32 v116, v116, v115"); e("v_lshlrev_b32 v242, 4, v116")
        mad(P, 'v242', 'v185', 896, 'v242')
        e("v_lshl_add_u32 v117, v112, 3, v114"); e("v_lshlrev_b32 v241, 4, v116"); mad(P, 'v241', 'v117', 3584, 'v241')
        e(f"s_lshr_b32 s7, {sSUB}, 1"); e(f"s_mul_i32 s7, s7, {32*3584}"); e("v_add_u32 v241, s7, v241")
        e(f"s_bitcmp1_b32 {sSUB}, 0"); e(f"s_cselect_b32 s{srd(5)}, s{srd(6)}, s{srd(5)}"); e(f"s_cselect_b32 s{srd(5)+1}, s{srd(6)+1}, s{srd(5)+1}")
        e(f"v_lshlrev_b32 v243, {5+lm}, v255")
        e("v_lshlrev_b32 v249, 4, v255")
        e(f"s_mul_i32 s87, {sSUB}, {2*14336}")
        wdo_read_bases(P, 'v246', 'v247', 'v112', 'v114', 'v115', 'v116', GLUB)
        e("v_add_u32 v224, 512, v224")
    else:
        e(f"v_lshlrev_b32 v252, {5+lm}, v255")
        if cfg.touch:
            for tr in range(cfg.ktr):
                F.add(f"s_add_u32 {sT3}, s89, {tr*65536}", f"buffer_load_dword v251, v252, {ST}, {sT3} offen", tag='touch')
            e("v_mul_u32_u24 v253, 84, v115"); mad(P, 'v253', 'v185', 3584, 'v253')
        if cfg.touch and cfg.gtouch:
            F.add(f"s_lshl_b32 s7, {sSH}, 1", f"s_and_b32 {sT2}, {sSUB}, 1", f"s_add_u32 s7, s7, {sT2}", f"s_mul_i32 {sT3}, s7, {14*M*3584}",
                  f"s_cmp_lt_u32 {sSUB}, 2", f"s_cselect_b32 s{srd(9)}, s{srd(5)}, s{srd(6)}", f"s_cselect_b32 s{srd(9)+1}, s{srd(5)+1}, s{srd(6)+1}",
                  f"s_mov_b32 s{srd(9)+2}, s{srd(5)+2}", f"buffer_load_dword v251, v253, {ST}, {sT3} offen", tag='touch')
            for _ in range(M - 1): F.add(f"s_add_u32 {sT3}, {sT3}, {14*3584}", f"buffer_load_dword v251, v253, {ST}, {sT3} offen", tag='touch')
        F.add(*final_salu()); F.add(f"s_mov_b32 s73, {f2u(-LOG2E):#x}", *xch_salu())
        e("v_bfe_u32 v116, v255, 1, 3"); e("v_lshlrev_b32 v117, 2, v116"); e("s_mov_b32 s7, 0xec975320"); e("v_bfe_u32 v117, s7, v117, 4")
        e("v_lshlrev_b32 v248, 10, v116"); e("v_lshl_add_u32 v248, v117, 4, v248")
        e("v_and_b32 v116, 1, v255"); e("v_lshl_add_u32 v248, v116, 7, v248")
        e("v_and_b32 v116, 1, v112"); e("v_lshl_add_u32 v248, v116, 5, v248"); e("v_lshrrev_b32 v116, 1, v112"); e("v_lshl_add_u32 v248, v116, 4, v248")
        e(f"v_add_u32 v249, {4*SLOT}, v224")
        e(f"v_mov_b32 v116, {FLAG}"); e("v_mov_b32 v117, 0"); e("ds_write_b32 v116, v117")
    e(f"v_add_u32 v225, {3*SLOT}, v224"); e(f"v_add_u32 v226, {6*SLOT}, v224")
    if cfg.hack & 16: stamp(P, cfg, 13)
    for kp in range(7): e(f"buffer_load_dwordx4 {vr(156+4*kp,4)}, v184, {SX}, {sT1} offen offset:{kp*128}")
    if cfg.hack & 16: stamp(P, cfg, 14)
    role = 'h' if helper else 'c'
    for hh in range(2):
        m, t, v, u = "v118", "v119", "v120", "v121"
        for d in range(28 * hh, 28 * hh + 28):
            e(f"v_lshlrev_b32 v{2*d}, 16, v{128+d}"); e(f"v_and_b32 v{2*d+1}, {sHI}, v{128+d}")
            if d % 28 == 0:
                e(f"v_mov_b32 {m}, v{2*d}"); e(f"v_mov_b32 {t}, v{2*d+1}"); e(f"v_mul_f32 {v}, v{2*d}, v{2*d}"); e(f"v_mul_f32 {u}, v{2*d+1}, v{2*d+1}")
            else:
                e(f"v_add_f32 {m}, {m}, v{2*d}"); e(f"v_add_f32 {t}, {t}, v{2*d+1}")
                e(f"v_fmac_f32 {v}, v{2*d}, v{2*d}"); e(f"v_fmac_f32 {u}, v{2*d+1}, v{2*d+1}")
            if d == cfg.t_at and cfg.touch:
                if not cfg.ctop: e("global_load_dword v251, v189, s[92:93]", tag='touch')
                e(f"buffer_load_dword v251, v250, {SWQ}, s90 offen", tag='touch')
            if helper and d >= cfg.wq_at and d % 2 == 1: F.emit()
        if hh == 1: stamp(P, cfg, 1)
        e(f"v_add_f32 {m}, {m}, {t}"); e(f"v_add_f32 {v}, {v}, {u}")
        for qp in ("quad_perm:[1,0,3,2]", "quad_perm:[2,3,0,1]", "row_half_mirror"):
            e(f"v_add_f32_dpp {m}, {m}, {m} {qp} row_mask:0xf bank_mask:0xf")
            e(f"v_add_f32_dpp {v}, {v}, {v} {qp} row_mask:0xf bank_mask:0xf")
        e(f"s_mov_b32 s7, {f2u(1.0/448):#x}")
        e(f"v_mul_f32 {m}, s7, {m}")
        e(f"v_mul_f32 {t}, {m}, {m}")
        e(f"v_fma_f32 {v}, {v}, s7, -{t}")
        e(f"v_max_f32 {v}, 0, {v}")
        e(f"v_cvt_pk_bf16_f32 {t}, {m}, {v}")
        e(f"v_lshlrev_b32 {m}, 16, {t}")
        e(f"v_and_b32 {v}, {sHI}, {t}")
        e(f"v_add_f32 {v}, {f2u(1e-5):#x}, {v}")
        e(f"v_cvt_pk_bf16_f32 {v}, {v}, {v}"); e(f"v_and_b32 {v}, {sHI}, {v}")
        e(f"v_sqrt_f32 {v}, {v}")
        e(f"v_cvt_pk_bf16_f32 {v}, {v}, {v}"); e(f"v_and_b32 {v}, {sHI}, {v}")
        e(f"v_rcp_f32 {v}, {v}")
        e(f"v_mul_f32 {m}, {m}, {v}")
        for kp in range(7):
            z = 7 * hh + kp
            for d in range(4 * z, 4 * z + 4):
                e(f"v_fma_f32 v{2*d}, v{2*d}, {v}, -{m}"); e(f"v_fma_f32 v{2*d+1}, v{2*d+1}, {v}, -{m}")
            for d in range(4 * z, 4 * z + 4):
                e(f"v_cvt_pk_bf16_f32 v{128+d}, v{2*d}, v{2*d+1}")
            ad = xa(2 * kp + 1, 'v187', 'v188', hh * 128).split()
            e(f"ds_write_b128 {ad[0]}, {vr(128+4*z,4)} {ad[1]}")
            if helper and hh == 1: F.emit(2)
        if hh == 0:
            if cfg.hack & 16: stamp(P, cfg, 15)
            e("v_mov_b32 v122, 0"); e("v_lshlrev_b32 v123, 7, v255")
            e(f"s_cmp_lg_u32 {sMODE}, 0"); e(f"s_cbranch_scc1 L_norst{role}")
            e(f"s_mov_b64 exec, {3 if helper else 0x7f}"); e("global_store_dword v123, v122, s[100:101] sc1", tag='opt'); e("s_mov_b64 exec, -1")
            e(f"L_norst{role}:")
    if helper: F.wait(('WQ', 0), ('WQ', 1))
    e("s_waitcnt lgkmcnt(0)")
    stamp(P, cfg, 12)
    e("s_barrier")
    xr = [f"ds_read_b128 {vr((2*kk+qt)*4,4)}, {xa(kk, *(('v229', 'v230') if kk & 1 else ('v227', 'v228')), qt*1024)}" for kk in range(14) for qt in range(2)]
    for t in xr[:16]: e(t)
    xr = xr[16:]
    def start():
        e("s_barrier", extra_rd=regs_of("v[0:63]"))
        if helper:
            for T in range(2, 6): dma_wq(F, T, WQ_SLOT[T])
            F.emit(4)
        stamp(P, cfg, 2)
    items = []
    after = {1: [('WQ', 6), ('WQ', 7), ('WQ', 8), ('WQ', 9)], 2: [('WQ', 10), ('WQ', 11)], 3: [('WQ', 12), ('WQ', 13)], 4: [('K', 0), ('V', 0)], 5: [('K', 1), ('K', 2)], 6: []}
    def mkhook(k):
        def hook():
            if helper:
                F.wait(('WQ', 2*k), ('WQ', 2*k+1), *([('K', 0)] if k == 6 else []))
            if k == 1: P.waitvm('opt')
            e("s_barrier", extra_rd=regs_of("v[64:111]") if k == 1 else None)
            if helper:
                for (w, t) in after.get(k, []):
                    if w == 'WQ': dma_wq(F, t, WQ_SLOT[t])
                    else: dma_kv(F, w, t, (t & 3) + (4 if w == 'V' else 0))
            elif k == 1:
                e(f"s_or_b32 s7, {sMODE}, {sSUB}"); e("s_cbranch_scc1 L_noarr")
                e(f"s_lshl_b32 s7, {sQB}, 4"); e("v_mov_b32 v228, s7"); e("v_mov_b32 v229, 1")
                e("s_mov_b64 exec, 1"); e("global_atomic_add v228, v229, s[68:69] sc1", tag='opt'); e("s_mov_b64 exec, -1")
                e("L_noarr:")
        return hook
    for T in range(14):
        sl = WQ_SLOT[T]; base = f"v{224 + sl // 3}"; so = (sl % 3) * SLOT
        for t in range(8):
            imm = so + (t >> 2) * 256 + (t & 3) * 32
            mf = [(128 + ((t >> 1) * 2 + qt) * 8 + (t & 1) * 4, (2 * T + qt) * 4, '0' if T == 0 else None) for qt in range(2)]
            items.append(dict(mf=mf, reads=tr_reads(base, imm, imm + 8448), hook=mkhook(T // 2) if (T % 2 == 0 and T > 0 and t == 0) else None))
    def gap(i, k):
        T, t = divmod(i, 8)
        for _ in range(2):
            if xr: e(xr.pop(0))
        if helper: F.emit()
        else:
            if T >= 1 and t < 4: e(f"v_mov_b64 {vr(8*(T-1)+2*t,2)}, 0")
            elif 1 <= T < 5 and t in (4, 5): e(f"v_mov_b64 {vr(112+4*(T-1)+2*(t-4),2)}, 0")
            elif t == 6 and T >= cfg.tq0: F.emit()
    stream(P, items, [192 + 4 * i for i in range(6)], 6, gap, group=3, start=start)
    assert not F.q or not helper
    F.flush()
    e(f"s_lshr_b32 s7, {sSUB}, 1"); e(f"s_mul_i32 s7, s7, {SLOT}"); e(f"s_and_b32 {sT3}, {sSUB}, 1"); e(f"s_lshl_b32 {sT3}, {sT3}, 13")
    e(f"s_add_u32 s7, s7, {sT3}"); e(f"s_add_u32 s7, s7, {7*SLOT}")
    e("v_lshlrev_b32 v254, 4, v255"); e("v_add_u32 v254, s7, v254")
    if helper:
        for g in range(8):
            for t in qfin(g): e(t)
            if g: e(f"ds_write_b128 v254, {vr(128+4*(g-1),4)} offset:{(g-1)*1024}")
        e(f"ds_write_b128 v254, {vr(156,4)} offset:{7*1024}")
        P.waitvm(('K', 1))
        e("s_waitcnt lgkmcnt(0)")
        stamp(P, cfg, 3)
        e("s_barrier")
    return F

def qfin(g):
    r = [f"v_mul_f32 v{128+8*g+i}, {sC}, v{128+8*g+i}" for i in range(8)]
    r += [f"v_cvt_pk_bf16_f32 v{128+4*g+i}, v{128+8*g+2*i}, v{129+8*g+2*i}" for i in (0, 2, 1, 3)] if g else \
         [f"v_cvt_pk_bf16_f32 v{128+i}, v{128+2*i}, v{129+2*i}" for i in range(4)]
    r += [f"v_permlane16_swap_b32 v{128+4*g}, v{130+4*g}", f"v_permlane16_swap_b32 v{129+4*g}, v{131+4*g}"]
    return r

BUFS = [224, 228, 232, 236, 240, 244, 252]
PAT = list(range(7)) + list(range(6)) + list(range(6)) + list(range(7)) + list(range(6))
LEAD = sched.LEAD
SA = [192, 200]; SB = 208; NEGM = 216; LR = [250, 251]
def fbuf(f): return BUFS[PAT[f % 32]]
def oacc(t, qt): return ((t >> 1) * 2 + qt) * 8 + (t & 1) * 4
def k_imm(f): return (f >> 3) * 8448 + ((f & 7) >> 1) * 256 + (f & 1) * 64
def k_read(P, f, slot): P.e(f"ds_read_b128 {vr(fbuf(f),4)}, v248 offset:{slot*SLOT + k_imm(f)}")
def v_read(P, f, slot):
    t = f - 16
    imm = slot * SLOT + (t >> 2) * 256 + (t & 3) * 32
    P.e(f"{TR} {vr(fbuf(f),2)}, v249 offset:{imm}")
    P.e(f"{TR} {vr(fbuf(f)+2,2)}, v249 offset:{imm + 8448}")

def sm_text(task, sa):
    if task[0] in ('exp', 'add'):
        _, blk, q, i = task
        r = (sa if blk == 'a' else SB) + 4 * q + i
        return f"v_exp_f32 v{r}, v{r}" if task[0] == 'exp' else f"v_add_f32 v{LR[q]}, v{LR[q]}, v{r}"
    _, q, k = task
    src = (sa if k < 2 else SB) + 4 * q + 2 * (k & 1)
    return f"v_cvt_pk_bf16_f32 v{sa+4*q+k}, v{src}, v{src+1}"

FIXED = WAITS = PLACE = None

def gen_iter(P, j, ctl=False, bar=16, lab='L_loop'):
    e = P.e
    cur = SA[j & 1]; nxt = SA[(j + 1) & 1]
    for g in range(64):
        f, qt = g >> 1, g & 1
        if CFG.snake & (1 if f < 16 else 2): qt ^= f & 1
        extra = set()
        for z in WAITS.get(g, []): extra |= regs_of(vr(fbuf(z), 4))
        if f < 16:
            acc = (nxt if f < 8 else SB) + 4 * qt
            c = vr(NEGM + 4 * qt, 4) if (f & 7) == 0 else vr(acc, 4)
            e(f"{MF} {vr(acc,4)}, {vr(fbuf(f),4)}, {vr(128 + ((f&7)*2+qt)*4,4)}, {c}", extra_rd=extra)
        else:
            a = oacc(f - 16, qt)
            e(f"{MF} {vr(a,4)}, {vr(fbuf(f),4)}, {vr(cur+4*qt,4)}, {vr(a,4)}", extra_rd=extra)
        late = []
        for it in FIXED[g]:
            if it[0] == 'read':
                n = it[1]
                if CFG.x & 4 and n % 2: continue
                if n < 16: k_read(P, n, (j + 1) & 3)
                elif n < 32: v_read(P, n, j & 3)
                else: k_read(P, n - 32, (j + 2) & 3)
            elif it[0] == 'ctl' and ctl: late.append(f"s_sub_u32 {sTRIP}, {sTRIP}, 1")
            elif it[0] == 'branch' and ctl: late.append(f"s_cbranch_scc0 {lab}")
        if g == bar: late.append("s_barrier")
        for t in PLACE.get(g + 64, []):
            if not (CFG.x & 2 and t[0] != 'cvt') and not (CFG.x & 8 and t[0] == 'add'): e(sm_text(t, cur))
        for t in PLACE.get(g, []):
            if not (CFG.x & 2 and t[0] != 'cvt') and not (CFG.x & 8 and t[0] == 'add'): e(sm_text(t, nxt))
        for t in late: e(t)

def xgroup(P, op, r, t):
    e = P.e
    e(f"v_mov_b32 {t}, {r}"); e(f"v_permlane16_swap_b32 {r}, {t}"); e(f"{op} {r}, {r}, {t}")
    e(f"v_mov_b32 {t}, {r}"); e(f"v_permlane32_swap_b32 {r}, {t}"); e(f"{op} {r}, {r}, {t}")

SR, SO, SF = SWQ, SWG, SWU
def msum(Q, acc, src):
    for h in range(16):
        for ee in range(2): Q.e(f"{MF} {vr(acc+4*ee,4)}, {vr(192+4*ee,4)}, {vr(src+4*h,4)}, {'0' if h == 0 else vr(acc+4*ee,4)}")
def silu8(Q, a):
    rnd8(Q, a, 224)
    for i in range(8): Q.e(f"v_mul_f32 v{224+i}, s73, v{a+i}")
    for i in range(8): Q.e(f"v_exp_f32 v{224+i}, v{224+i}")
    for i in range(8): Q.e(f"v_add_f32 v{224+i}, 1.0, v{224+i}")
    for i in range(8): Q.e(f"v_rcp_f32 v{224+i}, v{224+i}")
    for i in range(8): Q.e(f"v_mul_f32 v{a+i}, v{a+i}, v{224+i}")
    rnd8(Q, a, 224)
def fetch(P, cfg, r, dst, voff, between):
    e = P.e
    e(f"s_lshl_b32 s84, {sSUB}, 7"); e(f"s_mov_b32 {sT1}, 0"); e(f"s_mov_b32 {sTRIP}, {SPIN}")
    if cfg.hack & 64: stamp(P, cfg, 1, True)
    def onepass(nm):
        e(f"buffer_load_dword v253, v252, {SF}, s84 offen offset:{512*r} sc1"); e("s_waitcnt vmcnt(0)")
        e("v_cmp_le_u32 vcc, 1, v253")
        e(f"s_andn2_b32 {sT2}, vcc_lo, {sT1}"); e(f"s_or_b32 {sT1}, {sT1}, vcc_lo")
        for h in range(16):
            e(f"s_bitcmp1_b32 {sT2}, {h}"); e(f"s_cbranch_scc0 {nm}_{h}")
            e(f"s_mov_b32 {sT3}, {h*1024 + r*4*STG}")
            e(f"buffer_load_dwordx4 {vr(dst+4*h,4)}, {voff}, {SR}, {sT3} offen sc1", tag='touch')
            e(f"{nm}_{h}:")
    onepass(f"L_fa{r}")
    if cfg.hack & 64: stamp(P, cfg, 2, True)
    between()
    e(f"s_cmp_eq_u32 {sT1}, -1"); e(f"s_cbranch_scc1 L_fd{r}")
    e(f"L_fl{r}:")
    onepass(f"L_fb{r}")
    e(f"s_cmp_eq_u32 {sT1}, -1"); e(f"s_cbranch_scc1 L_fd{r}")
    e(f"s_sleep {cfg.slp}")
    e(f"s_sub_u32 {sTRIP}, {sTRIP}, 1"); e(f"s_cbranch_scc0 L_fl{r}")
    e(f"L_fd{r}:")
    if cfg.hack & 64: stamp(P, cfg, 3, True)
def fin(P, cfg, r, src, xr):
    e = P.e; a = 208
    for d in range(4): e(f"v_lshlrev_b32 v{232+2*d}, 16, v{xr+d}"); e(f"v_and_b32 v{233+2*d}, {sHI}, v{xr+d}")
    e("s_waitcnt vmcnt(0)")
    if cfg.hack & 64: stamp(P, cfg, 4, True)
    msum(P, a, src)
    rnd8(P, a, 224)
    for i in range(8): e(f"v_mul_f32 v{a+i}, v{a+i}, v{200+i}")
    rnd8(P, a, 224)
    for i in range(8): e(f"v_add_f32 v{a+i}, v{a+i}, v{232+i}")
    for d in range(4): e(f"v_cvt_pk_bf16_f32 v{240+d}, v{a+2*d}, v{a+2*d+1}")
    e(f"buffer_store_dwordx4 v[240:243], v251, {SO}, s86 offen offset:{r*512}")

def gen_compute(P, cfg):
    e = P.e
    m0 = P.mark()
    if cfg.prio == 1: e("s_setprio 2")
    gen_ln_qproj(P, cfg, False)
    stamp(P, cfg, 3)
    order = [f for kk in range(8) for f in (kk, 8 + kk)]
    items = [dict(mf=[((SA[0] if f < 8 else SB) + 4 * qt, 128 + ((f & 7) * 2 + qt) * 4, '0' if (f & 7) == 0 else None) for qt in range(2)],
                  reads=[("ds_read_b128", "v248", k_imm(f), 0, 4)]) for f in order]
    def start():
        for t in range(4): e(f"v_mov_b64 {vr(104+2*t,2)}, 0")
        for t in qfin(0) + qfin(1): e(t)
    def gap0(i, k):
        if i < 6:
            for t in qfin(i + 2): e(t)
            if i == 2: e("s_barrier")
            if i >= 2:
                for z in (2 * (i - 2), 2 * (i - 2) + 1): e(f"ds_read_b128 {vr(160+4*z,4)}, v254 offset:{z*1024}")
    stream(P, items, BUFS[:6], 6, gap0, group=2, start=start)
    e("s_waitcnt vmcnt(0)")
    for f in range(LEAD): k_read(P, f, 1)
    e(f"s_cmp_lg_u32 {sMODE}, 0"); e("s_cbranch_scc1 L_havem")
    mm = P.mark()
    for q in range(2):
        a, b, m = SA[0] + 4 * q, SB + 4 * q, NEGM + 4 * q
        e(f"v_max3_f32 v{m}, v{a}, v{a+1}, v{a+2}"); e(f"v_max3_f32 v{m}, v{m}, v{a+3}, v{b}"); e(f"v_max3_f32 v{m}, v{m}, v{b+1}, v{b+2}"); e(f"v_max_f32 v{m}, v{m}, v{b+3}")
    xgroup(P, "v_max_f32", f"v{NEGM}", f"v{NEGM+1}"); xgroup(P, "v_max_f32", f"v{NEGM+4}", f"v{NEGM+5}")
    for q in range(2):
        m = NEGM + 4 * q
        for i in (1, 2, 3, 0): e(f"v_sub_f32 v{m+i}, 0, v{m}")
    minit = P.since(mm)
    e("L_havem:")
    for q in range(2):
        for i in range(4):
            e(f"v_add_f32 v{SA[0]+4*q+i}, v{SA[0]+4*q+i}, v{NEGM+4*q}"); e(f"v_add_f32 v{SB+4*q+i}, v{SB+4*q+i}, v{NEGM+4*q}")
    e(f"v_mov_b32 v{LR[0]}, 0"); e(f"v_mov_b32 v{LR[1]}, 0")
    for g in range(18, 64):
        for t in PLACE[g]: e(sm_text(t, SA[0]))
    e(f"s_mov_b32 {sTRIP}, 15")
    stamp(P, cfg, 4)
    e("s_waitcnt lgkmcnt(0)")
    if cfg.vbit >= 0: e(f"s_bitcmp1_b32 {sSUB}, {cfg.vbit}"); e("s_cbranch_scc1 L_itb0")
    e("s_branch L_it0")
    pro = P.since(m0)
    itb = {}
    if cfg.vbit >= 0:
        e(".p2align 6")
        e("L_loopb:")
        for j in (3, 0, 1, 2):
            if j == 0: e("L_itb0:")
            m = P.mark(); gen_iter(P, j, ctl=(j == 2), bar=cfg.barb, lab='L_loopb'); itb[j] = P.since(m)
        e("s_branch L_tail")
    e(".p2align 6")
    e("L_loop:")
    its = {}
    for j in (3, 0, 1, 2):
        if j == 0: e("L_it0:")
        m = P.mark(); gen_iter(P, j, ctl=(j == 2), bar=cfg.bara); its[j] = P.since(m)
    m1 = P.mark()
    e('L_tail:')
    stamp(P, cfg, 5)
    cur = SA[1]
    e("s_barrier")
    for f in range(16, 16 + LEAD): v_read(P, f, 3)
    for g in range(64, 82):
        for t in PLACE[g]: e(sm_text(t, cur))
    post_ops = []
    Q = Prog()
    xgroup(Q, "v_add_f32", f"v{LR[0]}", "v208"); xgroup(Q, "v_add_f32", f"v{LR[1]}", "v209")
    Q.e(f"v_max_f32 v208, v{LR[0]}, v{LR[1]}"); Q.e(f"v_add_f32 v209, v{LR[0]}, v{LR[1]}")
    Q.e(f"v_rcp_f32 v{LR[0]}, v{LR[0]}"); Q.e(f"v_rcp_f32 v{LR[1]}, v{LR[1]}")
    Q.e("v_mbcnt_lo_u32_b32 v210, -1, 0"); Q.e("v_mbcnt_hi_u32_b32 v210, -1, v210")
    Q.e("v_lshrrev_b32 v211, 4, v210"); Q.e("v_bfe_u32 v212, v210, 2, 2"); Q.e("v_and_b32 v213, 3, v210")
    Q.e("v_lshrrev_b32 v212, 2, v210"); Q.e("v_lshlrev_b32 v192, 7, v212"); Q.e("v_lshl_add_u32 v192, v213, 3, v192")
    Q.e("v_bfe_u32 v212, v210, 3, 2"); Q.e("v_lshl_add_u32 v192, v212, 5, v192")
    for ee in (1, 2, 3): Q.e(f"v_xor_b32 v{192+ee}, {32*ee}, v192")
    for ee in range(4): Q.e(f"v_add_u32 v{196+ee}, {6*SLOT}, v{192+ee}")
    Q.e("v_lshlrev_b32 v248, 4, v210")
    Q.e(f"v_mov_b32 v214, {FLAG}"); Q.e("v_mov_b32 v215, 1")
    rest = Q.L
    for g in range(32, 64):
        f, qt = g >> 1, g & 1
        extra = set()
        for z in WAITS.get(g, []):
            if 16 <= z < 32: extra |= regs_of(vr(fbuf(z), 4))
        a = oacc(f - 16, qt)
        e(f"{MF} {vr(a,4)}, {vr(fbuf(f),4)}, {vr(cur+4*qt,4)}, {vr(a,4)}", extra_rd=extra)
        if qt == 1 and f + LEAD < 32: v_read(P, f + LEAD, 3)
        else:
            for _ in range(2):
                if rest: P.L.append(rest.pop(0))
    P.L.extend(rest)
    e(f"v_cmp_ngt_f32 vcc, {f2u(cfg.thr):#x}, v209")
    e("s_cbranch_vccz L_noflag")
    e("ds_write_b32 v214, v215")
    e("s_waitcnt lgkmcnt(0)")
    e("L_noflag:")
    e("s_barrier")
    e("ds_read_b32 v215, v214")
    def onorm(g):
        return [f"v_mul_f32 v{8*g+i}, v{8*g+i}, v{LR[g & 1]}" for i in range(8)] + [f"v_cvt_pk_bf16_f32 v{4*g+i}, v{8*g+2*i}, v{8*g+2*i+1}" for i in range(4)]
    items = []
    F = Filler(P)
    def ehook(t):
        def h():
            if cfg.hack & 32 and t % 2 == 0: e(f"s_memtime s[{48+t}:{49+t}]")
            if t in (2, 3, 4, 5, 6, cfg.lastb): e("s_barrier")
        return h
    def acc_o(s, ee, qt): return (64 if s & 1 else 128) + ((ee >> 1) * 2 + qt) * 8 + (ee & 1) * 4
    for t in range(14):
        sl = WO_SLOT[t]; so = (sl % 3) * SLOT; s, hf = t >> 1, t & 1
        for k4 in range(4):
            for ee in range(4):
                base = f"v{[192, 200, 196][sl // 3] + ee}"
                imm = so + k4 * 4096; kk = 4 * hf + k4
                items.append(dict(mf=[(acc_o(s, ee, qt), (kk * 2 + qt) * 4, '0' if kk == 0 else None) for qt in range(2)],
                                  reads=tr_reads(base, imm, imm + 2048),
                                  hook=ehook(t) if (t > 0 and k4 == 0 and ee == 0) else None))
    def cv(s, u, hf):
        o = 160 + 16 * (s & 1) + 4 * u + 2 * hf; a = acc_o(s, 0, 0) + 8 * u + 4 * hf
        F.add(f"v_cvt_pk_bf16_f32 v{o}, v{a}, v{a+1}", f"v_cvt_pk_bf16_f32 v{o+1}, v{a+2}, v{a+3}")
    def sto(s, u):
        o = 160 + 16 * (s & 1) + 4 * u
        F.add(f"s_mov_b32 {sT0}, {s*STG + u*16384}", f"buffer_store_dwordx4 {vr(o,4)}, v248, {SP}, {sT0} offen sc1", tag=('S', s))
    def publish(r):
        F.add((('S', r),), "s_mov_b64 exec, 1", f"global_store_dword v249, v254, s[100:101] offset:{128*r} sc1", "s_mov_b64 exec, -1", tag='fl')
    nrm = [t for g in range(2, 16) for t in onorm(g)]
    def start():
        for ee in range(4): e(f"v_add_u32 v{200+ee}, {3*SLOT}, v{192+ee}")
        e("v_mov_b32 v249, 0"); e("v_mov_b32 v254, 1"); e("v_add_u32 v204, s85, v248"); e("v_add_u32 v205, s90, v248")
        for t in onorm(0) + onorm(1): e(t)
        e("v_readfirstlane_b32 s7, v215")
        e(f"s_andn2_b32 s7, s7, {sMODE}"); e("s_cbranch_scc1 L_maxpass")
        stamp(P, cfg, 6)
        if cfg.hack & 32: stamp(P, cfg, 1)
        if cfg.hack & 64: stamp(P, cfg, 12, True)
    def gap(i, k):
        s, r = divmod(i, 32)
        if k: return
        for _ in range(6):
            if nrm: e(nrm.pop(0))
        if s >= 1:
            u, z = divmod(r, cfg.ssp)
            if u < 4:
                if z == 0: cv(s - 1, u, 0)
                if z == 1: cv(s - 1, u, 1)
                if z == 2: sto(s - 1, u)
        if s >= 2 and r == cfg.pubr: publish(s - 2)
        if i == cfg.xat: e('s_barrier')
        F.flush()
    stream(P, items, [216 + 4 * i for i in range(8)], 7, gap, group=4, start=start)
    if cfg.hack & 32: e('s_memtime s[62:63]'); e('s_waitcnt lgkmcnt(0)'); dump_stamps(P); e('s_endpgm')
    st = (lambda i: None) if cfg.hack & 16 else (lambda i: stamp(P, cfg, i, bool(cfg.hack & 64)))
    st(13)
    for u in range(4): cv(6, u, 0); cv(6, u, 1); sto(6, u)
    F.flush()
    if cfg.xat >= 224: e("s_barrier")
    st(14)
    for k, r0 in enumerate((192, 196, 244, 250)): e(f"ds_read_b128 {vr(r0,4)}, v205 offset:{k*1024}")
    for h in range(16): e(f"ds_read_b128 {vr(64+4*h,4)}, v204 offset:{h*1024}")
    publish(5); F.flush()
    msum(P, 200, 64)
    st(15); publish(6); F.flush()
    if cfg.hack & 64: stamp(P, cfg, 9, True)
    e(f"s_cmp_eq_u32 {sSUB}, 3"); e("s_cbranch_scc1 L_cdone")
    cslow = []
    fetch(P, cfg, 1, 0, "v248", lambda: silu8(P, 200))
    fin(P, cfg, 1, 0, 244)
    e("L_cdone:")
    if cfg.stamps:
        stamp(P, cfg, 7); e("s_waitcnt vmcnt(0)"); stamp(P, cfg, 8); stamp(P, cfg, 11, True); dump_stamps(P)
    e("s_endpgm")
    post = [x for x in P.since(m1) if not any(x is y for y in cslow)]
    m2 = P.mark()
    e("L_maxpass:")
    e("s_waitcnt vmcnt(0) lgkmcnt(0)")
    e("v_and_b32 v0, 15, v210"); e("v_lshlrev_b32 v0, 9, v0"); e("v_and_b32 v1, 1, v211"); e("v_lshl_add_u32 v0, v1, 5, v0")
    e("v_lshrrev_b32 v1, 1, v211"); e("v_lshl_add_u32 v0, v1, 4, v0")
    e(f"v_mov_b32 v{NEGM}, 0xff800000"); e(f"v_mov_b32 v{NEGM+4}, 0xff800000")
    e(f"s_mov_b32 {sT0}, 0")
    e("L_mp_loop:")
    for kk in range(8): e(f"buffer_load_dwordx4 {vr(16+4*kk,4)}, v0, {SK}, {sT0} offen offset:{kk*64}")
    e("s_waitcnt vmcnt(0)")
    for kk in range(8):
        for qt in range(2): e(f"{MF} {vr(8+4*qt,4)}, {vr(16+4*kk,4)}, {vr(128+(kk*2+qt)*4,4)}, {'0' if kk == 0 else vr(8+4*qt,4)}")
    e("s_nop 15")
    for qt in range(2):
        m = NEGM + 4 * qt; a = 8 + 4 * qt
        e(f"v_max3_f32 v{m}, v{m}, v{a}, v{a+1}"); e(f"v_max3_f32 v{m}, v{m}, v{a+2}, v{a+3}")
    e(f"s_add_u32 {sT0}, {sT0}, 8192"); e(f"s_cmp_lt_u32 {sT0}, {1<<20}"); e("s_cbranch_scc1 L_mp_loop")
    xgroup(P, "v_max_f32", f"v{NEGM}", f"v{NEGM+1}"); xgroup(P, "v_max_f32", f"v{NEGM+4}", f"v{NEGM+5}")
    for q in range(2):
        m = NEGM + 4 * q
        for i in (1, 2, 3, 0): e(f"v_sub_f32 v{m+i}, 0, v{m}")
    e("L_again:")
    e("s_waitcnt vmcnt(0) lgkmcnt(0)")
    e("v_mbcnt_lo_u32_b32 v0, -1, 0"); e("v_mbcnt_hi_u32_b32 v0, -1, v0"); e(f"s_lshl_b32 s7, {sWV}, 6"); e("v_add_u32 v0, s7, v0")
    e(f"s_mov_b32 {sMODE}, 1")
    e("s_barrier")
    e("s_branch L_restart")
    mp = P.since(m2)
    body = its[0] + its[1] + its[2] + its[3]
    trace = pro + body * 2 + its[0] + its[1] + its[2] + post
    skip = set(id(x) for x in minit)
    trace2 = [x for x in pro if id(x) not in skip] + body
    extra = []
    if itb:
        bb = itb[0] + itb[1] + itb[2] + itb[3]
        extra = [pro + bb * 2 + itb[0] + itb[1] + itb[2] + post]
    return [trace, trace2] + extra, [mp, cslow]

def poll(P, name, load, cmp, pre_issued=False):
    e = P.e
    if not pre_issued: e(load)
    e(cmp); e("s_cmp_eq_u64 vcc, -1"); e(f"s_cbranch_scc1 {name}_ok")
    m = P.mark()
    e(f"s_mov_b32 s7, {SPIN}")
    e(f"{name}_lp:")
    e(f"s_sleep {CFG.slp}")
    e(load, tag='opt'); e("s_waitcnt vmcnt(0)")
    e(cmp); e("s_cmp_eq_u64 vcc, -1"); e(f"s_cbranch_scc1 {name}_ok")
    e("s_sub_u32 s7, s7, 1"); e(f"s_cbranch_scc0 {name}_lp")
    slow = P.since(m)
    e(f"{name}_ok:")
    return slow

def rnd8(P, r, t):
    for d in range(4): P.e(f"v_cvt_pk_bf16_f32 v{t+d}, v{r+2*d}, v{r+2*d+1}")
    for d in range(4): P.e(f"v_lshlrev_b32 v{r+2*d}, 16, v{t+d}"); P.e(f"v_and_b32 v{r+2*d+1}, {sHI}, v{t+d}")

def gen_helper(P, cfg):
    e = P.e
    m0 = P.mark()
    e("L_helper:")
    e("s_setprio 2")
    F = gen_ln_qproj(P, cfg, True)
    dma_kv(F, 'V', 1, 5); dma_kv(F, 'K', 3, 3); dma_kv(F, 'V', 2, 6); F.flush()
    e(f"s_mov_b32 s73, {f2u(-LOG2E):#x}")
    lo, hi = cfg.plo, cfg.phi
    if lo != 2: e(f"s_setprio {lo}")
    P.waitvm(('V', 0), ('K', 2))
    e("s_barrier")
    GU0 = 3; ACT0 = GU0 + 28; NACT = cfg.nact; DN0 = ACT0 + NACT
    GPUB = [DN0 + 10, DN0 + 16]; GPOLL = [DN0 + 12, DN0 + 21]; GSRC = [112, 0]; GSET = DN0 + 2; GSET2 = DN0 + 15
    slows = []
    ntr = [cfg.ktr]
    def acc_g(m, ee, mat, qt): return 112 + 32 * (m & 1) + (ee * 2 + qt) * 8 + mat * 4
    def act(m):
        L = []
        for ee in range(2):
            regs = [acc_g(m, ee, 0, qt) + i for qt in range(2) for i in range(4)]
            for r in regs: L.append(f"v_mul_f32 v{r}, s73, v{r}")
            for r in regs: L.append(f"v_exp_f32 v{r}, v{r}")
            for r in regs: L.append(f"v_add_f32 v{r}, 1.0, v{r}")
            for r in regs: L.append(f"v_rcp_f32 v{r}, v{r}")
            for r in regs: L.append(f"v_mul_f32 v{r}, v{r}, v{r+4}")
            for qt in range(2):
                a = acc_g(m, ee, 0, qt); d = 208 + (m * 2 + qt) * 4 + ee * 2
                L.append(f"v_cvt_pk_bf16_f32 v{d}, v{a}, v{a+1}"); L.append(f"v_cvt_pk_bf16_f32 v{d+1}, v{a+2}, v{a+3}")
        return L
    def split(L, n):
        cost = [2 if t.startswith(('v_exp', 'v_rcp')) else 1 for t in L]; tot = sum(cost); parts = [[] for _ in range(n)]; acc = 0
        for t, c in zip(L, cost):
            parts[min(n - 1, acc * n // tot)].append(t); acc += c
        return parts
    def acc_d(nt, ee, qt): return 48 + 16 * (nt & 1) + (qt * 2 + ee) * 4
    def out_cv(nt):
        o = 80 + 8 * (nt & 1)
        return [f"v_cvt_pk_bf16_f32 v{o+4*qt+i}, v{acc_d(nt, 0, qt)+2*i}, v{acc_d(nt, 0, qt)+2*i+1}" for qt in range(2) for i in range(4)]
    def out_st(nt):
        o = 80 + 8 * (nt & 1)
        e(f"s_mov_b32 {sT3}, {(nt>>1)*STG + (nt&1)*32768}"); e(f"buffer_store_dwordx4 {vr(o,4)}, v249, {SP}, {sT3} offen sc1", tag=('st', nt // 8))
        e(f"s_addk_i32 {sT3}, 16384"); e(f"buffer_store_dwordx4 {vr(o+4,4)}, v249, {SP}, {sT3} offen sc1", tag=('st', nt // 8))
    def chunk_mf(c, i):
        b, ee = i >> 1, i & 1
        if c < 28:
            m, s = divmod(c, 7); T = 2 * s + (b >> 1)
            return [(acc_g(m, ee, b & 1, qt), (2 * T + qt) * 4, T == 0) for qt in range(2)]
        return [(acc_d(c - 28, ee, qt), 208 + (b * 2 + qt) * 4, b == 0) for qt in range(2)]
    def rd(c, i):
        imm = (c % 3) * GLUS + (i >> 1) * 2048
        e(f"{TR} {vr(176+4*i,2)}, v{246+(i&1)} offset:{imm}"); e(f"{TR} {vr(178+4*i,2)}, v{246+(i&1)} offset:{imm+1024}")
    small_only = []; big_only = []
    def burst(c, nxt, fill, skip_from=8):
        fill = list(fill)
        if hi != lo: e(f"s_setprio {hi}")
        for i in range(8):
            if i == skip_from:
                for t in fill: e(t)
                fill = []
                e("s_cmp_lg_u32 s99, 0"); e(f"s_cbranch_scc1 L_bs{c}"); mk = P.mark()
            for k, (acc, bb, z) in enumerate(chunk_mf(c, i)[::-1] if (cfg.snake & 4 and i & 1) else chunk_mf(c, i)):
                e(f"{MF} {vr(acc,4)}, {vr(176+4*i,4)}, {vr(bb,4)}, {'0' if z else vr(acc,4)}")
                if k == 0:
                    room = 2
                    while fill and room > 0:
                        cst = 2 if fill[0].startswith(('v_exp', 'v_rcp')) else 1
                        if cst > room: break
                        e(fill.pop(0)); room -= cst
            if nxt is not None: rd(nxt, i)
        if skip_from < 8:
            big_only.extend(P.since(mk)); e(f"L_bs{c}:")
        if hi != lo: e(f"s_setprio {lo}")
        for t in fill: e(t)
    for j in range(64):
        if j in (3, ACT0, DN0, DN0 + 14, 62): stamp(P, cfg, {3: 4, ACT0: 5, DN0: 6, DN0 + 14: 7, 62: 8}[j])
        if j in (3, ACT0): stamp(P, cfg, {3: 1, ACT0: 2}[j], True)
        if j == GSET + 1: e("global_load_dword v253, v252, s[68:69] sc1")
        if j in GPOLL: e(f"buffer_load_dword v253, v252, {SF}, s84 offen offset:{128*GPOLL.index(j)} sc1")
        if j + 4 < 64 and not cfg.x & 1: dma_kv(F, 'K', j + 4, j & 3)
        if j < 28: dma_gu(F, j)
        if 0 <= j + 3 - DN0 < 14: dma_wd(F, 28 + j + 3 - DN0, j + 3 - DN0)
        if j + 3 < 64 and not (cfg.x & 1 and j): dma_kv(F, 'V', j + 3, 4 + ((j + 3) & 3))
        for nt in {59: [0], 60: [1], 61: [2, 3], 62: [4, 5], 63: [6, 7]}.get(j, []): dma_wo(F, nt, WO_SLOT[nt])
        if cfg.touch:
            if cfg.ltouch and j % 2 == 0 and ntr[0] < min(16, j // 4 + cfg.klead + 1):
                ntr[0] += 1
                F.add(f"s_add_u32 {sT3}, s89, {(ntr[0]-1)*65536}", f"buffer_load_dword v244, v243, {ST}, {sT3} offen", tag='touch')
            if j == 10:
                F.add(f"s_mul_i32 {sT3}, {sSH}, 7168", f"s_add_u32 {sT3}, {sT3}, s88", f"s_lshl_b32 {sT3}, {sT3}, {cfg.hx-1}", f"buffer_load_dword v244, v243, {SWD}, {sT3} offen", tag='touch')
            if j in (cfg.wot, cfg.wot + 2):
                F.add(f"s_mul_i32 {sT3}, {sSH}, 14336", f"s_add_u32 {sT3}, {sT3}, s88", f"s_add_u32 {sT3}, {sT3}, {0 if j==cfg.wot else 8192}", f"s_lshl_b32 {sT3}, {sT3}, {cfg.hx-1}", f"buffer_load_dword v244, v243, {SWO}, {sT3} offen", tag='touch')
        if j == GU0 - 1:
            for i in range(8): rd(0, i)
        if GU0 <= j < ACT0:
            c = j - GU0; m, s = divmod(c, 7)
            fill = split(act(m - 1), 7)[s] if m else []
            if m == 3:
                e("s_cmp_lg_u32 s99, 0"); e(f"s_cbranch_scc0 L_bg{c}")
                mk = P.mark()
                for t in fill: e(t)
                e(f"s_branch L_be{c}")
                small_only.extend(P.since(mk))
                e(f"L_bg{c}:"); mk = P.mark()
            burst(c, c + 1 if c < 27 else None, fill)
            if m == 3: big_only.extend(P.since(mk)); e(f"L_be{c}:")
        if DN0 <= j < DN0 + 14:
            nt = j - DN0
            burst(28 + nt, 29 + nt if nt < 13 else None, out_cv(nt - 1) if nt else [], skip_from=6)
        if j == DN0 + 14:
            for t in out_cv(13): e(t)
        if ACT0 <= j < DN0:
            F.flush()
            e("s_cmp_lg_u32 s99, 0"); e(f"s_cbranch_scc1 L_as{j}"); mk = P.mark()
            for t in split(act(3), NACT)[j - ACT0]: e(t)
            big_only.extend(P.since(mk)); e(f"L_as{j}:")
            if j == DN0 - 1:
                for i in range(8): rd(28, i)
        if j == GSET:
            for t in final_salu(): e(t)
            e(f"s_lshl_b32 s7, {sQB}, 4"); e("v_mov_b32 v252, s7")
        if j == GSET2:
            F.emit(4)
            e("v_and_b32 v176, 15, v255"); e("v_lshrrev_b32 v177, 4, v255")
            e("v_mul_u32_u24 v251, 896, v176"); e("v_lshl_add_u32 v251, v177, 4, v251")
            e("v_lshrrev_b32 v178, 3, v255"); e("v_lshlrev_b32 v179, 1, v177"); e("v_and_b32 v180, 7, v255"); e("v_xor_b32 v179, v179, v180")
            e("v_mul_u32_u24 v248, 896, v178"); e("v_lshl_add_u32 v248, v179, 4, v248")
            e("v_bfe_u32 v178, v176, 2, 1"); e("v_lshlrev_b32 v178, 3, v178")
            e("v_lshrrev_b32 v179, 3, v176"); e("v_lshl_add_u32 v178, v179, 1, v178")
            e("v_bfe_u32 v179, v176, 1, 1"); e("v_add_u32 v178, v178, v179")
            e("v_lshlrev_b32 v179, 2, v177"); e("v_sub_u32 v178, v178, v179")
            e("v_and_b32 v179, 1, v176"); e("v_lshlrev_b32 v179, 4, v179"); e("v_mov_b32 v180, 0x3f80"); e("v_lshlrev_b32 v179, v179, v180")
            for ee in range(2):
                for i in range(4):
                    e(f"v_cmp_eq_u32 vcc, {i - 4 * ee}, v178"); e(f"v_cndmask_b32 v{192+4*ee+i}, 0, v179, vcc")
        F.flush()
        if DN0 + 1 <= j <= DN0 + 14: out_st(j - DN0 - 1)
        if j == GSET2 + 2:
            for r in range(2): e(f"buffer_load_dwordx4 {vr(216+4*r,4)}, v251, {SX}, s86 offen offset:{r*512}")
            if cfg.otouch: e(f"buffer_load_dword v244, off, {SO}, s86", tag='touch')
        if j in GPUB:
            r = GPUB.index(j)
            e("v_mov_b32 v96, 0"); e(f"v_mov_b32 v97, 1"); P.waitvm(('st', r))
            e("s_mov_b64 exec, 1"); e(f"global_store_dword v96, v97, s[100:101] offset:{128*r} sc1", tag='fl'); e("s_mov_b64 exec, -1")
        if j == GSET + 1:
            slows.append(poll(P, "L_pa", "global_load_dword v253, v252, s[68:69] sc1", "v_cmp_le_u32 vcc, 16, v253", True))
            e("v_and_b32 v252, 15, v255"); e("v_lshlrev_b32 v252, 2, v252")
        if j in GPOLL:
            r = GPOLL.index(j)
            slows.append(poll(P, f"L_pg{r}", f"buffer_load_dword v253, v252, {SF}, s84 offen offset:{128*r} sc1", "v_cmp_le_u32 vcc, 1, v253", True))
        for r in range(2):
            k = j - GPOLL[r] - 1
            if 0 <= k < 8:
                for h in (2 * k, 2 * k + 1):
                    e(f"s_mov_b32 {sT3}, {GP_OFF + h*1024 + r*4*STG}")
                    e(f"buffer_load_dwordx4 {vr(GSRC[r]+4*h,4)}, v249, {SR}, {sT3} offen sc1")
        if j == cfg.pe: stamp(P, cfg, 13)
        if j < 63:
            need = [('K', j + 3), ('V', j + 1), ('G', j - 1)]
            if 0 <= j + 2 - DN0 < 14: need.append(('G', 28 + j + 2 - DN0))
        else:
            need = [('WO', 0), ('WO', 1)]
            e(f"v_mov_b32 v176, {FLAG}")
        P.waitvm(*need)
        if GU0 - 1 <= j < DN0 + 13: e("s_waitcnt lgkmcnt(0)")
        if j == cfg.pe: stamp(P, cfg, 14)
        e("s_barrier")
        if j == cfg.pe - 1: stamp(P, cfg, 9)
        if j == cfg.pe: stamp(P, cfg, 15)
    e("ds_read_b32 v177, v176")
    for k in range(6):
        if cfg.hack & 32 and k >= 2: stamp(P, cfg, 1 + 3 * (k - 2))
        dma_wo(F, 8 + k, WO_SLOT[8 + k]); F.flush()
        if cfg.hack & 32 and k >= 2: stamp(P, cfg, 2 + 3 * (k - 2))
        if k == 0:
            e("v_readfirstlane_b32 s7, v177")
            e(f"s_andn2_b32 s7, s7, {sMODE}"); e("s_cbranch_scc1 L_again")
        P.waitvm(*[('WO', t) for t in ([k + 2] if k < 4 else range(6, cfg.lastb) if k == 4 else range(cfg.lastb, 14))])
        if cfg.hack & 32 and k >= 2: stamp(P, cfg, 3 + 3 * (k - 2))
        e("s_barrier")
    if cfg.hack & 32: stamp(P, cfg, 13); dump_stamps(P); e("s_endpgm")
    e(f"s_setprio {cfg.pep}")
    if cfg.hack & 4: e("s_branch L_hdone")
    e(f"s_cmp_eq_u32 {sSUB}, 3"); e("s_cbranch_scc1 L_hskip")
    for t in xch_salu(): e(t)
    e("v_add_u32 v176, s85, v249"); e("v_add_u32 v177, s90, v249"); e("v_mov_b32 v250, v249")
    for h in range(16): e(f"ds_write_b128 v176, {vr(4*h,4)} offset:{h*1024}")
    for k, r0 in enumerate((192, 196, 220, 250)): e(f"ds_write_b128 v177, {vr(r0,4)} offset:{k*1024}")
    e("L_hskip:")
    e("s_waitcnt vmcnt(0) lgkmcnt(0)")
    e("s_barrier")
    fetch(P, cfg, 0, 0, "v249", lambda: (msum(P, 200, 112), silu8(P, 200)))
    fin(P, cfg, 0, 0, 216)
    e("L_hdone:")
    if cfg.stamps:
        e("s_waitcnt vmcnt(0)"); stamp(P, cfg, 11, True); dump_stamps(P)
    e("s_endpgm")
    sk = set(id(x) for s in slows for x in s)
    allh = [x for x in P.since(m0) if id(x) not in sk]
    so = set(map(id, small_only)); bo = set(map(id, big_only))
    return [[x for x in allh if id(x) not in so], [x for x in allh if id(x) not in bo]], slows

def kd(name, vgpr, ydim=False):
    return "\n".join([f".amdhsa_kernel {name}", f"  .amdhsa_next_free_vgpr {vgpr}", "  .amdhsa_next_free_sgpr 102",
        f"  .amdhsa_accum_offset {vgpr}", "  .amdhsa_group_segment_fixed_size 0", "  .amdhsa_kernarg_size 96",
        "  .amdhsa_user_sgpr_count 2", "  .amdhsa_user_sgpr_kernarg_segment_ptr 1", "  .amdhsa_system_sgpr_workgroup_id_x 1"]
        + (["  .amdhsa_system_sgpr_workgroup_id_y 1"] if ydim else []) + [".end_amdhsa_kernel"])

def generate(cfg=None):
    cfg = cfg or Cfg()
    global FIXED, WAITS, PLACE, CFG
    CFG = cfg
    FIXED, WAITS, PLACE = sched.plan(wait_group=cfg.wg)
    P = Prog()
    K1 = NAME + "_kernel"
    P.e(".p2align 8"); P.e(f"{K1}:")
    m = P.mark(); gen_entry(P, cfg); entry = P.since(m)
    ctraces, other = gen_compute(P, cfg)
    htrace, hother = gen_helper(P, cfg)
    P.e("L_end:"); P.e("s_endpgm")
    P.e("L_code_end:")
    full = [entry + t for t in ctraces] + [entry + t for t in htrace]
    resolve(full + [[x for x in t if x.tag != 'opt'] for t in full] + other + hother)
    nb = lambda t: sum(1 for x in t if x.kind != 'none' and x.op == 's_barrier')
    print("barriers compute", nb(ctraces[0]) + 13 * 4, "helper", nb(htrace[0]), nb(htrace[1]))
    if cfg.hack & 2:
        for I in P.L:
            if I.text.startswith("buffer_store_dwordx4"): I.text = I.text.replace(" sc1", "")
    if cfg.hack & 8:
        for I in P.L:
            if I.text.startswith("buffer_store_dwordx4"): I.text = I.text.replace(" sc1", " sc0 sc1")
    if cfg.dflag:
        fl = {1: "nt", 2: "sc1", 3: "sc0", 4: "sc0 sc1", 5: "sc0 nt", 6: "sc1 nt"}[cfg.dflag]
        for I in P.L:
            if I.text.endswith(" lds") and I.tag and I.tag[0] in ('K', 'V', 'G', 'WQ', 'WO'): I.text = I.text[:-4] + f" {fl} lds"
    out = expand(P.L)
    mis = align8(out)
    head = [f"; @launch grid=(256,1,1) block=(512,1,1) lds={LDS_BYTES}",
            '.amdgcn_target "amdgcn-amd-amdhsa--gfx950"', ".text",
            f".globl {K1}", f".type {K1},@function"]
    span = 0
    for I in out:
        if I.text == "L_code_end:": break
        if I.text.startswith(".p2align"):
            a = 1 << int(I.text.split()[1]); span = -(-span // a) * a
        span += I.size()
    body = [I.text.replace("CODE_SPAN", str((span - 128) & ~3)) for I in out]
    print("code bytes K1", span)
    tail = ['.section .rodata,"a"', ".p2align 6", kd(K1, 256)]
    return "\n".join(head + body + tail) + "\n", mis

if __name__ == "__main__":
    cfg = Cfg()
    for a in sys.argv[2:]:
        k, v = a.split('='); setattr(cfg, k, float(v) if k == 'thr' else int(v))
    s, mis = generate(cfg)
    open(sys.argv[1], "w").write(s)
    print("bytes", len(s), "lines", s.count("\n"), "misaligned", mis)
```

```python
import struct, sys
from asmlib import *
import sched

NAME = "recurrent_scan__mha_block_cached__glu_gated_glu__prompt"
def f2u(x): return struct.unpack('<I', struct.pack('<f', x))[0]
LOG2E = 1.4426950408889634
SLOT = 16896
GLUB = 8 * SLOT
GLUS = 8192
FLAG = GLUB - 32
LDS_BYTES = 163840
GP_OFF = 0x2000000
STG = 262144
FL_OFF = 0x4000000
SPIN = 400000

sHEAD, sQB, sWV, sSUB = 's3', 's4', 's5', 's6'
SX, SK, SV, SWQ, SWO, SWG, SWU, SWD, SP, ST = [f"s[{8+4*i}:{11+4*i}]" for i in range(10)]
sC = 's72'; sHI = 's74'; sTRIP = 's75'
sLK, sLV, sL1K = 's76', 's77', 's78'
sMODE = 's79'
sSH = 's91'
sT0, sT1, sT2, sT3 = 's80', 's81', 's82', 's83'
sKO, sVO = 's96', 's97'
def srd(i): return 8 + 4 * i
def vr(a, n): return f"v[{a}:{a+n-1}]"
MF = "v_mfma_f32_16x16x32_bf16"
TR = "ds_read_b64_tr_b16"

class Cfg:
    glu = 1
    touch = 1
    prio = 2
    stamps = 0
    thr = 2.0 ** 64
    wq_at = 33
    xpar = 0
    pe = 20
    hack = 0
    plo = 0
    hx = 1
    t_at = 28
    ktr = 2
    klead = 6
    gtouch = 1
    tq0 = 8
    phi = 2
    nact = 2
    flip = 0
    x = 0
    snake = 7
    lnpk = 3
    pre2 = 0
    xrot = 1
    stouch = 0
    tlb = 0
    oflag = 1
    otouch = 0
    dflag = 0
    vbit = -1
    bara = 15
    barb = 15
    pep = 0
    pd = 2
    lastb = 9
    pubr = 13
    ctop = 1
    xat = 224
    ssp = 4
    fo = 1
    sn = -1
    wot = 53
    pl = 4
    slp = 8
    wg = 3
    ltouch = 1
    etouch = 1

def stream(P, items, bufs, lead, gapfill=None, group=2, start=None):
    n = len(items)
    buf = [bufs[i % len(bufs)] for i in range(n)]
    def reads(i):
        it = items[i]
        if it.get('hook'): it['hook']()
        for (op, addr, imm, sub, w) in it['reads']:
            P.e(f"{op} {vr(buf[i]+sub, w)}, {addr} offset:{imm}")
    for i in range(min(lead, n)): reads(i)
    if start: start()
    for i in range(n):
        it = items[i]
        for k, (acc, b, c) in enumerate(it['mf'][::-1] if (CFG.snake & 4 and i & 1) else it['mf']):
            extra = set()
            if group and k == len(it['mf']) - 1 and (i + 1) % group == 0:
                for z in range(1, group + 1):
                    if i + z < n: extra |= regs_of(vr(buf[i+z], 4))
            P.e(f"{MF} {vr(acc,4)}, {vr(buf[i],4)}, {vr(b,4)}, {c if c is not None else vr(acc,4)}", extra_rd=extra)
            if k == len(it['mf']) - 1 and i + lead < n: reads(i + lead)
            elif gapfill: gapfill(i, k)

def tr_reads(addr, imm0, imm1): return [(TR, addr, imm0, 0, 2), (TR, addr, imm1, 2, 2)]

class Filler:
    def __init__(self, P): self.P = P; self.q = []
    def add(self, *texts, **kw): self.q.append((texts, kw))
    def emit(self, k=1):
        for _ in range(k):
            if not self.q: return
            texts, kw = self.q.pop(0)
            for t in texts:
                if isinstance(t, tuple): self.P.waitvm(*t)
                elif t.startswith(('buffer_', 'global_')): self.P.e(t, **kw)
                else: self.P.e(t)
    def flush(self): self.emit(len(self.q))
    def wait(self, *tags):
        assert not any(kw.get('tag') in tags for _, kw in self.q), tags
        self.P.waitvm(*tags)

def dma_kv(F, which, tile, slot):
    sr, sl, so = (SK, sLK, sKO) if which == 'K' else (SV, sLV, sVO)
    ld = lambda off: f"buffer_load_dwordx4 v240, {sr}, {so} offen" + (f" offset:{off}" if off else "") + " lds"
    tag = (which, tile)
    F.add(f"s_add_u32 m0, {sl}, {slot*SLOT}", f"s_addk_i32 {so}, 8192", ld(0), tag=tag)
    F.add("s_addk_i32 m0, 32", ld(1024), tag=tag)
    F.add(f"s_addk_i32 m0, {8448-32}", f"s_addk_i32 {so}, 8192", ld(0), tag=tag)
    F.add("s_addk_i32 m0, 32", ld(1024), tag=tag)
def dma_wq(F, tile, slot):
    ld = f"buffer_load_dwordx4 v245, {SWQ}, {sT0} offen lds"
    tag = ('WQ', tile)
    F.add(f"s_add_u32 m0, {sLV}, {slot*SLOT}", f"s_mov_b32 {sT0}, {32*tile*8192}", ld, tag=tag)
    for d in (1056, 7392, 1056):
        F.add(f"s_addk_i32 m0, {d}", f"s_addk_i32 {sT0}, 16384", ld, tag=tag)
def dma_wo(F, t, slot):
    ld = f"buffer_load_dwordx4 v248, {SWO}, {sT0} offen lds"
    tag = ('WO', t)
    F.add(f"s_add_u32 m0, {sL1K}, {slot*SLOT}", f"s_add_u32 {sT0}, s87, {(t & 1)*128*896 + (t >> 1)*128}", ld, tag=tag)
    for p in range(3): F.add("s_addk_i32 m0, 1024", f"s_addk_i32 {sT0}, {8*896}", ld, tag=tag)
def dma_gu(F, c):
    base = GLUB + (c % 3) * GLUS; m, s = divmod(c, 7)
    ld = f"buffer_load_dwordx4 v241, {SWG}, {sT2} offen lds"
    F.add(f"s_add_u32 m0, s88, {base}", f"s_mov_b32 {sT2}, {64*s*3584 + m*64}", ld, tag=('G', c))
    F.add("s_addk_i32 m0, 1024", f"s_addk_i32 {sT2}, {4*3584}", ld, tag=('G', c))
def dma_wd(F, c, nt):
    base = GLUB + (c % 3) * GLUS
    ld = f"buffer_load_dwordx4 v242, {SWD}, {sT2} offen lds"
    F.add(f"s_add_u32 m0, s88, {base}", f"s_add_u32 {sT2}, s87, {nt*64}", ld, tag=('G', c))
    F.add("s_addk_i32 m0, 1024", f"s_addk_i32 {sT2}, 14336", ld, tag=('G', c))

WQ_SLOT = {0: 7, 1: 8, 2: 5, 3: 3, 4: 6, 5: 4, 6: 0, 7: 1, 8: 2, 9: 7, 10: 8, 11: 5, 12: 3, 13: 6}
WO_SLOT = {0: 8, 1: 0, 2: 1, 3: 4, 4: 2, 5: 5, 6: 3, 7: 6, 8: 7, 9: 8, 10: 0, 11: 1, 12: 4, 13: 2}

def streg(idx): return {0: 's94', 10: 's95'}.get(idx, f"s{48+idx}") if not H32 else f"s{48+idx}"
H32 = False
NLAB = 0
def stamp(P, cfg, idx, real=False):
    if not cfg.stamps: return
    P.e(f"{'s_memrealtime' if real else 's_memtime'} s[64:65]"); P.e("s_waitcnt lgkmcnt(0)")
    P.e(f"s_mov_b32 {streg(idx)}, s64")
def dump_stamps(P):
    e = P.e
    global H32
    H32 = bool(CFG.hack & 32)
    if CFG.hack & 128:
        global NLAB
        NLAB += 1
        e("s_mov_b64 exec, 1")
        e("v_mov_b32 v0, 0"); e(f"v_mov_b32 v1, {streg(11)}"); e(f"s_not_b32 s7, {streg(10)}"); e("v_mov_b32 v2, s7")
        e("global_atomic_umax v0, v1, s[68:69] offset:4"); e("global_atomic_umax v0, v2, s[68:69] offset:8")
        e(f"s_lshl_b32 s7, s2, 3"); e(f"s_add_u32 s7, s7, {sWV}"); e(f"s_cmp_lg_u32 s7, {37*8}"); e(f"s_cbranch_scc1 L_nd{NLAB}")
        for w, (x, y) in zip((3, 5, 6, 7, 9, 10, 11, 13, 14), ((1, 0), (2, 1), (3, 2), (4, 3), (5, 4), (6, 5), (13, 6), (8, 13), (11, 10))):
            e(f"s_sub_u32 s7, {streg(x)}, {streg(y)}"); e(f"v_mov_b32 v{w+4}, s7"); e(f"global_store_dword v0, v{w+4}, s[68:69] offset:{4*w}")
        e(f"L_nd{NLAB}:")
        return
    for i in range(16): e(f"v_writelane_b32 v254, {streg(i)}, {i}")
    e(f"s_lshl_b32 s7, s2, 3"); e(f"s_add_u32 s7, s7, {sWV}"); e("s_lshl_b32 s7, s7, 8"); e("s_add_u32 s7, s7, 0x8000000")
    e("s_add_u32 s96, s70, s7"); e("s_addc_u32 s97, s71, 0")
    e("v_mbcnt_lo_u32_b32 v255, -1, 0"); e("v_mbcnt_hi_u32_b32 v255, -1, v255"); e("v_lshlrev_b32 v255, 2, v255")
    e("global_store_dword v255, v254, s[96:97]")

def mad(P, dst, src, mul, acc=None):
    P.e(f"s_movk_i32 s7, {mul}" if mul < 32768 else f"s_mov_b32 s7, {mul}")
    if acc is None: P.e(f"v_mul_u32_u24 {dst}, s7, {src}")
    else: P.e(f"v_mad_u32_u24 {dst}, {src}, s7, {acc}")

def gen_entry(P, cfg):
    e = P.e
    e("s_cmp_ge_u32 s2, 256"); e("s_cbranch_scc1 L_end")
    e(f"s_mov_b32 {sMODE}, 0")
    e("L_restart:")
    stamp(P, cfg, 0); stamp(P, cfg, 10, True)
    e("s_load_dwordx16 s[48:63], s[0:1], 0"); e("s_load_dwordx8 s[64:71], s[0:1], 64")
    e("s_getpc_b64 s[96:97]")
    if cfg.ctop:
        e("s_lshr_b32 s7, s2, 3"); e("s_lshl_b32 s7, s7, 12"); e("v_lshl_add_u32 v189, v0, 3, s7"); e("v_min_u32 v189, CODE_SPAN, v189")
        e("global_load_dword v251, v189, s[96:97]", tag='touch')
    e("v_lshrrev_b32 v1, 6, v0")
    e("v_and_b32 v255, 63, v0")
    e(f"v_readfirstlane_b32 {sWV}, v1")
    hx = cfg.hx; lm = hx - 1; M = 1 << lm
    e(f"s_and_b32 {sHEAD}, s2, {(16 >> hx) - 1}"); e(f"s_lshl_b32 {sHEAD}, {sHEAD}, {hx}"); e(f"s_bfe_u32 s7, s2, {(hx << 16) | 3:#x}"); e(f"s_add_u32 {sHEAD}, {sHEAD}, s7")
    e(f"s_lshr_b32 {sSH}, s2, {3 + hx}")
    if hx > 1: e(f"s_bfe_u32 s7, s2, {(lm << 16) | (4 - hx):#x}"); e(f"s_lshl_b32 s7, s7, {5 - hx}"); e(f"s_add_u32 {sQB}, {sSH}, s7")
    else: e(f"s_mov_b32 {sQB}, {sSH}")
    e(f"s_and_b32 {sSUB}, {sWV}, 3")
    e("s_mov_b32 s11, 0x20000"); e(f"s_mov_b32 s10, {2048*896}")
    e("v_lshrrev_b32 v186, 3, v255"); e("v_and_b32 v185, 7, v255"); e("v_lshlrev_b32 v184, 4, v185"); mad(P, 'v184', 'v186', 896, 'v184')
    if cfg.xrot: e(f"s_add_u32 s84, {sWV}, s2"); e("s_and_b32 s84, s84, 7"); e(f"s_and_b32 {sTRIP}, s2, {cfg.xrot & 1}")
    else: e(f"s_mov_b32 s84, {sWV}"); e(f"s_mov_b32 {sTRIP}, 0")
    e(f"s_lshl_b32 s7, {sQB}, 3"); e("s_add_u32 s7, s7, s84"); e(f"s_mul_i32 {sT0}, s7, {16*896}")
    def mk(i, plo, mul, total, exact=None, idx=sHEAD):
        b = srd(i)
        e(f"s_mul_i32 s7, {idx}, {mul}")
        e(f"s_add_u32 s{b}, s{plo}, s7"); e(f"s_addc_u32 s{b+1}, s{plo+1}, 0")
        if exact is not None: e(f"s_mov_b32 s{b+2}, {exact}")
        else: e(f"s_sub_u32 s{b+2}, {total}, s7")
    e(f"v_lshrrev_b32 v250, {4-lm}, v0"); e("v_lshlrev_b32 v250, 13, v250"); e(f"v_and_b32 v2, {(16>>lm)-1}, v0"); e(f"v_lshl_add_u32 v250, v2, {5+lm}, v250")
    e(f"s_mul_i32 s90, {sSH}, {28*M*8192}")
    for i in range(1, 10): e(f"s_mov_b32 s{srd(i)+3}, 0x20000")
    e(f"s_mul_i32 s7, {sTRIP}, {8*896}"); e(f"s_add_u32 {sT1}, {sT0}, {8*896}"); e(f"s_add_u32 {sT0}, {sT0}, s7"); e(f"s_sub_u32 {sT1}, {sT1}, s7")
    e("s_waitcnt lgkmcnt(0)")
    if cfg.hack & 16: e("s_memtime s[86:87]")
    e("s_mov_b32 s8, s48"); e("s_mov_b32 s9, s49")
    if cfg.t_at == -2:
        mk(3, 54, 512, 448 * 8192); e(f"buffer_load_dword v251, v250, {SWQ}, s90 offen", tag='touch')
    for kp in range(7): e(f"buffer_load_dwordx4 {vr(128+4*kp,4)}, v184, {SX}, {sT0} offen offset:{kp*128}")
    if cfg.t_at != -2: mk(3, 54, 512, 448 * 8192)
    if cfg.t_at == -1: e(f"buffer_load_dword v251, v250, {SWQ}, s90 offen", tag='touch')
    if cfg.tlb & 1:
        e(f"s_load_dword s92, s[{srd(3)}:{srd(3)+1}], 0"); e(f"s_add_u32 s96, s{srd(3)}, {447*8192}"); e(f"s_addc_u32 s97, s{srd(3)+1}, 0"); e("s_load_dword s92, s[96:97], 0")
    if cfg.stouch:
        e(f"s_cmp_eq_u32 {sWV}, 7"); e("s_cbranch_scc1 L_nost")
        e(f"s_lshl_b32 s7, {sWV}, 15"); e("s_add_u32 s7, s7, s90"); e(f"s_add_u32 s96, s{srd(3)}, s7"); e(f"s_addc_u32 s97, s{srd(3)+1}, 0")
        for r in range(4):
            for l in range(4 * cfg.stouch): e(f"s_load_dword s92, s[96:97], {r*8192 + l*(128//cfg.stouch)}")
        e("L_nost:")
    mk(1, 50, 1 << 20, 0, 1 << 20)
    mk(2, 52, 1 << 20, 0, 1 << 20)
    mk(4, 56, 256 * 896, 0, 256 * 896)
    assert hx == 1
    e("s_and_b32 s98, s2, 6"); e("s_bfe_u32 s7, s2, 0x10003"); e("s_add_u32 s98, s98, s7"); e("s_mul_i32 s98, s98, 7")
    e("s_and_b32 s99, s2, 1")
    if cfg.flip: e("s_mul_i32 s7, s99, 3"); e("s_xor_b32 s99, s99, 1")
    else: e("s_lshl_b32 s7, s99, 2")
    e("s_add_u32 s98, s98, s7")
    mk(5, 60, 64, 448 * 3584, idx='s98')
    mk(6, 62, 64, 448 * 3584, idx='s98')
    mk(7, 64, 32 * 896, 1792 * 896, idx='s98')
    e(f"s_mul_i32 s7, {sQB}, {7*STG}"); e(f"s_lshl_b32 {sT2}, {sSUB}, 16"); e(f"s_add_u32 s7, s7, {sT2}"); e(f"s_lshl_b32 {sT2}, {sHEAD}, 10"); e(f"s_add_u32 s7, s7, {sT2}")
    e(f"s_lshr_b32 {sT2}, {sWV}, 2"); e(f"s_mul_i32 {sT2}, {sT2}, {GP_OFF}"); e(f"s_add_u32 s7, s7, {sT2}")
    e(f"s_add_u32 s{srd(8)}, s70, s7"); e(f"s_addc_u32 s{srd(8)+1}, s71, 0"); e(f"s_mov_b32 s{srd(8)+2}, {7*STG}")
    e(f"s_lshl_b32 s7, {sQB}, 2"); e(f"s_add_u32 s7, s7, {sSUB}"); e("s_lshl_b32 s7, s7, 8"); e(f"s_add_u32 s7, s7, {sHEAD}"); e("s_lshl_b32 s7, s7, 2")
    e(f"s_lshr_b32 {sT2}, {sWV}, 2"); e(f"s_lshl_b32 {sT2}, {sT2}, 16"); e(f"s_add_u32 s7, s7, {sT2}"); e(f"s_add_u32 s7, s7, {FL_OFF}")
    e("s_add_u32 s100, s70, s7"); e("s_addc_u32 s101, s71, 0")
    if cfg.tlb & 2:
        for i in (1, 2, 4, 5, 6, 7, 8): e(f"s_load_dword s92, s[{srd(i)}:{srd(i)+1}], 0")
        for p in ("100:101", "66:67", "68:69"): e(f"s_load_dword s92, s[{p}], 0")
    e(f"s_cmp_lt_u32 {sSUB}, 2")
    e(f"s_cselect_b32 s{srd(9)}, s{srd(1)}, s{srd(2)}"); e(f"s_cselect_b32 s{srd(9)+1}, s{srd(1)+1}, s{srd(2)+1}"); e(f"s_mov_b32 s{srd(9)+2}, {1<<20}")
    e(f"s_lshl_b32 s89, {sSH}, {12+lm}"); e(f"s_and_b32 s7, {sSUB}, 1"); e(f"s_lshl_b32 s7, s7, {11+lm}"); e("s_add_u32 s89, s89, s7")
    e(f"s_mov_b32 {sC}, {f2u(LOG2E/16):#x}"); e(f"s_mov_b32 {sHI}, 0xffff0000")
    e("v_lshrrev_b32 v112, 4, v255"); e("v_bfe_u32 v114, v255, 2, 2"); e("v_and_b32 v115, 3, v255")
    e("v_lshrrev_b32 v116, 1, v114"); e("v_lshl_add_u32 v116, v112, 1, v116"); e("v_lshlrev_b32 v224, 3, v115"); mad(P, 'v224', 'v116', 1056, 'v224')
    e("v_and_b32 v116, 1, v114"); e("v_lshl_add_u32 v224, v116, 7, v224")
    e("v_bfe_u32 v117, v255, 2, 1"); e("v_lshl_add_u32 v116, v115, 1, v117"); e("v_xor_b32 v116, v116, v186"); e("v_lshlrev_b32 v187, 4, v116")
    e("v_lshl_add_u32 v187, v115, 8, v187"); e("v_xor_b32 v117, 1, v117"); e("v_lshl_add_u32 v187, v117, 13, v187")
    e("s_lshl_b32 s7, s84, 3"); e(f"s_add_u32 s7, s7, {sTRIP}"); e("s_lshl_b32 s7, s7, 7"); e("v_add_u32 v187, s7, v187"); e("v_add_u32 v188, 0x10000, v187")
    e("v_lshlrev_b32 v116, 1, v112"); e("v_and_b32 v117, 15, v255"); e("v_xor_b32 v116, v116, v117"); e("v_lshlrev_b32 v227, 4, v116"); e("v_lshl_add_u32 v227, v112, 8, v227")
    e(f"s_lshl_b32 s7, {sSUB}, 11"); e("v_add_u32 v227, s7, v227"); e("v_add_u32 v228, 0x10000, v227")
    e("v_xor_b32 v229, 16, v227"); e("v_xor_b32 v230, 16, v228")
    e("v_lshrrev_b32 v185, 2, v255")
    if cfg.hack & 16: e("s_waitcnt lgkmcnt(0)"); e("s_mov_b32 s57, s86"); cfg.pe = -5
    e("v_lshlrev_b32 v240, 7, v112")
    e("v_and_b32 v116, 7, v255"); e("v_lshl_add_u32 v240, v116, 4, v240")
    e("v_bfe_u32 v116, v255, 3, 1")
    e("v_lshl_add_u32 v245, v116, 13, v240")
    e("v_lshl_add_u32 v240, v116, 9, v240")
    e(f"s_lshl_b32 s7, {sSUB}, 16"); e("v_add_u32 v245, s7, v245")
    e(f"s_mul_i32 {sLV}, {sSUB}, 2112")
    e(f"s_cmp_ge_u32 {sWV}, 4"); e("s_cbranch_scc1 L_hs")

def wdo_read_bases(P, d0, d1, G, r, c, tmp, add=0):
    e = P.e
    e(f"v_lshlrev_b32 {d0}, 3, {c}"); e(f"v_lshl_add_u32 {d0}, {G}, 8, {d0}"); e(f"v_lshl_add_u32 {d0}, {r}, 6, {d0}")
    e(f"v_and_b32 {tmp}, 1, {G}"); e(f"v_lshl_add_u32 {d0}, {tmp}, 5, {d0}")
    if add: e(f"v_add_u32 {d0}, {add}, {d0}")
    e(f"v_xor_b32 {d1}, 32, {d0}")

def final_salu():
    R = []; e = R.append
    e(f"s_lshr_b32 s7, {sHEAD}, 2"); e(f"s_mul_i32 {sT3}, {sQB}, {7*STG}"); e(f"s_lshl_b32 {sT2}, {sHEAD}, 14"); e(f"s_add_u32 {sT3}, {sT3}, {sT2}")
    e(f"s_lshl_b32 {sT2}, {sSUB}, 18"); e(f"s_add_u32 {sT3}, {sT3}, {sT2}")
    e(f"s_add_u32 s{srd(3)}, s70, {sT3}"); e(f"s_addc_u32 s{srd(3)+1}, s71, 0"); e(f"s_mov_b32 s{srd(3)+2}, {GP_OFF + 5*STG}")
    e(f"s_mov_b32 s{srd(5)}, s66"); e(f"s_mov_b32 s{srd(5)+1}, s67"); e(f"s_mov_b32 s{srd(5)+2}, {2048*896}")
    e(f"s_lshl_b32 {sT2}, {sQB}, 2"); e(f"s_add_u32 s7, s7, {sT2}")
    e(f"s_lshl_b32 {sT2}, s7, 10"); e(f"s_add_u32 {sT2}, {sT2}, {FL_OFF}")
    e(f"s_add_u32 s{srd(6)}, s70, {sT2}"); e(f"s_addc_u32 s{srd(6)+1}, s71, 0"); e(f"s_mov_b32 s{srd(6)+2}, 0x10400"); e("s_mov_b32 s84, 0x10000")
    e("s_lshl_b32 s7, s7, 1"); e(f"s_and_b32 {sT2}, {sHEAD}, 1"); e(f"s_add_u32 s7, s7, {sT2}"); e(f"s_mul_i32 s86, s7, {16*896}")
    e(f"s_lshl_b32 {sT2}, {sSUB}, 7"); e(f"s_add_u32 s86, s86, {sT2}"); e(f"s_bfe_u32 {sT2}, {sHEAD}, 0x10001"); e(f"s_lshl_b32 {sT2}, {sT2}, 6"); e(f"s_add_u32 s86, s86, {sT2}")
    return R

def xch_salu():
    return [f"s_lshl_b32 s7, {sSUB}, 2", "s_lshr_b32 s7, 0x635, s7", "s_and_b32 s7, s7, 15", f"s_mul_i32 s85, s7, {SLOT}",
            f"s_lshl_b32 s90, {sSUB}, 12", f"s_add_u32 s90, s90, {GLUB + 16384}"]

def xa(kk, lo, hi, add=0):
    o = (13 - kk) * 8192
    return f"{hi if o >= 65536 else lo} offset:{(o & 0xffff) + add}"
XR = [f"ds_read_b128 {vr((2*kk+qt)*4,4)}, {xa(kk, *(('v229', 'v230') if kk & 1 else ('v227', 'v228')), qt*1024)}" for kk in range(14) for qt in range(2)]

def gen_setup(P, cfg, helper):
    e = P.e
    F = Filler(P)
    lm = cfg.hx - 1; M = 1 << lm
    e(f"s_mov_b32 s93, {int(helper)}")
    if helper:
        e(f"s_lshl_b32 s88, {sSUB}, 11"); e("v_add_u32 v240, s88, v240")
        e(f"s_lshl_b32 s7, {sSUB}, 3"); e(f"s_lshr_b32 {sLK}, 0xc0703000, s7"); e(f"s_and_b32 {sLK}, {sLK}, 0xff"); e(f"s_add_u32 {sLK}, {sLK}, s88")
        e(f"s_lshl_b32 {sL1K}, {sSUB}, 12")
        e(f"s_movk_i32 {sKO}, -8192"); e(f"s_movk_i32 {sVO}, -8192")
        e("v_and_b32 v116, 1, v112"); e("v_lshlrev_b32 v116, 1, v116"); e("v_xor_b32 v116, v116, v115"); e("v_lshlrev_b32 v242, 4, v116")
        mad(P, 'v242', 'v185', 896, 'v242')
        e("v_lshl_add_u32 v117, v112, 3, v114"); e("v_lshlrev_b32 v241, 4, v116"); mad(P, 'v241', 'v117', 3584, 'v241')
        e(f"s_lshr_b32 s7, {sSUB}, 1"); e(f"s_mul_i32 s7, s7, {32*3584}"); e("v_add_u32 v241, s7, v241")
        e(f"s_bitcmp1_b32 {sSUB}, 0"); e(f"s_cselect_b32 s{srd(5)}, s{srd(6)}, s{srd(5)}"); e(f"s_cselect_b32 s{srd(5)+1}, s{srd(6)+1}, s{srd(5)+1}")
        e(f"v_lshlrev_b32 v243, {5+lm}, v255")
        e("v_lshlrev_b32 v249, 4, v255")
        e(f"s_mul_i32 s87, {sSUB}, {2*14336}")
        wdo_read_bases(P, 'v246', 'v247', 'v112', 'v114', 'v115', 'v116', GLUB)
        e("v_add_u32 v224, 512, v224")
    else:
        e(f"v_lshlrev_b32 v252, {5+lm}, v255")
        if cfg.touch:
            for tr in range(cfg.ktr):
                F.add(f"s_add_u32 {sT3}, s89, {tr*65536}", f"buffer_load_dword v251, v252, {ST}, {sT3} offen", tag='touch')
            e("v_mul_u32_u24 v253, 84, v115"); mad(P, 'v253', 'v185', 3584, 'v253')
        if cfg.touch and cfg.gtouch:
            F.add(f"s_lshl_b32 s7, {sSH}, 1", f"s_and_b32 {sT2}, {sSUB}, 1", f"s_add_u32 s7, s7, {sT2}", f"s_mul_i32 {sT3}, s7, {14*M*3584}",
                  f"s_cmp_lt_u32 {sSUB}, 2", f"s_cselect_b32 s{srd(9)}, s{srd(5)}, s{srd(6)}", f"s_cselect_b32 s{srd(9)+1}, s{srd(5)+1}, s{srd(6)+1}",
                  f"s_mov_b32 s{srd(9)+2}, s{srd(5)+2}", f"buffer_load_dword v251, v253, {ST}, {sT3} offen", tag='touch')
            for _ in range(M - 1): F.add(f"s_add_u32 {sT3}, {sT3}, {14*3584}", f"buffer_load_dword v251, v253, {ST}, {sT3} offen", tag='touch')
        F.add(*final_salu()); F.add(f"s_mov_b32 s73, {f2u(-LOG2E):#x}", *xch_salu())
        e("v_bfe_u32 v116, v255, 1, 3"); e("v_lshlrev_b32 v117, 2, v116"); e("s_mov_b32 s7, 0xec975320"); e("v_bfe_u32 v117, s7, v117, 4")
        e("v_lshlrev_b32 v248, 10, v116"); e("v_lshl_add_u32 v248, v117, 4, v248")
        e("v_and_b32 v116, 1, v255"); e("v_lshl_add_u32 v248, v116, 7, v248")
        e("v_and_b32 v116, 1, v112"); e("v_lshl_add_u32 v248, v116, 5, v248"); e("v_lshrrev_b32 v116, 1, v112"); e("v_lshl_add_u32 v248, v116, 4, v248")
        e(f"v_add_u32 v249, {4*SLOT}, v224")
        e(f"v_mov_b32 v116, {FLAG}"); e("v_mov_b32 v117, 0"); e("ds_write_b32 v116, v117")
    return F

def gen_ln(P, cfg):
    e = P.e
    F = Filler(P)
    e(f"v_add_u32 v225, {3*SLOT}, v224"); e(f"v_add_u32 v226, {6*SLOT}, v224")
    ld = f"buffer_load_dwordx4 v245, {SWQ}, {sT0} offen lds"
    F.add(f"s_lshr_b32 s7, {sWV}, 2", f"s_lshl_b32 {sT0}, s7, 18", f"s_mul_i32 s7, s7, {SLOT}", f"s_add_u32 s7, s7, {sLV}", f"s_add_u32 m0, s7, {7*SLOT}", ld, tag='W01')
    for d in (1056, 7392, 1056): F.add(f"s_addk_i32 m0, {d}", f"s_addk_i32 {sT0}, 16384", ld, tag='W01')
    if cfg.hack & 16: stamp(P, cfg, 13)
    for kp in range(cfg.pre2): e(f"buffer_load_dwordx4 {vr(156+4*kp,4)}, v184, {SX}, {sT1} offen offset:{kp*128}")
    if cfg.hack & 16: stamp(P, cfg, 14)
    for hh in range(2):
        m, t, v, u = "v118", "v119", "v120", "v121"
        for d in range(28 * hh, 28 * hh + 28):
            kp = d // 4 + cfg.pre2
            if hh == 0 and d % 4 == 0 and kp < 7:
                e(f"buffer_load_dwordx4 {vr(156+4*kp,4)}, v184, {SX}, {sT1} offen offset:{kp*128}", extra_rd=regs_of(f"v{128+d}"))
            e(f"v_lshlrev_b32 v{2*d}, 16, v{128+d}"); e(f"v_and_b32 v{2*d+1}, {sHI}, v{128+d}")
            pr = vr(2 * d, 2)
            if cfg.lnpk & 1:
                if d % 28 == 0: e(f"v_mov_b64 v[118:119], {pr}"); e(f"v_pk_mul_f32 v[120:121], {pr}, {pr}")
                else: e(f"v_pk_add_f32 v[118:119], v[118:119], {pr}"); e(f"v_pk_fma_f32 v[120:121], {pr}, {pr}, v[120:121]")
            elif d % 28 == 0:
                e(f"v_mov_b32 {m}, v{2*d}"); e(f"v_mov_b32 {t}, v{2*d+1}"); e(f"v_mul_f32 {v}, v{2*d}, v{2*d}"); e(f"v_mul_f32 {u}, v{2*d+1}, v{2*d+1}")
            else:
                e(f"v_add_f32 {m}, {m}, v{2*d}"); e(f"v_add_f32 {t}, {t}, v{2*d+1}")
                e(f"v_fmac_f32 {v}, v{2*d}, v{2*d}"); e(f"v_fmac_f32 {u}, v{2*d+1}, v{2*d+1}")
            if d == cfg.t_at and cfg.touch:
                e(f"buffer_load_dword v251, v250, {SWQ}, s90 offen", tag='touch')
            if d >= cfg.wq_at and d % 4 == 1: F.emit()
        if hh == 1: stamp(P, cfg, 1)
        e(f"v_add_f32 {m}, {m}, {t}"); e(f"v_add_f32 {v}, {v}, {u}")
        for qp in ("quad_perm:[1,0,3,2]", "quad_perm:[2,3,0,1]", "row_half_mirror"):
            e(f"v_add_f32_dpp {m}, {m}, {m} {qp} row_mask:0xf bank_mask:0xf")
            e(f"v_add_f32_dpp {v}, {v}, {v} {qp} row_mask:0xf bank_mask:0xf")
        e(f"s_mov_b32 s7, {f2u(1.0/448):#x}")
        e(f"v_mul_f32 {m}, s7, {m}")
        e(f"v_mul_f32 {t}, {m}, {m}")
        e(f"v_fma_f32 {v}, {v}, s7, -{t}")
        e(f"v_max_f32 {v}, 0, {v}")
        e(f"v_cvt_pk_bf16_f32 {t}, {m}, {v}")
        e(f"v_lshlrev_b32 {m}, 16, {t}")
        e(f"v_and_b32 {v}, {sHI}, {t}")
        e(f"v_add_f32 {v}, {f2u(1e-5):#x}, {v}")
        e(f"v_cvt_pk_bf16_f32 {v}, {v}, {v}"); e(f"v_and_b32 {v}, {sHI}, {v}")
        e(f"v_sqrt_f32 {v}, {v}")
        e(f"v_cvt_pk_bf16_f32 {v}, {v}, {v}"); e(f"v_and_b32 {v}, {sHI}, {v}")
        e(f"v_rcp_f32 {v}, {v}")
        e(f"v_mul_f32 {m}, {m}, {v}")
        if not cfg.lnpk & 2: e(f"v_mov_b32 {t}, {m}"); e(f"v_mov_b32 {u}, {v}")
        for kp in range(7):
            z = 7 * hh + kp
            for d in range(4 * z, 4 * z + 4):
                if cfg.lnpk & 2: e(f"v_pk_fma_f32 {vr(2*d,2)}, {vr(2*d,2)}, v[120:121], v[118:119] op_sel_hi:[1,0,0] neg_lo:[0,0,1] neg_hi:[0,0,1]")
                else: e(f"v_fma_f32 v{2*d}, v{2*d}, {u}, -{t}"); e(f"v_fma_f32 v{2*d+1}, v{2*d+1}, {v}, -{m}")
            for d in range(4 * z, 4 * z + 4):
                e(f"v_cvt_pk_bf16_f32 v{128+d}, v{2*d}, v{2*d+1}")
            ad = xa(2 * kp + 1, 'v187', 'v188').split()
            e(f"ds_write_b128 {ad[0]}, {vr(128+4*z,4)} {ad[1]}")
            if hh == 1: F.emit(2)
        if hh == 0:
            if cfg.hack & 16: stamp(P, cfg, 15)
            e("v_xor_b32 v187, 0x80, v187"); e("v_xor_b32 v188, 0x80, v188")
            e("v_mov_b32 v122, 0"); e("v_lshlrev_b32 v123, 7, v255")
            e(f"s_cmp_lg_u32 {sMODE}, 0"); e(f"s_cbranch_scc1 L_norst")
            e(f"s_mov_b64 exec, 0x7f"); e("global_store_dword v123, v122, s[100:101] sc1", tag='opt'); e("s_mov_b64 exec, -1")
            e(f"L_norst:")
    F.wait('W01')
    e("s_waitcnt lgkmcnt(0)")
    stamp(P, cfg, 12)
    e("s_barrier")
    for t in XR[:16]: e(t)
    e("s_cmp_eq_u32 s93, 1"); e("s_cbranch_scc1 L_helper")

def gen_qproj(P, cfg, helper, F):
    e = P.e
    xr = XR[16:]
    def start():
        e("s_barrier", extra_rd=regs_of("v[0:63]"))
        if helper:
            for T in range(2, 6): dma_wq(F, T, WQ_SLOT[T])
            F.emit(4)
        stamp(P, cfg, 2)
    items = []
    after = {1: [('WQ', 6), ('WQ', 7), ('WQ', 8), ('WQ', 9)], 2: [('WQ', 10), ('WQ', 11)], 3: [('WQ', 12), ('WQ', 13)], 4: [('K', 0), ('V', 0)], 5: [('K', 1), ('K', 2)], 6: []}
    def mkhook(k):
        def hook():
            if helper:
                F.wait(('WQ', 2*k), ('WQ', 2*k+1), *([('K', 0)] if k == 6 else []))
            if k == 1: P.waitvm('opt')
            e("s_barrier", extra_rd=regs_of("v[64:111]") if k == 1 else None)
            if helper:
                for (w, t) in after.get(k, []):
                    if w == 'WQ': dma_wq(F, t, WQ_SLOT[t])
                    else: dma_kv(F, w, t, (t & 3) + (4 if w == 'V' else 0))
            elif k == 1:
                e(f"s_or_b32 s7, {sMODE}, {sSUB}"); e("s_cbranch_scc1 L_noarr")
                e(f"s_lshl_b32 s7, {sQB}, 4"); e("v_mov_b32 v228, s7"); e("v_mov_b32 v229, 1")
                e("s_mov_b64 exec, 1"); e("global_atomic_add v228, v229, s[68:69] sc1", tag='opt'); e("s_mov_b64 exec, -1")
                e("L_noarr:")
        return hook
    for T in range(14):
        sl = WQ_SLOT[T]; base = f"v{224 + sl // 3}"; so = (sl % 3) * SLOT
        for t in range(8):
            imm = so + (t >> 2) * 256 + (t & 3) * 32
            mf = [(128 + ((t >> 1) * 2 + qt) * 8 + (t & 1) * 4, (2 * T + qt) * 4, '0' if T == 0 else None) for qt in range(2)]
            items.append(dict(mf=mf, reads=tr_reads(base, imm, imm + 8448), hook=mkhook(T // 2) if (T % 2 == 0 and T > 0 and t == 0) else None))
    def gap(i, k):
        T, t = divmod(i, 8)
        for _ in range(2):
            if xr: e(xr.pop(0))
        if helper: F.emit()
        else:
            if T >= 1 and t < 4: e(f"v_mov_b64 {vr(8*(T-1)+2*t,2)}, 0")
            elif 1 <= T < 5 and t in (4, 5): e(f"v_mov_b64 {vr(112+4*(T-1)+2*(t-4),2)}, 0")
            elif t == 6 and T >= cfg.tq0: F.emit()
    stream(P, items, [192 + 4 * i for i in range(6)], 6, gap, group=3, start=start)
    assert not F.q or not helper
    F.flush()
    e(f"s_lshr_b32 s7, {sSUB}, 1"); e(f"s_mul_i32 s7, s7, {SLOT}"); e(f"s_and_b32 {sT3}, {sSUB}, 1"); e(f"s_lshl_b32 {sT3}, {sT3}, 13")
    e(f"s_add_u32 s7, s7, {sT3}"); e(f"s_add_u32 s7, s7, {7*SLOT}")
    e("v_lshlrev_b32 v254, 4, v255"); e("v_add_u32 v254, s7, v254")
    if helper:
        for g in range(8):
            for t in qfin(g): e(t)
            if g: e(f"ds_write_b128 v254, {vr(128+4*(g-1),4)} offset:{(g-1)*1024}")
        e(f"ds_write_b128 v254, {vr(156,4)} offset:{7*1024}")
        P.waitvm(('K', 1))
        e("s_waitcnt lgkmcnt(0)")
        stamp(P, cfg, 3)
        e("s_barrier")
    return F

def qfin(g):
    r = [f"v_mul_f32 v{128+8*g+i}, {sC}, v{128+8*g+i}" for i in range(8)]
    r += [f"v_cvt_pk_bf16_f32 v{128+4*g+i}, v{128+8*g+2*i}, v{129+8*g+2*i}" for i in (0, 2, 1, 3)] if g else \
         [f"v_cvt_pk_bf16_f32 v{128+i}, v{128+2*i}, v{129+2*i}" for i in range(4)]
    r += [f"v_permlane16_swap_b32 v{128+4*g}, v{130+4*g}", f"v_permlane16_swap_b32 v{129+4*g}, v{131+4*g}"]
    return r

BUFS = [224, 228, 232, 236, 240, 244, 252]
PAT = list(range(7)) + list(range(6)) + list(range(6)) + list(range(7)) + list(range(6))
LEAD = sched.LEAD
SA = [192, 200]; SB = 208; NEGM = 216; LR = [250, 251]
def fbuf(f): return BUFS[PAT[f % 32]]
def oacc(t, qt): return ((t >> 1) * 2 + qt) * 8 + (t & 1) * 4
def k_imm(f): return (f >> 3) * 8448 + ((f & 7) >> 1) * 256 + (f & 1) * 64
def k_read(P, f, slot): P.e(f"ds_read_b128 {vr(fbuf(f),4)}, v248 offset:{slot*SLOT + k_imm(f)}")
def v_read(P, f, slot):
    t = f - 16
    imm = slot * SLOT + (t >> 2) * 256 + (t & 3) * 32
    P.e(f"{TR} {vr(fbuf(f),2)}, v249 offset:{imm}")
    P.e(f"{TR} {vr(fbuf(f)+2,2)}, v249 offset:{imm + 8448}")

def sm_text(task, sa):
    if task[0] in ('exp', 'add'):
        _, blk, q, i = task
        r = (sa if blk == 'a' else SB) + 4 * q + i
        return f"v_exp_f32 v{r}, v{r}" if task[0] == 'exp' else f"v_add_f32 v{LR[q]}, v{LR[q]}, v{r}"
    _, q, k = task
    src = (sa if k < 2 else SB) + 4 * q + 2 * (k & 1)
    return f"v_cvt_pk_bf16_f32 v{sa+4*q+k}, v{src}, v{src+1}"

FIXED = WAITS = PLACE = None

def gen_iter(P, j, ctl=False, bar=16, lab='L_loop'):
    e = P.e
    cur = SA[j & 1]; nxt = SA[(j + 1) & 1]
    for g in range(64):
        f, qt = g >> 1, g & 1
        if CFG.snake & (1 if f < 16 else 2): qt ^= f & 1
        extra = set()
        for z in WAITS.get(g, []): extra |= regs_of(vr(fbuf(z), 4))
        if f < 16:
            acc = (nxt if f < 8 else SB) + 4 * qt
            c = vr(NEGM + 4 * qt, 4) if (f & 7) == 0 else vr(acc, 4)
            e(f"{MF} {vr(acc,4)}, {vr(fbuf(f),4)}, {vr(128 + ((f&7)*2+qt)*4,4)}, {c}", extra_rd=extra)
        else:
            a = oacc(f - 16, qt)
            e(f"{MF} {vr(a,4)}, {vr(fbuf(f),4)}, {vr(cur+4*qt,4)}, {vr(a,4)}", extra_rd=extra)
        late = []
        for it in FIXED[g]:
            if it[0] == 'read':
                n = it[1]
                if CFG.x & 4 and n % 2: continue
                if n < 16: k_read(P, n, (j + 1) & 3)
                elif n < 32: v_read(P, n, j & 3)
                else: k_read(P, n - 32, (j + 2) & 3)
            elif it[0] == 'ctl' and ctl: late.append(f"s_sub_u32 {sTRIP}, {sTRIP}, 1")
            elif it[0] == 'branch' and ctl: late.append(f"s_cbranch_scc0 {lab}")
        if g == bar: late.append("s_barrier")
        for t in PLACE.get(g + 64, []):
            if not (CFG.x & 2 and t[0] != 'cvt') and not (CFG.x & 8 and t[0] == 'add'): e(sm_text(t, cur))
        for t in PLACE.get(g, []):
            if not (CFG.x & 2 and t[0] != 'cvt') and not (CFG.x & 8 and t[0] == 'add'): e(sm_text(t, nxt))
        for t in late: e(t)

def xgroup(P, op, r, t):
    e = P.e
    e(f"v_mov_b32 {t}, {r}"); e(f"v_permlane16_swap_b32 {r}, {t}"); e(f"{op} {r}, {r}, {t}")
    e(f"v_mov_b32 {t}, {r}"); e(f"v_permlane32_swap_b32 {r}, {t}"); e(f"{op} {r}, {r}, {t}")

SR, SO, SF = SWQ, SWG, SWU
def msum(Q, acc, src):
    for h in range(16):
        for ee in range(2): Q.e(f"{MF} {vr(acc+4*ee,4)}, {vr(192+4*ee,4)}, {vr(src+4*h,4)}, {'0' if h == 0 else vr(acc+4*ee,4)}")
def silu8(Q, a):
    rnd8(Q, a, 224)
    for i in range(8): Q.e(f"v_mul_f32 v{224+i}, s73, v{a+i}")
    for i in range(8): Q.e(f"v_exp_f32 v{224+i}, v{224+i}")
    for i in range(8): Q.e(f"v_add_f32 v{224+i}, 1.0, v{224+i}")
    for i in range(8): Q.e(f"v_rcp_f32 v{224+i}, v{224+i}")
    for i in range(8): Q.e(f"v_mul_f32 v{a+i}, v{a+i}, v{224+i}")
    rnd8(Q, a, 224)
def fetch(P, cfg, r, dst, voff, between):
    e = P.e
    e(f"s_lshl_b32 s84, {sSUB}, 7"); e(f"s_mov_b32 {sT1}, 0"); e(f"s_mov_b32 {sTRIP}, {SPIN}")
    if cfg.hack & 64: stamp(P, cfg, 1, True)
    def onepass(nm):
        e(f"buffer_load_dword v253, v252, {SF}, s84 offen offset:{512*r} sc1"); e("s_waitcnt vmcnt(0)")
        e("v_cmp_le_u32 vcc, 1, v253")
        e(f"s_andn2_b32 {sT2}, vcc_lo, {sT1}"); e(f"s_or_b32 {sT1}, {sT1}, vcc_lo")
        for h in range(16):
            e(f"s_bitcmp1_b32 {sT2}, {h}"); e(f"s_cbranch_scc0 {nm}_{h}")
            e(f"s_mov_b32 {sT3}, {h*1024 + r*4*STG}")
            e(f"buffer_load_dwordx4 {vr(dst+4*h,4)}, {voff}, {SR}, {sT3} offen sc1", tag='touch')
            e(f"{nm}_{h}:")
    onepass(f"L_fa{r}")
    if cfg.hack & 64: stamp(P, cfg, 2, True)
    between()
    e(f"s_cmp_eq_u32 {sT1}, -1"); e(f"s_cbranch_scc1 L_fd{r}")
    e(f"L_fl{r}:")
    onepass(f"L_fb{r}")
    e(f"s_cmp_eq_u32 {sT1}, -1"); e(f"s_cbranch_scc1 L_fd{r}")
    e(f"s_sleep {cfg.slp}")
    e(f"s_sub_u32 {sTRIP}, {sTRIP}, 1"); e(f"s_cbranch_scc0 L_fl{r}")
    e(f"L_fd{r}:")
    if cfg.hack & 64: stamp(P, cfg, 3, True)
def fin(P, cfg, r, src, xr):
    e = P.e; a = 208
    for d in range(4): e(f"v_lshlrev_b32 v{232+2*d}, 16, v{xr+d}"); e(f"v_and_b32 v{233+2*d}, {sHI}, v{xr+d}")
    e("s_waitcnt vmcnt(0)")
    if cfg.hack & 64: stamp(P, cfg, 4, True)
    msum(P, a, src)
    rnd8(P, a, 224)
    for i in range(8): e(f"v_mul_f32 v{a+i}, v{a+i}, v{200+i}")
    rnd8(P, a, 224)
    for i in range(8): e(f"v_add_f32 v{a+i}, v{a+i}, v{232+i}")
    for d in range(4): e(f"v_cvt_pk_bf16_f32 v{240+d}, v{a+2*d}, v{a+2*d+1}")
    e(f"buffer_store_dwordx4 v[240:243], v251, {SO}, s86 offen offset:{r*512}" + ["", " sc1", " nt", " sc0 sc1"][cfg.oflag])

def gen_compute(P, cfg, FC):
    e = P.e
    m0 = P.mark()
    gen_qproj(P, cfg, False, FC)
    stamp(P, cfg, 3)
    order = [f for kk in range(8) for f in (kk, 8 + kk)]
    items = [dict(mf=[((SA[0] if f < 8 else SB) + 4 * qt, 128 + ((f & 7) * 2 + qt) * 4, '0' if (f & 7) == 0 else None) for qt in range(2)],
                  reads=[("ds_read_b128", "v248", k_imm(f), 0, 4)]) for f in order]
    def start():
        for t in range(4): e(f"v_mov_b64 {vr(104+2*t,2)}, 0")
        for t in qfin(0) + qfin(1): e(t)
    def gap0(i, k):
        if i < 6:
            for t in qfin(i + 2): e(t)
            if i == 2: e("s_barrier")
            if i >= 2:
                for z in (2 * (i - 2), 2 * (i - 2) + 1): e(f"ds_read_b128 {vr(160+4*z,4)}, v254 offset:{z*1024}")
    stream(P, items, BUFS[:6], 6, gap0, group=2, start=start)
    e("s_waitcnt vmcnt(0)")
    for f in range(LEAD): k_read(P, f, 1)
    e(f"s_cmp_lg_u32 {sMODE}, 0"); e("s_cbranch_scc1 L_havem")
    mm = P.mark()
    for q in range(2):
        a, b, m = SA[0] + 4 * q, SB + 4 * q, NEGM + 4 * q
        e(f"v_max3_f32 v{m}, v{a}, v{a+1}, v{a+2}"); e(f"v_max3_f32 v{m}, v{m}, v{a+3}, v{b}"); e(f"v_max3_f32 v{m}, v{m}, v{b+1}, v{b+2}"); e(f"v_max_f32 v{m}, v{m}, v{b+3}")
    xgroup(P, "v_max_f32", f"v{NEGM}", f"v{NEGM+1}"); xgroup(P, "v_max_f32", f"v{NEGM+4}", f"v{NEGM+5}")
    for q in range(2):
        m = NEGM + 4 * q
        for i in (1, 2, 3, 0): e(f"v_sub_f32 v{m+i}, 0, v{m}")
    minit = P.since(mm)
    e("L_havem:")
    for q in range(2):
        for i in range(4):
            e(f"v_add_f32 v{SA[0]+4*q+i}, v{SA[0]+4*q+i}, v{NEGM+4*q}"); e(f"v_add_f32 v{SB+4*q+i}, v{SB+4*q+i}, v{NEGM+4*q}")
    e(f"v_mov_b32 v{LR[0]}, 0"); e(f"v_mov_b32 v{LR[1]}, 0")
    for g in range(18, 64):
        for t in PLACE[g]: e(sm_text(t, SA[0]))
    e(f"s_mov_b32 {sTRIP}, 15")
    stamp(P, cfg, 4)
    e("s_waitcnt lgkmcnt(0)")
    if cfg.vbit >= 0: e(f"s_bitcmp1_b32 {sSUB}, {cfg.vbit}"); e("s_cbranch_scc1 L_itb0")
    e("s_branch L_it0")
    pro = P.since(m0)
    itb = {}
    if cfg.vbit >= 0:
        e(".p2align 6")
        e("L_loopb:")
        for j in (3, 0, 1, 2):
            if j == 0: e("L_itb0:")
            m = P.mark(); gen_iter(P, j, ctl=(j == 2), bar=cfg.barb, lab='L_loopb'); itb[j] = P.since(m)
        e("s_branch L_tail")
    e(".p2align 6")
    e("L_loop:")
    its = {}
    for j in (3, 0, 1, 2):
        if j == 0: e("L_it0:")
        m = P.mark(); gen_iter(P, j, ctl=(j == 2), bar=cfg.bara); its[j] = P.since(m)
    m1 = P.mark()
    e('L_tail:')
    stamp(P, cfg, 5)
    cur = SA[1]
    e("s_barrier")
    for f in range(16, 16 + LEAD): v_read(P, f, 3)
    for g in range(64, 82):
        for t in PLACE[g]: e(sm_text(t, cur))
    post_ops = []
    Q = Prog()
    xgroup(Q, "v_add_f32", f"v{LR[0]}", "v208"); xgroup(Q, "v_add_f32", f"v{LR[1]}", "v209")
    Q.e(f"v_max_f32 v208, v{LR[0]}, v{LR[1]}"); Q.e(f"v_add_f32 v209, v{LR[0]}, v{LR[1]}")
    Q.e(f"v_rcp_f32 v{LR[0]}, v{LR[0]}"); Q.e(f"v_rcp_f32 v{LR[1]}, v{LR[1]}")
    Q.e("v_mbcnt_lo_u32_b32 v210, -1, 0"); Q.e("v_mbcnt_hi_u32_b32 v210, -1, v210")
    Q.e("v_lshrrev_b32 v211, 4, v210"); Q.e("v_bfe_u32 v212, v210, 2, 2"); Q.e("v_and_b32 v213, 3, v210")
    Q.e("v_lshrrev_b32 v212, 2, v210"); Q.e("v_lshlrev_b32 v192, 7, v212"); Q.e("v_lshl_add_u32 v192, v213, 3, v192")
    Q.e("v_bfe_u32 v212, v210, 3, 2"); Q.e("v_lshl_add_u32 v192, v212, 5, v192")
    for ee in (1, 2, 3): Q.e(f"v_xor_b32 v{192+ee}, {32*ee}, v192")
    for ee in range(4): Q.e(f"v_add_u32 v{196+ee}, {6*SLOT}, v{192+ee}")
    Q.e("v_lshlrev_b32 v248, 4, v210")
    Q.e(f"v_mov_b32 v214, {FLAG}"); Q.e("v_mov_b32 v215, 1")
    rest = Q.L
    for g in range(32, 64):
        f, qt = g >> 1, g & 1
        extra = set()
        for z in WAITS.get(g, []):
            if 16 <= z < 32: extra |= regs_of(vr(fbuf(z), 4))
        a = oacc(f - 16, qt)
        e(f"{MF} {vr(a,4)}, {vr(fbuf(f),4)}, {vr(cur+4*qt,4)}, {vr(a,4)}", extra_rd=extra)
        if qt == 1 and f + LEAD < 32: v_read(P, f + LEAD, 3)
        else:
            for _ in range(2):
                if rest: P.L.append(rest.pop(0))
    P.L.extend(rest)
    e(f"v_cmp_ngt_f32 vcc, {f2u(cfg.thr):#x}, v209")
    e("s_cbranch_vccz L_noflag")
    e("ds_write_b32 v214, v215")
    e("s_waitcnt lgkmcnt(0)")
    e("L_noflag:")
    e("s_barrier")
    e("ds_read_b32 v215, v214")
    def onorm(g):
        return [f"v_mul_f32 v{8*g+i}, v{8*g+i}, v{LR[g & 1]}" for i in range(8)] + [f"v_cvt_pk_bf16_f32 v{4*g+i}, v{8*g+2*i}, v{8*g+2*i+1}" for i in range(4)]
    items = []
    F = Filler(P)
    def ehook(t):
        def h():
            if cfg.hack & 32 and t % 2 == 0: e(f"s_memtime s[{48+t}:{49+t}]")
            if t in (2, 3, 4, 5, 6, cfg.lastb): e("s_barrier")
        return h
    def acc_o(s, ee, qt): return (64 if s & 1 else 128) + ((ee >> 1) * 2 + qt) * 8 + (ee & 1) * 4
    for t in range(14):
        sl = WO_SLOT[t]; so = (sl % 3) * SLOT; s, hf = t >> 1, t & 1
        for k4 in range(4):
            for ee in range(4):
                base = f"v{[192, 200, 196][sl // 3] + ee}"
                imm = so + k4 * 4096; kk = 4 * hf + k4
                items.append(dict(mf=[(acc_o(s, ee, qt), (kk * 2 + qt) * 4, '0' if kk == 0 else None) for qt in range(2)],
                                  reads=tr_reads(base, imm, imm + 2048),
                                  hook=ehook(t) if (t > 0 and k4 == 0 and ee == 0) else None))
    def cv(s, u, hf):
        o = 160 + 16 * (s & 1) + 4 * u + 2 * hf; a = acc_o(s, 0, 0) + 8 * u + 4 * hf
        F.add(f"v_cvt_pk_bf16_f32 v{o}, v{a}, v{a+1}", f"v_cvt_pk_bf16_f32 v{o+1}, v{a+2}, v{a+3}")
    def sto(s, u):
        o = 160 + 16 * (s & 1) + 4 * u
        F.add(f"s_mov_b32 {sT0}, {s*STG + u*16384}", f"buffer_store_dwordx4 {vr(o,4)}, v248, {SP}, {sT0} offen sc1", tag=('S', s))
    def publish(r):
        F.add((('S', r),), "s_mov_b64 exec, 1", f"global_store_dword v249, v254, s[100:101] offset:{128*r} sc1", "s_mov_b64 exec, -1", tag='fl')
    nrm = [t for g in range(2, 16) for t in onorm(g)]
    def start():
        for ee in range(4): e(f"v_add_u32 v{200+ee}, {3*SLOT}, v{192+ee}")
        e("v_mov_b32 v249, 0"); e("v_mov_b32 v254, 1"); e("v_add_u32 v204, s85, v248"); e("v_add_u32 v205, s90, v248")
        for t in onorm(0) + onorm(1): e(t)
        e("v_readfirstlane_b32 s7, v215")
        e(f"s_andn2_b32 s7, s7, {sMODE}"); e("s_cbranch_scc1 L_maxpass")
        stamp(P, cfg, 6)
        if cfg.hack & 32: stamp(P, cfg, 1)
        if cfg.hack & 64: stamp(P, cfg, 12, True)
    def gap(i, k):
        s, r = divmod(i, 32)
        if k: return
        for _ in range(6):
            if nrm: e(nrm.pop(0))
        if s >= 1:
            u, z = divmod(r, cfg.ssp)
            if u < 4:
                if z == 0: cv(s - 1, u, 0)
                if z == 1: cv(s - 1, u, 1)
                if z == 2: sto(s - 1, u)
        if s >= 2 and r == cfg.pubr: publish(s - 2)
        if i == cfg.xat: e('s_barrier')
        F.flush()
    stream(P, items, [216 + 4 * i for i in range(8)], 7, gap, group=4, start=start)
    if cfg.hack & 32: e('s_memtime s[62:63]'); e('s_waitcnt lgkmcnt(0)'); dump_stamps(P); e('s_endpgm')
    st = (lambda i: None) if cfg.hack & 16 else (lambda i: stamp(P, cfg, i, bool(cfg.hack & 64)))
    st(13)
    for u in range(4): cv(6, u, 0); cv(6, u, 1); sto(6, u)
    F.flush()
    if cfg.xat >= 224: e("s_barrier")
    st(14)
    for k, r0 in enumerate((192, 196, 244, 250)): e(f"ds_read_b128 {vr(r0,4)}, v205 offset:{k*1024}")
    for h in range(16): e(f"ds_read_b128 {vr(64+4*h,4)}, v204 offset:{h*1024}")
    publish(5); F.flush()
    msum(P, 200, 64)
    st(15); publish(6); F.flush()
    if cfg.hack & 64: stamp(P, cfg, 9, True)
    e(f"s_cmp_eq_u32 {sSUB}, 3"); e("s_cbranch_scc1 L_cdone")
    cslow = []
    fetch(P, cfg, 1, 0, "v248", lambda: silu8(P, 200))
    fin(P, cfg, 1, 0, 244)
    e("L_cdone:")
    if cfg.stamps:
        stamp(P, cfg, 7); e("s_waitcnt vmcnt(0)"); stamp(P, cfg, 8); stamp(P, cfg, 11, True); dump_stamps(P)
    e("s_endpgm")
    post = [x for x in P.since(m1) if not any(x is y for y in cslow)]
    m2 = P.mark()
    e("L_maxpass:")
    e("s_waitcnt vmcnt(0) lgkmcnt(0)")
    e("v_and_b32 v0, 15, v210"); e("v_lshlrev_b32 v0, 9, v0"); e("v_and_b32 v1, 1, v211"); e("v_lshl_add_u32 v0, v1, 5, v0")
    e("v_lshrrev_b32 v1, 1, v211"); e("v_lshl_add_u32 v0, v1, 4, v0")
    e(f"v_mov_b32 v{NEGM}, 0xff800000"); e(f"v_mov_b32 v{NEGM+4}, 0xff800000")
    e(f"s_mov_b32 {sT0}, 0")
    e("L_mp_loop:")
    for kk in range(8): e(f"buffer_load_dwordx4 {vr(16+4*kk,4)}, v0, {SK}, {sT0} offen offset:{kk*64}")
    e("s_waitcnt vmcnt(0)")
    for kk in range(8):
        for qt in range(2): e(f"{MF} {vr(8+4*qt,4)}, {vr(16+4*kk,4)}, {vr(128+(kk*2+qt)*4,4)}, {'0' if kk == 0 else vr(8+4*qt,4)}")
    e("s_nop 15")
    for qt in range(2):
        m = NEGM + 4 * qt; a = 8 + 4 * qt
        e(f"v_max3_f32 v{m}, v{m}, v{a}, v{a+1}"); e(f"v_max3_f32 v{m}, v{m}, v{a+2}, v{a+3}")
    e(f"s_add_u32 {sT0}, {sT0}, 8192"); e(f"s_cmp_lt_u32 {sT0}, {1<<20}"); e("s_cbranch_scc1 L_mp_loop")
    xgroup(P, "v_max_f32", f"v{NEGM}", f"v{NEGM+1}"); xgroup(P, "v_max_f32", f"v{NEGM+4}", f"v{NEGM+5}")
    for q in range(2):
        m = NEGM + 4 * q
        for i in (1, 2, 3, 0): e(f"v_sub_f32 v{m+i}, 0, v{m}")
    e("L_again:")
    e("s_waitcnt vmcnt(0) lgkmcnt(0)")
    e("v_mbcnt_lo_u32_b32 v0, -1, 0"); e("v_mbcnt_hi_u32_b32 v0, -1, v0"); e(f"s_lshl_b32 s7, {sWV}, 6"); e("v_add_u32 v0, s7, v0")
    e(f"s_mov_b32 {sMODE}, 1"); e("s_setprio 0")
    e("s_barrier")
    e("s_branch L_restart")
    mp = P.since(m2)
    body = its[0] + its[1] + its[2] + its[3]
    trace = pro + body * 2 + its[0] + its[1] + its[2] + post
    skip = set(id(x) for x in minit)
    trace2 = [x for x in pro if id(x) not in skip] + body
    extra = []
    if itb:
        bb = itb[0] + itb[1] + itb[2] + itb[3]
        extra = [pro + bb * 2 + itb[0] + itb[1] + itb[2] + post]
    return [trace, trace2] + extra, [mp, cslow]

def poll(P, name, load, cmp, pre_issued=False):
    e = P.e
    if not pre_issued: e(load)
    e(cmp); e("s_cmp_eq_u64 vcc, -1"); e(f"s_cbranch_scc1 {name}_ok")
    m = P.mark()
    e(f"s_mov_b32 s7, {SPIN}")
    e(f"{name}_lp:")
    e(f"s_sleep {CFG.slp}")
    e(load, tag='opt'); e("s_waitcnt vmcnt(0)")
    e(cmp); e("s_cmp_eq_u64 vcc, -1"); e(f"s_cbranch_scc1 {name}_ok")
    e("s_sub_u32 s7, s7, 1"); e(f"s_cbranch_scc0 {name}_lp")
    slow = P.since(m)
    e(f"{name}_ok:")
    return slow

def rnd8(P, r, t):
    for d in range(4): P.e(f"v_cvt_pk_bf16_f32 v{t+d}, v{r+2*d}, v{r+2*d+1}")
    for d in range(4): P.e(f"v_lshlrev_b32 v{r+2*d}, 16, v{t+d}"); P.e(f"v_and_b32 v{r+2*d+1}, {sHI}, v{t+d}")

def gen_helper(P, cfg, FH):
    e = P.e
    m0 = P.mark()
    e("L_helper:")
    e("s_setprio 2")
    F = gen_qproj(P, cfg, True, FH)
    dma_kv(F, 'V', 1, 5); dma_kv(F, 'K', 3, 3); dma_kv(F, 'V', 2, 6); F.flush()
    e(f"s_mov_b32 s73, {f2u(-LOG2E):#x}")
    lo, hi = cfg.plo, cfg.phi
    if lo != 2: e(f"s_setprio {lo}")
    P.waitvm(('V', 0), ('K', 2))
    e("s_barrier")
    GU0 = 3; ACT0 = GU0 + 28; NACT = cfg.nact; DN0 = ACT0 + NACT
    GPUB = [DN0 + 10, DN0 + 16]; GPOLL = [DN0 + 12, DN0 + 21]; GSRC = [112, 0]; GSET = DN0 + 2; GSET2 = DN0 + 15
    slows = []
    ntr = [cfg.ktr]
    def acc_g(m, ee, mat, qt): return 112 + 32 * (m & 1) + (ee * 2 + qt) * 8 + mat * 4
    def act(m):
        L = []
        for ee in range(2):
            regs = [acc_g(m, ee, 0, qt) + i for qt in range(2) for i in range(4)]
            for r in regs: L.append(f"v_mul_f32 v{r}, s73, v{r}")
            for r in regs: L.append(f"v_exp_f32 v{r}, v{r}")
            for r in regs: L.append(f"v_add_f32 v{r}, 1.0, v{r}")
            for r in regs: L.append(f"v_rcp_f32 v{r}, v{r}")
            for r in regs: L.append(f"v_mul_f32 v{r}, v{r}, v{r+4}")
            for qt in range(2):
                a = acc_g(m, ee, 0, qt); d = 208 + (m * 2 + qt) * 4 + ee * 2
                L.append(f"v_cvt_pk_bf16_f32 v{d}, v{a}, v{a+1}"); L.append(f"v_cvt_pk_bf16_f32 v{d+1}, v{a+2}, v{a+3}")
        return L
    def split(L, n):
        cost = [2 if t.startswith(('v_exp', 'v_rcp')) else 1 for t in L]; tot = sum(cost); parts = [[] for _ in range(n)]; acc = 0
        for t, c in zip(L, cost):
            parts[min(n - 1, acc * n // tot)].append(t); acc += c
        return parts
    def acc_d(nt, ee, qt): return 48 + 16 * (nt & 1) + (qt * 2 + ee) * 4
    def out_cv(nt):
        o = 80 + 8 * (nt & 1)
        return [f"v_cvt_pk_bf16_f32 v{o+4*qt+i}, v{acc_d(nt, 0, qt)+2*i}, v{acc_d(nt, 0, qt)+2*i+1}" for qt in range(2) for i in range(4)]
    def out_st(nt):
        o = 80 + 8 * (nt & 1)
        e(f"s_mov_b32 {sT3}, {(nt>>1)*STG + (nt&1)*32768}"); e(f"buffer_store_dwordx4 {vr(o,4)}, v249, {SP}, {sT3} offen sc1", tag=('st', nt // 8))
        e(f"s_addk_i32 {sT3}, 16384"); e(f"buffer_store_dwordx4 {vr(o+4,4)}, v249, {SP}, {sT3} offen sc1", tag=('st', nt // 8))
    def chunk_mf(c, i):
        b, ee = i >> 1, i & 1
        if c < 28:
            m, s = divmod(c, 7); T = 2 * s + (b >> 1)
            return [(acc_g(m, ee, b & 1, qt), (2 * T + qt) * 4, T == 0) for qt in range(2)]
        return [(acc_d(c - 28, ee, qt), 208 + (b * 2 + qt) * 4, b == 0) for qt in range(2)]
    def rd(c, i):
        imm = (c % 3) * GLUS + (i >> 1) * 2048
        e(f"{TR} {vr(176+4*i,2)}, v{246+(i&1)} offset:{imm}"); e(f"{TR} {vr(178+4*i,2)}, v{246+(i&1)} offset:{imm+1024}")
    small_only = []; big_only = []
    def burst(c, nxt, fill, skip_from=8):
        fill = list(fill)
        if hi != lo: e(f"s_setprio {hi}")
        for i in range(8):
            if i == skip_from:
                for t in fill: e(t)
                fill = []
                e("s_cmp_lg_u32 s99, 0"); e(f"s_cbranch_scc1 L_bs{c}"); mk = P.mark()
            for k, (acc, bb, z) in enumerate(chunk_mf(c, i)[::-1] if (cfg.snake & 4 and i & 1) else chunk_mf(c, i)):
                e(f"{MF} {vr(acc,4)}, {vr(176+4*i,4)}, {vr(bb,4)}, {'0' if z else vr(acc,4)}")
                if k == 0:
                    room = 2
                    while fill and room > 0:
                        cst = 2 if fill[0].startswith(('v_exp', 'v_rcp')) else 1
                        if cst > room: break
                        e(fill.pop(0)); room -= cst
            if nxt is not None: rd(nxt, i)
        if skip_from < 8:
            big_only.extend(P.since(mk)); e(f"L_bs{c}:")
        if hi != lo: e(f"s_setprio {lo}")
        for t in fill: e(t)
    for j in range(64):
        if j in (3, ACT0, DN0, DN0 + 14, 62): stamp(P, cfg, {3: 4, ACT0: 5, DN0: 6, DN0 + 14: 7, 62: 8}[j])
        if j in (3, ACT0) and not cfg.hack & 16: stamp(P, cfg, {3: 1, ACT0: 2}[j], True)
        if j == GSET + 1: e("global_load_dword v253, v252, s[68:69] sc1")
        if j in GPOLL: e(f"buffer_load_dword v253, v252, {SF}, s84 offen offset:{128*GPOLL.index(j)} sc1")
        if j + 4 < 64 and not cfg.x & 1: dma_kv(F, 'K', j + 4, j & 3)
        if j < 28: dma_gu(F, j)
        if 0 <= j + 3 - DN0 < 14: dma_wd(F, 28 + j + 3 - DN0, j + 3 - DN0)
        if j + 3 < 64 and not (cfg.x & 1 and j): dma_kv(F, 'V', j + 3, 4 + ((j + 3) & 3))
        for nt in {59: [0], 60: [1], 61: [2, 3], 62: [4, 5], 63: [6, 7]}.get(j, []): dma_wo(F, nt, WO_SLOT[nt])
        if cfg.touch:
            if cfg.ltouch and j % 2 == 0 and ntr[0] < min(16, j // 4 + cfg.klead + 1):
                ntr[0] += 1
                F.add(f"s_add_u32 {sT3}, s89, {(ntr[0]-1)*65536}", f"buffer_load_dword v244, v243, {ST}, {sT3} offen", tag='touch')
            if j == 10:
                F.add(f"s_mul_i32 {sT3}, {sSH}, 7168", f"s_add_u32 {sT3}, {sT3}, s88", f"s_lshl_b32 {sT3}, {sT3}, {cfg.hx-1}", f"buffer_load_dword v244, v243, {SWD}, {sT3} offen", tag='touch')
            if j in (cfg.wot, cfg.wot + 2):
                F.add(f"s_mul_i32 {sT3}, {sSH}, 14336", f"s_add_u32 {sT3}, {sT3}, s88", f"s_add_u32 {sT3}, {sT3}, {0 if j==cfg.wot else 8192}", f"s_lshl_b32 {sT3}, {sT3}, {cfg.hx-1}", f"buffer_load_dword v244, v243, {SWO}, {sT3} offen", tag='touch')
        if j == GU0 - 1:
            for i in range(8): rd(0, i)
        if GU0 <= j < ACT0:
            c = j - GU0; m, s = divmod(c, 7)
            fill = split(act(m - 1), 7)[s] if m else []
            if m == 3:
                e("s_cmp_lg_u32 s99, 0"); e(f"s_cbranch_scc0 L_bg{c}")
                mk = P.mark()
                for t in fill: e(t)
                e(f"s_branch L_be{c}")
                small_only.extend(P.since(mk))
                e(f"L_bg{c}:"); mk = P.mark()
            burst(c, c + 1 if c < 27 else None, fill)
            if m == 3: big_only.extend(P.since(mk)); e(f"L_be{c}:")
        if DN0 <= j < DN0 + 14:
            nt = j - DN0
            burst(28 + nt, 29 + nt if nt < 13 else None, out_cv(nt - 1) if nt else [], skip_from=6)
        if j == DN0 + 14:
            for t in out_cv(13): e(t)
        if ACT0 <= j < DN0:
            F.flush()
            e("s_cmp_lg_u32 s99, 0"); e(f"s_cbranch_scc1 L_as{j}"); mk = P.mark()
            for t in split(act(3), NACT)[j - ACT0]: e(t)
            big_only.extend(P.since(mk)); e(f"L_as{j}:")
            if j == DN0 - 1:
                for i in range(8): rd(28, i)
        if j == GSET:
            for t in final_salu(): e(t)
            e(f"s_lshl_b32 s7, {sQB}, 4"); e("v_mov_b32 v252, s7")
        if j == GSET2:
            F.emit(4)
            e("v_and_b32 v176, 15, v255"); e("v_lshrrev_b32 v177, 4, v255")
            e("v_mul_u32_u24 v251, 896, v176"); e("v_lshl_add_u32 v251, v177, 4, v251")
            e("v_lshrrev_b32 v178, 3, v255"); e("v_lshlrev_b32 v179, 1, v177"); e("v_and_b32 v180, 7, v255"); e("v_xor_b32 v179, v179, v180")
            e("v_mul_u32_u24 v248, 896, v178"); e("v_lshl_add_u32 v248, v179, 4, v248")
            e("v_bfe_u32 v178, v176, 2, 1"); e("v_lshlrev_b32 v178, 3, v178")
            e("v_lshrrev_b32 v179, 3, v176"); e("v_lshl_add_u32 v178, v179, 1, v178")
            e("v_bfe_u32 v179, v176, 1, 1"); e("v_add_u32 v178, v178, v179")
            e("v_lshlrev_b32 v179, 2, v177"); e("v_sub_u32 v178, v178, v179")
            e("v_and_b32 v179, 1, v176"); e("v_lshlrev_b32 v179, 4, v179"); e("v_mov_b32 v180, 0x3f80"); e("v_lshlrev_b32 v179, v179, v180")
            for ee in range(2):
                for i in range(4):
                    e(f"v_cmp_eq_u32 vcc, {i - 4 * ee}, v178"); e(f"v_cndmask_b32 v{192+4*ee+i}, 0, v179, vcc")
        F.flush()
        if DN0 + 1 <= j <= DN0 + 14: out_st(j - DN0 - 1)
        if j == GSET2 + 2:
            for r in range(2): e(f"buffer_load_dwordx4 {vr(216+4*r,4)}, v251, {SX}, s86 offen offset:{r*512}")
            if cfg.otouch: e(f"buffer_load_dword v244, off, {SO}, s86", tag='touch')
        if j in GPUB:
            r = GPUB.index(j)
            e("v_mov_b32 v96, 0"); e(f"v_mov_b32 v97, 1"); P.waitvm(('st', r))
            e("s_mov_b64 exec, 1"); e(f"global_store_dword v96, v97, s[100:101] offset:{128*r} sc1", tag='fl'); e("s_mov_b64 exec, -1")
        if j == GSET + 1:
            slows.append(poll(P, "L_pa", "global_load_dword v253, v252, s[68:69] sc1", "v_cmp_le_u32 vcc, 16, v253", True))
            e("v_and_b32 v252, 15, v255"); e("v_lshlrev_b32 v252, 2, v252")
        if j in GPOLL:
            r = GPOLL.index(j)
            slows.append(poll(P, f"L_pg{r}", f"buffer_load_dword v253, v252, {SF}, s84 offen offset:{128*r} sc1", "v_cmp_le_u32 vcc, 1, v253", True))
        for r in range(2):
            k = j - GPOLL[r] - 1
            if 0 <= k < 8:
                for h in (2 * k, 2 * k + 1):
                    e(f"s_mov_b32 {sT3}, {GP_OFF + h*1024 + r*4*STG}")
                    e(f"buffer_load_dwordx4 {vr(GSRC[r]+4*h,4)}, v249, {SR}, {sT3} offen sc1")
        if j == cfg.pe: stamp(P, cfg, 13)
        if j < 63:
            need = [('K', j + 3), ('V', j + 1), ('G', j - 1)]
            if 0 <= j + 2 - DN0 < 14: need.append(('G', 28 + j + 2 - DN0))
        else:
            need = [('WO', 0), ('WO', 1)]
            e(f"v_mov_b32 v176, {FLAG}")
        P.waitvm(*need)
        if GU0 - 1 <= j < DN0 + 13: e("s_waitcnt lgkmcnt(0)")
        if j == cfg.pe: stamp(P, cfg, 14)
        e("s_barrier")
        if j == cfg.pe - 1: stamp(P, cfg, 9)
        if j == cfg.pe: stamp(P, cfg, 15)
    e("ds_read_b32 v177, v176")
    for k in range(6):
        if cfg.hack & 32 and k >= 2: stamp(P, cfg, 1 + 3 * (k - 2))
        dma_wo(F, 8 + k, WO_SLOT[8 + k]); F.flush()
        if cfg.hack & 32 and k >= 2: stamp(P, cfg, 2 + 3 * (k - 2))
        if k == 0:
            e("v_readfirstlane_b32 s7, v177")
            e(f"s_andn2_b32 s7, s7, {sMODE}"); e("s_cbranch_scc1 L_again")
        P.waitvm(*[('WO', t) for t in ([k + 2] if k < 4 else range(6, cfg.lastb) if k == 4 else range(cfg.lastb, 14))])
        if cfg.hack & 32 and k >= 2: stamp(P, cfg, 3 + 3 * (k - 2))
        e("s_barrier")
    if cfg.hack & 32: stamp(P, cfg, 13); dump_stamps(P); e("s_endpgm")
    e(f"s_setprio {cfg.pep}")
    if cfg.hack & 4: e("s_branch L_hdone")
    e(f"s_cmp_eq_u32 {sSUB}, 3"); e("s_cbranch_scc1 L_hskip")
    for t in xch_salu(): e(t)
    e("v_add_u32 v176, s85, v249"); e("v_add_u32 v177, s90, v249"); e("v_mov_b32 v250, v249")
    for h in range(16): e(f"ds_write_b128 v176, {vr(4*h,4)} offset:{h*1024}")
    for k, r0 in enumerate((192, 196, 220, 250)): e(f"ds_write_b128 v177, {vr(r0,4)} offset:{k*1024}")
    e("L_hskip:")
    e("s_waitcnt vmcnt(0) lgkmcnt(0)")
    e("s_barrier")
    fetch(P, cfg, 0, 0, "v249", lambda: (msum(P, 200, 112), silu8(P, 200)))
    fin(P, cfg, 0, 0, 216)
    e("L_hdone:")
    if cfg.stamps:
        e("s_waitcnt vmcnt(0)"); stamp(P, cfg, 11, True); dump_stamps(P)
    e("s_endpgm")
    sk = set(id(x) for s in slows for x in s)
    allh = [x for x in P.since(m0) if id(x) not in sk]
    so = set(map(id, small_only)); bo = set(map(id, big_only))
    return [[x for x in allh if id(x) not in so], [x for x in allh if id(x) not in bo]], slows

def kd(name, vgpr, ydim=False):
    return "\n".join([f".amdhsa_kernel {name}", f"  .amdhsa_next_free_vgpr {vgpr}", "  .amdhsa_next_free_sgpr 102",
        f"  .amdhsa_accum_offset {vgpr}", "  .amdhsa_group_segment_fixed_size 0", "  .amdhsa_kernarg_size 96",
        "  .amdhsa_user_sgpr_count 2", "  .amdhsa_user_sgpr_kernarg_segment_ptr 1", "  .amdhsa_system_sgpr_workgroup_id_x 1"]
        + (["  .amdhsa_system_sgpr_workgroup_id_y 1"] if ydim else []) + [".end_amdhsa_kernel"])

def generate(cfg=None):
    cfg = cfg or Cfg()
    global FIXED, WAITS, PLACE, CFG
    CFG = cfg
    FIXED, WAITS, PLACE = sched.plan(wait_group=cfg.wg)
    P = Prog()
    K1 = NAME + "_kernel"
    P.e(".p2align 8"); P.e(f"{K1}:")
    m = P.mark(); gen_entry(P, cfg); entry = P.since(m)
    m = P.mark(); FC = gen_setup(P, cfg, False); P.e("s_branch L_ln"); cs = P.since(m)
    P.e("L_hs:")
    m = P.mark(); FH = gen_setup(P, cfg, True); hs = P.since(m)
    P.e("L_ln:")
    m = P.mark(); gen_ln(P, cfg); ln = P.since(m)
    ctraces, other = gen_compute(P, cfg, FC)
    htrace, hother = gen_helper(P, cfg, FH)
    ctraces = [cs + ln + t for t in ctraces]; htrace = [hs + ln + t for t in htrace]
    P.e("L_end:"); P.e("s_endpgm")
    P.e("L_code_end:")
    full = [entry + t for t in ctraces] + [entry + t for t in htrace]
    resolve(full + [[x for x in t if x.tag != 'opt'] for t in full] + other + hother)
    nb = lambda t: sum(1 for x in t if x.kind != 'none' and x.op == 's_barrier')
    print("barriers compute", nb(ctraces[0]) + 13 * 4, "helper", nb(htrace[0]), nb(htrace[1]))
    if cfg.hack & 2:
        for I in P.L:
            if I.text.startswith("buffer_store_dwordx4"): I.text = I.text.replace(" sc1", "")
    if cfg.hack & 8:
        for I in P.L:
            if I.text.startswith("buffer_store_dwordx4"): I.text = I.text.replace(" sc1", " sc0 sc1")
    if cfg.dflag:
        fl = {1: "nt", 2: "sc1", 3: "sc0", 4: "sc0 sc1", 5: "sc0 nt", 6: "sc1 nt"}[cfg.dflag]
        for I in P.L:
            if I.text.endswith(" lds") and I.tag and I.tag[0] in ('K', 'V', 'G', 'WQ', 'WO'): I.text = I.text[:-4] + f" {fl} lds"
    out = expand(P.L)
    mis = align8(out)
    head = [f"; @launch grid=(256,1,1) block=(512,1,1) lds={LDS_BYTES}",
            '.amdgcn_target "amdgcn-amd-amdhsa--gfx950"', ".text",
            f".globl {K1}", f".type {K1},@function"]
    span = 0
    for I in out:
        if I.text == "L_code_end:": break
        if I.text.startswith(".p2align"):
            a = 1 << int(I.text.split()[1]); span = -(-span // a) * a
        span += I.size()
    body = [I.text.replace("CODE_SPAN", str((span - 128) & ~3)) for I in out]
    print("code bytes K1", span)
    tail = ['.section .rodata,"a"', ".p2align 6", kd(K1, 256)]
    return "\n".join(head + body + tail) + "\n", mis

if __name__ == "__main__":
    cfg = Cfg()
    for a in sys.argv[2:]:
        k, v = a.split('='); setattr(cfg, k, float(v) if k == 'thr' else int(v))
    s, mis = generate(cfg)
    open(sys.argv[1], "w").write(s)
    print("bytes", len(s), "lines", s.count("\n"), "misaligned", mis)
```

```python
import struct, sys
from asmlib import *
import sched

NAME = "recurrent_scan__mha_block_cached__glu_gated_glu__prompt"
def f2u(x): return struct.unpack('<I', struct.pack('<f', x))[0]
LOG2E = 1.4426950408889634
SLOT = 16896
GLUB = 8 * SLOT
GLUS = 8192
FLAG = GLUB - 32
LDS_BYTES = 163840
GP_OFF = 0x2000000
STG = 262144
FL_OFF = 0x4000000
SPIN = 400000

sHEAD, sQB, sWV, sSUB = 's3', 's4', 's5', 's6'
SX, SK, SV, SWQ, SWO, SWG, SWU, SWD, SP, ST = [f"s[{8+4*i}:{11+4*i}]" for i in range(10)]
sC = 's72'; sHI = 's74'; sTRIP = 's75'
sLK, sLV, sL1K = 's76', 's77', 's78'
sMODE = 's79'
sSH = 's91'
sT0, sT1, sT2, sT3 = 's80', 's81', 's82', 's83'
sKO, sVO = 's96', 's97'
def srd(i): return 8 + 4 * i
def vr(a, n): return f"v[{a}:{a+n-1}]"
MF = "v_mfma_f32_16x16x32_bf16"
TR = "ds_read_b64_tr_b16"

class Cfg:
    glu = 1
    touch = 1
    prio = 2
    stamps = 0
    thr = 2.0 ** 64
    wq_at = 33
    xpar = 0
    pe = 20
    hack = 0
    plo = 0
    hx = 1
    t_at = 28
    ktr = 3
    klead = 16
    gtouch = 1
    tq0 = 8
    phi = 2
    nact = 2
    flip = 0
    x = 0
    snake = 7
    lnpk = 3
    pre2 = 0
    xrot = 1
    stouch = 0
    tlb = 0
    wot2 = 27
    wsoff = 0
    tper = 2
    oflag = 1
    otouch = 0
    dflag = 0
    vbit = -1
    bara = 15
    barb = 15
    pep = 0
    pd = 2
    lastb = 9
    pubr = 13
    ctop = 1
    xat = 224
    ssp = 4
    fo = 1
    sn = -1
    wot = 57
    pl = 4
    slp = 8
    wg = 3
    ltouch = 1
    etouch = 1

def stream(P, items, bufs, lead, gapfill=None, group=2, start=None):
    n = len(items)
    buf = [bufs[i % len(bufs)] for i in range(n)]
    def reads(i):
        it = items[i]
        if it.get('hook'): it['hook']()
        for (op, addr, imm, sub, w) in it['reads']:
            P.e(f"{op} {vr(buf[i]+sub, w)}, {addr} offset:{imm}")
    for i in range(min(lead, n)): reads(i)
    if start: start()
    for i in range(n):
        it = items[i]
        for k, (acc, b, c) in enumerate(it['mf'][::-1] if (CFG.snake & 4 and i & 1) else it['mf']):
            extra = set()
            if group and k == len(it['mf']) - 1 and (i + 1) % group == 0:
                for z in range(1, group + 1):
                    if i + z < n: extra |= regs_of(vr(buf[i+z], 4))
            P.e(f"{MF} {vr(acc,4)}, {vr(buf[i],4)}, {vr(b,4)}, {c if c is not None else vr(acc,4)}", extra_rd=extra)
            if k == len(it['mf']) - 1 and i + lead < n: reads(i + lead)
            elif gapfill: gapfill(i, k)

def tr_reads(addr, imm0, imm1): return [(TR, addr, imm0, 0, 2), (TR, addr, imm1, 2, 2)]

class Filler:
    def __init__(self, P): self.P = P; self.q = []
    def add(self, *texts, **kw): self.q.append((texts, kw))
    def emit(self, k=1):
        for _ in range(k):
            if not self.q: return
            texts, kw = self.q.pop(0)
            for t in texts:
                if isinstance(t, tuple): self.P.waitvm(*t)
                elif t.startswith(('buffer_', 'global_')): self.P.e(t, **kw)
                else: self.P.e(t)
    def flush(self): self.emit(len(self.q))
    def wait(self, *tags):
        assert not any(kw.get('tag') in tags for _, kw in self.q), tags
        self.P.waitvm(*tags)

def dma_kv(F, which, tile, slot):
    sr, sl, so = (SK, sLK, sKO) if which == 'K' else (SV, sLV, sVO)
    ld = lambda off: f"buffer_load_dwordx4 v240, {sr}, {so} offen" + (f" offset:{off}" if off else "") + " lds"
    tag = (which, tile)
    F.add(f"s_add_u32 m0, {sl}, {slot*SLOT}", f"s_addk_i32 {so}, 8192", ld(0), tag=tag)
    F.add("s_addk_i32 m0, 32", ld(1024), tag=tag)
    F.add(f"s_addk_i32 m0, {8448-32}", f"s_addk_i32 {so}, 8192", ld(0), tag=tag)
    F.add("s_addk_i32 m0, 32", ld(1024), tag=tag)
def dma_wq(F, tile, slot):
    ld = f"buffer_load_dwordx4 v245, {SWQ}, {sT0} offen lds"
    tag = ('WQ', tile)
    F.add(f"s_add_u32 m0, {sLV}, {slot*SLOT}", f"s_mov_b32 {sT0}, {32*tile*8192}", ld, tag=tag)
    for d in (1056, 7392, 1056):
        F.add(f"s_addk_i32 m0, {d}", f"s_addk_i32 {sT0}, 16384", ld, tag=tag)
def dma_wo(F, t, slot):
    ld = f"buffer_load_dwordx4 v248, {SWO}, {sT0} offen lds"
    tag = ('WO', t)
    F.add(f"s_add_u32 m0, {sL1K}, {slot*SLOT}", f"s_add_u32 {sT0}, s87, {(t & 1)*128*896 + (t >> 1)*128}", ld, tag=tag)
    for p in range(3): F.add("s_addk_i32 m0, 1024", f"s_addk_i32 {sT0}, {8*896}", ld, tag=tag)
def dma_gu(F, c):
    base = GLUB + (c % 3) * GLUS; m, s = divmod(c, 7)
    ld = f"buffer_load_dwordx4 v241, {SWG}, {sT2} offen lds"
    F.add(f"s_add_u32 m0, s88, {base}", f"s_mov_b32 {sT2}, {64*s*3584 + m*64}", ld, tag=('G', c))
    F.add("s_addk_i32 m0, 1024", f"s_addk_i32 {sT2}, {4*3584}", ld, tag=('G', c))
def dma_wd(F, c, nt):
    base = GLUB + (c % 3) * GLUS
    ld = f"buffer_load_dwordx4 v242, {SWD}, {sT2} offen lds"
    F.add(f"s_add_u32 m0, s88, {base}", f"s_add_u32 {sT2}, s87, {nt*64}", ld, tag=('G', c))
    F.add("s_addk_i32 m0, 1024", f"s_addk_i32 {sT2}, 14336", ld, tag=('G', c))

WQ_SLOT = {0: 7, 1: 8, 2: 5, 3: 3, 4: 6, 5: 4, 6: 0, 7: 1, 8: 2, 9: 7, 10: 8, 11: 5, 12: 3, 13: 6}
WO_SLOT = {0: 8, 1: 0, 2: 1, 3: 4, 4: 2, 5: 5, 6: 3, 7: 6, 8: 7, 9: 8, 10: 0, 11: 1, 12: 4, 13: 2}

def streg(idx): return {0: 's94', 10: 's95'}.get(idx, f"s{48+idx}") if not H32 else f"s{48+idx}"
H32 = False
NLAB = 0
def stamp(P, cfg, idx, real=False):
    if not cfg.stamps: return
    P.e(f"{'s_memrealtime' if real else 's_memtime'} s[64:65]"); P.e("s_waitcnt lgkmcnt(0)")
    P.e(f"s_mov_b32 {streg(idx)}, s64")
def dump_stamps(P):
    e = P.e
    global H32
    H32 = bool(CFG.hack & 32)
    if CFG.hack & 128:
        global NLAB
        NLAB += 1
        e("s_mov_b64 exec, 1")
        e("v_mov_b32 v0, 0"); e(f"v_mov_b32 v1, {streg(11)}"); e(f"s_not_b32 s7, {streg(10)}"); e("v_mov_b32 v2, s7")
        e("global_atomic_umax v0, v1, s[68:69] offset:4"); e("global_atomic_umax v0, v2, s[68:69] offset:8")
        e(f"s_lshl_b32 s7, s2, 3"); e(f"s_add_u32 s7, s7, {sWV}"); e(f"s_cmp_lg_u32 s7, {37*8}"); e(f"s_cbranch_scc1 L_nd{NLAB}")
        for w, (x, y) in zip((3, 5, 6, 7, 9, 10, 11, 13, 14), ((1, 0), (2, 1), (3, 2), (4, 3), (5, 4), (6, 5), (13, 6), (8, 13), (11, 10))):
            e(f"s_sub_u32 s7, {streg(x)}, {streg(y)}"); e(f"v_mov_b32 v{w+4}, s7"); e(f"global_store_dword v0, v{w+4}, s[68:69] offset:{4*w}")
        e(f"L_nd{NLAB}:")
        return
    for i in range(16): e(f"v_writelane_b32 v254, {streg(i)}, {i}")
    e(f"s_lshl_b32 s7, s2, 3"); e(f"s_add_u32 s7, s7, {sWV}"); e("s_lshl_b32 s7, s7, 8"); e("s_add_u32 s7, s7, 0x8000000")
    e("s_add_u32 s96, s70, s7"); e("s_addc_u32 s97, s71, 0")
    e("v_mbcnt_lo_u32_b32 v255, -1, 0"); e("v_mbcnt_hi_u32_b32 v255, -1, v255"); e("v_lshlrev_b32 v255, 2, v255")
    e("global_store_dword v255, v254, s[96:97]")

def mad(P, dst, src, mul, acc=None):
    P.e(f"s_movk_i32 s7, {mul}" if mul < 32768 else f"s_mov_b32 s7, {mul}")
    if acc is None: P.e(f"v_mul_u32_u24 {dst}, s7, {src}")
    else: P.e(f"v_mad_u32_u24 {dst}, {src}, s7, {acc}")

def gen_entry(P, cfg):
    e = P.e
    e("s_cmp_ge_u32 s2, 256"); e("s_cbranch_scc1 L_end")
    e(f"s_mov_b32 {sMODE}, 0")
    e("L_restart:")
    stamp(P, cfg, 0); stamp(P, cfg, 10, True)
    e("s_load_dwordx16 s[48:63], s[0:1], 0"); e("s_load_dwordx8 s[64:71], s[0:1], 64")
    e("s_getpc_b64 s[96:97]")
    if cfg.ctop:
        e("s_lshr_b32 s7, s2, 3"); e("s_lshl_b32 s7, s7, 12"); e("v_lshl_add_u32 v189, v0, 3, s7"); e("v_min_u32 v189, CODE_SPAN, v189")
        e("global_load_dword v251, v189, s[96:97]", tag='touch')
    e("v_lshrrev_b32 v1, 6, v0")
    e("v_and_b32 v255, 63, v0")
    e(f"v_readfirstlane_b32 {sWV}, v1")
    hx = cfg.hx; lm = hx - 1; M = 1 << lm
    e(f"s_and_b32 {sHEAD}, s2, {(16 >> hx) - 1}"); e(f"s_lshl_b32 {sHEAD}, {sHEAD}, {hx}"); e(f"s_bfe_u32 s7, s2, {(hx << 16) | 3:#x}"); e(f"s_add_u32 {sHEAD}, {sHEAD}, s7")
    e(f"s_lshr_b32 {sSH}, s2, {3 + hx}")
    if hx > 1: e(f"s_bfe_u32 s7, s2, {(lm << 16) | (4 - hx):#x}"); e(f"s_lshl_b32 s7, s7, {5 - hx}"); e(f"s_add_u32 {sQB}, {sSH}, s7")
    else: e(f"s_mov_b32 {sQB}, {sSH}")
    e(f"s_and_b32 {sSUB}, {sWV}, 3")
    e("s_mov_b32 s11, 0x20000"); e(f"s_mov_b32 s10, {2048*896}")
    e("v_lshrrev_b32 v186, 3, v255"); e("v_and_b32 v185, 7, v255"); e("v_lshlrev_b32 v184, 4, v185"); mad(P, 'v184', 'v186', 896, 'v184')
    if cfg.xrot: e(f"s_add_u32 s84, {sWV}, s2"); e("s_and_b32 s84, s84, 7"); e(f"s_and_b32 {sTRIP}, s2, {cfg.xrot & 1}")
    else: e(f"s_mov_b32 s84, {sWV}"); e(f"s_mov_b32 {sTRIP}, 0")
    e(f"s_lshl_b32 s7, {sQB}, 3"); e("s_add_u32 s7, s7, s84"); e(f"s_mul_i32 {sT0}, s7, {16*896}")
    def mk(i, plo, mul, total, exact=None, idx=sHEAD):
        b = srd(i)
        e(f"s_mul_i32 s7, {idx}, {mul}")
        e(f"s_add_u32 s{b}, s{plo}, s7"); e(f"s_addc_u32 s{b+1}, s{plo+1}, 0")
        if exact is not None: e(f"s_mov_b32 s{b+2}, {exact}")
        else: e(f"s_sub_u32 s{b+2}, {total}, s7")
    e(f"v_lshrrev_b32 v250, {4-lm}, v0"); e("v_lshlrev_b32 v250, 13, v250"); e(f"v_and_b32 v2, {(16>>lm)-1}, v0"); e(f"v_lshl_add_u32 v250, v2, {5+lm}, v250")
    e(f"s_mul_i32 s90, {sSH}, {28*M*8192}")
    for i in range(1, 10): e(f"s_mov_b32 s{srd(i)+3}, 0x20000")
    e(f"s_mul_i32 s7, {sTRIP}, {8*896}"); e(f"s_add_u32 {sT1}, {sT0}, {8*896}"); e(f"s_add_u32 {sT0}, {sT0}, s7"); e(f"s_sub_u32 {sT1}, {sT1}, s7")
    e("s_waitcnt lgkmcnt(0)")
    if cfg.hack & 16: e("s_memtime s[86:87]")
    e("s_mov_b32 s8, s48"); e("s_mov_b32 s9, s49")
    if cfg.t_at == -2:
        mk(3, 54, 512, 448 * 8192); e(f"buffer_load_dword v251, v250, {SWQ}, s90 offen", tag='touch')
    for kp in range(7): e(f"buffer_load_dwordx4 {vr(128+4*kp,4)}, v184, {SX}, {sT0} offen offset:{kp*128}")
    if cfg.t_at != -2: mk(3, 54, 512, 448 * 8192)
    if cfg.t_at == -1: e(f"buffer_load_dword v251, v250, {SWQ}, s90 offen", tag='touch')
    if cfg.tlb & 1:
        e(f"s_load_dword s92, s[{srd(3)}:{srd(3)+1}], 0"); e(f"s_add_u32 s96, s{srd(3)}, {447*8192}"); e(f"s_addc_u32 s97, s{srd(3)+1}, 0"); e("s_load_dword s92, s[96:97], 0")
    if cfg.stouch:
        e(f"s_cmp_eq_u32 {sWV}, 7"); e("s_cbranch_scc1 L_nost")
        e(f"s_lshl_b32 s7, {sWV}, 15"); e("s_add_u32 s7, s7, s90"); e(f"s_add_u32 s96, s{srd(3)}, s7"); e(f"s_addc_u32 s97, s{srd(3)+1}, 0")
        for r in range(4):
            for l in range(4 * cfg.stouch): e(f"s_load_dword s92, s[96:97], {r*8192 + l*(128//cfg.stouch)}")
        e("L_nost:")
    if cfg.wsoff: e(f"s_add_u32 s70, s70, {cfg.wsoff << 20}"); e("s_addc_u32 s71, s71, 0")
    mk(1, 50, 1 << 20, 0, 1 << 20)
    mk(2, 52, 1 << 20, 0, 1 << 20)
    mk(4, 56, 256 * 896, 0, 256 * 896)
    assert hx == 1
    e("s_and_b32 s98, s2, 6"); e("s_bfe_u32 s7, s2, 0x10003"); e("s_add_u32 s98, s98, s7"); e("s_mul_i32 s98, s98, 7")
    e("s_and_b32 s99, s2, 1")
    if cfg.flip: e("s_mul_i32 s7, s99, 3"); e("s_xor_b32 s99, s99, 1")
    else: e("s_lshl_b32 s7, s99, 2")
    e("s_add_u32 s98, s98, s7")
    mk(5, 60, 64, 448 * 3584, idx='s98')
    mk(6, 62, 64, 448 * 3584, idx='s98')
    mk(7, 64, 32 * 896, 1792 * 896, idx='s98')
    e(f"s_mul_i32 s7, {sQB}, {7*STG}"); e(f"s_lshl_b32 {sT2}, {sSUB}, 16"); e(f"s_add_u32 s7, s7, {sT2}"); e(f"s_lshl_b32 {sT2}, {sHEAD}, 10"); e(f"s_add_u32 s7, s7, {sT2}")
    e(f"s_lshr_b32 {sT2}, {sWV}, 2"); e(f"s_mul_i32 {sT2}, {sT2}, {GP_OFF}"); e(f"s_add_u32 s7, s7, {sT2}")
    e(f"s_add_u32 s{srd(8)}, s70, s7"); e(f"s_addc_u32 s{srd(8)+1}, s71, 0"); e(f"s_mov_b32 s{srd(8)+2}, {7*STG}")
    e(f"s_lshl_b32 s7, {sQB}, 2"); e(f"s_add_u32 s7, s7, {sSUB}"); e("s_lshl_b32 s7, s7, 8"); e(f"s_add_u32 s7, s7, {sHEAD}"); e("s_lshl_b32 s7, s7, 2")
    e(f"s_lshr_b32 {sT2}, {sWV}, 2"); e(f"s_lshl_b32 {sT2}, {sT2}, 16"); e(f"s_add_u32 s7, s7, {sT2}"); e(f"s_add_u32 s7, s7, {FL_OFF}")
    e("s_add_u32 s100, s70, s7"); e("s_addc_u32 s101, s71, 0")
    if cfg.tlb & 2:
        for i in (1, 2, 4, 5, 6, 7, 8): e(f"s_load_dword s92, s[{srd(i)}:{srd(i)+1}], 0")
        for p in ("100:101", "66:67", "68:69"): e(f"s_load_dword s92, s[{p}], 0")
    e(f"s_cmp_lt_u32 {sSUB}, 2")
    e(f"s_cselect_b32 s{srd(9)}, s{srd(1)}, s{srd(2)}"); e(f"s_cselect_b32 s{srd(9)+1}, s{srd(1)+1}, s{srd(2)+1}"); e(f"s_mov_b32 s{srd(9)+2}, {1<<20}")
    e(f"s_lshl_b32 s89, {sSH}, {12+lm}"); e(f"s_and_b32 s7, {sSUB}, 1"); e(f"s_lshl_b32 s7, s7, {11+lm}"); e("s_add_u32 s89, s89, s7")
    e(f"s_mov_b32 {sC}, {f2u(LOG2E/16):#x}"); e(f"s_mov_b32 {sHI}, 0xffff0000")
    e("v_lshrrev_b32 v112, 4, v255"); e("v_bfe_u32 v114, v255, 2, 2"); e("v_and_b32 v115, 3, v255")
    e("v_lshrrev_b32 v116, 1, v114"); e("v_lshl_add_u32 v116, v112, 1, v116"); e("v_lshlrev_b32 v224, 3, v115"); mad(P, 'v224', 'v116', 1056, 'v224')
    e("v_and_b32 v116, 1, v114"); e("v_lshl_add_u32 v224, v116, 7, v224")
    e("v_bfe_u32 v117, v255, 2, 1"); e("v_lshl_add_u32 v116, v115, 1, v117"); e("v_xor_b32 v116, v116, v186"); e("v_lshlrev_b32 v187, 4, v116")
    e("v_lshl_add_u32 v187, v115, 8, v187"); e("v_xor_b32 v117, 1, v117"); e("v_lshl_add_u32 v187, v117, 13, v187")
    e("s_lshl_b32 s7, s84, 3"); e(f"s_add_u32 s7, s7, {sTRIP}"); e("s_lshl_b32 s7, s7, 7"); e("v_add_u32 v187, s7, v187"); e("v_add_u32 v188, 0x10000, v187")
    e("v_lshlrev_b32 v116, 1, v112"); e("v_and_b32 v117, 15, v255"); e("v_xor_b32 v116, v116, v117"); e("v_lshlrev_b32 v227, 4, v116"); e("v_lshl_add_u32 v227, v112, 8, v227")
    e(f"s_lshl_b32 s7, {sSUB}, 11"); e("v_add_u32 v227, s7, v227"); e("v_add_u32 v228, 0x10000, v227")
    e("v_xor_b32 v229, 16, v227"); e("v_xor_b32 v230, 16, v228")
    e("v_lshrrev_b32 v185, 2, v255")
    if cfg.hack & 16: e("s_waitcnt lgkmcnt(0)"); e("s_mov_b32 s57, s86"); cfg.pe = -5
    e("v_lshlrev_b32 v240, 7, v112")
    e("v_and_b32 v116, 7, v255"); e("v_lshl_add_u32 v240, v116, 4, v240")
    e("v_bfe_u32 v116, v255, 3, 1")
    e("v_lshl_add_u32 v245, v116, 13, v240")
    e("v_lshl_add_u32 v240, v116, 9, v240")
    e(f"s_lshl_b32 s7, {sSUB}, 16"); e("v_add_u32 v245, s7, v245")
    e(f"s_mul_i32 {sLV}, {sSUB}, 2112")
    e(f"s_cmp_ge_u32 {sWV}, 4"); e("s_cbranch_scc1 L_hs")

def wdo_read_bases(P, d0, d1, G, r, c, tmp, add=0):
    e = P.e
    e(f"v_lshlrev_b32 {d0}, 3, {c}"); e(f"v_lshl_add_u32 {d0}, {G}, 8, {d0}"); e(f"v_lshl_add_u32 {d0}, {r}, 6, {d0}")
    e(f"v_and_b32 {tmp}, 1, {G}"); e(f"v_lshl_add_u32 {d0}, {tmp}, 5, {d0}")
    if add: e(f"v_add_u32 {d0}, {add}, {d0}")
    e(f"v_xor_b32 {d1}, 32, {d0}")

def final_salu():
    R = []; e = R.append
    e(f"s_lshr_b32 s7, {sHEAD}, 2"); e(f"s_mul_i32 {sT3}, {sQB}, {7*STG}"); e(f"s_lshl_b32 {sT2}, {sHEAD}, 14"); e(f"s_add_u32 {sT3}, {sT3}, {sT2}")
    e(f"s_lshl_b32 {sT2}, {sSUB}, 18"); e(f"s_add_u32 {sT3}, {sT3}, {sT2}")
    e(f"s_add_u32 s{srd(3)}, s70, {sT3}"); e(f"s_addc_u32 s{srd(3)+1}, s71, 0"); e(f"s_mov_b32 s{srd(3)+2}, {GP_OFF + 5*STG}")
    e(f"s_mov_b32 s{srd(5)}, s66"); e(f"s_mov_b32 s{srd(5)+1}, s67"); e(f"s_mov_b32 s{srd(5)+2}, {2048*896}")
    e(f"s_lshl_b32 {sT2}, {sQB}, 2"); e(f"s_add_u32 s7, s7, {sT2}")
    e(f"s_lshl_b32 {sT2}, s7, 10"); e(f"s_add_u32 {sT2}, {sT2}, {FL_OFF}")
    e(f"s_add_u32 s{srd(6)}, s70, {sT2}"); e(f"s_addc_u32 s{srd(6)+1}, s71, 0"); e(f"s_mov_b32 s{srd(6)+2}, 0x10400"); e("s_mov_b32 s84, 0x10000")
    e("s_lshl_b32 s7, s7, 1"); e(f"s_and_b32 {sT2}, {sHEAD}, 1"); e(f"s_add_u32 s7, s7, {sT2}"); e(f"s_mul_i32 s86, s7, {16*896}")
    e(f"s_lshl_b32 {sT2}, {sSUB}, 7"); e(f"s_add_u32 s86, s86, {sT2}"); e(f"s_bfe_u32 {sT2}, {sHEAD}, 0x10001"); e(f"s_lshl_b32 {sT2}, {sT2}, 6"); e(f"s_add_u32 s86, s86, {sT2}")
    return R

def xch_salu():
    return [f"s_lshl_b32 s7, {sSUB}, 2", "s_lshr_b32 s7, 0x635, s7", "s_and_b32 s7, s7, 15", f"s_mul_i32 s85, s7, {SLOT}",
            f"s_lshl_b32 s90, {sSUB}, 12", f"s_add_u32 s90, s90, {GLUB + 16384}"]

def xa(kk, lo, hi, add=0):
    o = (13 - kk) * 8192
    return f"{hi if o >= 65536 else lo} offset:{(o & 0xffff) + add}"
XR = [f"ds_read_b128 {vr((2*kk+qt)*4,4)}, {xa(kk, *(('v229', 'v230') if kk & 1 else ('v227', 'v228')), qt*1024)}" for kk in range(14) for qt in range(2)]

def gen_setup(P, cfg, helper):
    e = P.e
    F = Filler(P)
    lm = cfg.hx - 1; M = 1 << lm
    e(f"s_mov_b32 s93, {int(helper)}")
    if helper:
        e(f"s_lshl_b32 s88, {sSUB}, 11"); e("v_add_u32 v240, s88, v240")
        e(f"s_lshl_b32 s7, {sSUB}, 3"); e(f"s_lshr_b32 {sLK}, 0xc0703000, s7"); e(f"s_and_b32 {sLK}, {sLK}, 0xff"); e(f"s_add_u32 {sLK}, {sLK}, s88")
        e(f"s_lshl_b32 {sL1K}, {sSUB}, 12")
        e(f"s_movk_i32 {sKO}, -8192"); e(f"s_movk_i32 {sVO}, -8192")
        e("v_and_b32 v116, 1, v112"); e("v_lshlrev_b32 v116, 1, v116"); e("v_xor_b32 v116, v116, v115"); e("v_lshlrev_b32 v242, 4, v116")
        mad(P, 'v242', 'v185', 896, 'v242')
        e("v_lshl_add_u32 v117, v112, 3, v114"); e("v_lshlrev_b32 v241, 4, v116"); mad(P, 'v241', 'v117', 3584, 'v241')
        e(f"s_lshr_b32 s7, {sSUB}, 1"); e(f"s_mul_i32 s7, s7, {32*3584}"); e("v_add_u32 v241, s7, v241")
        e(f"s_bitcmp1_b32 {sSUB}, 0"); e(f"s_cselect_b32 s{srd(5)}, s{srd(6)}, s{srd(5)}"); e(f"s_cselect_b32 s{srd(5)+1}, s{srd(6)+1}, s{srd(5)+1}")
        e(f"v_lshlrev_b32 v243, {5+lm}, v255")
        e("v_lshlrev_b32 v249, 4, v255")
        e(f"s_mul_i32 s87, {sSUB}, {2*14336}")
        wdo_read_bases(P, 'v246', 'v247', 'v112', 'v114', 'v115', 'v116', GLUB)
        e("v_add_u32 v224, 512, v224")
    else:
        e(f"v_lshlrev_b32 v252, {5+lm}, v255")
        if cfg.touch:
            for tr in range(cfg.ktr):
                F.add(f"s_add_u32 {sT3}, s89, {tr*65536}", f"buffer_load_dword v251, v252, {ST}, {sT3} offen", tag='touch')
            e("v_mul_u32_u24 v253, 84, v115"); mad(P, 'v253', 'v185', 3584, 'v253')
        if cfg.touch and cfg.gtouch:
            F.add(f"s_lshl_b32 s7, {sSH}, 1", f"s_and_b32 {sT2}, {sSUB}, 1", f"s_add_u32 s7, s7, {sT2}", f"s_mul_i32 {sT3}, s7, {14*M*3584}",
                  f"s_cmp_lt_u32 {sSUB}, 2", f"s_cselect_b32 s{srd(9)}, s{srd(5)}, s{srd(6)}", f"s_cselect_b32 s{srd(9)+1}, s{srd(5)+1}, s{srd(6)+1}",
                  f"s_mov_b32 s{srd(9)+2}, s{srd(5)+2}", f"buffer_load_dword v251, v253, {ST}, {sT3} offen", tag='touch')
            for _ in range(M - 1): F.add(f"s_add_u32 {sT3}, {sT3}, {14*3584}", f"buffer_load_dword v251, v253, {ST}, {sT3} offen", tag='touch')
        F.add(*final_salu()); F.add(f"s_mov_b32 s73, {f2u(-LOG2E):#x}", *xch_salu())
        e("v_bfe_u32 v116, v255, 1, 3"); e("v_lshlrev_b32 v117, 2, v116"); e("s_mov_b32 s7, 0xec975320"); e("v_bfe_u32 v117, s7, v117, 4")
        e("v_lshlrev_b32 v248, 10, v116"); e("v_lshl_add_u32 v248, v117, 4, v248")
        e("v_and_b32 v116, 1, v255"); e("v_lshl_add_u32 v248, v116, 7, v248")
        e("v_and_b32 v116, 1, v112"); e("v_lshl_add_u32 v248, v116, 5, v248"); e("v_lshrrev_b32 v116, 1, v112"); e("v_lshl_add_u32 v248, v116, 4, v248")
        e(f"v_add_u32 v249, {4*SLOT}, v224")
        e(f"v_mov_b32 v116, {FLAG}"); e("v_mov_b32 v117, 0"); e("ds_write_b32 v116, v117")
    return F

def gen_ln(P, cfg):
    e = P.e
    F = Filler(P)
    e(f"v_add_u32 v225, {3*SLOT}, v224"); e(f"v_add_u32 v226, {6*SLOT}, v224")
    ld = f"buffer_load_dwordx4 v245, {SWQ}, {sT0} offen lds"
    F.add(f"s_lshr_b32 s7, {sWV}, 2", f"s_lshl_b32 {sT0}, s7, 18", f"s_mul_i32 s7, s7, {SLOT}", f"s_add_u32 s7, s7, {sLV}", f"s_add_u32 m0, s7, {7*SLOT}", ld, tag='W01')
    for d in (1056, 7392, 1056): F.add(f"s_addk_i32 m0, {d}", f"s_addk_i32 {sT0}, 16384", ld, tag='W01')
    if cfg.hack & 16: stamp(P, cfg, 13)
    for kp in range(cfg.pre2): e(f"buffer_load_dwordx4 {vr(156+4*kp,4)}, v184, {SX}, {sT1} offen offset:{kp*128}")
    if cfg.hack & 16: stamp(P, cfg, 14)
    for hh in range(2):
        m, t, v, u = "v118", "v119", "v120", "v121"
        for d in range(28 * hh, 28 * hh + 28):
            kp = d // 4 + cfg.pre2
            if hh == 0 and d % 4 == 0 and kp < 7:
                e(f"buffer_load_dwordx4 {vr(156+4*kp,4)}, v184, {SX}, {sT1} offen offset:{kp*128}", extra_rd=regs_of(f"v{128+d}"))
            e(f"v_lshlrev_b32 v{2*d}, 16, v{128+d}"); e(f"v_and_b32 v{2*d+1}, {sHI}, v{128+d}")
            pr = vr(2 * d, 2)
            if cfg.lnpk & 1:
                if d % 28 == 0: e(f"v_mov_b64 v[118:119], {pr}"); e(f"v_pk_mul_f32 v[120:121], {pr}, {pr}")
                else: e(f"v_pk_add_f32 v[118:119], v[118:119], {pr}"); e(f"v_pk_fma_f32 v[120:121], {pr}, {pr}, v[120:121]")
            elif d % 28 == 0:
                e(f"v_mov_b32 {m}, v{2*d}"); e(f"v_mov_b32 {t}, v{2*d+1}"); e(f"v_mul_f32 {v}, v{2*d}, v{2*d}"); e(f"v_mul_f32 {u}, v{2*d+1}, v{2*d+1}")
            else:
                e(f"v_add_f32 {m}, {m}, v{2*d}"); e(f"v_add_f32 {t}, {t}, v{2*d+1}")
                e(f"v_fmac_f32 {v}, v{2*d}, v{2*d}"); e(f"v_fmac_f32 {u}, v{2*d+1}, v{2*d+1}")
            if d == cfg.t_at and cfg.touch:
                e(f"buffer_load_dword v251, v250, {SWQ}, s90 offen", tag='touch')
            if d >= cfg.wq_at and d % 4 == 1: F.emit()
        if hh == 1: stamp(P, cfg, 1)
        e(f"v_add_f32 {m}, {m}, {t}"); e(f"v_add_f32 {v}, {v}, {u}")
        for qp in ("quad_perm:[1,0,3,2]", "quad_perm:[2,3,0,1]", "row_half_mirror"):
            e(f"v_add_f32_dpp {m}, {m}, {m} {qp} row_mask:0xf bank_mask:0xf")
            e(f"v_add_f32_dpp {v}, {v}, {v} {qp} row_mask:0xf bank_mask:0xf")
        e(f"s_mov_b32 s7, {f2u(1.0/448):#x}")
        e(f"v_mul_f32 {m}, s7, {m}")
        e(f"v_mul_f32 {t}, {m}, {m}")
        e(f"v_fma_f32 {v}, {v}, s7, -{t}")
        e(f"v_max_f32 {v}, 0, {v}")
        e(f"v_cvt_pk_bf16_f32 {t}, {m}, {v}")
        e(f"v_lshlrev_b32 {m}, 16, {t}")
        e(f"v_and_b32 {v}, {sHI}, {t}")
        e(f"v_add_f32 {v}, {f2u(1e-5):#x}, {v}")
        e(f"v_cvt_pk_bf16_f32 {v}, {v}, {v}"); e(f"v_and_b32 {v}, {sHI}, {v}")
        e(f"v_sqrt_f32 {v}, {v}")
        e(f"v_cvt_pk_bf16_f32 {v}, {v}, {v}"); e(f"v_and_b32 {v}, {sHI}, {v}")
        e(f"v_rcp_f32 {v}, {v}")
        e(f"v_mul_f32 {m}, {m}, {v}")
        if not cfg.lnpk & 2: e(f"v_mov_b32 {t}, {m}"); e(f"v_mov_b32 {u}, {v}")
        for kp in range(7):
            z = 7 * hh + kp
            for d in range(4 * z, 4 * z + 4):
                if cfg.lnpk & 2: e(f"v_pk_fma_f32 {vr(2*d,2)}, {vr(2*d,2)}, v[120:121], v[118:119] op_sel_hi:[1,0,0] neg_lo:[0,0,1] neg_hi:[0,0,1]")
                else: e(f"v_fma_f32 v{2*d}, v{2*d}, {u}, -{t}"); e(f"v_fma_f32 v{2*d+1}, v{2*d+1}, {v}, -{m}")
            for d in range(4 * z, 4 * z + 4):
                e(f"v_cvt_pk_bf16_f32 v{128+d}, v{2*d}, v{2*d+1}")
            ad = xa(2 * kp + 1, 'v187', 'v188').split()
            e(f"ds_write_b128 {ad[0]}, {vr(128+4*z,4)} {ad[1]}")
            if hh == 1: F.emit(2)
        if hh == 0:
            if cfg.hack & 16: stamp(P, cfg, 15)
            e("v_xor_b32 v187, 0x80, v187"); e("v_xor_b32 v188, 0x80, v188")
            e("v_mov_b32 v122, 0"); e("v_lshlrev_b32 v123, 7, v255")
            e(f"s_cmp_lg_u32 {sMODE}, 0"); e(f"s_cbranch_scc1 L_norst")
            e(f"s_mov_b64 exec, 0x7f"); e("global_store_dword v123, v122, s[100:101] sc1", tag='opt'); e("s_mov_b64 exec, -1")
            e(f"L_norst:")
    F.wait('W01')
    e("s_waitcnt lgkmcnt(0)")
    stamp(P, cfg, 12)
    e("s_barrier")
    for t in XR[:16]: e(t)
    e("s_cmp_eq_u32 s93, 1"); e("s_cbranch_scc1 L_helper")

def gen_qproj(P, cfg, helper, F):
    e = P.e
    xr = XR[16:]
    def start():
        e("s_barrier", extra_rd=regs_of("v[0:63]"))
        if helper:
            for T in range(2, 6): dma_wq(F, T, WQ_SLOT[T])
            F.emit(4)
        stamp(P, cfg, 2)
    items = []
    after = {1: [('WQ', 6), ('WQ', 7), ('WQ', 8), ('WQ', 9)], 2: [('WQ', 10), ('WQ', 11)], 3: [('WQ', 12), ('WQ', 13)], 4: [('K', 0), ('V', 0)], 5: [('K', 1), ('K', 2)], 6: []}
    def mkhook(k):
        def hook():
            if helper:
                F.wait(('WQ', 2*k), ('WQ', 2*k+1), *([('K', 0)] if k == 6 else []))
            if k == 1: P.waitvm('opt')
            e("s_barrier", extra_rd=regs_of("v[64:111]") if k == 1 else None)
            if helper:
                for (w, t) in after.get(k, []):
                    if w == 'WQ': dma_wq(F, t, WQ_SLOT[t])
                    else: dma_kv(F, w, t, (t & 3) + (4 if w == 'V' else 0))
            elif k == 1:
                e(f"s_or_b32 s7, {sMODE}, {sSUB}"); e("s_cbranch_scc1 L_noarr")
                e(f"s_lshl_b32 s7, {sQB}, 4"); e("v_mov_b32 v228, s7"); e("v_mov_b32 v229, 1")
                e("s_mov_b64 exec, 1"); e("global_atomic_add v228, v229, s[68:69] sc1", tag='opt'); e("s_mov_b64 exec, -1")
                e("L_noarr:")
        return hook
    for T in range(14):
        sl = WQ_SLOT[T]; base = f"v{224 + sl // 3}"; so = (sl % 3) * SLOT
        for t in range(8):
            imm = so + (t >> 2) * 256 + (t & 3) * 32
            mf = [(128 + ((t >> 1) * 2 + qt) * 8 + (t & 1) * 4, (2 * T + qt) * 4, '0' if T == 0 else None) for qt in range(2)]
            items.append(dict(mf=mf, reads=tr_reads(base, imm, imm + 8448), hook=mkhook(T // 2) if (T % 2 == 0 and T > 0 and t == 0) else None))
    def gap(i, k):
        T, t = divmod(i, 8)
        for _ in range(2):
            if xr: e(xr.pop(0))
        if helper: F.emit()
        else:
            if T >= 1 and t < 4: e(f"v_mov_b64 {vr(8*(T-1)+2*t,2)}, 0")
            elif 1 <= T < 5 and t in (4, 5): e(f"v_mov_b64 {vr(112+4*(T-1)+2*(t-4),2)}, 0")
            elif t == 6 and T >= cfg.tq0: F.emit()
    stream(P, items, [192 + 4 * i for i in range(6)], 6, gap, group=3, start=start)
    assert not F.q or not helper
    F.flush()
    e(f"s_lshr_b32 s7, {sSUB}, 1"); e(f"s_mul_i32 s7, s7, {SLOT}"); e(f"s_and_b32 {sT3}, {sSUB}, 1"); e(f"s_lshl_b32 {sT3}, {sT3}, 13")
    e(f"s_add_u32 s7, s7, {sT3}"); e(f"s_add_u32 s7, s7, {7*SLOT}")
    e("v_lshlrev_b32 v254, 4, v255"); e("v_add_u32 v254, s7, v254")
    if helper:
        for g in range(8):
            for t in qfin(g): e(t)
            if g: e(f"ds_write_b128 v254, {vr(128+4*(g-1),4)} offset:{(g-1)*1024}")
        e(f"ds_write_b128 v254, {vr(156,4)} offset:{7*1024}")
        P.waitvm(('K', 1))
        e("s_waitcnt lgkmcnt(0)")
        stamp(P, cfg, 3)
        e("s_barrier")
    return F

def qfin(g):
    r = [f"v_mul_f32 v{128+8*g+i}, {sC}, v{128+8*g+i}" for i in range(8)]
    r += [f"v_cvt_pk_bf16_f32 v{128+4*g+i}, v{128+8*g+2*i}, v{129+8*g+2*i}" for i in (0, 2, 1, 3)] if g else \
         [f"v_cvt_pk_bf16_f32 v{128+i}, v{128+2*i}, v{129+2*i}" for i in range(4)]
    r += [f"v_permlane16_swap_b32 v{128+4*g}, v{130+4*g}", f"v_permlane16_swap_b32 v{129+4*g}, v{131+4*g}"]
    return r

BUFS = [224, 228, 232, 236, 240, 244, 252]
PAT = list(range(7)) + list(range(6)) + list(range(6)) + list(range(7)) + list(range(6))
LEAD = sched.LEAD
SA = [192, 200]; SB = 208; NEGM = 216; LR = [250, 251]
def fbuf(f): return BUFS[PAT[f % 32]]
def oacc(t, qt): return ((t >> 1) * 2 + qt) * 8 + (t & 1) * 4
def k_imm(f): return (f >> 3) * 8448 + ((f & 7) >> 1) * 256 + (f & 1) * 64
def k_read(P, f, slot): P.e(f"ds_read_b128 {vr(fbuf(f),4)}, v248 offset:{slot*SLOT + k_imm(f)}")
def v_read(P, f, slot):
    t = f - 16
    imm = slot * SLOT + (t >> 2) * 256 + (t & 3) * 32
    P.e(f"{TR} {vr(fbuf(f),2)}, v249 offset:{imm}")
    P.e(f"{TR} {vr(fbuf(f)+2,2)}, v249 offset:{imm + 8448}")

def sm_text(task, sa):
    if task[0] in ('exp', 'add'):
        _, blk, q, i = task
        r = (sa if blk == 'a' else SB) + 4 * q + i
        return f"v_exp_f32 v{r}, v{r}" if task[0] == 'exp' else f"v_add_f32 v{LR[q]}, v{LR[q]}, v{r}"
    _, q, k = task
    src = (sa if k < 2 else SB) + 4 * q + 2 * (k & 1)
    return f"v_cvt_pk_bf16_f32 v{sa+4*q+k}, v{src}, v{src+1}"

FIXED = WAITS = PLACE = None

def gen_iter(P, j, ctl=False, bar=16, lab='L_loop'):
    e = P.e
    cur = SA[j & 1]; nxt = SA[(j + 1) & 1]
    for g in range(64):
        f, qt = g >> 1, g & 1
        if CFG.snake & (1 if f < 16 else 2): qt ^= f & 1
        extra = set()
        for z in WAITS.get(g, []): extra |= regs_of(vr(fbuf(z), 4))
        if f < 16:
            acc = (nxt if f < 8 else SB) + 4 * qt
            c = vr(NEGM + 4 * qt, 4) if (f & 7) == 0 else vr(acc, 4)
            e(f"{MF} {vr(acc,4)}, {vr(fbuf(f),4)}, {vr(128 + ((f&7)*2+qt)*4,4)}, {c}", extra_rd=extra)
        else:
            a = oacc(f - 16, qt)
            e(f"{MF} {vr(a,4)}, {vr(fbuf(f),4)}, {vr(cur+4*qt,4)}, {vr(a,4)}", extra_rd=extra)
        late = []
        for it in FIXED[g]:
            if it[0] == 'read':
                n = it[1]
                if CFG.x & 4 and n % 2: continue
                if n < 16: k_read(P, n, (j + 1) & 3)
                elif n < 32: v_read(P, n, j & 3)
                else: k_read(P, n - 32, (j + 2) & 3)
            elif it[0] == 'ctl' and ctl: late.append(f"s_sub_u32 {sTRIP}, {sTRIP}, 1")
            elif it[0] == 'branch' and ctl: late.append(f"s_cbranch_scc0 {lab}")
        if g == bar: late.append("s_barrier")
        for t in PLACE.get(g + 64, []):
            if not (CFG.x & 2 and t[0] != 'cvt') and not (CFG.x & 8 and t[0] == 'add'): e(sm_text(t, cur))
        for t in PLACE.get(g, []):
            if not (CFG.x & 2 and t[0] != 'cvt') and not (CFG.x & 8 and t[0] == 'add'): e(sm_text(t, nxt))
        for t in late: e(t)

def xgroup(P, op, r, t):
    e = P.e
    e(f"v_mov_b32 {t}, {r}"); e(f"v_permlane16_swap_b32 {r}, {t}"); e(f"{op} {r}, {r}, {t}")
    e(f"v_mov_b32 {t}, {r}"); e(f"v_permlane32_swap_b32 {r}, {t}"); e(f"{op} {r}, {r}, {t}")

SR, SO, SF = SWQ, SWG, SWU
def msum(Q, acc, src):
    for h in range(16):
        for ee in range(2): Q.e(f"{MF} {vr(acc+4*ee,4)}, {vr(192+4*ee,4)}, {vr(src+4*h,4)}, {'0' if h == 0 else vr(acc+4*ee,4)}")
def silu8(Q, a):
    rnd8(Q, a, 224)
    for i in range(8): Q.e(f"v_mul_f32 v{224+i}, s73, v{a+i}")
    for i in range(8): Q.e(f"v_exp_f32 v{224+i}, v{224+i}")
    for i in range(8): Q.e(f"v_add_f32 v{224+i}, 1.0, v{224+i}")
    for i in range(8): Q.e(f"v_rcp_f32 v{224+i}, v{224+i}")
    for i in range(8): Q.e(f"v_mul_f32 v{a+i}, v{a+i}, v{224+i}")
    rnd8(Q, a, 224)
def fetch(P, cfg, r, dst, voff, between):
    e = P.e
    e(f"s_lshl_b32 s84, {sSUB}, 7"); e(f"s_mov_b32 {sT1}, 0"); e(f"s_mov_b32 {sTRIP}, {SPIN}")
    if cfg.hack & 64: stamp(P, cfg, 1, True)
    def onepass(nm):
        e(f"buffer_load_dword v253, v252, {SF}, s84 offen offset:{512*r} sc1"); e("s_waitcnt vmcnt(0)")
        e("v_cmp_le_u32 vcc, 1, v253")
        e(f"s_andn2_b32 {sT2}, vcc_lo, {sT1}"); e(f"s_or_b32 {sT1}, {sT1}, vcc_lo")
        for h in range(16):
            e(f"s_bitcmp1_b32 {sT2}, {h}"); e(f"s_cbranch_scc0 {nm}_{h}")
            e(f"s_mov_b32 {sT3}, {h*1024 + r*4*STG}")
            e(f"buffer_load_dwordx4 {vr(dst+4*h,4)}, {voff}, {SR}, {sT3} offen sc1", tag='touch')
            e(f"{nm}_{h}:")
    onepass(f"L_fa{r}")
    if cfg.hack & 64: stamp(P, cfg, 2, True)
    between()
    e(f"s_cmp_eq_u32 {sT1}, -1"); e(f"s_cbranch_scc1 L_fd{r}")
    e(f"L_fl{r}:")
    onepass(f"L_fb{r}")
    e(f"s_cmp_eq_u32 {sT1}, -1"); e(f"s_cbranch_scc1 L_fd{r}")
    e(f"s_sleep {cfg.slp}")
    e(f"s_sub_u32 {sTRIP}, {sTRIP}, 1"); e(f"s_cbranch_scc0 L_fl{r}")
    e(f"L_fd{r}:")
    if cfg.hack & 64: stamp(P, cfg, 3, True)
def fin(P, cfg, r, src, xr):
    e = P.e; a = 208
    for d in range(4): e(f"v_lshlrev_b32 v{232+2*d}, 16, v{xr+d}"); e(f"v_and_b32 v{233+2*d}, {sHI}, v{xr+d}")
    e("s_waitcnt vmcnt(0)")
    if cfg.hack & 64: stamp(P, cfg, 4, True)
    msum(P, a, src)
    rnd8(P, a, 224)
    for i in range(8): e(f"v_mul_f32 v{a+i}, v{a+i}, v{200+i}")
    rnd8(P, a, 224)
    for i in range(8): e(f"v_add_f32 v{a+i}, v{a+i}, v{232+i}")
    for d in range(4): e(f"v_cvt_pk_bf16_f32 v{240+d}, v{a+2*d}, v{a+2*d+1}")
    e(f"buffer_store_dwordx4 v[240:243], v251, {SO}, s86 offen offset:{r*512}" + ["", " sc1", " nt", " sc0 sc1"][cfg.oflag])

def gen_compute(P, cfg, FC):
    e = P.e
    m0 = P.mark()
    gen_qproj(P, cfg, False, FC)
    stamp(P, cfg, 3)
    order = [f for kk in range(8) for f in (kk, 8 + kk)]
    items = [dict(mf=[((SA[0] if f < 8 else SB) + 4 * qt, 128 + ((f & 7) * 2 + qt) * 4, '0' if (f & 7) == 0 else None) for qt in range(2)],
                  reads=[("ds_read_b128", "v248", k_imm(f), 0, 4)]) for f in order]
    def start():
        for t in range(4): e(f"v_mov_b64 {vr(104+2*t,2)}, 0")
        for t in qfin(0) + qfin(1): e(t)
    def gap0(i, k):
        if i < 6:
            for t in qfin(i + 2): e(t)
            if i == 2: e("s_barrier")
            if i >= 2:
                for z in (2 * (i - 2), 2 * (i - 2) + 1): e(f"ds_read_b128 {vr(160+4*z,4)}, v254 offset:{z*1024}")
    stream(P, items, BUFS[:6], 6, gap0, group=2, start=start)
    e("s_waitcnt vmcnt(0)")
    for f in range(LEAD): k_read(P, f, 1)
    e(f"s_cmp_lg_u32 {sMODE}, 0"); e("s_cbranch_scc1 L_havem")
    mm = P.mark()
    for q in range(2):
        a, b, m = SA[0] + 4 * q, SB + 4 * q, NEGM + 4 * q
        e(f"v_max3_f32 v{m}, v{a}, v{a+1}, v{a+2}"); e(f"v_max3_f32 v{m}, v{m}, v{a+3}, v{b}"); e(f"v_max3_f32 v{m}, v{m}, v{b+1}, v{b+2}"); e(f"v_max_f32 v{m}, v{m}, v{b+3}")
    xgroup(P, "v_max_f32", f"v{NEGM}", f"v{NEGM+1}"); xgroup(P, "v_max_f32", f"v{NEGM+4}", f"v{NEGM+5}")
    for q in range(2):
        m = NEGM + 4 * q
        for i in (1, 2, 3, 0): e(f"v_sub_f32 v{m+i}, 0, v{m}")
    minit = P.since(mm)
    e("L_havem:")
    for q in range(2):
        for i in range(4):
            e(f"v_add_f32 v{SA[0]+4*q+i}, v{SA[0]+4*q+i}, v{NEGM+4*q}"); e(f"v_add_f32 v{SB+4*q+i}, v{SB+4*q+i}, v{NEGM+4*q}")
    e(f"v_mov_b32 v{LR[0]}, 0"); e(f"v_mov_b32 v{LR[1]}, 0")
    for g in range(18, 64):
        for t in PLACE[g]: e(sm_text(t, SA[0]))
    e(f"s_mov_b32 {sTRIP}, 15")
    stamp(P, cfg, 4)
    e("s_waitcnt lgkmcnt(0)")
    if cfg.vbit >= 0: e(f"s_bitcmp1_b32 {sSUB}, {cfg.vbit}"); e("s_cbranch_scc1 L_itb0")
    e("s_branch L_it0")
    pro = P.since(m0)
    itb = {}
    if cfg.vbit >= 0:
        e(".p2align 6")
        e("L_loopb:")
        for j in (3, 0, 1, 2):
            if j == 0: e("L_itb0:")
            m = P.mark(); gen_iter(P, j, ctl=(j == 2), bar=cfg.barb, lab='L_loopb'); itb[j] = P.since(m)
        e("s_branch L_tail")
    e(".p2align 6")
    e("L_loop:")
    its = {}
    for j in (3, 0, 1, 2):
        if j == 0: e("L_it0:")
        m = P.mark(); gen_iter(P, j, ctl=(j == 2), bar=cfg.bara); its[j] = P.since(m)
    m1 = P.mark()
    e('L_tail:')
    stamp(P, cfg, 5)
    cur = SA[1]
    e("s_barrier")
    for f in range(16, 16 + LEAD): v_read(P, f, 3)
    for g in range(64, 82):
        for t in PLACE[g]: e(sm_text(t, cur))
    post_ops = []
    Q = Prog()
    xgroup(Q, "v_add_f32", f"v{LR[0]}", "v208"); xgroup(Q, "v_add_f32", f"v{LR[1]}", "v209")
    Q.e(f"v_max_f32 v208, v{LR[0]}, v{LR[1]}"); Q.e(f"v_add_f32 v209, v{LR[0]}, v{LR[1]}")
    Q.e(f"v_rcp_f32 v{LR[0]}, v{LR[0]}"); Q.e(f"v_rcp_f32 v{LR[1]}, v{LR[1]}")
    Q.e("v_mbcnt_lo_u32_b32 v210, -1, 0"); Q.e("v_mbcnt_hi_u32_b32 v210, -1, v210")
    Q.e("v_lshrrev_b32 v211, 4, v210"); Q.e("v_bfe_u32 v212, v210, 2, 2"); Q.e("v_and_b32 v213, 3, v210")
    Q.e("v_lshrrev_b32 v212, 2, v210"); Q.e("v_lshlrev_b32 v192, 7, v212"); Q.e("v_lshl_add_u32 v192, v213, 3, v192")
    Q.e("v_bfe_u32 v212, v210, 3, 2"); Q.e("v_lshl_add_u32 v192, v212, 5, v192")
    for ee in (1, 2, 3): Q.e(f"v_xor_b32 v{192+ee}, {32*ee}, v192")
    for ee in range(4): Q.e(f"v_add_u32 v{196+ee}, {6*SLOT}, v{192+ee}")
    Q.e("v_lshlrev_b32 v248, 4, v210")
    Q.e(f"v_mov_b32 v214, {FLAG}"); Q.e("v_mov_b32 v215, 1")
    rest = Q.L
    for g in range(32, 64):
        f, qt = g >> 1, g & 1
        extra = set()
        for z in WAITS.get(g, []):
            if 16 <= z < 32: extra |= regs_of(vr(fbuf(z), 4))
        a = oacc(f - 16, qt)
        e(f"{MF} {vr(a,4)}, {vr(fbuf(f),4)}, {vr(cur+4*qt,4)}, {vr(a,4)}", extra_rd=extra)
        if qt == 1 and f + LEAD < 32: v_read(P, f + LEAD, 3)
        else:
            for _ in range(2):
                if rest: P.L.append(rest.pop(0))
    P.L.extend(rest)
    e(f"v_cmp_ngt_f32 vcc, {f2u(cfg.thr):#x}, v209")
    e("s_cbranch_vccz L_noflag")
    e("ds_write_b32 v214, v215")
    e("s_waitcnt lgkmcnt(0)")
    e("L_noflag:")
    e("s_barrier")
    e("ds_read_b32 v215, v214")
    def onorm(g):
        return [f"v_mul_f32 v{8*g+i}, v{8*g+i}, v{LR[g & 1]}" for i in range(8)] + [f"v_cvt_pk_bf16_f32 v{4*g+i}, v{8*g+2*i}, v{8*g+2*i+1}" for i in range(4)]
    items = []
    F = Filler(P)
    def ehook(t):
        def h():
            if cfg.hack & 32 and t % 2 == 0: e(f"s_memtime s[{48+t}:{49+t}]")
            if t in (2, 3, 4, 5, 6, cfg.lastb): e("s_barrier")
        return h
    def acc_o(s, ee, qt): return (64 if s & 1 else 128) + ((ee >> 1) * 2 + qt) * 8 + (ee & 1) * 4
    for t in range(14):
        sl = WO_SLOT[t]; so = (sl % 3) * SLOT; s, hf = t >> 1, t & 1
        for k4 in range(4):
            for ee in range(4):
                base = f"v{[192, 200, 196][sl // 3] + ee}"
                imm = so + k4 * 4096; kk = 4 * hf + k4
                items.append(dict(mf=[(acc_o(s, ee, qt), (kk * 2 + qt) * 4, '0' if kk == 0 else None) for qt in range(2)],
                                  reads=tr_reads(base, imm, imm + 2048),
                                  hook=ehook(t) if (t > 0 and k4 == 0 and ee == 0) else None))
    def cv(s, u, hf):
        o = 160 + 16 * (s & 1) + 4 * u + 2 * hf; a = acc_o(s, 0, 0) + 8 * u + 4 * hf
        F.add(f"v_cvt_pk_bf16_f32 v{o}, v{a}, v{a+1}", f"v_cvt_pk_bf16_f32 v{o+1}, v{a+2}, v{a+3}")
    def sto(s, u):
        o = 160 + 16 * (s & 1) + 4 * u
        F.add(f"s_mov_b32 {sT0}, {s*STG + u*16384}", f"buffer_store_dwordx4 {vr(o,4)}, v248, {SP}, {sT0} offen sc1", tag=('S', s))
    def publish(r):
        F.add((('S', r),), "s_mov_b64 exec, 1", f"global_store_dword v249, v254, s[100:101] offset:{128*r} sc1", "s_mov_b64 exec, -1", tag='fl')
    nrm = [t for g in range(2, 16) for t in onorm(g)]
    def start():
        for ee in range(4): e(f"v_add_u32 v{200+ee}, {3*SLOT}, v{192+ee}")
        e("v_mov_b32 v249, 0"); e("v_mov_b32 v254, 1"); e("v_add_u32 v204, s85, v248"); e("v_add_u32 v205, s90, v248")
        for t in onorm(0) + onorm(1): e(t)
        e("v_readfirstlane_b32 s7, v215")
        e(f"s_andn2_b32 s7, s7, {sMODE}"); e("s_cbranch_scc1 L_maxpass")
        stamp(P, cfg, 6)
        if cfg.hack & 32: stamp(P, cfg, 1)
        if cfg.hack & 64: stamp(P, cfg, 12, True)
    def gap(i, k):
        s, r = divmod(i, 32)
        if k: return
        for _ in range(6):
            if nrm: e(nrm.pop(0))
        if s >= 1:
            u, z = divmod(r, cfg.ssp)
            if u < 4:
                if z == 0: cv(s - 1, u, 0)
                if z == 1: cv(s - 1, u, 1)
                if z == 2: sto(s - 1, u)
        if s >= 2 and r == cfg.pubr: publish(s - 2)
        if i == cfg.xat: e('s_barrier')
        F.flush()
    stream(P, items, [216 + 4 * i for i in range(8)], 7, gap, group=4, start=start)
    if cfg.hack & 32: e('s_memtime s[62:63]'); e('s_waitcnt lgkmcnt(0)'); dump_stamps(P); e('s_endpgm')
    st = (lambda i: None) if cfg.hack & 16 else (lambda i: stamp(P, cfg, i, bool(cfg.hack & 64)))
    st(13)
    for u in range(4): cv(6, u, 0); cv(6, u, 1); sto(6, u)
    F.flush()
    if cfg.xat >= 224: e("s_barrier")
    st(14)
    for k, r0 in enumerate((192, 196, 244, 250)): e(f"ds_read_b128 {vr(r0,4)}, v205 offset:{k*1024}")
    for h in range(16): e(f"ds_read_b128 {vr(64+4*h,4)}, v204 offset:{h*1024}")
    publish(5); F.flush()
    msum(P, 200, 64)
    st(15); publish(6); F.flush()
    if cfg.hack & 64: stamp(P, cfg, 9, True)
    e(f"s_cmp_eq_u32 {sSUB}, 3"); e("s_cbranch_scc1 L_cdone")
    cslow = []
    fetch(P, cfg, 1, 0, "v248", lambda: silu8(P, 200))
    fin(P, cfg, 1, 0, 244)
    e("L_cdone:")
    if cfg.stamps:
        stamp(P, cfg, 7); e("s_waitcnt vmcnt(0)"); stamp(P, cfg, 8); stamp(P, cfg, 11, True); dump_stamps(P)
    e("s_endpgm")
    post = [x for x in P.since(m1) if not any(x is y for y in cslow)]
    m2 = P.mark()
    e("L_maxpass:")
    e("s_waitcnt vmcnt(0) lgkmcnt(0)")
    e("v_and_b32 v0, 15, v210"); e("v_lshlrev_b32 v0, 9, v0"); e("v_and_b32 v1, 1, v211"); e("v_lshl_add_u32 v0, v1, 5, v0")
    e("v_lshrrev_b32 v1, 1, v211"); e("v_lshl_add_u32 v0, v1, 4, v0")
    e(f"v_mov_b32 v{NEGM}, 0xff800000"); e(f"v_mov_b32 v{NEGM+4}, 0xff800000")
    e(f"s_mov_b32 {sT0}, 0")
    e("L_mp_loop:")
    for kk in range(8): e(f"buffer_load_dwordx4 {vr(16+4*kk,4)}, v0, {SK}, {sT0} offen offset:{kk*64}")
    e("s_waitcnt vmcnt(0)")
    for kk in range(8):
        for qt in range(2): e(f"{MF} {vr(8+4*qt,4)}, {vr(16+4*kk,4)}, {vr(128+(kk*2+qt)*4,4)}, {'0' if kk == 0 else vr(8+4*qt,4)}")
    e("s_nop 15")
    for qt in range(2):
        m = NEGM + 4 * qt; a = 8 + 4 * qt
        e(f"v_max3_f32 v{m}, v{m}, v{a}, v{a+1}"); e(f"v_max3_f32 v{m}, v{m}, v{a+2}, v{a+3}")
    e(f"s_add_u32 {sT0}, {sT0}, 8192"); e(f"s_cmp_lt_u32 {sT0}, {1<<20}"); e("s_cbranch_scc1 L_mp_loop")
    xgroup(P, "v_max_f32", f"v{NEGM}", f"v{NEGM+1}"); xgroup(P, "v_max_f32", f"v{NEGM+4}", f"v{NEGM+5}")
    for q in range(2):
        m = NEGM + 4 * q
        for i in (1, 2, 3, 0): e(f"v_sub_f32 v{m+i}, 0, v{m}")
    e("L_again:")
    e("s_waitcnt vmcnt(0) lgkmcnt(0)")
    e("v_mbcnt_lo_u32_b32 v0, -1, 0"); e("v_mbcnt_hi_u32_b32 v0, -1, v0"); e(f"s_lshl_b32 s7, {sWV}, 6"); e("v_add_u32 v0, s7, v0")
    e(f"s_mov_b32 {sMODE}, 1"); e("s_setprio 0")
    e("s_barrier")
    e("s_branch L_restart")
    mp = P.since(m2)
    body = its[0] + its[1] + its[2] + its[3]
    trace = pro + body * 2 + its[0] + its[1] + its[2] + post
    skip = set(id(x) for x in minit)
    trace2 = [x for x in pro if id(x) not in skip] + body
    extra = []
    if itb:
        bb = itb[0] + itb[1] + itb[2] + itb[3]
        extra = [pro + bb * 2 + itb[0] + itb[1] + itb[2] + post]
    return [trace, trace2] + extra, [mp, cslow]

def poll(P, name, load, cmp, pre_issued=False):
    e = P.e
    if not pre_issued: e(load)
    e(cmp); e("s_cmp_eq_u64 vcc, -1"); e(f"s_cbranch_scc1 {name}_ok")
    m = P.mark()
    e(f"s_mov_b32 s7, {SPIN}")
    e(f"{name}_lp:")
    e(f"s_sleep {CFG.slp}")
    e(load, tag='opt'); e("s_waitcnt vmcnt(0)")
    e(cmp); e("s_cmp_eq_u64 vcc, -1"); e(f"s_cbranch_scc1 {name}_ok")
    e("s_sub_u32 s7, s7, 1"); e(f"s_cbranch_scc0 {name}_lp")
    slow = P.since(m)
    e(f"{name}_ok:")
    return slow

def rnd8(P, r, t):
    for d in range(4): P.e(f"v_cvt_pk_bf16_f32 v{t+d}, v{r+2*d}, v{r+2*d+1}")
    for d in range(4): P.e(f"v_lshlrev_b32 v{r+2*d}, 16, v{t+d}"); P.e(f"v_and_b32 v{r+2*d+1}, {sHI}, v{t+d}")

def gen_helper(P, cfg, FH):
    e = P.e
    m0 = P.mark()
    e("L_helper:")
    e("s_setprio 2")
    F = gen_qproj(P, cfg, True, FH)
    dma_kv(F, 'V', 1, 5); dma_kv(F, 'K', 3, 3); dma_kv(F, 'V', 2, 6); F.flush()
    e(f"s_mov_b32 s73, {f2u(-LOG2E):#x}")
    lo, hi = cfg.plo, cfg.phi
    if lo != 2: e(f"s_setprio {lo}")
    P.waitvm(('V', 0), ('K', 2))
    e("s_barrier")
    GU0 = 3; ACT0 = GU0 + 28; NACT = cfg.nact; DN0 = ACT0 + NACT
    GPUB = [DN0 + 10, DN0 + 16]; GPOLL = [DN0 + 12, DN0 + 21]; GSRC = [112, 0]; GSET = DN0 + 2; GSET2 = DN0 + 15
    slows = []
    ntr = [cfg.ktr]
    def acc_g(m, ee, mat, qt): return 112 + 32 * (m & 1) + (ee * 2 + qt) * 8 + mat * 4
    def act(m):
        L = []
        for ee in range(2):
            regs = [acc_g(m, ee, 0, qt) + i for qt in range(2) for i in range(4)]
            for r in regs: L.append(f"v_mul_f32 v{r}, s73, v{r}")
            for r in regs: L.append(f"v_exp_f32 v{r}, v{r}")
            for r in regs: L.append(f"v_add_f32 v{r}, 1.0, v{r}")
            for r in regs: L.append(f"v_rcp_f32 v{r}, v{r}")
            for r in regs: L.append(f"v_mul_f32 v{r}, v{r}, v{r+4}")
            for qt in range(2):
                a = acc_g(m, ee, 0, qt); d = 208 + (m * 2 + qt) * 4 + ee * 2
                L.append(f"v_cvt_pk_bf16_f32 v{d}, v{a}, v{a+1}"); L.append(f"v_cvt_pk_bf16_f32 v{d+1}, v{a+2}, v{a+3}")
        return L
    def split(L, n):
        cost = [2 if t.startswith(('v_exp', 'v_rcp')) else 1 for t in L]; tot = sum(cost); parts = [[] for _ in range(n)]; acc = 0
        for t, c in zip(L, cost):
            parts[min(n - 1, acc * n // tot)].append(t); acc += c
        return parts
    def acc_d(nt, ee, qt): return 48 + 16 * (nt & 1) + (qt * 2 + ee) * 4
    def out_cv(nt):
        o = 80 + 8 * (nt & 1)
        return [f"v_cvt_pk_bf16_f32 v{o+4*qt+i}, v{acc_d(nt, 0, qt)+2*i}, v{acc_d(nt, 0, qt)+2*i+1}" for qt in range(2) for i in range(4)]
    def out_st(nt):
        o = 80 + 8 * (nt & 1)
        e(f"s_mov_b32 {sT3}, {(nt>>1)*STG + (nt&1)*32768}"); e(f"buffer_store_dwordx4 {vr(o,4)}, v249, {SP}, {sT3} offen sc1", tag=('st', nt // 8))
        e(f"s_addk_i32 {sT3}, 16384"); e(f"buffer_store_dwordx4 {vr(o+4,4)}, v249, {SP}, {sT3} offen sc1", tag=('st', nt // 8))
    def chunk_mf(c, i):
        b, ee = i >> 1, i & 1
        if c < 28:
            m, s = divmod(c, 7); T = 2 * s + (b >> 1)
            return [(acc_g(m, ee, b & 1, qt), (2 * T + qt) * 4, T == 0) for qt in range(2)]
        return [(acc_d(c - 28, ee, qt), 208 + (b * 2 + qt) * 4, b == 0) for qt in range(2)]
    def rd(c, i):
        imm = (c % 3) * GLUS + (i >> 1) * 2048
        e(f"{TR} {vr(176+4*i,2)}, v{246+(i&1)} offset:{imm}"); e(f"{TR} {vr(178+4*i,2)}, v{246+(i&1)} offset:{imm+1024}")
    small_only = []; big_only = []
    def burst(c, nxt, fill, skip_from=8):
        fill = list(fill)
        if hi != lo: e(f"s_setprio {hi}")
        for i in range(8):
            if i == skip_from:
                for t in fill: e(t)
                fill = []
                e("s_cmp_lg_u32 s99, 0"); e(f"s_cbranch_scc1 L_bs{c}"); mk = P.mark()
            for k, (acc, bb, z) in enumerate(chunk_mf(c, i)[::-1] if (cfg.snake & 4 and i & 1) else chunk_mf(c, i)):
                e(f"{MF} {vr(acc,4)}, {vr(176+4*i,4)}, {vr(bb,4)}, {'0' if z else vr(acc,4)}")
                if k == 0:
                    room = 2
                    while fill and room > 0:
                        cst = 2 if fill[0].startswith(('v_exp', 'v_rcp')) else 1
                        if cst > room: break
                        e(fill.pop(0)); room -= cst
            if nxt is not None: rd(nxt, i)
        if skip_from < 8:
            big_only.extend(P.since(mk)); e(f"L_bs{c}:")
        if hi != lo: e(f"s_setprio {lo}")
        for t in fill: e(t)
    for j in range(64):
        if j in (3, ACT0, DN0, DN0 + 14, 62): stamp(P, cfg, {3: 4, ACT0: 5, DN0: 6, DN0 + 14: 7, 62: 8}[j])
        if j in (3, ACT0) and not cfg.hack & 16: stamp(P, cfg, {3: 1, ACT0: 2}[j], True)
        if j == GSET + 1: e("global_load_dword v253, v252, s[68:69] sc1")
        if j in GPOLL: e(f"buffer_load_dword v253, v252, {SF}, s84 offen offset:{128*GPOLL.index(j)} sc1")
        if j + 4 < 64 and not cfg.x & 1: dma_kv(F, 'K', j + 4, j & 3)
        if j < 28: dma_gu(F, j)
        if 0 <= j + 3 - DN0 < 14: dma_wd(F, 28 + j + 3 - DN0, j + 3 - DN0)
        if j + 3 < 64 and not (cfg.x & 1 and j): dma_kv(F, 'V', j + 3, 4 + ((j + 3) & 3))
        for nt in {59: [0], 60: [1], 61: [2, 3], 62: [4, 5], 63: [6, 7]}.get(j, []): dma_wo(F, nt, WO_SLOT[nt])
        if cfg.touch:
            if cfg.ltouch and j % cfg.tper == 0 and ntr[0] < min(16, j // 4 + cfg.klead + 1):
                ntr[0] += 1
                F.add(f"s_add_u32 {sT3}, s89, {(ntr[0]-1)*65536}", f"buffer_load_dword v244, v243, {ST}, {sT3} offen", tag='touch')
            if j == 10:
                F.add(f"s_mul_i32 {sT3}, {sSH}, 7168", f"s_add_u32 {sT3}, {sT3}, s88", f"s_lshl_b32 {sT3}, {sT3}, {cfg.hx-1}", f"buffer_load_dword v244, v243, {SWD}, {sT3} offen", tag='touch')
            if j in (cfg.wot, cfg.wot + 2, cfg.wot2, cfg.wot2 + 2):
                F.add(f"s_mul_i32 {sT3}, {sSH}, 14336", f"s_add_u32 {sT3}, {sT3}, s88", f"s_add_u32 {sT3}, {sT3}, {0 if j in (cfg.wot, cfg.wot2) else 8192}", f"s_lshl_b32 {sT3}, {sT3}, {cfg.hx-1}", f"buffer_load_dword v244, v243, {SWO}, {sT3} offen", tag='touch')
        if j == GU0 - 1:
            for i in range(8): rd(0, i)
        if GU0 <= j < ACT0:
            c = j - GU0; m, s = divmod(c, 7)
            fill = split(act(m - 1), 7)[s] if m else []
            if m == 3:
                e("s_cmp_lg_u32 s99, 0"); e(f"s_cbranch_scc0 L_bg{c}")
                mk = P.mark()
                for t in fill: e(t)
                e(f"s_branch L_be{c}")
                small_only.extend(P.since(mk))
                e(f"L_bg{c}:"); mk = P.mark()
            burst(c, c + 1 if c < 27 else None, fill)
            if m == 3: big_only.extend(P.since(mk)); e(f"L_be{c}:")
        if DN0 <= j < DN0 + 14:
            nt = j - DN0
            burst(28 + nt, 29 + nt if nt < 13 else None, out_cv(nt - 1) if nt else [], skip_from=6)
        if j == DN0 + 14:
            for t in out_cv(13): e(t)
        if ACT0 <= j < DN0:
            F.flush()
            e("s_cmp_lg_u32 s99, 0"); e(f"s_cbranch_scc1 L_as{j}"); mk = P.mark()
            for t in split(act(3), NACT)[j - ACT0]: e(t)
            big_only.extend(P.since(mk)); e(f"L_as{j}:")
            if j == DN0 - 1:
                for i in range(8): rd(28, i)
        if j == GSET:
            for t in final_salu(): e(t)
            e(f"s_lshl_b32 s7, {sQB}, 4"); e("v_mov_b32 v252, s7")
        if j == GSET2:
            F.emit(4)
            e("v_and_b32 v176, 15, v255"); e("v_lshrrev_b32 v177, 4, v255")
            e("v_mul_u32_u24 v251, 896, v176"); e("v_lshl_add_u32 v251, v177, 4, v251")
            e("v_lshrrev_b32 v178, 3, v255"); e("v_lshlrev_b32 v179, 1, v177"); e("v_and_b32 v180, 7, v255"); e("v_xor_b32 v179, v179, v180")
            e("v_mul_u32_u24 v248, 896, v178"); e("v_lshl_add_u32 v248, v179, 4, v248")
            e("v_bfe_u32 v178, v176, 2, 1"); e("v_lshlrev_b32 v178, 3, v178")
            e("v_lshrrev_b32 v179, 3, v176"); e("v_lshl_add_u32 v178, v179, 1, v178")
            e("v_bfe_u32 v179, v176, 1, 1"); e("v_add_u32 v178, v178, v179")
            e("v_lshlrev_b32 v179, 2, v177"); e("v_sub_u32 v178, v178, v179")
            e("v_and_b32 v179, 1, v176"); e("v_lshlrev_b32 v179, 4, v179"); e("v_mov_b32 v180, 0x3f80"); e("v_lshlrev_b32 v179, v179, v180")
            for ee in range(2):
                for i in range(4):
                    e(f"v_cmp_eq_u32 vcc, {i - 4 * ee}, v178"); e(f"v_cndmask_b32 v{192+4*ee+i}, 0, v179, vcc")
        F.flush()
        if DN0 + 1 <= j <= DN0 + 14: out_st(j - DN0 - 1)
        if j == GSET2 + 2:
            for r in range(2): e(f"buffer_load_dwordx4 {vr(216+4*r,4)}, v251, {SX}, s86 offen offset:{r*512}")
            if cfg.otouch: e(f"buffer_load_dword v244, off, {SO}, s86", tag='touch')
        if j in GPUB:
            r = GPUB.index(j)
            e("v_mov_b32 v96, 0"); e(f"v_mov_b32 v97, 1"); P.waitvm(('st', r))
            e("s_mov_b64 exec, 1"); e(f"global_store_dword v96, v97, s[100:101] offset:{128*r} sc1", tag='fl'); e("s_mov_b64 exec, -1")
        if j == GSET + 1:
            slows.append(poll(P, "L_pa", "global_load_dword v253, v252, s[68:69] sc1", "v_cmp_le_u32 vcc, 16, v253", True))
            e("v_and_b32 v252, 15, v255"); e("v_lshlrev_b32 v252, 2, v252")
        if j in GPOLL:
            r = GPOLL.index(j)
            slows.append(poll(P, f"L_pg{r}", f"buffer_load_dword v253, v252, {SF}, s84 offen offset:{128*r} sc1", "v_cmp_le_u32 vcc, 1, v253", True))
        for r in range(2):
            k = j - GPOLL[r] - 1
            if 0 <= k < 8:
                for h in (2 * k, 2 * k + 1):
                    e(f"s_mov_b32 {sT3}, {GP_OFF + h*1024 + r*4*STG}")
                    e(f"buffer_load_dwordx4 {vr(GSRC[r]+4*h,4)}, v249, {SR}, {sT3} offen sc1")
        if j == cfg.pe: stamp(P, cfg, 13)
        if j < 63:
            need = [('K', j + 3), ('V', j + 1), ('G', j - 1)]
            if 0 <= j + 2 - DN0 < 14: need.append(('G', 28 + j + 2 - DN0))
        else:
            need = [('WO', 0), ('WO', 1)]
            e(f"v_mov_b32 v176, {FLAG}")
        P.waitvm(*need)
        if GU0 - 1 <= j < DN0 + 13: e("s_waitcnt lgkmcnt(0)")
        if j == cfg.pe: stamp(P, cfg, 14)
        e("s_barrier")
        if j == cfg.pe - 1: stamp(P, cfg, 9)
        if j == cfg.pe: stamp(P, cfg, 15)
    e("ds_read_b32 v177, v176")
    for k in range(6):
        if cfg.hack & 32 and k >= 2: stamp(P, cfg, 1 + 3 * (k - 2))
        dma_wo(F, 8 + k, WO_SLOT[8 + k]); F.flush()
        if cfg.hack & 32 and k >= 2: stamp(P, cfg, 2 + 3 * (k - 2))
        if k == 0:
            e("v_readfirstlane_b32 s7, v177")
            e(f"s_andn2_b32 s7, s7, {sMODE}"); e("s_cbranch_scc1 L_again")
        P.waitvm(*[('WO', t) for t in ([k + 2] if k < 4 else range(6, cfg.lastb) if k == 4 else range(cfg.lastb, 14))])
        if cfg.hack & 32 and k >= 2: stamp(P, cfg, 3 + 3 * (k - 2))
        e("s_barrier")
    if cfg.hack & 32: stamp(P, cfg, 13); dump_stamps(P); e("s_endpgm")
    e(f"s_setprio {cfg.pep}")
    if cfg.hack & 4: e("s_branch L_hdone")
    e(f"s_cmp_eq_u32 {sSUB}, 3"); e("s_cbranch_scc1 L_hskip")
    for t in xch_salu(): e(t)
    e("v_add_u32 v176, s85, v249"); e("v_add_u32 v177, s90, v249"); e("v_mov_b32 v250, v249")
    for h in range(16): e(f"ds_write_b128 v176, {vr(4*h,4)} offset:{h*1024}")
    for k, r0 in enumerate((192, 196, 220, 250)): e(f"ds_write_b128 v177, {vr(r0,4)} offset:{k*1024}")
    e("L_hskip:")
    e("s_waitcnt vmcnt(0) lgkmcnt(0)")
    e("s_barrier")
    fetch(P, cfg, 0, 0, "v249", lambda: (msum(P, 200, 112), silu8(P, 200)))
    fin(P, cfg, 0, 0, 216)
    e("L_hdone:")
    if cfg.stamps:
        e("s_waitcnt vmcnt(0)"); stamp(P, cfg, 11, True); dump_stamps(P)
    e("s_endpgm")
    sk = set(id(x) for s in slows for x in s)
    allh = [x for x in P.since(m0) if id(x) not in sk]
    so = set(map(id, small_only)); bo = set(map(id, big_only))
    return [[x for x in allh if id(x) not in so], [x for x in allh if id(x) not in bo]], slows

def kd(name, vgpr, ydim=False):
    return "\n".join([f".amdhsa_kernel {name}", f"  .amdhsa_next_free_vgpr {vgpr}", "  .amdhsa_next_free_sgpr 102",
        f"  .amdhsa_accum_offset {vgpr}", "  .amdhsa_group_segment_fixed_size 0", "  .amdhsa_kernarg_size 96",
        "  .amdhsa_user_sgpr_count 2", "  .amdhsa_user_sgpr_kernarg_segment_ptr 1", "  .amdhsa_system_sgpr_workgroup_id_x 1"]
        + (["  .amdhsa_system_sgpr_workgroup_id_y 1"] if ydim else []) + [".end_amdhsa_kernel"])

def generate(cfg=None):
    cfg = cfg or Cfg()
    global FIXED, WAITS, PLACE, CFG
    CFG = cfg
    FIXED, WAITS, PLACE = sched.plan(wait_group=cfg.wg)
    P = Prog()
    K1 = NAME + "_kernel"
    P.e(".p2align 8"); P.e(f"{K1}:")
    m = P.mark(); gen_entry(P, cfg); entry = P.since(m)
    m = P.mark(); FC = gen_setup(P, cfg, False); P.e("s_branch L_ln"); cs = P.since(m)
    P.e("L_hs:")
    m = P.mark(); FH = gen_setup(P, cfg, True); hs = P.since(m)
    P.e("L_ln:")
    m = P.mark(); gen_ln(P, cfg); ln = P.since(m)
    ctraces, other = gen_compute(P, cfg, FC)
    htrace, hother = gen_helper(P, cfg, FH)
    ctraces = [cs + ln + t for t in ctraces]; htrace = [hs + ln + t for t in htrace]
    P.e("L_end:"); P.e("s_endpgm")
    P.e("L_code_end:")
    full = [entry + t for t in ctraces] + [entry + t for t in htrace]
    resolve(full + [[x for x in t if x.tag != 'opt'] for t in full] + other + hother)
    nb = lambda t: sum(1 for x in t if x.kind != 'none' and x.op == 's_barrier')
    print("barriers compute", nb(ctraces[0]) + 13 * 4, "helper", nb(htrace[0]), nb(htrace[1]))
    if cfg.hack & 2:
        for I in P.L:
            if I.text.startswith("buffer_store_dwordx4"): I.text = I.text.replace(" sc1", "")
    if cfg.hack & 8:
        for I in P.L:
            if I.text.startswith("buffer_store_dwordx4"): I.text = I.text.replace(" sc1", " sc0 sc1")
    if cfg.dflag:
        fl = {1: "nt", 2: "sc1", 3: "sc0", 4: "sc0 sc1", 5: "sc0 nt", 6: "sc1 nt"}[cfg.dflag]
        for I in P.L:
            if I.text.endswith(" lds") and I.tag and I.tag[0] in ('K', 'V', 'G', 'WQ', 'WO'): I.text = I.text[:-4] + f" {fl} lds"
    out = expand(P.L)
    mis = align8(out)
    head = [f"; @launch grid=(256,1,1) block=(512,1,1) lds={LDS_BYTES}",
            '.amdgcn_target "amdgcn-amd-amdhsa--gfx950"', ".text",
            f".globl {K1}", f".type {K1},@function"]
    span = 0
    for I in out:
        if I.text == "L_code_end:": break
        if I.text.startswith(".p2align"):
            a = 1 << int(I.text.split()[1]); span = -(-span // a) * a
        span += I.size()
    body = [I.text.replace("CODE_SPAN", str((span - 128) & ~3)) for I in out]
    print("code bytes K1", span)
    tail = ['.section .rodata,"a"', ".p2align 6", kd(K1, 256)]
    return "\n".join(head + body + tail) + "\n", mis

if __name__ == "__main__":
    cfg = Cfg()
    for a in sys.argv[2:]:
        k, v = a.split('='); setattr(cfg, k, float(v) if k == 'thr' else int(v))
    s, mis = generate(cfg)
    open(sys.argv[1], "w").write(s)
    print("bytes", len(s), "lines", s.count("\n"), "misaligned", mis)
```

```python
import struct, sys
from asmlib import *
import sched

NAME = "recurrent_scan__mha_block_cached__glu_gated_glu__prompt"
def f2u(x): return struct.unpack('<I', struct.pack('<f', x))[0]
LOG2E = 1.4426950408889634
SLOT = 16896
GLUB = 8 * SLOT
GLUS = 8192
FLAG = GLUB - 32
LDS_BYTES = 163840
GP_OFF = 0x2000000
STG = 262144
FL_OFF = 0x4000000
SPIN = 400000

sHEAD, sQB, sWV, sSUB = 's3', 's4', 's5', 's6'
SX, SK, SV, SWQ, SWO, SWG, SWU, SWD, SP, ST = [f"s[{8+4*i}:{11+4*i}]" for i in range(10)]
sC = 's72'; sHI = 's74'; sTRIP = 's75'
sLK, sLV, sL1K = 's76', 's77', 's78'
sMODE = 's79'
sSH = 's91'
sT0, sT1, sT2, sT3 = 's80', 's81', 's82', 's83'
sKO, sVO = 's96', 's97'
def srd(i): return 8 + 4 * i
def vr(a, n): return f"v[{a}:{a+n-1}]"
MF = "v_mfma_f32_16x16x32_bf16"
TR = "ds_read_b64_tr_b16"

class Cfg:
    glu = 1
    touch = 1
    prio = 2
    stamps = 0
    thr = 2.0 ** 64
    wq_at = 33
    xpar = 0
    pe = 20
    hack = 0
    plo = 0
    hx = 1
    t_at = 28
    ktr = 3
    klead = 16
    gtouch = 1
    tq0 = 8
    phi = 2
    nact = 2
    flip = 0
    x = 0
    snake = 7
    lnpk = 3
    pre2 = 0
    xrot = 1
    stouch = 0
    tlb = 0
    pn = 0
    toff = 0
    obias = 0
    wot2 = 27
    wsoff = 0
    tper = 2
    oflag = 1
    otouch = 0
    dflag = 0
    vbit = -1
    bara = 15
    barb = 15
    pep = 0
    pd = 2
    lastb = 9
    pubr = 13
    ctop = 1
    xat = 224
    ssp = 4
    fo = 1
    sn = -1
    wot = 57
    pl = 4
    slp = 8
    wg = 3
    ltouch = 1
    etouch = 1

def stream(P, items, bufs, lead, gapfill=None, group=2, start=None):
    n = len(items)
    buf = [bufs[i % len(bufs)] for i in range(n)]
    def reads(i):
        it = items[i]
        if it.get('hook'): it['hook']()
        for (op, addr, imm, sub, w) in it['reads']:
            P.e(f"{op} {vr(buf[i]+sub, w)}, {addr} offset:{imm}")
    for i in range(min(lead, n)): reads(i)
    if start: start()
    for i in range(n):
        it = items[i]
        for k, (acc, b, c) in enumerate(it['mf'][::-1] if (CFG.snake & 4 and i & 1) else it['mf']):
            extra = set()
            if group and k == len(it['mf']) - 1 and (i + 1) % group == 0:
                for z in range(1, group + 1):
                    if i + z < n: extra |= regs_of(vr(buf[i+z], 4))
            P.e(f"{MF} {vr(acc,4)}, {vr(buf[i],4)}, {vr(b,4)}, {c if c is not None else vr(acc,4)}", extra_rd=extra)
            if k == len(it['mf']) - 1 and i + lead < n: reads(i + lead)
            elif gapfill: gapfill(i, k)

def tr_reads(addr, imm0, imm1): return [(TR, addr, imm0, 0, 2), (TR, addr, imm1, 2, 2)]

class Filler:
    def __init__(self, P): self.P = P; self.q = []
    def add(self, *texts, **kw): self.q.append((texts, kw))
    def emit(self, k=1):
        for _ in range(k):
            if not self.q: return
            texts, kw = self.q.pop(0)
            for t in texts:
                if isinstance(t, tuple): self.P.waitvm(*t)
                elif t.startswith(('buffer_', 'global_')): self.P.e(t, **kw)
                else: self.P.e(t)
    def flush(self): self.emit(len(self.q))
    def wait(self, *tags):
        assert not any(kw.get('tag') in tags for _, kw in self.q), tags
        self.P.waitvm(*tags)

def dma_kv(F, which, tile, slot):
    sr, sl, so = (SK, sLK, sKO) if which == 'K' else (SV, sLV, sVO)
    ld = lambda off: f"buffer_load_dwordx4 v240, {sr}, {so} offen" + (f" offset:{off}" if off else "") + " lds"
    tag = (which, tile)
    F.add(f"s_add_u32 m0, {sl}, {slot*SLOT}", f"s_addk_i32 {so}, 8192", ld(0), tag=tag)
    F.add("s_addk_i32 m0, 32", ld(1024), tag=tag)
    F.add(f"s_addk_i32 m0, {8448-32}", f"s_addk_i32 {so}, 8192", ld(0), tag=tag)
    F.add("s_addk_i32 m0, 32", ld(1024), tag=tag)
def dma_wq(F, tile, slot):
    ld = f"buffer_load_dwordx4 v245, {SWQ}, {sT0} offen lds"
    tag = ('WQ', tile)
    F.add(f"s_add_u32 m0, {sLV}, {slot*SLOT}", f"s_mov_b32 {sT0}, {32*tile*8192}", ld, tag=tag)
    for d in (1056, 7392, 1056):
        F.add(f"s_addk_i32 m0, {d}", f"s_addk_i32 {sT0}, 16384", ld, tag=tag)
def dma_wo(F, t, slot):
    ld = f"buffer_load_dwordx4 v248, {SWO}, {sT0} offen lds"
    tag = ('WO', t)
    F.add(f"s_add_u32 m0, {sL1K}, {slot*SLOT}", f"s_add_u32 {sT0}, s87, {(t & 1)*128*896 + (t >> 1)*128}", ld, tag=tag)
    for p in range(3): F.add("s_addk_i32 m0, 1024", f"s_addk_i32 {sT0}, {8*896}", ld, tag=tag)
def dma_gu(F, c):
    base = GLUB + (c % 3) * GLUS; m, s = divmod(c, 7)
    ld = f"buffer_load_dwordx4 v241, {SWG}, {sT2} offen lds"
    F.add(f"s_add_u32 m0, s88, {base}", f"s_mov_b32 {sT2}, {64*s*3584 + m*64}", ld, tag=('G', c))
    F.add("s_addk_i32 m0, 1024", f"s_addk_i32 {sT2}, {4*3584}", ld, tag=('G', c))
def dma_wd(F, c, nt):
    base = GLUB + (c % 3) * GLUS
    ld = f"buffer_load_dwordx4 v242, {SWD}, {sT2} offen lds"
    F.add(f"s_add_u32 m0, s88, {base}", f"s_add_u32 {sT2}, s87, {nt*64}", ld, tag=('G', c))
    F.add("s_addk_i32 m0, 1024", f"s_addk_i32 {sT2}, 14336", ld, tag=('G', c))

WQ_SLOT = {0: 7, 1: 8, 2: 5, 3: 3, 4: 6, 5: 4, 6: 0, 7: 1, 8: 2, 9: 7, 10: 8, 11: 5, 12: 3, 13: 6}
WO_SLOT = {0: 8, 1: 0, 2: 1, 3: 4, 4: 2, 5: 5, 6: 3, 7: 6, 8: 7, 9: 8, 10: 0, 11: 1, 12: 4, 13: 2}

def streg(idx): return {0: 's94', 10: 's95'}.get(idx, f"s{48+idx}") if not H32 else f"s{48+idx}"
H32 = False
NLAB = 0
def stamp(P, cfg, idx, real=False):
    if not cfg.stamps: return
    P.e(f"{'s_memrealtime' if real else 's_memtime'} s[64:65]"); P.e("s_waitcnt lgkmcnt(0)")
    P.e(f"s_mov_b32 {streg(idx)}, s64")
def dump_stamps(P):
    e = P.e
    global H32
    H32 = bool(CFG.hack & 32)
    if CFG.hack & 128:
        global NLAB
        NLAB += 1
        e("s_mov_b64 exec, 1")
        e("v_mov_b32 v0, 0"); e(f"v_mov_b32 v1, {streg(11)}"); e(f"s_not_b32 s7, {streg(10)}"); e("v_mov_b32 v2, s7")
        e("global_atomic_umax v0, v1, s[68:69] offset:4"); e("global_atomic_umax v0, v2, s[68:69] offset:8")
        e(f"s_lshl_b32 s7, s2, 3"); e(f"s_add_u32 s7, s7, {sWV}"); e(f"s_cmp_lg_u32 s7, {37*8}"); e(f"s_cbranch_scc1 L_nd{NLAB}")
        for w, (x, y) in zip((3, 5, 6, 7, 9, 10, 11, 13, 14), ((1, 0), (2, 1), (3, 2), (4, 3), (5, 4), (6, 5), (13, 6), (8, 13), (11, 10))):
            e(f"s_sub_u32 s7, {streg(x)}, {streg(y)}"); e(f"v_mov_b32 v{w+4}, s7"); e(f"global_store_dword v0, v{w+4}, s[68:69] offset:{4*w}")
        e(f"L_nd{NLAB}:")
        return
    for i in range(16): e(f"v_writelane_b32 v254, {streg(i)}, {i}")
    e(f"s_lshl_b32 s7, s2, 3"); e(f"s_add_u32 s7, s7, {sWV}"); e("s_lshl_b32 s7, s7, 8"); e("s_add_u32 s7, s7, 0x8000000")
    e("s_add_u32 s96, s70, s7"); e("s_addc_u32 s97, s71, 0")
    e("v_mbcnt_lo_u32_b32 v255, -1, 0"); e("v_mbcnt_hi_u32_b32 v255, -1, v255"); e("v_lshlrev_b32 v255, 2, v255")
    e("global_store_dword v255, v254, s[96:97]")

def mad(P, dst, src, mul, acc=None):
    P.e(f"s_movk_i32 s7, {mul}" if mul < 32768 else f"s_mov_b32 s7, {mul}")
    if acc is None: P.e(f"v_mul_u32_u24 {dst}, s7, {src}")
    else: P.e(f"v_mad_u32_u24 {dst}, {src}, s7, {acc}")

def gen_entry(P, cfg):
    e = P.e
    e("s_cmp_ge_u32 s2, 256"); e("s_cbranch_scc1 L_end")
    e(f"s_mov_b32 {sMODE}, 0")
    e("L_restart:")
    stamp(P, cfg, 0); stamp(P, cfg, 10, True)
    e("s_load_dwordx16 s[48:63], s[0:1], 0"); e("s_load_dwordx8 s[64:71], s[0:1], 64")
    e("s_getpc_b64 s[96:97]")
    if cfg.ctop:
        e("s_lshr_b32 s7, s2, 3"); e("s_lshl_b32 s7, s7, 12"); e("v_lshl_add_u32 v189, v0, 3, s7"); e("v_min_u32 v189, CODE_SPAN, v189")
        e("global_load_dword v251, v189, s[96:97]", tag='touch')
    e("v_lshrrev_b32 v1, 6, v0")
    e("v_and_b32 v255, 63, v0")
    e(f"v_readfirstlane_b32 {sWV}, v1")
    hx = cfg.hx; lm = hx - 1; M = 1 << lm
    e(f"s_and_b32 {sHEAD}, s2, {(16 >> hx) - 1}"); e(f"s_lshl_b32 {sHEAD}, {sHEAD}, {hx}"); e(f"s_bfe_u32 s7, s2, {(hx << 16) | 3:#x}"); e(f"s_add_u32 {sHEAD}, {sHEAD}, s7")
    e(f"s_lshr_b32 {sSH}, s2, {3 + hx}")
    if hx > 1: e(f"s_bfe_u32 s7, s2, {(lm << 16) | (4 - hx):#x}"); e(f"s_lshl_b32 s7, s7, {5 - hx}"); e(f"s_add_u32 {sQB}, {sSH}, s7")
    else: e(f"s_mov_b32 {sQB}, {sSH}")
    e(f"s_and_b32 {sSUB}, {sWV}, 3")
    e("s_mov_b32 s11, 0x20000"); e(f"s_mov_b32 s10, {2048*896}")
    e("v_lshrrev_b32 v186, 3, v255"); e("v_and_b32 v185, 7, v255"); e("v_lshlrev_b32 v184, 4, v185"); mad(P, 'v184', 'v186', 896, 'v184')
    if cfg.xrot: e(f"s_add_u32 s84, {sWV}, s2"); e("s_and_b32 s84, s84, 7"); e(f"s_and_b32 {sTRIP}, s2, {cfg.xrot & 1}")
    else: e(f"s_mov_b32 s84, {sWV}"); e(f"s_mov_b32 {sTRIP}, 0")
    e(f"s_lshl_b32 s7, {sQB}, 3"); e("s_add_u32 s7, s7, s84"); e(f"s_mul_i32 {sT0}, s7, {16*896}")
    def mk(i, plo, mul, total, exact=None, idx=sHEAD):
        b = srd(i)
        e(f"s_mul_i32 s7, {idx}, {mul}")
        e(f"s_add_u32 s{b}, s{plo}, s7"); e(f"s_addc_u32 s{b+1}, s{plo+1}, 0")
        if exact is not None: e(f"s_mov_b32 s{b+2}, {exact}")
        else: e(f"s_sub_u32 s{b+2}, {total}, s7")
    e(f"v_lshrrev_b32 v250, {4-lm}, v0"); e("v_lshlrev_b32 v250, 13, v250"); e(f"v_and_b32 v2, {(16>>lm)-1}, v0"); e(f"v_lshl_add_u32 v250, v2, {5+lm}, v250")
    e(f"s_mul_i32 s90, {sSH}, {28*M*8192}")
    for i in range(1, 10): e(f"s_mov_b32 s{srd(i)+3}, 0x20000")
    e(f"s_mul_i32 s7, {sTRIP}, {8*896}"); e(f"s_add_u32 {sT1}, {sT0}, {8*896}"); e(f"s_add_u32 {sT0}, {sT0}, s7"); e(f"s_sub_u32 {sT1}, {sT1}, s7")
    e("s_waitcnt lgkmcnt(0)")
    if cfg.hack & 16: e("s_memtime s[86:87]")
    e("s_mov_b32 s8, s48"); e("s_mov_b32 s9, s49")
    if cfg.t_at == -2:
        mk(3, 54, 512, 448 * 8192); e(f"buffer_load_dword v251, v250, {SWQ}, s90 offen", tag='touch')
    for kp in range(7): e(f"buffer_load_dwordx4 {vr(128+4*kp,4)}, v184, {SX}, {sT0} offen offset:{kp*128}")
    if cfg.t_at != -2: mk(3, 54, 512, 448 * 8192)
    if cfg.t_at == -1: e(f"buffer_load_dword v251, v250, {SWQ}, s90 offen", tag='touch')
    if cfg.tlb & 1:
        e(f"s_load_dword s92, s[{srd(3)}:{srd(3)+1}], 0"); e(f"s_add_u32 s96, s{srd(3)}, {447*8192}"); e(f"s_addc_u32 s97, s{srd(3)+1}, 0"); e("s_load_dword s92, s[96:97], 0")
    if cfg.stouch:
        e(f"s_cmp_eq_u32 {sWV}, 7"); e("s_cbranch_scc1 L_nost")
        e(f"s_lshl_b32 s7, {sWV}, 15"); e("s_add_u32 s7, s7, s90"); e(f"s_add_u32 s96, s{srd(3)}, s7"); e(f"s_addc_u32 s97, s{srd(3)+1}, 0")
        for r in range(4):
            for l in range(4 * cfg.stouch): e(f"s_load_dword s92, s[96:97], {r*8192 + l*(128//cfg.stouch)}")
        e("L_nost:")
    if cfg.wsoff: e(f"s_add_u32 s70, s70, {cfg.wsoff << 20}"); e("s_addc_u32 s71, s71, 0")
    mk(1, 50, 1 << 20, 0, 1 << 20)
    mk(2, 52, 1 << 20, 0, 1 << 20)
    mk(4, 56, 256 * 896, 0, 256 * 896)
    assert hx == 1
    e("s_and_b32 s98, s2, 6"); e("s_bfe_u32 s7, s2, 0x10003"); e("s_add_u32 s98, s98, s7"); e("s_mul_i32 s98, s98, 7")
    e("s_and_b32 s99, s2, 1")
    if cfg.flip: e("s_mul_i32 s7, s99, 3"); e("s_xor_b32 s99, s99, 1")
    else: e("s_lshl_b32 s7, s99, 2")
    e("s_add_u32 s98, s98, s7")
    mk(5, 60, 64, 448 * 3584, idx='s98')
    mk(6, 62, 64, 448 * 3584, idx='s98')
    mk(7, 64, 32 * 896, 1792 * 896, idx='s98')
    e(f"s_mul_i32 s7, {sQB}, {7*STG}"); e(f"s_lshl_b32 {sT2}, {sSUB}, 16"); e(f"s_add_u32 s7, s7, {sT2}"); e(f"s_lshl_b32 {sT2}, {sHEAD}, 10"); e(f"s_add_u32 s7, s7, {sT2}")
    e(f"s_lshr_b32 {sT2}, {sWV}, 2"); e(f"s_mul_i32 {sT2}, {sT2}, {GP_OFF}"); e(f"s_add_u32 s7, s7, {sT2}")
    e(f"s_add_u32 s{srd(8)}, s70, s7"); e(f"s_addc_u32 s{srd(8)+1}, s71, 0"); e(f"s_mov_b32 s{srd(8)+2}, {7*STG}")
    e(f"s_lshl_b32 s7, {sQB}, 2"); e(f"s_add_u32 s7, s7, {sSUB}"); e("s_lshl_b32 s7, s7, 8"); e(f"s_add_u32 s7, s7, {sHEAD}"); e("s_lshl_b32 s7, s7, 2")
    e(f"s_lshr_b32 {sT2}, {sWV}, 2"); e(f"s_lshl_b32 {sT2}, {sT2}, 16"); e(f"s_add_u32 s7, s7, {sT2}"); e(f"s_add_u32 s7, s7, {FL_OFF}")
    e("s_add_u32 s100, s70, s7"); e("s_addc_u32 s101, s71, 0")
    if cfg.tlb & 2:
        for i in (1, 2, 4, 5, 6, 7, 8): e(f"s_load_dword s92, s[{srd(i)}:{srd(i)+1}], 0")
        for p in ("100:101", "66:67", "68:69"): e(f"s_load_dword s92, s[{p}], 0")
    e(f"s_cmp_lt_u32 {sSUB}, 2")
    e(f"s_cselect_b32 s{srd(9)}, s{srd(1)}, s{srd(2)}"); e(f"s_cselect_b32 s{srd(9)+1}, s{srd(1)+1}, s{srd(2)+1}"); e(f"s_mov_b32 s{srd(9)+2}, {1<<20}")
    e(f"s_lshl_b32 s89, {sSH}, {12+lm}"); e(f"s_and_b32 s7, {sSUB}, 1"); e(f"s_lshl_b32 s7, s7, {11+lm}"); e("s_add_u32 s89, s89, s7")
    e(f"s_mov_b32 {sC}, {f2u(LOG2E/16):#x}"); e(f"s_mov_b32 {sHI}, 0xffff0000")
    e("v_lshrrev_b32 v112, 4, v255"); e("v_bfe_u32 v114, v255, 2, 2"); e("v_and_b32 v115, 3, v255")
    e("v_lshrrev_b32 v116, 1, v114"); e("v_lshl_add_u32 v116, v112, 1, v116"); e("v_lshlrev_b32 v224, 3, v115"); mad(P, 'v224', 'v116', 1056, 'v224')
    e("v_and_b32 v116, 1, v114"); e("v_lshl_add_u32 v224, v116, 7, v224")
    e("v_bfe_u32 v117, v255, 2, 1"); e("v_lshl_add_u32 v116, v115, 1, v117"); e("v_xor_b32 v116, v116, v186"); e("v_lshlrev_b32 v187, 4, v116")
    e("v_lshl_add_u32 v187, v115, 8, v187"); e("v_xor_b32 v117, 1, v117"); e("v_lshl_add_u32 v187, v117, 13, v187")
    e("s_lshl_b32 s7, s84, 3"); e(f"s_add_u32 s7, s7, {sTRIP}"); e("s_lshl_b32 s7, s7, 7"); e("v_add_u32 v187, s7, v187"); e("v_add_u32 v188, 0x10000, v187")
    e("v_lshlrev_b32 v116, 1, v112"); e("v_and_b32 v117, 15, v255"); e("v_xor_b32 v116, v116, v117"); e("v_lshlrev_b32 v227, 4, v116"); e("v_lshl_add_u32 v227, v112, 8, v227")
    e(f"s_lshl_b32 s7, {sSUB}, 11"); e("v_add_u32 v227, s7, v227"); e("v_add_u32 v228, 0x10000, v227")
    e("v_xor_b32 v229, 16, v227"); e("v_xor_b32 v230, 16, v228")
    e("v_lshrrev_b32 v185, 2, v255")
    if cfg.hack & 16: e("s_waitcnt lgkmcnt(0)"); e("s_mov_b32 s57, s86"); cfg.pe = -5
    e("v_lshlrev_b32 v240, 7, v112")
    e("v_and_b32 v116, 7, v255"); e("v_lshl_add_u32 v240, v116, 4, v240")
    e("v_bfe_u32 v116, v255, 3, 1")
    e("v_lshl_add_u32 v245, v116, 13, v240")
    e("v_lshl_add_u32 v240, v116, 9, v240")
    e(f"s_lshl_b32 s7, {sSUB}, 16"); e("v_add_u32 v245, s7, v245")
    e(f"s_mul_i32 {sLV}, {sSUB}, 2112")
    e(f"s_cmp_ge_u32 {sWV}, 4"); e("s_cbranch_scc1 L_hs")

def wdo_read_bases(P, d0, d1, G, r, c, tmp, add=0):
    e = P.e
    e(f"v_lshlrev_b32 {d0}, 3, {c}"); e(f"v_lshl_add_u32 {d0}, {G}, 8, {d0}"); e(f"v_lshl_add_u32 {d0}, {r}, 6, {d0}")
    e(f"v_and_b32 {tmp}, 1, {G}"); e(f"v_lshl_add_u32 {d0}, {tmp}, 5, {d0}")
    if add: e(f"v_add_u32 {d0}, {add}, {d0}")
    e(f"v_xor_b32 {d1}, 32, {d0}")

def final_salu():
    R = []; e = R.append
    e(f"s_lshr_b32 s7, {sHEAD}, 2"); e(f"s_mul_i32 {sT3}, {sQB}, {7*STG}"); e(f"s_lshl_b32 {sT2}, {sHEAD}, 14"); e(f"s_add_u32 {sT3}, {sT3}, {sT2}")
    e(f"s_lshl_b32 {sT2}, {sSUB}, 18"); e(f"s_add_u32 {sT3}, {sT3}, {sT2}")
    e(f"s_add_u32 s{srd(3)}, s70, {sT3}"); e(f"s_addc_u32 s{srd(3)+1}, s71, 0"); e(f"s_mov_b32 s{srd(3)+2}, {GP_OFF + 5*STG}")
    e(f"s_mov_b32 s{srd(5)}, s66"); e(f"s_mov_b32 s{srd(5)+1}, s67"); e(f"s_mov_b32 s{srd(5)+2}, {2048*896}")
    e(f"s_lshl_b32 {sT2}, {sQB}, 2"); e(f"s_add_u32 s7, s7, {sT2}")
    e(f"s_lshl_b32 {sT2}, s7, 10"); e(f"s_add_u32 {sT2}, {sT2}, {FL_OFF}")
    e(f"s_add_u32 s{srd(6)}, s70, {sT2}"); e(f"s_addc_u32 s{srd(6)+1}, s71, 0"); e(f"s_mov_b32 s{srd(6)+2}, 0x10400"); e("s_mov_b32 s84, 0x10000")
    e("s_lshl_b32 s7, s7, 1"); e(f"s_and_b32 {sT2}, {sHEAD}, 1"); e(f"s_add_u32 s7, s7, {sT2}"); e(f"s_mul_i32 s86, s7, {16*896}")
    e(f"s_lshl_b32 {sT2}, {sSUB}, 7"); e(f"s_add_u32 s86, s86, {sT2}"); e(f"s_bfe_u32 {sT2}, {sHEAD}, 0x10001"); e(f"s_lshl_b32 {sT2}, {sT2}, 6"); e(f"s_add_u32 s86, s86, {sT2}")
    return R

def xch_salu():
    return [f"s_lshl_b32 s7, {sSUB}, 2", "s_lshr_b32 s7, 0x635, s7", "s_and_b32 s7, s7, 15", f"s_mul_i32 s85, s7, {SLOT}",
            f"s_lshl_b32 s90, {sSUB}, 12", f"s_add_u32 s90, s90, {GLUB + 16384}"]

def xa(kk, lo, hi, add=0):
    o = (13 - kk) * 8192
    return f"{hi if o >= 65536 else lo} offset:{(o & 0xffff) + add}"
XR = [f"ds_read_b128 {vr((2*kk+qt)*4,4)}, {xa(kk, *(('v229', 'v230') if kk & 1 else ('v227', 'v228')), qt*1024)}" for kk in range(14) for qt in range(2)]

def gen_setup(P, cfg, helper):
    e = P.e
    F = Filler(P)
    lm = cfg.hx - 1; M = 1 << lm
    e(f"s_mov_b32 s93, {int(helper)}")
    if helper:
        e(f"s_lshl_b32 s88, {sSUB}, 11"); e("v_add_u32 v240, s88, v240")
        e(f"s_lshl_b32 s7, {sSUB}, 3"); e(f"s_lshr_b32 {sLK}, 0xc0703000, s7"); e(f"s_and_b32 {sLK}, {sLK}, 0xff"); e(f"s_add_u32 {sLK}, {sLK}, s88")
        e(f"s_lshl_b32 {sL1K}, {sSUB}, 12")
        e(f"s_movk_i32 {sKO}, -8192"); e(f"s_movk_i32 {sVO}, -8192")
        e("v_and_b32 v116, 1, v112"); e("v_lshlrev_b32 v116, 1, v116"); e("v_xor_b32 v116, v116, v115"); e("v_lshlrev_b32 v242, 4, v116")
        mad(P, 'v242', 'v185', 896, 'v242')
        e("v_lshl_add_u32 v117, v112, 3, v114"); e("v_lshlrev_b32 v241, 4, v116"); mad(P, 'v241', 'v117', 3584, 'v241')
        e(f"s_lshr_b32 s7, {sSUB}, 1"); e(f"s_mul_i32 s7, s7, {32*3584}"); e("v_add_u32 v241, s7, v241")
        e(f"s_bitcmp1_b32 {sSUB}, 0"); e(f"s_cselect_b32 s{srd(5)}, s{srd(6)}, s{srd(5)}"); e(f"s_cselect_b32 s{srd(5)+1}, s{srd(6)+1}, s{srd(5)+1}")
        e(f"v_lshlrev_b32 v243, {5+lm}, v255")
        e("v_lshlrev_b32 v249, 4, v255")
        e(f"s_mul_i32 s87, {sSUB}, {2*14336}")
        wdo_read_bases(P, 'v246', 'v247', 'v112', 'v114', 'v115', 'v116', GLUB)
        e("v_add_u32 v224, 512, v224")
    else:
        e(f"v_lshlrev_b32 v252, {5+lm}, v255")
        if cfg.touch:
            for tr in range(cfg.ktr):
                F.add(f"s_add_u32 {sT3}, s89, {tr*65536}", f"buffer_load_dword v251, v252, {ST}, {sT3} offen", tag='touch')
            e("v_mul_u32_u24 v253, 84, v115"); mad(P, 'v253', 'v185', 3584, 'v253')
        if cfg.touch and cfg.gtouch:
            F.add(f"s_lshl_b32 s7, {sSH}, 1", f"s_and_b32 {sT2}, {sSUB}, 1", f"s_add_u32 s7, s7, {sT2}", f"s_mul_i32 {sT3}, s7, {14*M*3584}",
                  f"s_cmp_lt_u32 {sSUB}, 2", f"s_cselect_b32 s{srd(9)}, s{srd(5)}, s{srd(6)}", f"s_cselect_b32 s{srd(9)+1}, s{srd(5)+1}, s{srd(6)+1}",
                  f"s_mov_b32 s{srd(9)+2}, s{srd(5)+2}", f"buffer_load_dword v251, v253, {ST}, {sT3} offen", tag='touch')
            for _ in range(M - 1): F.add(f"s_add_u32 {sT3}, {sT3}, {14*3584}", f"buffer_load_dword v251, v253, {ST}, {sT3} offen", tag='touch')
        F.add(*final_salu()); F.add(f"s_mov_b32 s73, {f2u(-LOG2E):#x}", *xch_salu())
        e("v_bfe_u32 v116, v255, 1, 3"); e("v_lshlrev_b32 v117, 2, v116"); e("s_mov_b32 s7, 0xec975320"); e("v_bfe_u32 v117, s7, v117, 4")
        e("v_lshlrev_b32 v248, 10, v116"); e("v_lshl_add_u32 v248, v117, 4, v248")
        e("v_and_b32 v116, 1, v255"); e("v_lshl_add_u32 v248, v116, 7, v248")
        e("v_and_b32 v116, 1, v112"); e("v_lshl_add_u32 v248, v116, 5, v248"); e("v_lshrrev_b32 v116, 1, v112"); e("v_lshl_add_u32 v248, v116, 4, v248")
        e(f"v_add_u32 v249, {4*SLOT}, v224")
        e(f"v_mov_b32 v116, {FLAG}"); e("v_mov_b32 v117, 0"); e("ds_write_b32 v116, v117")
    return F

def gen_ln(P, cfg):
    e = P.e
    F = Filler(P)
    e(f"v_add_u32 v225, {3*SLOT}, v224"); e(f"v_add_u32 v226, {6*SLOT}, v224")
    ld = f"buffer_load_dwordx4 v245, {SWQ}, {sT0} offen lds"
    F.add(f"s_lshr_b32 s7, {sWV}, 2", f"s_lshl_b32 {sT0}, s7, 18", f"s_mul_i32 s7, s7, {SLOT}", f"s_add_u32 s7, s7, {sLV}", f"s_add_u32 m0, s7, {7*SLOT}", ld, tag='W01')
    for d in (1056, 7392, 1056): F.add(f"s_addk_i32 m0, {d}", f"s_addk_i32 {sT0}, 16384", ld, tag='W01')
    if cfg.hack & 16: stamp(P, cfg, 13)
    for kp in range(cfg.pre2): e(f"buffer_load_dwordx4 {vr(156+4*kp,4)}, v184, {SX}, {sT1} offen offset:{kp*128}")
    if cfg.hack & 16: stamp(P, cfg, 14)
    for hh in range(2):
        m, t, v, u = "v118", "v119", "v120", "v121"
        for d in range(28 * hh, 28 * hh + 28):
            kp = d // 4 + cfg.pre2
            if hh == 0 and d % 4 == 0 and kp < 7:
                e(f"buffer_load_dwordx4 {vr(156+4*kp,4)}, v184, {SX}, {sT1} offen offset:{kp*128}", extra_rd=regs_of(f"v{128+d}"))
            e(f"v_lshlrev_b32 v{2*d}, 16, v{128+d}"); e(f"v_and_b32 v{2*d+1}, {sHI}, v{128+d}")
            pr = vr(2 * d, 2)
            if cfg.lnpk & 1:
                if d % 28 == 0: e(f"v_mov_b64 v[118:119], {pr}"); e(f"v_pk_mul_f32 v[120:121], {pr}, {pr}")
                else: e(f"v_pk_add_f32 v[118:119], v[118:119], {pr}"); e(f"v_pk_fma_f32 v[120:121], {pr}, {pr}, v[120:121]")
            elif d % 28 == 0:
                e(f"v_mov_b32 {m}, v{2*d}"); e(f"v_mov_b32 {t}, v{2*d+1}"); e(f"v_mul_f32 {v}, v{2*d}, v{2*d}"); e(f"v_mul_f32 {u}, v{2*d+1}, v{2*d+1}")
            else:
                e(f"v_add_f32 {m}, {m}, v{2*d}"); e(f"v_add_f32 {t}, {t}, v{2*d+1}")
                e(f"v_fmac_f32 {v}, v{2*d}, v{2*d}"); e(f"v_fmac_f32 {u}, v{2*d+1}, v{2*d+1}")
            if d == cfg.t_at and cfg.touch:
                e(f"buffer_load_dword v251, v250, {SWQ}, s90 offen", tag='touch')
            if d >= cfg.wq_at and d % 4 == 1: F.emit()
        if hh == 1: stamp(P, cfg, 1)
        e(f"v_add_f32 {m}, {m}, {t}"); e(f"v_add_f32 {v}, {v}, {u}")
        for qp in ("quad_perm:[1,0,3,2]", "quad_perm:[2,3,0,1]", "row_half_mirror"):
            e(f"v_add_f32_dpp {m}, {m}, {m} {qp} row_mask:0xf bank_mask:0xf")
            e(f"v_add_f32_dpp {v}, {v}, {v} {qp} row_mask:0xf bank_mask:0xf")
        e(f"s_mov_b32 s7, {f2u(1.0/448):#x}")
        e(f"v_mul_f32 {m}, s7, {m}")
        e(f"v_mul_f32 {t}, {m}, {m}")
        e(f"v_fma_f32 {v}, {v}, s7, -{t}")
        e(f"v_max_f32 {v}, 0, {v}")
        e(f"v_cvt_pk_bf16_f32 {t}, {m}, {v}")
        e(f"v_lshlrev_b32 {m}, 16, {t}")
        e(f"v_and_b32 {v}, {sHI}, {t}")
        e(f"v_add_f32 {v}, {f2u(1e-5):#x}, {v}")
        e(f"v_cvt_pk_bf16_f32 {v}, {v}, {v}"); e(f"v_and_b32 {v}, {sHI}, {v}")
        e(f"v_sqrt_f32 {v}, {v}")
        e(f"v_cvt_pk_bf16_f32 {v}, {v}, {v}"); e(f"v_and_b32 {v}, {sHI}, {v}")
        e(f"v_rcp_f32 {v}, {v}")
        e(f"v_mul_f32 {m}, {m}, {v}")
        if not cfg.lnpk & 2: e(f"v_mov_b32 {t}, {m}"); e(f"v_mov_b32 {u}, {v}")
        for kp in range(7):
            z = 7 * hh + kp
            for d in range(4 * z, 4 * z + 4):
                if cfg.lnpk & 2: e(f"v_pk_fma_f32 {vr(2*d,2)}, {vr(2*d,2)}, v[120:121], v[118:119] op_sel_hi:[1,0,0] neg_lo:[0,0,1] neg_hi:[0,0,1]")
                else: e(f"v_fma_f32 v{2*d}, v{2*d}, {u}, -{t}"); e(f"v_fma_f32 v{2*d+1}, v{2*d+1}, {v}, -{m}")
            for d in range(4 * z, 4 * z + 4):
                e(f"v_cvt_pk_bf16_f32 v{128+d}, v{2*d}, v{2*d+1}")
            ad = xa(2 * kp + 1, 'v187', 'v188').split()
            e(f"ds_write_b128 {ad[0]}, {vr(128+4*z,4)} {ad[1]}")
            if hh == 1: F.emit(2)
        if hh == 0:
            if cfg.hack & 16: stamp(P, cfg, 15)
            e("v_xor_b32 v187, 0x80, v187"); e("v_xor_b32 v188, 0x80, v188")
            e("v_mov_b32 v122, 0"); e("v_lshlrev_b32 v123, 7, v255")
            e(f"s_cmp_lg_u32 {sMODE}, 0"); e(f"s_cbranch_scc1 L_norst")
            e(f"s_mov_b64 exec, 0x7f"); e("global_store_dword v123, v122, s[100:101] sc1", tag='opt'); e("s_mov_b64 exec, -1")
            e(f"L_norst:")
    F.wait('W01')
    e("s_waitcnt lgkmcnt(0)")
    stamp(P, cfg, 12)
    e("s_barrier")
    for t in XR[:16]: e(t)
    e("s_cmp_eq_u32 s93, 1"); e("s_cbranch_scc1 L_helper")

def gen_qproj(P, cfg, helper, F):
    e = P.e
    xr = XR[16:]
    def start():
        e("s_barrier", extra_rd=regs_of("v[0:63]"))
        if helper:
            for T in range(2, 6): dma_wq(F, T, WQ_SLOT[T])
            F.emit(4)
        stamp(P, cfg, 2)
    items = []
    after = {1: [('WQ', 6), ('WQ', 7), ('WQ', 8), ('WQ', 9)], 2: [('WQ', 10), ('WQ', 11)], 3: [('WQ', 12), ('WQ', 13)], 4: [('K', 0), ('V', 0)], 5: [('K', 1), ('K', 2)], 6: []}
    def mkhook(k):
        def hook():
            if helper:
                F.wait(('WQ', 2*k), ('WQ', 2*k+1), *([('K', 0)] if k == 6 else []))
            if k == 1: P.waitvm('opt')
            e("s_barrier", extra_rd=regs_of("v[64:111]") if k == 1 else None)
            if helper:
                for (w, t) in after.get(k, []):
                    if w == 'WQ': dma_wq(F, t, WQ_SLOT[t])
                    else: dma_kv(F, w, t, (t & 3) + (4 if w == 'V' else 0))
            elif k == 1:
                e(f"s_or_b32 s7, {sMODE}, {sSUB}"); e("s_cbranch_scc1 L_noarr")
                e(f"s_lshl_b32 s7, {sQB}, 4"); e("v_mov_b32 v228, s7"); e("v_mov_b32 v229, 1")
                e("s_mov_b64 exec, 1"); e("global_atomic_add v228, v229, s[68:69] sc1", tag='opt'); e("s_mov_b64 exec, -1")
                e("L_noarr:")
        return hook
    for T in range(14):
        sl = WQ_SLOT[T]; base = f"v{224 + sl // 3}"; so = (sl % 3) * SLOT
        for t in range(8):
            imm = so + (t >> 2) * 256 + (t & 3) * 32
            mf = [(128 + ((t >> 1) * 2 + qt) * 8 + (t & 1) * 4, (2 * T + qt) * 4, '0' if T == 0 else None) for qt in range(2)]
            items.append(dict(mf=mf, reads=tr_reads(base, imm, imm + 8448), hook=mkhook(T // 2) if (T % 2 == 0 and T > 0 and t == 0) else None))
    def gap(i, k):
        T, t = divmod(i, 8)
        for _ in range(2):
            if xr: e(xr.pop(0))
        if helper: F.emit()
        else:
            if T >= 1 and t < 4: e(f"v_mov_b64 {vr(8*(T-1)+2*t,2)}, 0")
            elif 1 <= T < 5 and t in (4, 5): e(f"v_mov_b64 {vr(112+4*(T-1)+2*(t-4),2)}, 0")
            elif t == 6 and T >= cfg.tq0: F.emit()
    stream(P, items, [192 + 4 * i for i in range(6)], 6, gap, group=3, start=start)
    assert not F.q or not helper
    F.flush()
    e(f"s_lshr_b32 s7, {sSUB}, 1"); e(f"s_mul_i32 s7, s7, {SLOT}"); e(f"s_and_b32 {sT3}, {sSUB}, 1"); e(f"s_lshl_b32 {sT3}, {sT3}, 13")
    e(f"s_add_u32 s7, s7, {sT3}"); e(f"s_add_u32 s7, s7, {7*SLOT}")
    e("v_lshlrev_b32 v254, 4, v255"); e("v_add_u32 v254, s7, v254")
    if helper:
        for g in range(8):
            for t in qfin(g): e(t)
            if g: e(f"ds_write_b128 v254, {vr(128+4*(g-1),4)} offset:{(g-1)*1024}")
        e(f"ds_write_b128 v254, {vr(156,4)} offset:{7*1024}")
        P.waitvm(('K', 1))
        e("s_waitcnt lgkmcnt(0)")
        stamp(P, cfg, 3)
        e("s_barrier")
    return F

def qfin(g):
    r = [f"v_mul_f32 v{128+8*g+i}, {sC}, v{128+8*g+i}" for i in range(8)]
    r += [f"v_cvt_pk_bf16_f32 v{128+4*g+i}, v{128+8*g+2*i}, v{129+8*g+2*i}" for i in (0, 2, 1, 3)] if g else \
         [f"v_cvt_pk_bf16_f32 v{128+i}, v{128+2*i}, v{129+2*i}" for i in range(4)]
    r += [f"v_permlane16_swap_b32 v{128+4*g}, v{130+4*g}", f"v_permlane16_swap_b32 v{129+4*g}, v{131+4*g}"]
    return r

BUFS = [224, 228, 232, 236, 240, 244, 252]
PAT = list(range(7)) + list(range(6)) + list(range(6)) + list(range(7)) + list(range(6))
LEAD = sched.LEAD
SA = [192, 200]; SB = 208; NEGM = 216; LR = [250, 251]
def fbuf(f): return BUFS[PAT[f % 32]]
def oacc(t, qt): return ((t >> 1) * 2 + qt) * 8 + (t & 1) * 4
def k_imm(f): return (f >> 3) * 8448 + ((f & 7) >> 1) * 256 + (f & 1) * 64
def k_read(P, f, slot): P.e(f"ds_read_b128 {vr(fbuf(f),4)}, v248 offset:{slot*SLOT + k_imm(f)}")
def v_read(P, f, slot):
    t = f - 16
    imm = slot * SLOT + (t >> 2) * 256 + (t & 3) * 32
    P.e(f"{TR} {vr(fbuf(f),2)}, v249 offset:{imm}")
    P.e(f"{TR} {vr(fbuf(f)+2,2)}, v249 offset:{imm + 8448}")

def sm_text(task, sa):
    if task[0] in ('exp', 'add'):
        _, blk, q, i = task
        r = (sa if blk == 'a' else SB) + 4 * q + i
        return f"v_exp_f32 v{r}, v{r}" if task[0] == 'exp' else f"v_add_f32 v{LR[q]}, v{LR[q]}, v{r}"
    _, q, k = task
    src = (sa if k < 2 else SB) + 4 * q + 2 * (k & 1)
    return f"v_cvt_pk_bf16_f32 v{sa+4*q+k}, v{src}, v{src+1}"

FIXED = WAITS = PLACE = None

def gen_iter(P, j, ctl=False, bar=16, lab='L_loop'):
    e = P.e
    cur = SA[j & 1]; nxt = SA[(j + 1) & 1]
    for g in range(64):
        f, qt = g >> 1, g & 1
        if CFG.snake & (1 if f < 16 else 2): qt ^= f & 1
        extra = set()
        for z in WAITS.get(g, []): extra |= regs_of(vr(fbuf(z), 4))
        if f < 16:
            acc = (nxt if f < 8 else SB) + 4 * qt
            c = (vr(NEGM + 4 * qt, 4) if not CFG.x & 16 else '0') if (f & 7) == 0 else vr(acc, 4)
            e(f"{MF} {vr(acc,4)}, {vr(fbuf(f),4)}, {vr(128 + ((f&7)*2+qt)*4,4)}, {c}", extra_rd=extra)
        else:
            a = oacc(f - 16, qt)
            e(f"{MF} {vr(a,4)}, {vr(fbuf(f),4)}, {vr(cur+4*qt,4)}, {vr(a,4)}", extra_rd=extra)
        if CFG.x & 32 and g in (41, 53): e(f"{MF} v[220:223], v[216:219], {vr(cur+4*qt,4)}, v[220:223]")
        late = []
        for it in FIXED[g]:
            if it[0] == 'read':
                n = it[1]
                if CFG.x & 4 and n % 2: continue
                if n < 16: k_read(P, n, (j + 1) & 3)
                elif n < 32: v_read(P, n, j & 3)
                else: k_read(P, n - 32, (j + 2) & 3)
            elif it[0] == 'ctl' and ctl: late.append(f"s_sub_u32 {sTRIP}, {sTRIP}, 1")
            elif it[0] == 'branch' and ctl: late.append(f"s_cbranch_scc0 {lab}")
        if g == bar: late.append("s_barrier")
        for t in PLACE.get(g + 64, []):
            if not (CFG.x & 2 and t[0] != 'cvt') and not (CFG.x & 8 and t[0] == 'add'): e(sm_text(t, cur))
        for t in PLACE.get(g, []):
            if not (CFG.x & 2 and t[0] != 'cvt') and not (CFG.x & 8 and t[0] == 'add'): e(sm_text(t, nxt))
        for t in late: e(t)

def xgroup(P, op, r, t):
    e = P.e
    e(f"v_mov_b32 {t}, {r}"); e(f"v_permlane16_swap_b32 {r}, {t}"); e(f"{op} {r}, {r}, {t}")
    e(f"v_mov_b32 {t}, {r}"); e(f"v_permlane32_swap_b32 {r}, {t}"); e(f"{op} {r}, {r}, {t}")

SR, SO, SF = SWQ, SWG, SWU
def msum(Q, acc, src):
    for h in range(16):
        for ee in range(2): Q.e(f"{MF} {vr(acc+4*ee,4)}, {vr(192+4*ee,4)}, {vr(src+4*h,4)}, {'0' if h == 0 else vr(acc+4*ee,4)}")
def silu8(Q, a):
    rnd8(Q, a, 224)
    for i in range(8): Q.e(f"v_mul_f32 v{224+i}, s73, v{a+i}")
    for i in range(8): Q.e(f"v_exp_f32 v{224+i}, v{224+i}")
    for i in range(8): Q.e(f"v_add_f32 v{224+i}, 1.0, v{224+i}")
    for i in range(8): Q.e(f"v_rcp_f32 v{224+i}, v{224+i}")
    for i in range(8): Q.e(f"v_mul_f32 v{a+i}, v{a+i}, v{224+i}")
    rnd8(Q, a, 224)
def fetch(P, cfg, r, dst, voff, between):
    e = P.e
    e(f"s_lshl_b32 s84, {sSUB}, 7"); e(f"s_mov_b32 {sT1}, 0"); e(f"s_mov_b32 {sTRIP}, {SPIN}")
    if cfg.hack & 64: stamp(P, cfg, 1, True)
    def onepass(nm):
        e(f"buffer_load_dword v253, v252, {SF}, s84 offen offset:{512*r} sc1"); e("s_waitcnt vmcnt(0)")
        e("v_cmp_le_u32 vcc, 1, v253")
        e(f"s_andn2_b32 {sT2}, vcc_lo, {sT1}"); e(f"s_or_b32 {sT1}, {sT1}, vcc_lo")
        for h in range(16):
            e(f"s_bitcmp1_b32 {sT2}, {h}"); e(f"s_cbranch_scc0 {nm}_{h}")
            e(f"s_mov_b32 {sT3}, {h*1024 + r*4*STG}")
            e(f"buffer_load_dwordx4 {vr(dst+4*h,4)}, {voff}, {SR}, {sT3} offen sc1", tag='touch')
            if r == 0 and nm.startswith("L_fa") and h < cfg.pn: e(f"s_waitcnt vmcnt({cfg.pl})")
            e(f"{nm}_{h}:")
    onepass(f"L_fa{r}")
    if cfg.hack & 64: stamp(P, cfg, 2, True)
    between()
    e(f"s_cmp_eq_u32 {sT1}, -1"); e(f"s_cbranch_scc1 L_fd{r}")
    e(f"L_fl{r}:")
    onepass(f"L_fb{r}")
    e(f"s_cmp_eq_u32 {sT1}, -1"); e(f"s_cbranch_scc1 L_fd{r}")
    e(f"s_sleep {cfg.slp}")
    e(f"s_sub_u32 {sTRIP}, {sTRIP}, 1"); e(f"s_cbranch_scc0 L_fl{r}")
    e(f"L_fd{r}:")
    if cfg.hack & 64: stamp(P, cfg, 3, True)
def fin(P, cfg, r, src, xr):
    e = P.e; a = 208
    for d in range(4): e(f"v_lshlrev_b32 v{232+2*d}, 16, v{xr+d}"); e(f"v_and_b32 v{233+2*d}, {sHI}, v{xr+d}")
    e("s_waitcnt vmcnt(0)")
    if cfg.hack & 64: stamp(P, cfg, 4, True)
    msum(P, a, src)
    rnd8(P, a, 224)
    for i in range(8): e(f"v_mul_f32 v{a+i}, v{a+i}, v{200+i}")
    rnd8(P, a, 224)
    for i in range(8): e(f"v_add_f32 v{a+i}, v{a+i}, v{232+i}")
    for d in range(4): e(f"v_cvt_pk_bf16_f32 v{240+d}, v{a+2*d}, v{a+2*d+1}")
    e(f"buffer_store_dwordx4 v[240:243], v251, {SO}, s86 offen offset:{r*512}" + ["", " sc1", " nt", " sc0 sc1"][cfg.oflag])

def gen_compute(P, cfg, FC):
    e = P.e
    m0 = P.mark()
    gen_qproj(P, cfg, False, FC)
    stamp(P, cfg, 3)
    order = [f for kk in range(8) for f in (kk, 8 + kk)]
    items = [dict(mf=[((SA[0] if f < 8 else SB) + 4 * qt, 128 + ((f & 7) * 2 + qt) * 4, '0' if (f & 7) == 0 else None) for qt in range(2)],
                  reads=[("ds_read_b128", "v248", k_imm(f), 0, 4)]) for f in order]
    def start():
        for t in range(4): e(f"v_mov_b64 {vr(104+2*t,2)}, 0")
        for t in qfin(0) + qfin(1): e(t)
    def gap0(i, k):
        if i < 6:
            for t in qfin(i + 2): e(t)
            if i == 2: e("s_barrier")
            if i >= 2:
                for z in (2 * (i - 2), 2 * (i - 2) + 1): e(f"ds_read_b128 {vr(160+4*z,4)}, v254 offset:{z*1024}")
    stream(P, items, BUFS[:6], 6, gap0, group=2, start=start)
    e("s_waitcnt vmcnt(0)")
    for f in range(LEAD): k_read(P, f, 1)
    e(f"s_cmp_lg_u32 {sMODE}, 0"); e("s_cbranch_scc1 L_havem")
    mm = P.mark()
    for q in range(2):
        a, b, m = SA[0] + 4 * q, SB + 4 * q, NEGM + 4 * q
        e(f"v_max3_f32 v{m}, v{a}, v{a+1}, v{a+2}"); e(f"v_max3_f32 v{m}, v{m}, v{a+3}, v{b}"); e(f"v_max3_f32 v{m}, v{m}, v{b+1}, v{b+2}"); e(f"v_max_f32 v{m}, v{m}, v{b+3}")
    xgroup(P, "v_max_f32", f"v{NEGM}", f"v{NEGM+1}"); xgroup(P, "v_max_f32", f"v{NEGM+4}", f"v{NEGM+5}")
    for q in range(2):
        m = NEGM + 4 * q
        for i in (1, 2, 3, 0): e(f"v_sub_f32 v{m+i}, {f2u(-float(cfg.toff)) if cfg.toff else 0:#x}, v{m}")
    minit = P.since(mm)
    e("L_havem:")
    for q in range(2):
        for i in range(4):
            e(f"v_add_f32 v{SA[0]+4*q+i}, v{SA[0]+4*q+i}, v{NEGM+4*q}"); e(f"v_add_f32 v{SB+4*q+i}, v{SB+4*q+i}, v{NEGM+4*q}")
    e(f"v_mov_b32 v{LR[0]}, 0"); e(f"v_mov_b32 v{LR[1]}, 0")
    for g in range(18, 64):
        for t in PLACE[g]: e(sm_text(t, SA[0]))
    e(f"s_mov_b32 {sTRIP}, 15")
    if cfg.obias:
        for i in range(128): e(f"v_mov_b32 v{i}, {f2u(2.0 ** (cfg.obias - cfg.toff)):#x}")
    if cfg.x & 32:
        e("v_mbcnt_lo_u32_b32 v220, -1, 0"); e("v_mbcnt_hi_u32_b32 v220, -1, v220"); e("v_and_b32 v220, 15, v220"); e("v_mov_b32 v221, 0x3f803f80")
        e(f"v_cmp_gt_u32 vcc, {16 if cfg.x & 64 else 1}, v220")
        for i in range(4): e(f"v_cndmask_b32 v{216+i}, 0, v221, vcc")
        for i in range(4): e(f"v_mov_b32 v{220+i}, 0")
    stamp(P, cfg, 4)
    e("s_waitcnt lgkmcnt(0)")
    if cfg.vbit >= 0: e(f"s_bitcmp1_b32 {sSUB}, {cfg.vbit}"); e("s_cbranch_scc1 L_itb0")
    e("s_branch L_it0")
    pro = P.since(m0)
    itb = {}
    if cfg.vbit >= 0:
        e(".p2align 6")
        e("L_loopb:")
        for j in (3, 0, 1, 2):
            if j == 0: e("L_itb0:")
            m = P.mark(); gen_iter(P, j, ctl=(j == 2), bar=cfg.barb, lab='L_loopb'); itb[j] = P.since(m)
        e("s_branch L_tail")
    e(".p2align 6")
    e("L_loop:")
    its = {}
    for j in (3, 0, 1, 2):
        if j == 0: e("L_it0:")
        m = P.mark(); gen_iter(P, j, ctl=(j == 2), bar=cfg.bara); its[j] = P.since(m)
    m1 = P.mark()
    e('L_tail:')
    stamp(P, cfg, 5)
    cur = SA[1]
    e("s_barrier")
    for f in range(16, 16 + LEAD): v_read(P, f, 3)
    for g in range(64, 82):
        for t in PLACE[g]: e(sm_text(t, cur))
    post_ops = []
    Q = Prog()
    xgroup(Q, "v_add_f32", f"v{LR[0]}", "v208"); xgroup(Q, "v_add_f32", f"v{LR[1]}", "v209")
    Q.e(f"v_max_f32 v208, v{LR[0]}, v{LR[1]}"); Q.e(f"v_add_f32 v209, v{LR[0]}, v{LR[1]}")
    Q.e(f"v_rcp_f32 v{LR[0]}, v{LR[0]}"); Q.e(f"v_rcp_f32 v{LR[1]}, v{LR[1]}")
    Q.e("v_mbcnt_lo_u32_b32 v210, -1, 0"); Q.e("v_mbcnt_hi_u32_b32 v210, -1, v210")
    Q.e("v_lshrrev_b32 v211, 4, v210"); Q.e("v_bfe_u32 v212, v210, 2, 2"); Q.e("v_and_b32 v213, 3, v210")
    Q.e("v_lshrrev_b32 v212, 2, v210"); Q.e("v_lshlrev_b32 v192, 7, v212"); Q.e("v_lshl_add_u32 v192, v213, 3, v192")
    Q.e("v_bfe_u32 v212, v210, 3, 2"); Q.e("v_lshl_add_u32 v192, v212, 5, v192")
    for ee in (1, 2, 3): Q.e(f"v_xor_b32 v{192+ee}, {32*ee}, v192")
    for ee in range(4): Q.e(f"v_add_u32 v{196+ee}, {6*SLOT}, v{192+ee}")
    Q.e("v_lshlrev_b32 v248, 4, v210")
    Q.e(f"v_mov_b32 v214, {FLAG}"); Q.e("v_mov_b32 v215, 1")
    rest = Q.L
    for g in range(32, 64):
        f, qt = g >> 1, g & 1
        extra = set()
        for z in WAITS.get(g, []):
            if 16 <= z < 32: extra |= regs_of(vr(fbuf(z), 4))
        a = oacc(f - 16, qt)
        e(f"{MF} {vr(a,4)}, {vr(fbuf(f),4)}, {vr(cur+4*qt,4)}, {vr(a,4)}", extra_rd=extra)
        if qt == 1 and f + LEAD < 32: v_read(P, f + LEAD, 3)
        else:
            for _ in range(2):
                if rest: P.L.append(rest.pop(0))
    P.L.extend(rest)
    e(f"v_cmp_ngt_f32 vcc, {f2u(cfg.thr):#x}, v209")
    e("s_cbranch_vccz L_noflag")
    e("ds_write_b32 v214, v215")
    e("s_waitcnt lgkmcnt(0)")
    e("L_noflag:")
    e("s_barrier")
    e("ds_read_b32 v215, v214")
    def onorm(g):
        return [f"v_mul_f32 v{8*g+i}, v{8*g+i}, v{LR[g & 1]}" for i in range(8)] + [f"v_cvt_pk_bf16_f32 v{4*g+i}, v{8*g+2*i}, v{8*g+2*i+1}" for i in range(4)]
    items = []
    F = Filler(P)
    def ehook(t):
        def h():
            if cfg.hack & 32 and t % 2 == 0: e(f"s_memtime s[{48+t}:{49+t}]")
            if t in (2, 3, 4, 5, 6, cfg.lastb): e("s_barrier")
        return h
    def acc_o(s, ee, qt): return (64 if s & 1 else 128) + ((ee >> 1) * 2 + qt) * 8 + (ee & 1) * 4
    for t in range(14):
        sl = WO_SLOT[t]; so = (sl % 3) * SLOT; s, hf = t >> 1, t & 1
        for k4 in range(4):
            for ee in range(4):
                base = f"v{[192, 200, 196][sl // 3] + ee}"
                imm = so + k4 * 4096; kk = 4 * hf + k4
                items.append(dict(mf=[(acc_o(s, ee, qt), (kk * 2 + qt) * 4, '0' if kk == 0 else None) for qt in range(2)],
                                  reads=tr_reads(base, imm, imm + 2048),
                                  hook=ehook(t) if (t > 0 and k4 == 0 and ee == 0) else None))
    def cv(s, u, hf):
        o = 160 + 16 * (s & 1) + 4 * u + 2 * hf; a = acc_o(s, 0, 0) + 8 * u + 4 * hf
        F.add(f"v_cvt_pk_bf16_f32 v{o}, v{a}, v{a+1}", f"v_cvt_pk_bf16_f32 v{o+1}, v{a+2}, v{a+3}")
    def sto(s, u):
        o = 160 + 16 * (s & 1) + 4 * u
        F.add(f"s_mov_b32 {sT0}, {s*STG + u*16384}", f"buffer_store_dwordx4 {vr(o,4)}, v248, {SP}, {sT0} offen sc1", tag=('S', s))
    def publish(r):
        F.add((('S', r),), "s_mov_b64 exec, 1", f"global_store_dword v249, v254, s[100:101] offset:{128*r} sc1", "s_mov_b64 exec, -1", tag='fl')
    nrm = [t for g in range(2, 16) for t in onorm(g)]
    def start():
        for ee in range(4): e(f"v_add_u32 v{200+ee}, {3*SLOT}, v{192+ee}")
        e("v_mov_b32 v249, 0"); e("v_mov_b32 v254, 1"); e("v_add_u32 v204, s85, v248"); e("v_add_u32 v205, s90, v248")
        for t in onorm(0) + onorm(1): e(t)
        e("v_readfirstlane_b32 s7, v215")
        e(f"s_andn2_b32 s7, s7, {sMODE}"); e("s_cbranch_scc1 L_maxpass")
        stamp(P, cfg, 6)
        if cfg.hack & 32: stamp(P, cfg, 1)
        if cfg.hack & 64: stamp(P, cfg, 12, True)
    def gap(i, k):
        s, r = divmod(i, 32)
        if k: return
        for _ in range(6):
            if nrm: e(nrm.pop(0))
        if s >= 1:
            u, z = divmod(r, cfg.ssp)
            if u < 4:
                if z == 0: cv(s - 1, u, 0)
                if z == 1: cv(s - 1, u, 1)
                if z == 2: sto(s - 1, u)
        if s >= 2 and r == cfg.pubr: publish(s - 2)
        if i == cfg.xat: e('s_barrier')
        F.flush()
    stream(P, items, [216 + 4 * i for i in range(8)], 7, gap, group=4, start=start)
    if cfg.hack & 32: e('s_memtime s[62:63]'); e('s_waitcnt lgkmcnt(0)'); dump_stamps(P); e('s_endpgm')
    st = (lambda i: None) if cfg.hack & 16 else (lambda i: stamp(P, cfg, i, bool(cfg.hack & 64)))
    st(13)
    for u in range(4): cv(6, u, 0); cv(6, u, 1); sto(6, u)
    F.flush()
    if cfg.xat >= 224: e("s_barrier")
    st(14)
    for k, r0 in enumerate((192, 196, 244, 250)): e(f"ds_read_b128 {vr(r0,4)}, v205 offset:{k*1024}")
    for h in range(16): e(f"ds_read_b128 {vr(64+4*h,4)}, v204 offset:{h*1024}")
    publish(5); F.flush()
    msum(P, 200, 64)
    st(15); publish(6); F.flush()
    if cfg.hack & 64: stamp(P, cfg, 9, True)
    e(f"s_cmp_eq_u32 {sSUB}, 3"); e("s_cbranch_scc1 L_cdone")
    cslow = []
    fetch(P, cfg, 1, 0, "v248", lambda: silu8(P, 200))
    fin(P, cfg, 1, 0, 244)
    e("L_cdone:")
    if cfg.stamps:
        stamp(P, cfg, 7); e("s_waitcnt vmcnt(0)"); stamp(P, cfg, 8); stamp(P, cfg, 11, True); dump_stamps(P)
    e("s_endpgm")
    post = [x for x in P.since(m1) if not any(x is y for y in cslow)]
    m2 = P.mark()
    e("L_maxpass:")
    e("s_waitcnt vmcnt(0) lgkmcnt(0)")
    e("v_and_b32 v0, 15, v210"); e("v_lshlrev_b32 v0, 9, v0"); e("v_and_b32 v1, 1, v211"); e("v_lshl_add_u32 v0, v1, 5, v0")
    e("v_lshrrev_b32 v1, 1, v211"); e("v_lshl_add_u32 v0, v1, 4, v0")
    e(f"v_mov_b32 v{NEGM}, 0xff800000"); e(f"v_mov_b32 v{NEGM+4}, 0xff800000")
    e(f"s_mov_b32 {sT0}, 0")
    e("L_mp_loop:")
    for kk in range(8): e(f"buffer_load_dwordx4 {vr(16+4*kk,4)}, v0, {SK}, {sT0} offen offset:{kk*64}")
    e("s_waitcnt vmcnt(0)")
    for kk in range(8):
        for qt in range(2): e(f"{MF} {vr(8+4*qt,4)}, {vr(16+4*kk,4)}, {vr(128+(kk*2+qt)*4,4)}, {'0' if kk == 0 else vr(8+4*qt,4)}")
    e("s_nop 15")
    for qt in range(2):
        m = NEGM + 4 * qt; a = 8 + 4 * qt
        e(f"v_max3_f32 v{m}, v{m}, v{a}, v{a+1}"); e(f"v_max3_f32 v{m}, v{m}, v{a+2}, v{a+3}")
    e(f"s_add_u32 {sT0}, {sT0}, 8192"); e(f"s_cmp_lt_u32 {sT0}, {1<<20}"); e("s_cbranch_scc1 L_mp_loop")
    xgroup(P, "v_max_f32", f"v{NEGM}", f"v{NEGM+1}"); xgroup(P, "v_max_f32", f"v{NEGM+4}", f"v{NEGM+5}")
    for q in range(2):
        m = NEGM + 4 * q
        for i in (1, 2, 3, 0): e(f"v_sub_f32 v{m+i}, {f2u(-float(cfg.toff)) if cfg.toff else 0:#x}, v{m}")
    e("L_again:")
    e("s_waitcnt vmcnt(0) lgkmcnt(0)")
    e("v_mbcnt_lo_u32_b32 v0, -1, 0"); e("v_mbcnt_hi_u32_b32 v0, -1, v0"); e(f"s_lshl_b32 s7, {sWV}, 6"); e("v_add_u32 v0, s7, v0")
    e(f"s_mov_b32 {sMODE}, 1"); e("s_setprio 0")
    e("s_barrier")
    e("s_branch L_restart")
    mp = P.since(m2)
    body = its[0] + its[1] + its[2] + its[3]
    trace = pro + body * 2 + its[0] + its[1] + its[2] + post
    skip = set(id(x) for x in minit)
    trace2 = [x for x in pro if id(x) not in skip] + body
    extra = []
    if itb:
        bb = itb[0] + itb[1] + itb[2] + itb[3]
        extra = [pro + bb * 2 + itb[0] + itb[1] + itb[2] + post]
    return [trace, trace2] + extra, [mp, cslow]

def poll(P, name, load, cmp, pre_issued=False):
    e = P.e
    if not pre_issued: e(load)
    e(cmp); e("s_cmp_eq_u64 vcc, -1"); e(f"s_cbranch_scc1 {name}_ok")
    m = P.mark()
    e(f"s_mov_b32 s7, {SPIN}")
    e(f"{name}_lp:")
    e(f"s_sleep {CFG.slp}")
    e(load, tag='opt'); e("s_waitcnt vmcnt(0)")
    e(cmp); e("s_cmp_eq_u64 vcc, -1"); e(f"s_cbranch_scc1 {name}_ok")
    e("s_sub_u32 s7, s7, 1"); e(f"s_cbranch_scc0 {name}_lp")
    slow = P.since(m)
    e(f"{name}_ok:")
    return slow

def rnd8(P, r, t):
    for d in range(4): P.e(f"v_cvt_pk_bf16_f32 v{t+d}, v{r+2*d}, v{r+2*d+1}")
    for d in range(4): P.e(f"v_lshlrev_b32 v{r+2*d}, 16, v{t+d}"); P.e(f"v_and_b32 v{r+2*d+1}, {sHI}, v{t+d}")

def gen_helper(P, cfg, FH):
    e = P.e
    m0 = P.mark()
    e("L_helper:")
    e("s_setprio 2")
    F = gen_qproj(P, cfg, True, FH)
    dma_kv(F, 'V', 1, 5); dma_kv(F, 'K', 3, 3); dma_kv(F, 'V', 2, 6); F.flush()
    e(f"s_mov_b32 s73, {f2u(-LOG2E):#x}")
    lo, hi = cfg.plo, cfg.phi
    if lo != 2: e(f"s_setprio {lo}")
    P.waitvm(('V', 0), ('K', 2))
    e("s_barrier")
    GU0 = 3; ACT0 = GU0 + 28; NACT = cfg.nact; DN0 = ACT0 + NACT
    GPUB = [DN0 + 10, DN0 + 16]; GPOLL = [DN0 + 12, DN0 + 21]; GSRC = [112, 0]; GSET = DN0 + 2; GSET2 = DN0 + 15
    slows = []
    ntr = [cfg.ktr]
    def acc_g(m, ee, mat, qt): return 112 + 32 * (m & 1) + (ee * 2 + qt) * 8 + mat * 4
    def act(m):
        L = []
        for ee in range(2):
            regs = [acc_g(m, ee, 0, qt) + i for qt in range(2) for i in range(4)]
            for r in regs: L.append(f"v_mul_f32 v{r}, s73, v{r}")
            for r in regs: L.append(f"v_exp_f32 v{r}, v{r}")
            for r in regs: L.append(f"v_add_f32 v{r}, 1.0, v{r}")
            for r in regs: L.append(f"v_rcp_f32 v{r}, v{r}")
            for r in regs: L.append(f"v_mul_f32 v{r}, v{r}, v{r+4}")
            for qt in range(2):
                a = acc_g(m, ee, 0, qt); d = 208 + (m * 2 + qt) * 4 + ee * 2
                L.append(f"v_cvt_pk_bf16_f32 v{d}, v{a}, v{a+1}"); L.append(f"v_cvt_pk_bf16_f32 v{d+1}, v{a+2}, v{a+3}")
        return L
    def split(L, n):
        cost = [2 if t.startswith(('v_exp', 'v_rcp')) else 1 for t in L]; tot = sum(cost); parts = [[] for _ in range(n)]; acc = 0
        for t, c in zip(L, cost):
            parts[min(n - 1, acc * n // tot)].append(t); acc += c
        return parts
    def acc_d(nt, ee, qt): return 48 + 16 * (nt & 1) + (qt * 2 + ee) * 4
    def out_cv(nt):
        o = 80 + 8 * (nt & 1)
        return [f"v_cvt_pk_bf16_f32 v{o+4*qt+i}, v{acc_d(nt, 0, qt)+2*i}, v{acc_d(nt, 0, qt)+2*i+1}" for qt in range(2) for i in range(4)]
    def out_st(nt):
        o = 80 + 8 * (nt & 1)
        e(f"s_mov_b32 {sT3}, {(nt>>1)*STG + (nt&1)*32768}"); e(f"buffer_store_dwordx4 {vr(o,4)}, v249, {SP}, {sT3} offen sc1", tag=('st', nt // 8))
        e(f"s_addk_i32 {sT3}, 16384"); e(f"buffer_store_dwordx4 {vr(o+4,4)}, v249, {SP}, {sT3} offen sc1", tag=('st', nt // 8))
    def chunk_mf(c, i):
        b, ee = i >> 1, i & 1
        if c < 28:
            m, s = divmod(c, 7); T = 2 * s + (b >> 1)
            return [(acc_g(m, ee, b & 1, qt), (2 * T + qt) * 4, T == 0) for qt in range(2)]
        return [(acc_d(c - 28, ee, qt), 208 + (b * 2 + qt) * 4, b == 0) for qt in range(2)]
    def rd(c, i):
        imm = (c % 3) * GLUS + (i >> 1) * 2048
        e(f"{TR} {vr(176+4*i,2)}, v{246+(i&1)} offset:{imm}"); e(f"{TR} {vr(178+4*i,2)}, v{246+(i&1)} offset:{imm+1024}")
    small_only = []; big_only = []
    def burst(c, nxt, fill, skip_from=8):
        fill = list(fill)
        if hi != lo: e(f"s_setprio {hi}")
        for i in range(8):
            if i == skip_from:
                for t in fill: e(t)
                fill = []
                e("s_cmp_lg_u32 s99, 0"); e(f"s_cbranch_scc1 L_bs{c}"); mk = P.mark()
            for k, (acc, bb, z) in enumerate(chunk_mf(c, i)[::-1] if (cfg.snake & 4 and i & 1) else chunk_mf(c, i)):
                e(f"{MF} {vr(acc,4)}, {vr(176+4*i,4)}, {vr(bb,4)}, {'0' if z else vr(acc,4)}")
                if k == 0:
                    room = 2
                    while fill and room > 0:
                        cst = 2 if fill[0].startswith(('v_exp', 'v_rcp')) else 1
                        if cst > room: break
                        e(fill.pop(0)); room -= cst
            if nxt is not None: rd(nxt, i)
        if skip_from < 8:
            big_only.extend(P.since(mk)); e(f"L_bs{c}:")
        if hi != lo: e(f"s_setprio {lo}")
        for t in fill: e(t)
    for j in range(64):
        if j in (3, ACT0, DN0, DN0 + 14, 62): stamp(P, cfg, {3: 4, ACT0: 5, DN0: 6, DN0 + 14: 7, 62: 8}[j])
        if j in (3, ACT0) and not cfg.hack & 16: stamp(P, cfg, {3: 1, ACT0: 2}[j], True)
        if j == GSET + 1: e("global_load_dword v253, v252, s[68:69] sc1")
        if j in GPOLL: e(f"buffer_load_dword v253, v252, {SF}, s84 offen offset:{128*GPOLL.index(j)} sc1")
        if j + 4 < 64 and not cfg.x & 1: dma_kv(F, 'K', j + 4, j & 3)
        if j < 28: dma_gu(F, j)
        if 0 <= j + 3 - DN0 < 14: dma_wd(F, 28 + j + 3 - DN0, j + 3 - DN0)
        if j + 3 < 64 and not (cfg.x & 1 and j): dma_kv(F, 'V', j + 3, 4 + ((j + 3) & 3))
        for nt in {59: [0], 60: [1], 61: [2, 3], 62: [4, 5], 63: [6, 7]}.get(j, []): dma_wo(F, nt, WO_SLOT[nt])
        if cfg.touch:
            if cfg.ltouch and j % cfg.tper == 0 and ntr[0] < min(16, j // 4 + cfg.klead + 1):
                ntr[0] += 1
                F.add(f"s_add_u32 {sT3}, s89, {(ntr[0]-1)*65536}", f"buffer_load_dword v244, v243, {ST}, {sT3} offen", tag='touch')
            if j == 10:
                F.add(f"s_mul_i32 {sT3}, {sSH}, 7168", f"s_add_u32 {sT3}, {sT3}, s88", f"s_lshl_b32 {sT3}, {sT3}, {cfg.hx-1}", f"buffer_load_dword v244, v243, {SWD}, {sT3} offen", tag='touch')
            if j in (cfg.wot, cfg.wot + 2, cfg.wot2, cfg.wot2 + 2):
                F.add(f"s_mul_i32 {sT3}, {sSH}, 14336", f"s_add_u32 {sT3}, {sT3}, s88", f"s_add_u32 {sT3}, {sT3}, {0 if j in (cfg.wot, cfg.wot2) else 8192}", f"s_lshl_b32 {sT3}, {sT3}, {cfg.hx-1}", f"buffer_load_dword v244, v243, {SWO}, {sT3} offen", tag='touch')
        if j == GU0 - 1:
            for i in range(8): rd(0, i)
        if GU0 <= j < ACT0:
            c = j - GU0; m, s = divmod(c, 7)
            fill = split(act(m - 1), 7)[s] if m else []
            if m == 3:
                e("s_cmp_lg_u32 s99, 0"); e(f"s_cbranch_scc0 L_bg{c}")
                mk = P.mark()
                for t in fill: e(t)
                e(f"s_branch L_be{c}")
                small_only.extend(P.since(mk))
                e(f"L_bg{c}:"); mk = P.mark()
            burst(c, c + 1 if c < 27 else None, fill)
            if m == 3: big_only.extend(P.since(mk)); e(f"L_be{c}:")
        if DN0 <= j < DN0 + 14:
            nt = j - DN0
            burst(28 + nt, 29 + nt if nt < 13 else None, out_cv(nt - 1) if nt else [], skip_from=6)
        if j == DN0 + 14:
            for t in out_cv(13): e(t)
        if ACT0 <= j < DN0:
            F.flush()
            e("s_cmp_lg_u32 s99, 0"); e(f"s_cbranch_scc1 L_as{j}"); mk = P.mark()
            for t in split(act(3), NACT)[j - ACT0]: e(t)
            big_only.extend(P.since(mk)); e(f"L_as{j}:")
            if j == DN0 - 1:
                for i in range(8): rd(28, i)
        if j == GSET:
            for t in final_salu(): e(t)
            e(f"s_lshl_b32 s7, {sQB}, 4"); e("v_mov_b32 v252, s7")
        if j == GSET2:
            F.emit(4)
            e("v_and_b32 v176, 15, v255"); e("v_lshrrev_b32 v177, 4, v255")
            e("v_mul_u32_u24 v251, 896, v176"); e("v_lshl_add_u32 v251, v177, 4, v251")
            e("v_lshrrev_b32 v178, 3, v255"); e("v_lshlrev_b32 v179, 1, v177"); e("v_and_b32 v180, 7, v255"); e("v_xor_b32 v179, v179, v180")
            e("v_mul_u32_u24 v248, 896, v178"); e("v_lshl_add_u32 v248, v179, 4, v248")
            e("v_bfe_u32 v178, v176, 2, 1"); e("v_lshlrev_b32 v178, 3, v178")
            e("v_lshrrev_b32 v179, 3, v176"); e("v_lshl_add_u32 v178, v179, 1, v178")
            e("v_bfe_u32 v179, v176, 1, 1"); e("v_add_u32 v178, v178, v179")
            e("v_lshlrev_b32 v179, 2, v177"); e("v_sub_u32 v178, v178, v179")
            e("v_and_b32 v179, 1, v176"); e("v_lshlrev_b32 v179, 4, v179"); e("v_mov_b32 v180, 0x3f80"); e("v_lshlrev_b32 v179, v179, v180")
            for ee in range(2):
                for i in range(4):
                    e(f"v_cmp_eq_u32 vcc, {i - 4 * ee}, v178"); e(f"v_cndmask_b32 v{192+4*ee+i}, 0, v179, vcc")
        F.flush()
        if DN0 + 1 <= j <= DN0 + 14: out_st(j - DN0 - 1)
        if j == GSET2 + 2:
            for r in range(2): e(f"buffer_load_dwordx4 {vr(216+4*r,4)}, v251, {SX}, s86 offen offset:{r*512}")
            if cfg.otouch: e(f"buffer_load_dword v244, off, {SO}, s86", tag='touch')
        if j in GPUB:
            r = GPUB.index(j)
            e("v_mov_b32 v96, 0"); e(f"v_mov_b32 v97, 1"); P.waitvm(('st', r))
            e("s_mov_b64 exec, 1"); e(f"global_store_dword v96, v97, s[100:101] offset:{128*r} sc1", tag='fl'); e("s_mov_b64 exec, -1")
        if j == GSET + 1:
            slows.append(poll(P, "L_pa", "global_load_dword v253, v252, s[68:69] sc1", "v_cmp_le_u32 vcc, 16, v253", True))
            e("v_and_b32 v252, 15, v255"); e("v_lshlrev_b32 v252, 2, v252")
        if j in GPOLL:
            r = GPOLL.index(j)
            slows.append(poll(P, f"L_pg{r}", f"buffer_load_dword v253, v252, {SF}, s84 offen offset:{128*r} sc1", "v_cmp_le_u32 vcc, 1, v253", True))
        for r in range(2):
            k = j - GPOLL[r] - 1
            if 0 <= k < 8:
                for h in (2 * k, 2 * k + 1):
                    e(f"s_mov_b32 {sT3}, {GP_OFF + h*1024 + r*4*STG}")
                    e(f"buffer_load_dwordx4 {vr(GSRC[r]+4*h,4)}, v249, {SR}, {sT3} offen sc1")
        if j == cfg.pe: stamp(P, cfg, 13)
        if j < 63:
            need = [('K', j + 3), ('V', j + 1), ('G', j - 1)]
            if 0 <= j + 2 - DN0 < 14: need.append(('G', 28 + j + 2 - DN0))
        else:
            need = [('WO', 0), ('WO', 1)]
            e(f"v_mov_b32 v176, {FLAG}")
        P.waitvm(*need)
        if GU0 - 1 <= j < DN0 + 13: e("s_waitcnt lgkmcnt(0)")
        if j == cfg.pe: stamp(P, cfg, 14)
        e("s_barrier")
        if j == cfg.pe - 1: stamp(P, cfg, 9)
        if j == cfg.pe: stamp(P, cfg, 15)
    e("ds_read_b32 v177, v176")
    for k in range(6):
        if cfg.hack & 32 and k >= 2: stamp(P, cfg, 1 + 3 * (k - 2))
        dma_wo(F, 8 + k, WO_SLOT[8 + k]); F.flush()
        if cfg.hack & 32 and k >= 2: stamp(P, cfg, 2 + 3 * (k - 2))
        if k == 0:
            e("v_readfirstlane_b32 s7, v177")
            e(f"s_andn2_b32 s7, s7, {sMODE}"); e("s_cbranch_scc1 L_again")
        P.waitvm(*[('WO', t) for t in ([k + 2] if k < 4 else range(6, cfg.lastb) if k == 4 else range(cfg.lastb, 14))])
        if cfg.hack & 32 and k >= 2: stamp(P, cfg, 3 + 3 * (k - 2))
        e("s_barrier")
    if cfg.hack & 32: stamp(P, cfg, 13); dump_stamps(P); e("s_endpgm")
    e(f"s_setprio {cfg.pep}")
    if cfg.hack & 4: e("s_branch L_hdone")
    e(f"s_cmp_eq_u32 {sSUB}, 3"); e("s_cbranch_scc1 L_hskip")
    for t in xch_salu(): e(t)
    e("v_add_u32 v176, s85, v249"); e("v_add_u32 v177, s90, v249"); e("v_mov_b32 v250, v249")
    for h in range(16): e(f"ds_write_b128 v176, {vr(4*h,4)} offset:{h*1024}")
    for k, r0 in enumerate((192, 196, 220, 250)): e(f"ds_write_b128 v177, {vr(r0,4)} offset:{k*1024}")
    e("L_hskip:")
    e("s_waitcnt vmcnt(0) lgkmcnt(0)")
    e("s_barrier")
    fetch(P, cfg, 0, 0, "v249", lambda: (msum(P, 200, 112), silu8(P, 200)))
    fin(P, cfg, 0, 0, 216)
    e("L_hdone:")
    if cfg.stamps:
        e("s_waitcnt vmcnt(0)"); stamp(P, cfg, 11, True); dump_stamps(P)
    e("s_endpgm")
    sk = set(id(x) for s in slows for x in s)
    allh = [x for x in P.since(m0) if id(x) not in sk]
    so = set(map(id, small_only)); bo = set(map(id, big_only))
    return [[x for x in allh if id(x) not in so], [x for x in allh if id(x) not in bo]], slows

def kd(name, vgpr, ydim=False):
    return "\n".join([f".amdhsa_kernel {name}", f"  .amdhsa_next_free_vgpr {vgpr}", "  .amdhsa_next_free_sgpr 102",
        f"  .amdhsa_accum_offset {vgpr}", "  .amdhsa_group_segment_fixed_size 0", "  .amdhsa_kernarg_size 96",
        "  .amdhsa_user_sgpr_count 2", "  .amdhsa_user_sgpr_kernarg_segment_ptr 1", "  .amdhsa_system_sgpr_workgroup_id_x 1"]
        + (["  .amdhsa_system_sgpr_workgroup_id_y 1"] if ydim else []) + [".end_amdhsa_kernel"])

def generate(cfg=None):
    cfg = cfg or Cfg()
    global FIXED, WAITS, PLACE, CFG
    CFG = cfg
    FIXED, WAITS, PLACE = sched.plan(wait_group=cfg.wg)
    P = Prog()
    K1 = NAME + "_kernel"
    P.e(".p2align 8"); P.e(f"{K1}:")
    m = P.mark(); gen_entry(P, cfg); entry = P.since(m)
    m = P.mark(); FC = gen_setup(P, cfg, False); P.e("s_branch L_ln"); cs = P.since(m)
    P.e("L_hs:")
    m = P.mark(); FH = gen_setup(P, cfg, True); hs = P.since(m)
    P.e("L_ln:")
    m = P.mark(); gen_ln(P, cfg); ln = P.since(m)
    ctraces, other = gen_compute(P, cfg, FC)
    htrace, hother = gen_helper(P, cfg, FH)
    ctraces = [cs + ln + t for t in ctraces]; htrace = [hs + ln + t for t in htrace]
    P.e("L_end:"); P.e("s_endpgm")
    P.e("L_code_end:")
    full = [entry + t for t in ctraces] + [entry + t for t in htrace]
    resolve(full + [[x for x in t if x.tag != 'opt'] for t in full] + other + hother)
    nb = lambda t: sum(1 for x in t if x.kind != 'none' and x.op == 's_barrier')
    print("barriers compute", nb(ctraces[0]) + 13 * 4, "helper", nb(htrace[0]), nb(htrace[1]))
    if cfg.hack & 2:
        for I in P.L:
            if I.text.startswith("buffer_store_dwordx4"): I.text = I.text.replace(" sc1", "")
    if cfg.hack & 8:
        for I in P.L:
            if I.text.startswith("buffer_store_dwordx4"): I.text = I.text.replace(" sc1", " sc0 sc1")
    if cfg.dflag:
        fl = {1: "nt", 2: "sc1", 3: "sc0", 4: "sc0 sc1", 5: "sc0 nt", 6: "sc1 nt"}[cfg.dflag]
        for I in P.L:
            if I.text.endswith(" lds") and I.tag and I.tag[0] in ('K', 'V', 'G', 'WQ', 'WO'): I.text = I.text[:-4] + f" {fl} lds"
    out = expand(P.L)
    mis = align8(out)
    head = [f"; @launch grid=(256,1,1) block=(512,1,1) lds={LDS_BYTES}",
            '.amdgcn_target "amdgcn-amd-amdhsa--gfx950"', ".text",
            f".globl {K1}", f".type {K1},@function"]
    span = 0
    for I in out:
        if I.text == "L_code_end:": break
        if I.text.startswith(".p2align"):
            a = 1 << int(I.text.split()[1]); span = -(-span // a) * a
        span += I.size()
    body = [I.text.replace("CODE_SPAN", str((span - 128) & ~3)) for I in out]
    print("code bytes K1", span)
    tail = ['.section .rodata,"a"', ".p2align 6", kd(K1, 256)]
    return "\n".join(head + body + tail) + "\n", mis

if __name__ == "__main__":
    cfg = Cfg()
    for a in sys.argv[2:]:
        k, v = a.split('='); setattr(cfg, k, float(v) if k == 'thr' else int(v))
    s, mis = generate(cfg)
    open(sys.argv[1], "w").write(s)
    print("bytes", len(s), "lines", s.count("\n"), "misaligned", mis)
```

```python
import struct, sys
from asmlib import *
import sched

NAME = "recurrent_scan__mha_block_cached__glu_gated_glu__prompt"
def f2u(x): return struct.unpack('<I', struct.pack('<f', x))[0]
LOG2E = 1.4426950408889634
SLOT = 16896
GLUB = 8 * SLOT
GLUS = 8192
FLAG = GLUB - 32
LDS_BYTES = 163840
GP_OFF = 0x2000000
STG = 262144
FL_OFF = 0x4000000
SPIN = 400000

sHEAD, sQB, sWV, sSUB = 's3', 's4', 's5', 's6'
SX, SK, SV, SWQ, SWO, SWG, SWU, SWD, SP, ST = [f"s[{8+4*i}:{11+4*i}]" for i in range(10)]
sC = 's72'; sHI = 's74'; sTRIP = 's75'
sLK, sLV, sL1K = 's76', 's77', 's78'
sMODE = 's79'
sSH = 's91'
sT0, sT1, sT2, sT3 = 's80', 's81', 's82', 's83'
sKO, sVO = 's96', 's97'
def srd(i): return 8 + 4 * i
def vr(a, n): return f"v[{a}:{a+n-1}]"
MF = "v_mfma_f32_16x16x32_bf16"
TR = "ds_read_b64_tr_b16"

class Cfg:
    glu = 1
    touch = 1
    prio = 2
    stamps = 0
    thr = 2.0 ** 64
    wq_at = 33
    xpar = 0
    pe = 20
    hack = 0
    plo = 0
    hx = 1
    t_at = 28
    ktr = 3
    klead = 16
    gtouch = 1
    tq0 = 8
    phi = 2
    nact = 2
    flip = 0
    x = 0
    snake = 7
    lnpk = 3
    pre2 = 0
    xrot = 1
    stouch = 0
    tlb = 0
    al = 1
    fmode = 0
    pn = 0
    toff = 0
    obias = 0
    wot2 = 27
    wsoff = 0
    tper = 2
    oflag = 1
    otouch = 0
    dflag = 0
    vbit = -1
    bara = 15
    barb = 15
    pep = 0
    pd = 2
    lastb = 9
    pubr = 13
    ctop = 1
    xat = 224
    ssp = 4
    fo = 1
    sn = -1
    wot = 57
    pl = 4
    slp = 8
    wg = 3
    ltouch = 1
    etouch = 1

def stream(P, items, bufs, lead, gapfill=None, group=2, start=None):
    n = len(items)
    buf = [bufs[i % len(bufs)] for i in range(n)]
    def reads(i):
        it = items[i]
        if it.get('hook'): it['hook']()
        for (op, addr, imm, sub, w) in it['reads']:
            P.e(f"{op} {vr(buf[i]+sub, w)}, {addr} offset:{imm}")
    for i in range(min(lead, n)): reads(i)
    if start: start()
    for i in range(n):
        it = items[i]
        for k, (acc, b, c) in enumerate(it['mf'][::-1] if (CFG.snake & 4 and i & 1) else it['mf']):
            extra = set()
            if group and k == len(it['mf']) - 1 and (i + 1) % group == 0:
                for z in range(1, group + 1):
                    if i + z < n: extra |= regs_of(vr(buf[i+z], 4))
            P.e(f"{MF} {vr(acc,4)}, {vr(buf[i],4)}, {vr(b,4)}, {c if c is not None else vr(acc,4)}", extra_rd=extra)
            if k == len(it['mf']) - 1 and i + lead < n: reads(i + lead)
            elif gapfill: gapfill(i, k)

def tr_reads(addr, imm0, imm1): return [(TR, addr, imm0, 0, 2), (TR, addr, imm1, 2, 2)]

class Filler:
    def __init__(self, P): self.P = P; self.q = []
    def add(self, *texts, **kw): self.q.append((texts, kw))
    def emit(self, k=1):
        for _ in range(k):
            if not self.q: return
            texts, kw = self.q.pop(0)
            for t in texts:
                if isinstance(t, tuple): self.P.waitvm(*t)
                elif t.startswith(('buffer_', 'global_')): self.P.e(t, **kw)
                else: self.P.e(t)
    def flush(self): self.emit(len(self.q))
    def wait(self, *tags):
        assert not any(kw.get('tag') in tags for _, kw in self.q), tags
        self.P.waitvm(*tags)

def dma_kv(F, which, tile, slot):
    sr, sl, so = (SK, sLK, sKO) if which == 'K' else (SV, sLV, sVO)
    ld = lambda off: f"buffer_load_dwordx4 v240, {sr}, {so} offen" + (f" offset:{off}" if off else "") + " lds"
    tag = (which, tile)
    F.add(f"s_add_u32 m0, {sl}, {slot*SLOT}", f"s_addk_i32 {so}, 8192", ld(0), tag=tag)
    F.add("s_addk_i32 m0, 32", ld(1024), tag=tag)
    F.add(f"s_addk_i32 m0, {8448-32}", f"s_addk_i32 {so}, 8192", ld(0), tag=tag)
    F.add("s_addk_i32 m0, 32", ld(1024), tag=tag)
def dma_wq(F, tile, slot):
    ld = f"buffer_load_dwordx4 v245, {SWQ}, {sT0} offen lds"
    tag = ('WQ', tile)
    F.add(f"s_add_u32 m0, {sLV}, {slot*SLOT}", f"s_mov_b32 {sT0}, {32*tile*8192}", ld, tag=tag)
    for d in (1056, 7392, 1056):
        F.add(f"s_addk_i32 m0, {d}", f"s_addk_i32 {sT0}, 16384", ld, tag=tag)
def dma_wo(F, t, slot):
    ld = f"buffer_load_dwordx4 v248, {SWO}, {sT0} offen lds"
    tag = ('WO', t)
    F.add(f"s_add_u32 m0, {sL1K}, {slot*SLOT}", f"s_add_u32 {sT0}, s87, {(t & 1)*128*896 + (t >> 1)*128}", ld, tag=tag)
    for p in range(3): F.add("s_addk_i32 m0, 1024", f"s_addk_i32 {sT0}, {8*896}", ld, tag=tag)
def dma_gu(F, c):
    base = GLUB + (c % 3) * GLUS; m, s = divmod(c, 7)
    ld = f"buffer_load_dwordx4 v241, {SWG}, {sT2} offen lds"
    F.add(f"s_add_u32 m0, s88, {base}", f"s_mov_b32 {sT2}, {64*s*3584 + m*64}", ld, tag=('G', c))
    F.add("s_addk_i32 m0, 1024", f"s_addk_i32 {sT2}, {4*3584}", ld, tag=('G', c))
def dma_wd(F, c, nt):
    base = GLUB + (c % 3) * GLUS
    ld = f"buffer_load_dwordx4 v242, {SWD}, {sT2} offen lds"
    F.add(f"s_add_u32 m0, s88, {base}", f"s_add_u32 {sT2}, s87, {nt*64}", ld, tag=('G', c))
    F.add("s_addk_i32 m0, 1024", f"s_addk_i32 {sT2}, 14336", ld, tag=('G', c))

WQ_SLOT = {0: 7, 1: 8, 2: 5, 3: 3, 4: 6, 5: 4, 6: 0, 7: 1, 8: 2, 9: 7, 10: 8, 11: 5, 12: 3, 13: 6}
WO_SLOT = {0: 8, 1: 0, 2: 1, 3: 4, 4: 2, 5: 5, 6: 3, 7: 6, 8: 7, 9: 8, 10: 0, 11: 1, 12: 4, 13: 2}

def streg(idx): return {0: 's94', 10: 's95'}.get(idx, f"s{48+idx}") if not H32 else f"s{48+idx}"
H32 = False
NLAB = 0
def stamp(P, cfg, idx, real=False):
    if not cfg.stamps: return
    P.e(f"{'s_memrealtime' if real else 's_memtime'} s[64:65]"); P.e("s_waitcnt lgkmcnt(0)")
    P.e(f"s_mov_b32 {streg(idx)}, s64")
def dump_stamps(P):
    e = P.e
    global H32
    H32 = bool(CFG.hack & 32)
    if CFG.hack & 128:
        global NLAB
        NLAB += 1
        e("s_mov_b64 exec, 1")
        e("v_mov_b32 v0, 0"); e(f"v_mov_b32 v1, {streg(11)}"); e(f"s_not_b32 s7, {streg(10)}"); e("v_mov_b32 v2, s7")
        e("global_atomic_umax v0, v1, s[68:69] offset:4"); e("global_atomic_umax v0, v2, s[68:69] offset:8")
        e(f"s_lshl_b32 s7, s2, 3"); e(f"s_add_u32 s7, s7, {sWV}"); e(f"s_cmp_lg_u32 s7, {37*8}"); e(f"s_cbranch_scc1 L_nd{NLAB}")
        for w, (x, y) in zip((3, 5, 6, 7, 9, 10, 11, 13, 14), ((1, 0), (2, 1), (3, 2), (4, 3), (5, 4), (6, 5), (13, 6), (8, 13), (11, 10))):
            e(f"s_sub_u32 s7, {streg(x)}, {streg(y)}"); e(f"v_mov_b32 v{w+4}, s7"); e(f"global_store_dword v0, v{w+4}, s[68:69] offset:{4*w}")
        e(f"L_nd{NLAB}:")
        return
    for i in range(16): e(f"v_writelane_b32 v254, {streg(i)}, {i}")
    e(f"s_lshl_b32 s7, s2, 3"); e(f"s_add_u32 s7, s7, {sWV}"); e("s_lshl_b32 s7, s7, 8"); e("s_add_u32 s7, s7, 0x8000000")
    e("s_add_u32 s96, s70, s7"); e("s_addc_u32 s97, s71, 0")
    e("v_mbcnt_lo_u32_b32 v255, -1, 0"); e("v_mbcnt_hi_u32_b32 v255, -1, v255"); e("v_lshlrev_b32 v255, 2, v255")
    e("global_store_dword v255, v254, s[96:97]")

def mad(P, dst, src, mul, acc=None):
    P.e(f"s_movk_i32 s7, {mul}" if mul < 32768 else f"s_mov_b32 s7, {mul}")
    if acc is None: P.e(f"v_mul_u32_u24 {dst}, s7, {src}")
    else: P.e(f"v_mad_u32_u24 {dst}, {src}, s7, {acc}")

def gen_entry(P, cfg):
    e = P.e
    e("s_cmp_ge_u32 s2, 256"); e("s_cbranch_scc1 L_end")
    e(f"s_mov_b32 {sMODE}, 0")
    e("L_restart:")
    stamp(P, cfg, 0); stamp(P, cfg, 10, True)
    e("s_load_dwordx16 s[48:63], s[0:1], 0"); e("s_load_dwordx8 s[64:71], s[0:1], 64")
    e("s_getpc_b64 s[96:97]")
    if cfg.ctop:
        e("s_lshr_b32 s7, s2, 3"); e("s_lshl_b32 s7, s7, 12"); e("v_lshl_add_u32 v189, v0, 3, s7"); e("v_min_u32 v189, CODE_SPAN, v189")
        e("global_load_dword v251, v189, s[96:97]", tag='touch')
    e("v_lshrrev_b32 v1, 6, v0")
    e("v_and_b32 v255, 63, v0")
    e(f"v_readfirstlane_b32 {sWV}, v1")
    hx = cfg.hx; lm = hx - 1; M = 1 << lm
    e(f"s_and_b32 {sHEAD}, s2, {(16 >> hx) - 1}"); e(f"s_lshl_b32 {sHEAD}, {sHEAD}, {hx}"); e(f"s_bfe_u32 s7, s2, {(hx << 16) | 3:#x}"); e(f"s_add_u32 {sHEAD}, {sHEAD}, s7")
    e(f"s_lshr_b32 {sSH}, s2, {3 + hx}")
    if hx > 1: e(f"s_bfe_u32 s7, s2, {(lm << 16) | (4 - hx):#x}"); e(f"s_lshl_b32 s7, s7, {5 - hx}"); e(f"s_add_u32 {sQB}, {sSH}, s7")
    else: e(f"s_mov_b32 {sQB}, {sSH}")
    e(f"s_and_b32 {sSUB}, {sWV}, 3")
    e("s_mov_b32 s11, 0x20000"); e(f"s_mov_b32 s10, {2048*896}")
    e("v_lshrrev_b32 v186, 3, v255"); e("v_and_b32 v185, 7, v255"); e("v_lshlrev_b32 v184, 4, v185"); mad(P, 'v184', 'v186', 896, 'v184')
    if cfg.xrot: e(f"s_add_u32 s84, {sWV}, s2"); e("s_and_b32 s84, s84, 7"); e(f"s_and_b32 {sTRIP}, s2, {cfg.xrot & 1}")
    else: e(f"s_mov_b32 s84, {sWV}"); e(f"s_mov_b32 {sTRIP}, 0")
    e(f"s_lshl_b32 s7, {sQB}, 3"); e("s_add_u32 s7, s7, s84"); e(f"s_mul_i32 {sT0}, s7, {16*896}")
    def mk(i, plo, mul, total, exact=None, idx=sHEAD):
        b = srd(i)
        e(f"s_mul_i32 s7, {idx}, {mul}")
        e(f"s_add_u32 s{b}, s{plo}, s7"); e(f"s_addc_u32 s{b+1}, s{plo+1}, 0")
        if exact is not None: e(f"s_mov_b32 s{b+2}, {exact}")
        else: e(f"s_sub_u32 s{b+2}, {total}, s7")
    e(f"v_lshrrev_b32 v250, {4-lm}, v0"); e("v_lshlrev_b32 v250, 13, v250"); e(f"v_and_b32 v2, {(16>>lm)-1}, v0"); e(f"v_lshl_add_u32 v250, v2, {5+lm}, v250")
    e(f"s_mul_i32 s90, {sSH}, {28*M*8192}")
    for i in range(1, 10): e(f"s_mov_b32 s{srd(i)+3}, 0x20000")
    e(f"s_mul_i32 s7, {sTRIP}, {8*896}"); e(f"s_add_u32 {sT1}, {sT0}, {8*896}"); e(f"s_add_u32 {sT0}, {sT0}, s7"); e(f"s_sub_u32 {sT1}, {sT1}, s7")
    e("s_waitcnt lgkmcnt(0)")
    if cfg.hack & 16: e("s_memtime s[86:87]")
    e("s_mov_b32 s8, s48"); e("s_mov_b32 s9, s49")
    if cfg.t_at == -2:
        mk(3, 54, 512, 448 * 8192); e(f"buffer_load_dword v251, v250, {SWQ}, s90 offen", tag='touch')
    for kp in range(7): e(f"buffer_load_dwordx4 {vr(128+4*kp,4)}, v184, {SX}, {sT0} offen offset:{kp*128}")
    if cfg.t_at != -2: mk(3, 54, 512, 448 * 8192)
    if cfg.t_at == -1: e(f"buffer_load_dword v251, v250, {SWQ}, s90 offen", tag='touch')
    if cfg.tlb & 1:
        e(f"s_load_dword s92, s[{srd(3)}:{srd(3)+1}], 0"); e(f"s_add_u32 s96, s{srd(3)}, {447*8192}"); e(f"s_addc_u32 s97, s{srd(3)+1}, 0"); e("s_load_dword s92, s[96:97], 0")
    if cfg.stouch:
        e(f"s_cmp_eq_u32 {sWV}, 7"); e("s_cbranch_scc1 L_nost")
        e(f"s_lshl_b32 s7, {sWV}, 15"); e("s_add_u32 s7, s7, s90"); e(f"s_add_u32 s96, s{srd(3)}, s7"); e(f"s_addc_u32 s97, s{srd(3)+1}, 0")
        for r in range(4):
            for l in range(4 * cfg.stouch): e(f"s_load_dword s92, s[96:97], {r*8192 + l*(128//cfg.stouch)}")
        e("L_nost:")
    if cfg.wsoff: e(f"s_add_u32 s70, s70, {cfg.wsoff << 20}"); e("s_addc_u32 s71, s71, 0")
    mk(1, 50, 1 << 20, 0, 1 << 20)
    mk(2, 52, 1 << 20, 0, 1 << 20)
    mk(4, 56, 256 * 896, 0, 256 * 896)
    assert hx == 1
    e("s_and_b32 s98, s2, 6"); e("s_bfe_u32 s7, s2, 0x10003"); e("s_add_u32 s98, s98, s7"); e("s_mul_i32 s98, s98, 7")
    e("s_and_b32 s99, s2, 1")
    if cfg.flip: e("s_mul_i32 s7, s99, 3"); e("s_xor_b32 s99, s99, 1")
    else: e("s_lshl_b32 s7, s99, 2")
    e("s_add_u32 s98, s98, s7")
    mk(5, 60, 64, 448 * 3584, idx='s98')
    mk(6, 62, 64, 448 * 3584, idx='s98')
    mk(7, 64, 32 * 896, 0, 128 * 896, idx='s98')
    e(f"s_mul_i32 s7, s99, {32*896}"); e(f"s_sub_u32 s{srd(7)+2}, s{srd(7)+2}, s7")
    e(f"s_mul_i32 s7, {sQB}, {7*STG}"); e(f"s_lshl_b32 {sT2}, {sSUB}, 16"); e(f"s_add_u32 s7, s7, {sT2}"); e(f"s_lshl_b32 {sT2}, {sHEAD}, 10"); e(f"s_add_u32 s7, s7, {sT2}")
    e(f"s_lshr_b32 {sT2}, {sWV}, 2"); e(f"s_mul_i32 {sT2}, {sT2}, {GP_OFF}"); e(f"s_add_u32 s7, s7, {sT2}")
    e(f"s_add_u32 s{srd(8)}, s70, s7"); e(f"s_addc_u32 s{srd(8)+1}, s71, 0"); e(f"s_mov_b32 s{srd(8)+2}, {7*STG}")
    e(f"s_lshl_b32 s7, {sQB}, 2"); e(f"s_add_u32 s7, s7, {sSUB}"); e("s_lshl_b32 s7, s7, 8"); e(f"s_add_u32 s7, s7, {sHEAD}"); e("s_lshl_b32 s7, s7, 2")
    e(f"s_lshr_b32 {sT2}, {sWV}, 2"); e(f"s_lshl_b32 {sT2}, {sT2}, 16"); e(f"s_add_u32 s7, s7, {sT2}"); e(f"s_add_u32 s7, s7, {FL_OFF}")
    e("s_add_u32 s100, s70, s7"); e("s_addc_u32 s101, s71, 0")
    if cfg.tlb & 2:
        for i in (1, 2, 4, 5, 6, 7, 8): e(f"s_load_dword s92, s[{srd(i)}:{srd(i)+1}], 0")
        for p in ("100:101", "66:67", "68:69"): e(f"s_load_dword s92, s[{p}], 0")
    e(f"s_cmp_lt_u32 {sSUB}, 2")
    e(f"s_cselect_b32 s{srd(9)}, s{srd(1)}, s{srd(2)}"); e(f"s_cselect_b32 s{srd(9)+1}, s{srd(1)+1}, s{srd(2)+1}"); e(f"s_mov_b32 s{srd(9)+2}, {1<<20}")
    e(f"s_lshl_b32 s89, {sSH}, {12+lm}"); e(f"s_and_b32 s7, {sSUB}, 1"); e(f"s_lshl_b32 s7, s7, {11+lm}"); e("s_add_u32 s89, s89, s7")
    e(f"s_mov_b32 {sC}, {f2u(LOG2E/16):#x}"); e(f"s_mov_b32 {sHI}, 0xffff0000")
    e("v_lshrrev_b32 v112, 4, v255"); e("v_bfe_u32 v114, v255, 2, 2"); e("v_and_b32 v115, 3, v255")
    e("v_lshrrev_b32 v116, 1, v114"); e("v_lshl_add_u32 v116, v112, 1, v116"); e("v_lshlrev_b32 v224, 3, v115"); mad(P, 'v224', 'v116', 1056, 'v224')
    e("v_and_b32 v116, 1, v114"); e("v_lshl_add_u32 v224, v116, 7, v224")
    e("v_bfe_u32 v117, v255, 2, 1"); e("v_lshl_add_u32 v116, v115, 1, v117"); e("v_xor_b32 v116, v116, v186"); e("v_lshlrev_b32 v187, 4, v116")
    e("v_lshl_add_u32 v187, v115, 8, v187"); e("v_xor_b32 v117, 1, v117"); e("v_lshl_add_u32 v187, v117, 13, v187")
    e("s_lshl_b32 s7, s84, 3"); e(f"s_add_u32 s7, s7, {sTRIP}"); e("s_lshl_b32 s7, s7, 7"); e("v_add_u32 v187, s7, v187"); e("v_add_u32 v188, 0x10000, v187")
    e("v_lshlrev_b32 v116, 1, v112"); e("v_and_b32 v117, 15, v255"); e("v_xor_b32 v116, v116, v117"); e("v_lshlrev_b32 v227, 4, v116"); e("v_lshl_add_u32 v227, v112, 8, v227")
    e(f"s_lshl_b32 s7, {sSUB}, 11"); e("v_add_u32 v227, s7, v227"); e("v_add_u32 v228, 0x10000, v227")
    e("v_xor_b32 v229, 16, v227"); e("v_xor_b32 v230, 16, v228")
    e("v_lshrrev_b32 v185, 2, v255")
    if cfg.hack & 16: e("s_waitcnt lgkmcnt(0)"); e("s_mov_b32 s57, s86"); cfg.pe = -5
    e("v_lshlrev_b32 v240, 7, v112")
    e("v_and_b32 v116, 7, v255"); e("v_lshl_add_u32 v240, v116, 4, v240")
    e("v_bfe_u32 v116, v255, 3, 1")
    e("v_lshl_add_u32 v245, v116, 13, v240")
    e("v_lshl_add_u32 v240, v116, 9, v240")
    e(f"s_lshl_b32 s7, {sSUB}, 16"); e("v_add_u32 v245, s7, v245")
    e(f"s_mul_i32 {sLV}, {sSUB}, 2112")
    e(f"s_cmp_ge_u32 {sWV}, 4"); e("s_cbranch_scc1 L_hs")

def wdo_read_bases(P, d0, d1, G, r, c, tmp, add=0):
    e = P.e
    e(f"v_lshlrev_b32 {d0}, 3, {c}"); e(f"v_lshl_add_u32 {d0}, {G}, 8, {d0}"); e(f"v_lshl_add_u32 {d0}, {r}, 6, {d0}")
    e(f"v_and_b32 {tmp}, 1, {G}"); e(f"v_lshl_add_u32 {d0}, {tmp}, 5, {d0}")
    if add: e(f"v_add_u32 {d0}, {add}, {d0}")
    e(f"v_xor_b32 {d1}, 32, {d0}")

def final_salu():
    R = []; e = R.append
    e(f"s_lshr_b32 s7, {sHEAD}, 2"); e(f"s_mul_i32 {sT3}, {sQB}, {7*STG}"); e(f"s_lshl_b32 {sT2}, {sHEAD}, 14"); e(f"s_add_u32 {sT3}, {sT3}, {sT2}")
    e(f"s_lshl_b32 {sT2}, {sSUB}, 18"); e(f"s_add_u32 {sT3}, {sT3}, {sT2}")
    e(f"s_add_u32 s{srd(3)}, s70, {sT3}"); e(f"s_addc_u32 s{srd(3)+1}, s71, 0"); e(f"s_cmp_eq_u32 {sSUB}, 3"); e(f"s_cselect_b32 s{srd(3)+2}, 0, {4*STG}"); e(f"s_add_u32 s{srd(3)+2}, s{srd(3)+2}, {GP_OFF + STG}")
    e(f"s_mov_b32 s{srd(5)}, s66"); e(f"s_mov_b32 s{srd(5)+1}, s67"); e(f"s_mov_b32 s{srd(5)+2}, {2048*896}")
    e(f"s_lshl_b32 {sT2}, {sQB}, 2"); e(f"s_add_u32 s7, s7, {sT2}")
    e(f"s_lshl_b32 {sT2}, s7, 10"); e(f"s_add_u32 {sT2}, {sT2}, {FL_OFF}")
    e(f"s_add_u32 s{srd(6)}, s70, {sT2}"); e(f"s_addc_u32 s{srd(6)+1}, s71, 0"); e(f"s_mov_b32 s{srd(6)+2}, 0x10400"); e("s_mov_b32 s84, 0x10000")
    e("s_lshl_b32 s7, s7, 1"); e(f"s_and_b32 {sT2}, {sHEAD}, 1"); e(f"s_add_u32 s7, s7, {sT2}"); e(f"s_mul_i32 s86, s7, {16*896}")
    e(f"s_lshl_b32 {sT2}, {sSUB}, 7"); e(f"s_add_u32 s86, s86, {sT2}"); e(f"s_bfe_u32 {sT2}, {sHEAD}, 0x10001"); e(f"s_lshl_b32 {sT2}, {sT2}, 6"); e(f"s_add_u32 s86, s86, {sT2}")
    return R

def xch_salu():
    return [f"s_lshl_b32 s7, {sSUB}, 2", "s_lshr_b32 s7, 0x635, s7", "s_and_b32 s7, s7, 15", f"s_mul_i32 s85, s7, {SLOT}",
            f"s_lshl_b32 s90, {sSUB}, 12", f"s_add_u32 s90, s90, {GLUB + 16384}"]

def xa(kk, lo, hi, add=0):
    o = (13 - kk) * 8192
    return f"{hi if o >= 65536 else lo} offset:{(o & 0xffff) + add}"
XR = [f"ds_read_b128 {vr((2*kk+qt)*4,4)}, {xa(kk, *(('v229', 'v230') if kk & 1 else ('v227', 'v228')), qt*1024)}" for kk in range(14) for qt in range(2)]

def gen_setup(P, cfg, helper):
    e = P.e
    F = Filler(P)
    lm = cfg.hx - 1; M = 1 << lm
    e(f"s_mov_b32 s93, {int(helper)}")
    if helper:
        e(f"s_lshl_b32 s88, {sSUB}, 11"); e("v_add_u32 v240, s88, v240")
        e(f"s_lshl_b32 s7, {sSUB}, 3"); e(f"s_lshr_b32 {sLK}, 0xc0703000, s7"); e(f"s_and_b32 {sLK}, {sLK}, 0xff"); e(f"s_add_u32 {sLK}, {sLK}, s88")
        e(f"s_lshl_b32 {sL1K}, {sSUB}, 12")
        e(f"s_movk_i32 {sKO}, -8192"); e(f"s_movk_i32 {sVO}, -8192")
        e("v_and_b32 v116, 1, v112"); e("v_lshlrev_b32 v116, 1, v116"); e("v_xor_b32 v116, v116, v115"); e("v_lshlrev_b32 v242, 4, v116")
        mad(P, 'v242', 'v185', 896, 'v242')
        e("v_lshl_add_u32 v117, v112, 3, v114"); e("v_lshlrev_b32 v241, 4, v116"); mad(P, 'v241', 'v117', 3584, 'v241')
        e(f"s_lshr_b32 s7, {sSUB}, 1"); e(f"s_mul_i32 s7, s7, {32*3584}"); e("v_add_u32 v241, s7, v241")
        e(f"s_bitcmp1_b32 {sSUB}, 0"); e(f"s_cselect_b32 s{srd(5)}, s{srd(6)}, s{srd(5)}"); e(f"s_cselect_b32 s{srd(5)+1}, s{srd(6)+1}, s{srd(5)+1}")
        e(f"v_lshlrev_b32 v243, {5+lm}, v255")
        e("v_lshlrev_b32 v249, 4, v255")
        e(f"s_mul_i32 s87, {sSUB}, {2*14336}")
        wdo_read_bases(P, 'v246', 'v247', 'v112', 'v114', 'v115', 'v116', GLUB)
        e("v_add_u32 v224, 512, v224")
    else:
        e(f"v_lshlrev_b32 v252, {5+lm}, v255")
        if cfg.touch:
            for tr in range(cfg.ktr):
                F.add(f"s_add_u32 {sT3}, s89, {tr*65536}", f"buffer_load_dword v251, v252, {ST}, {sT3} offen", tag='touch')
            e("v_mul_u32_u24 v253, 84, v115"); mad(P, 'v253', 'v185', 3584, 'v253')
        if cfg.touch and cfg.gtouch:
            F.add(f"s_lshl_b32 s7, {sSH}, 1", f"s_and_b32 {sT2}, {sSUB}, 1", f"s_add_u32 s7, s7, {sT2}", f"s_mul_i32 {sT3}, s7, {14*M*3584}",
                  f"s_cmp_lt_u32 {sSUB}, 2", f"s_cselect_b32 s{srd(9)}, s{srd(5)}, s{srd(6)}", f"s_cselect_b32 s{srd(9)+1}, s{srd(5)+1}, s{srd(6)+1}",
                  f"s_mov_b32 s{srd(9)+2}, s{srd(5)+2}", f"buffer_load_dword v251, v253, {ST}, {sT3} offen", tag='touch')
            for _ in range(M - 1): F.add(f"s_add_u32 {sT3}, {sT3}, {14*3584}", f"buffer_load_dword v251, v253, {ST}, {sT3} offen", tag='touch')
        F.add(*final_salu()); F.add(f"s_mov_b32 s73, {f2u(-LOG2E):#x}", *xch_salu())
        e("v_bfe_u32 v116, v255, 1, 3"); e("v_lshlrev_b32 v117, 2, v116"); e("s_mov_b32 s7, 0xec975320"); e("v_bfe_u32 v117, s7, v117, 4")
        e("v_lshlrev_b32 v248, 10, v116"); e("v_lshl_add_u32 v248, v117, 4, v248")
        e("v_and_b32 v116, 1, v255"); e("v_lshl_add_u32 v248, v116, 7, v248")
        e("v_and_b32 v116, 1, v112"); e("v_lshl_add_u32 v248, v116, 5, v248"); e("v_lshrrev_b32 v116, 1, v112"); e("v_lshl_add_u32 v248, v116, 4, v248")
        e(f"v_add_u32 v249, {4*SLOT}, v224")
        e(f"v_mov_b32 v116, {FLAG}"); e("v_mov_b32 v117, 0"); e("ds_write_b32 v116, v117")
    return F

def gen_ln(P, cfg):
    e = P.e
    F = Filler(P)
    e(f"v_add_u32 v225, {3*SLOT}, v224"); e(f"v_add_u32 v226, {6*SLOT}, v224")
    ld = f"buffer_load_dwordx4 v245, {SWQ}, {sT0} offen lds"
    F.add(f"s_lshr_b32 s7, {sWV}, 2", f"s_lshl_b32 {sT0}, s7, 18", f"s_mul_i32 s7, s7, {SLOT}", f"s_add_u32 s7, s7, {sLV}", f"s_add_u32 m0, s7, {7*SLOT}", ld, tag='W01')
    for d in (1056, 7392, 1056): F.add(f"s_addk_i32 m0, {d}", f"s_addk_i32 {sT0}, 16384", ld, tag='W01')
    if cfg.hack & 16: stamp(P, cfg, 13)
    for kp in range(cfg.pre2): e(f"buffer_load_dwordx4 {vr(156+4*kp,4)}, v184, {SX}, {sT1} offen offset:{kp*128}")
    if cfg.hack & 16: stamp(P, cfg, 14)
    for hh in range(2):
        m, t, v, u = "v118", "v119", "v120", "v121"
        for d in range(28 * hh, 28 * hh + 28):
            kp = d // 4 + cfg.pre2
            if hh == 0 and d % 4 == 0 and kp < 7:
                e(f"buffer_load_dwordx4 {vr(156+4*kp,4)}, v184, {SX}, {sT1} offen offset:{kp*128}", extra_rd=regs_of(f"v{128+d}"))
            e(f"v_lshlrev_b32 v{2*d}, 16, v{128+d}"); e(f"v_and_b32 v{2*d+1}, {sHI}, v{128+d}")
            pr = vr(2 * d, 2)
            if cfg.lnpk & 1:
                if d % 28 == 0: e(f"v_mov_b64 v[118:119], {pr}"); e(f"v_pk_mul_f32 v[120:121], {pr}, {pr}")
                else: e(f"v_pk_add_f32 v[118:119], v[118:119], {pr}"); e(f"v_pk_fma_f32 v[120:121], {pr}, {pr}, v[120:121]")
            elif d % 28 == 0:
                e(f"v_mov_b32 {m}, v{2*d}"); e(f"v_mov_b32 {t}, v{2*d+1}"); e(f"v_mul_f32 {v}, v{2*d}, v{2*d}"); e(f"v_mul_f32 {u}, v{2*d+1}, v{2*d+1}")
            else:
                e(f"v_add_f32 {m}, {m}, v{2*d}"); e(f"v_add_f32 {t}, {t}, v{2*d+1}")
                e(f"v_fmac_f32 {v}, v{2*d}, v{2*d}"); e(f"v_fmac_f32 {u}, v{2*d+1}, v{2*d+1}")
            if d == cfg.t_at and cfg.touch:
                e(f"buffer_load_dword v251, v250, {SWQ}, s90 offen", tag='touch')
            if d >= cfg.wq_at and d % 4 == 1: F.emit()
        if hh == 1: stamp(P, cfg, 1)
        e(f"v_add_f32 {m}, {m}, {t}"); e(f"v_add_f32 {v}, {v}, {u}")
        for qp in ("quad_perm:[1,0,3,2]", "quad_perm:[2,3,0,1]", "row_half_mirror"):
            e(f"v_add_f32_dpp {m}, {m}, {m} {qp} row_mask:0xf bank_mask:0xf")
            e(f"v_add_f32_dpp {v}, {v}, {v} {qp} row_mask:0xf bank_mask:0xf")
        e(f"s_mov_b32 s7, {f2u(1.0/448):#x}")
        e(f"v_mul_f32 {m}, s7, {m}")
        e(f"v_mul_f32 {t}, {m}, {m}")
        e(f"v_fma_f32 {v}, {v}, s7, -{t}")
        e(f"v_max_f32 {v}, 0, {v}")
        e(f"v_cvt_pk_bf16_f32 {t}, {m}, {v}")
        e(f"v_lshlrev_b32 {m}, 16, {t}")
        e(f"v_and_b32 {v}, {sHI}, {t}")
        e(f"v_add_f32 {v}, {f2u(1e-5):#x}, {v}")
        e(f"v_cvt_pk_bf16_f32 {v}, {v}, {v}"); e(f"v_and_b32 {v}, {sHI}, {v}")
        e(f"v_sqrt_f32 {v}, {v}")
        e(f"v_cvt_pk_bf16_f32 {v}, {v}, {v}"); e(f"v_and_b32 {v}, {sHI}, {v}")
        e(f"v_rcp_f32 {v}, {v}")
        e(f"v_mul_f32 {m}, {m}, {v}")
        if not cfg.lnpk & 2: e(f"v_mov_b32 {t}, {m}"); e(f"v_mov_b32 {u}, {v}")
        for kp in range(7):
            z = 7 * hh + kp
            for d in range(4 * z, 4 * z + 4):
                if cfg.lnpk & 2: e(f"v_pk_fma_f32 {vr(2*d,2)}, {vr(2*d,2)}, v[120:121], v[118:119] op_sel_hi:[1,0,0] neg_lo:[0,0,1] neg_hi:[0,0,1]")
                else: e(f"v_fma_f32 v{2*d}, v{2*d}, {u}, -{t}"); e(f"v_fma_f32 v{2*d+1}, v{2*d+1}, {v}, -{m}")
            for d in range(4 * z, 4 * z + 4):
                e(f"v_cvt_pk_bf16_f32 v{128+d}, v{2*d}, v{2*d+1}")
            ad = xa(2 * kp + 1, 'v187', 'v188').split()
            e(f"ds_write_b128 {ad[0]}, {vr(128+4*z,4)} {ad[1]}")
            if hh == 1: F.emit(2)
        if hh == 0:
            if cfg.hack & 16: stamp(P, cfg, 15)
            e("v_xor_b32 v187, 0x80, v187"); e("v_xor_b32 v188, 0x80, v188")
            e("v_mov_b32 v122, 0"); e("v_lshlrev_b32 v123, 7, v255")
            e(f"s_cmp_lg_u32 {sMODE}, 0"); e(f"s_cbranch_scc1 L_norst")
            e(f"s_mov_b64 exec, 0x7f"); e("global_store_dword v123, v122, s[100:101] sc1", tag='opt'); e("s_mov_b64 exec, -1")
            e(f"L_norst:")
    F.wait('W01')
    e("s_waitcnt lgkmcnt(0)")
    stamp(P, cfg, 12)
    e("s_barrier")
    for t in XR[:16]: e(t)
    e("s_cmp_eq_u32 s93, 1"); e("s_cbranch_scc1 L_helper")

def gen_qproj(P, cfg, helper, F):
    e = P.e
    xr = XR[16:]
    def start():
        e("s_barrier", extra_rd=regs_of("v[0:63]"))
        if helper:
            for T in range(2, 6): dma_wq(F, T, WQ_SLOT[T])
            F.emit(4)
        stamp(P, cfg, 2)
    items = []
    after = {1: [('WQ', 6), ('WQ', 7), ('WQ', 8), ('WQ', 9)], 2: [('WQ', 10), ('WQ', 11)], 3: [('WQ', 12), ('WQ', 13)], 4: [('K', 0), ('V', 0)], 5: [('K', 1), ('K', 2)], 6: []}
    def mkhook(k):
        def hook():
            if helper:
                F.wait(('WQ', 2*k), ('WQ', 2*k+1), *([('K', 0)] if k == 6 else []))
            if k == 1: P.waitvm('opt')
            e("s_barrier", extra_rd=regs_of("v[64:111]") if k == 1 else None)
            if helper:
                for (w, t) in after.get(k, []):
                    if w == 'WQ': dma_wq(F, t, WQ_SLOT[t])
                    else: dma_kv(F, w, t, (t & 3) + (4 if w == 'V' else 0))
            elif k == 1:
                e(f"s_or_b32 s7, {sMODE}, {sSUB}"); e("s_cbranch_scc1 L_noarr")
                e(f"s_lshl_b32 s7, {sQB}, 4"); e("v_mov_b32 v228, s7"); e("v_mov_b32 v229, 1")
                e("s_mov_b64 exec, 1"); e("global_atomic_add v228, v229, s[68:69] sc1", tag='opt'); e("s_mov_b64 exec, -1")
                e("L_noarr:")
        return hook
    for T in range(14):
        sl = WQ_SLOT[T]; base = f"v{224 + sl // 3}"; so = (sl % 3) * SLOT
        for t in range(8):
            imm = so + (t >> 2) * 256 + (t & 3) * 32
            mf = [(128 + ((t >> 1) * 2 + qt) * 8 + (t & 1) * 4, (2 * T + qt) * 4, '0' if T == 0 else None) for qt in range(2)]
            items.append(dict(mf=mf, reads=tr_reads(base, imm, imm + 8448), hook=mkhook(T // 2) if (T % 2 == 0 and T > 0 and t == 0) else None))
    def gap(i, k):
        T, t = divmod(i, 8)
        for _ in range(2):
            if xr: e(xr.pop(0))
        if helper: F.emit()
        else:
            if T >= 1 and t < 4: e(f"v_mov_b64 {vr(8*(T-1)+2*t,2)}, 0")
            elif 1 <= T < 5 and t in (4, 5): e(f"v_mov_b64 {vr(112+4*(T-1)+2*(t-4),2)}, 0")
            elif t == 6 and T >= cfg.tq0: F.emit()
    stream(P, items, [192 + 4 * i for i in range(6)], 6, gap, group=3, start=start)
    assert not F.q or not helper
    F.flush()
    e(f"s_lshr_b32 s7, {sSUB}, 1"); e(f"s_mul_i32 s7, s7, {SLOT}"); e(f"s_and_b32 {sT3}, {sSUB}, 1"); e(f"s_lshl_b32 {sT3}, {sT3}, 13")
    e(f"s_add_u32 s7, s7, {sT3}"); e(f"s_add_u32 s7, s7, {7*SLOT}")
    e("v_lshlrev_b32 v254, 4, v255"); e("v_add_u32 v254, s7, v254")
    if helper:
        for g in range(8):
            for t in qfin(g): e(t)
            if g: e(f"ds_write_b128 v254, {vr(128+4*(g-1),4)} offset:{(g-1)*1024}")
        e(f"ds_write_b128 v254, {vr(156,4)} offset:{7*1024}")
        P.waitvm(('K', 1))
        e("s_waitcnt lgkmcnt(0)")
        stamp(P, cfg, 3)
        e("s_barrier")
    return F

def qfin(g):
    r = [f"v_mul_f32 v{128+8*g+i}, {sC}, v{128+8*g+i}" for i in range(8)]
    r += [f"v_cvt_pk_bf16_f32 v{128+4*g+i}, v{128+8*g+2*i}, v{129+8*g+2*i}" for i in (0, 2, 1, 3)] if g else \
         [f"v_cvt_pk_bf16_f32 v{128+i}, v{128+2*i}, v{129+2*i}" for i in range(4)]
    r += [f"v_permlane16_swap_b32 v{128+4*g}, v{130+4*g}", f"v_permlane16_swap_b32 v{129+4*g}, v{131+4*g}"]
    return r

BUFS = [224, 228, 232, 236, 240, 244, 252]
PAT = list(range(7)) + list(range(6)) + list(range(6)) + list(range(7)) + list(range(6))
LEAD = sched.LEAD
SA = [192, 200]; SB = 208; NEGM = 216; LR = [250, 251]
def fbuf(f): return BUFS[PAT[f % 32]]
def oacc(t, qt): return ((t >> 1) * 2 + qt) * 8 + (t & 1) * 4
def k_imm(f): return (f >> 3) * 8448 + ((f & 7) >> 1) * 256 + (f & 1) * 64
def k_read(P, f, slot): P.e(f"ds_read_b128 {vr(fbuf(f),4)}, v248 offset:{slot*SLOT + k_imm(f)}")
def v_read(P, f, slot):
    t = f - 16
    imm = slot * SLOT + (t >> 2) * 256 + (t & 3) * 32
    P.e(f"{TR} {vr(fbuf(f),2)}, v249 offset:{imm}")
    P.e(f"{TR} {vr(fbuf(f)+2,2)}, v249 offset:{imm + 8448}")

def sm_text(task, sa):
    if task[0] in ('exp', 'add'):
        _, blk, q, i = task
        r = (sa if blk == 'a' else SB) + 4 * q + i
        return f"v_exp_f32 v{r}, v{r}" if task[0] == 'exp' else f"v_add_f32 v{LR[q]}, v{LR[q]}, v{r}"
    _, q, k = task
    src = (sa if k < 2 else SB) + 4 * q + 2 * (k & 1)
    return f"v_cvt_pk_bf16_f32 v{sa+4*q+k}, v{src}, v{src+1}"

FIXED = WAITS = PLACE = None

def gen_iter(P, j, ctl=False, bar=16, lab='L_loop'):
    e = P.e
    cur = SA[j & 1]; nxt = SA[(j + 1) & 1]
    for g in range(64):
        f, qt = g >> 1, g & 1
        if CFG.snake & (1 if f < 16 else 2): qt ^= f & 1
        extra = set()
        for z in WAITS.get(g, []): extra |= regs_of(vr(fbuf(z), 4))
        if f < 16:
            acc = (nxt if f < 8 else SB) + 4 * qt
            c = (vr(NEGM + 4 * qt, 4) if not CFG.x & 16 else '0') if (f & 7) == 0 else vr(acc, 4)
            e(f"{MF} {vr(acc,4)}, {vr(fbuf(f),4)}, {vr(128 + ((f&7)*2+qt)*4,4)}, {c}", extra_rd=extra)
        else:
            a = oacc(f - 16, qt)
            e(f"{MF} {vr(a,4)}, {vr(fbuf(f),4)}, {vr(cur+4*qt,4)}, {vr(a,4)}", extra_rd=extra)
        if CFG.x & 32 and g in (41, 53): e(f"{MF} v[220:223], v[216:219], {vr(cur+4*qt,4)}, v[220:223]")
        late = []
        for it in FIXED[g]:
            if it[0] == 'read':
                n = it[1]
                if CFG.x & 4 and n % 2: continue
                if n < 16: k_read(P, n, (j + 1) & 3)
                elif n < 32: v_read(P, n, j & 3)
                else: k_read(P, n - 32, (j + 2) & 3)
            elif it[0] == 'ctl' and ctl: late.append(f"s_sub_u32 {sTRIP}, {sTRIP}, 1")
            elif it[0] == 'branch' and ctl: late.append(f"s_cbranch_scc0 {lab}")
        if g == bar: late.append("s_barrier")
        for t in PLACE.get(g + 64, []):
            if not (CFG.x & 2 and t[0] != 'cvt') and not (CFG.x & 8 and t[0] == 'add'): e(sm_text(t, cur))
        for t in PLACE.get(g, []):
            if not (CFG.x & 2 and t[0] != 'cvt') and not (CFG.x & 8 and t[0] == 'add'): e(sm_text(t, nxt))
        for t in late: e(t)

def xgroup(P, op, r, t):
    e = P.e
    e(f"v_mov_b32 {t}, {r}"); e(f"v_permlane16_swap_b32 {r}, {t}"); e(f"{op} {r}, {r}, {t}")
    e(f"v_mov_b32 {t}, {r}"); e(f"v_permlane32_swap_b32 {r}, {t}"); e(f"{op} {r}, {r}, {t}")

SR, SO, SF = SWQ, SWG, SWU
def msum(Q, acc, src):
    for h in range(16):
        for ee in range(2): Q.e(f"{MF} {vr(acc+4*ee,4)}, {vr(192+4*ee,4)}, {vr(src+4*h,4)}, {'0' if h == 0 else vr(acc+4*ee,4)}")
def silu8(Q, a):
    rnd8(Q, a, 224)
    for i in range(8): Q.e(f"v_mul_f32 v{224+i}, s73, v{a+i}")
    for i in range(8): Q.e(f"v_exp_f32 v{224+i}, v{224+i}")
    for i in range(8): Q.e(f"v_add_f32 v{224+i}, 1.0, v{224+i}")
    for i in range(8): Q.e(f"v_rcp_f32 v{224+i}, v{224+i}")
    for i in range(8): Q.e(f"v_mul_f32 v{a+i}, v{a+i}, v{224+i}")
    rnd8(Q, a, 224)
def fetch(P, cfg, r, dst, voff, between):
    e = P.e
    e(f"s_lshl_b32 s84, {sSUB}, 7"); e(f"s_mov_b32 {sT1}, 0"); e(f"s_mov_b32 {sTRIP}, {SPIN}")
    if cfg.hack & 64: stamp(P, cfg, 1, True)
    def onepass(nm):
        e(f"buffer_load_dword v253, v252, {SF}, s84 offen offset:{512*r} sc1"); e("s_waitcnt vmcnt(0)")
        e("v_cmp_le_u32 vcc, 1, v253")
        if cfg.fmode & 2: e("s_cmp_eq_u32 vcc_lo, -1"); e("s_cselect_b32 vcc_lo, -1, 0")
        e(f"s_andn2_b32 {sT2}, vcc_lo, {sT1}"); e(f"s_or_b32 {sT1}, {sT1}, vcc_lo")
        for h in range(16):
            e(f"s_bitcmp1_b32 {sT2}, {h}"); e(f"s_cbranch_scc0 {nm}_{h}")
            e(f"s_mov_b32 {sT3}, {h*1024 + r*4*STG}")
            e(f"buffer_load_dwordx4 {vr(dst+4*h,4)}, {voff}, {SR}, {sT3} offen sc1", tag='touch')
            if r == 0 and nm.startswith("L_fa") and h < cfg.pn: e(f"s_waitcnt vmcnt({cfg.pl})")
            e(f"{nm}_{h}:")
    onepass(f"L_fa{r}")
    if cfg.hack & 64: stamp(P, cfg, 2, True)
    between()
    e(f"s_cmp_eq_u32 {sT1}, -1"); e(f"s_cbranch_scc1 L_fd{r}")
    e(f"L_fl{r}:")
    onepass(f"L_fb{r}")
    e(f"s_cmp_eq_u32 {sT1}, -1"); e(f"s_cbranch_scc1 L_fd{r}")
    e(f"s_sleep {cfg.slp}")
    e(f"s_sub_u32 {sTRIP}, {sTRIP}, 1"); e(f"s_cbranch_scc0 L_fl{r}")
    e(f"L_fd{r}:")
    if cfg.hack & 64: stamp(P, cfg, 3, True)
def fin(P, cfg, r, src, xr):
    e = P.e; a = 208
    for d in range(4): e(f"v_lshlrev_b32 v{232+2*d}, 16, v{xr+d}"); e(f"v_and_b32 v{233+2*d}, {sHI}, v{xr+d}")
    e("s_waitcnt vmcnt(0)")
    if cfg.hack & 64: stamp(P, cfg, 4, True)
    msum(P, a, src)
    rnd8(P, a, 224)
    for i in range(8): e(f"v_mul_f32 v{a+i}, v{a+i}, v{200+i}")
    rnd8(P, a, 224)
    for i in range(8): e(f"v_add_f32 v{a+i}, v{a+i}, v{232+i}")
    for d in range(4): e(f"v_cvt_pk_bf16_f32 v{240+d}, v{a+2*d}, v{a+2*d+1}")
    e(f"buffer_store_dwordx4 v[240:243], v251, {SO}, s86 offen offset:{r*512}" + ["", " sc1", " nt", " sc0 sc1"][cfg.oflag])

def gen_compute(P, cfg, FC):
    e = P.e
    m0 = P.mark()
    gen_qproj(P, cfg, False, FC)
    stamp(P, cfg, 3)
    order = [f for kk in range(8) for f in (kk, 8 + kk)]
    items = [dict(mf=[((SA[0] if f < 8 else SB) + 4 * qt, 128 + ((f & 7) * 2 + qt) * 4, '0' if (f & 7) == 0 else None) for qt in range(2)],
                  reads=[("ds_read_b128", "v248", k_imm(f), 0, 4)]) for f in order]
    def start():
        for t in range(4): e(f"v_mov_b64 {vr(104+2*t,2)}, 0")
        for t in qfin(0) + qfin(1): e(t)
    def gap0(i, k):
        if i < 6:
            for t in qfin(i + 2): e(t)
            if i == 2: e("s_barrier")
            if i >= 2:
                for z in (2 * (i - 2), 2 * (i - 2) + 1): e(f"ds_read_b128 {vr(160+4*z,4)}, v254 offset:{z*1024}")
    stream(P, items, BUFS[:6], 6, gap0, group=2, start=start)
    e("s_waitcnt vmcnt(0)")
    for f in range(LEAD): k_read(P, f, 1)
    e(f"s_cmp_lg_u32 {sMODE}, 0"); e("s_cbranch_scc1 L_havem")
    mm = P.mark()
    for q in range(2):
        a, b, m = SA[0] + 4 * q, SB + 4 * q, NEGM + 4 * q
        e(f"v_max3_f32 v{m}, v{a}, v{a+1}, v{a+2}"); e(f"v_max3_f32 v{m}, v{m}, v{a+3}, v{b}"); e(f"v_max3_f32 v{m}, v{m}, v{b+1}, v{b+2}"); e(f"v_max_f32 v{m}, v{m}, v{b+3}")
    xgroup(P, "v_max_f32", f"v{NEGM}", f"v{NEGM+1}"); xgroup(P, "v_max_f32", f"v{NEGM+4}", f"v{NEGM+5}")
    for q in range(2):
        m = NEGM + 4 * q
        for i in (1, 2, 3, 0): e(f"v_sub_f32 v{m+i}, {f2u(-float(cfg.toff)) if cfg.toff else 0:#x}, v{m}")
    minit = P.since(mm)
    e("L_havem:")
    for q in range(2):
        for i in range(4):
            e(f"v_add_f32 v{SA[0]+4*q+i}, v{SA[0]+4*q+i}, v{NEGM+4*q}"); e(f"v_add_f32 v{SB+4*q+i}, v{SB+4*q+i}, v{NEGM+4*q}")
    e(f"v_mov_b32 v{LR[0]}, 0"); e(f"v_mov_b32 v{LR[1]}, 0")
    for g in range(18, 64):
        for t in PLACE[g]: e(sm_text(t, SA[0]))
    e(f"s_mov_b32 {sTRIP}, 15")
    if cfg.obias:
        for i in range(128): e(f"v_mov_b32 v{i}, {f2u(2.0 ** (cfg.obias - cfg.toff)):#x}")
    if cfg.x & 32:
        e("v_mbcnt_lo_u32_b32 v220, -1, 0"); e("v_mbcnt_hi_u32_b32 v220, -1, v220"); e("v_and_b32 v220, 15, v220"); e("v_mov_b32 v221, 0x3f803f80")
        e(f"v_cmp_gt_u32 vcc, {16 if cfg.x & 64 else 1}, v220")
        for i in range(4): e(f"v_cndmask_b32 v{216+i}, 0, v221, vcc")
        for i in range(4): e(f"v_mov_b32 v{220+i}, 0")
    stamp(P, cfg, 4)
    e("s_waitcnt lgkmcnt(0)")
    if cfg.vbit >= 0: e(f"s_bitcmp1_b32 {sSUB}, {cfg.vbit}"); e("s_cbranch_scc1 L_itb0")
    e("s_branch L_it0")
    pro = P.since(m0)
    itb = {}
    if cfg.vbit >= 0:
        e(".p2align 6")
        e("L_loopb:")
        for j in (3, 0, 1, 2):
            if j == 0: e("L_itb0:")
            m = P.mark(); gen_iter(P, j, ctl=(j == 2), bar=cfg.barb, lab='L_loopb'); itb[j] = P.since(m)
        e("s_branch L_tail")
    e(".p2align 6")
    e("L_loop:")
    its = {}
    for j in (3, 0, 1, 2):
        if j == 0: e("L_it0:")
        m = P.mark(); gen_iter(P, j, ctl=(j == 2), bar=cfg.bara); its[j] = P.since(m)
    m1 = P.mark()
    e('L_tail:')
    stamp(P, cfg, 5)
    cur = SA[1]
    e("s_barrier")
    for f in range(16, 16 + LEAD): v_read(P, f, 3)
    for g in range(64, 82):
        for t in PLACE[g]: e(sm_text(t, cur))
    post_ops = []
    Q = Prog()
    xgroup(Q, "v_add_f32", f"v{LR[0]}", "v208"); xgroup(Q, "v_add_f32", f"v{LR[1]}", "v209")
    Q.e(f"v_max_f32 v208, v{LR[0]}, v{LR[1]}"); Q.e(f"v_add_f32 v209, v{LR[0]}, v{LR[1]}")
    Q.e(f"v_rcp_f32 v{LR[0]}, v{LR[0]}"); Q.e(f"v_rcp_f32 v{LR[1]}, v{LR[1]}")
    Q.e("v_mbcnt_lo_u32_b32 v210, -1, 0"); Q.e("v_mbcnt_hi_u32_b32 v210, -1, v210")
    Q.e("v_lshrrev_b32 v211, 4, v210"); Q.e("v_bfe_u32 v212, v210, 2, 2"); Q.e("v_and_b32 v213, 3, v210")
    Q.e("v_lshrrev_b32 v212, 2, v210"); Q.e("v_lshlrev_b32 v192, 7, v212"); Q.e("v_lshl_add_u32 v192, v213, 3, v192")
    Q.e("v_bfe_u32 v212, v210, 3, 2"); Q.e("v_lshl_add_u32 v192, v212, 5, v192")
    for ee in (1, 2, 3): Q.e(f"v_xor_b32 v{192+ee}, {32*ee}, v192")
    for ee in range(4): Q.e(f"v_add_u32 v{196+ee}, {6*SLOT}, v{192+ee}")
    Q.e("v_lshlrev_b32 v248, 4, v210")
    Q.e(f"v_mov_b32 v214, {FLAG}"); Q.e("v_mov_b32 v215, 1")
    rest = Q.L
    for g in range(32, 64):
        f, qt = g >> 1, g & 1
        extra = set()
        for z in WAITS.get(g, []):
            if 16 <= z < 32: extra |= regs_of(vr(fbuf(z), 4))
        a = oacc(f - 16, qt)
        e(f"{MF} {vr(a,4)}, {vr(fbuf(f),4)}, {vr(cur+4*qt,4)}, {vr(a,4)}", extra_rd=extra)
        if qt == 1 and f + LEAD < 32: v_read(P, f + LEAD, 3)
        else:
            for _ in range(2):
                if rest: P.L.append(rest.pop(0))
    P.L.extend(rest)
    e(f"v_cmp_ngt_f32 vcc, {f2u(cfg.thr):#x}, v209")
    e("s_cbranch_vccz L_noflag")
    e("ds_write_b32 v214, v215")
    e("s_waitcnt lgkmcnt(0)")
    e("L_noflag:")
    e("s_barrier")
    e("ds_read_b32 v215, v214")
    def onorm(g):
        return [f"v_mul_f32 v{8*g+i}, v{8*g+i}, v{LR[g & 1]}" for i in range(8)] + [f"v_cvt_pk_bf16_f32 v{4*g+i}, v{8*g+2*i}, v{8*g+2*i+1}" for i in range(4)]
    items = []
    F = Filler(P)
    def ehook(t):
        def h():
            if cfg.hack & 32 and t % 2 == 0: e(f"s_memtime s[{48+t}:{49+t}]")
            if t in (2, 3, 4, 5, 6, cfg.lastb): e("s_barrier")
        return h
    def acc_o(s, ee, qt): return (64 if s & 1 else 128) + ((ee >> 1) * 2 + qt) * 8 + (ee & 1) * 4
    for t in range(14):
        sl = WO_SLOT[t]; so = (sl % 3) * SLOT; s, hf = t >> 1, t & 1
        for k4 in range(4):
            for ee in range(4):
                base = f"v{[192, 200, 196][sl // 3] + ee}"
                imm = so + k4 * 4096; kk = 4 * hf + k4
                items.append(dict(mf=[(acc_o(s, ee, qt), (kk * 2 + qt) * 4, '0' if kk == 0 else None) for qt in range(2)],
                                  reads=tr_reads(base, imm, imm + 2048),
                                  hook=ehook(t) if (t > 0 and k4 == 0 and ee == 0) else None))
    def cv(s, u, hf):
        o = 160 + 16 * (s & 1) + 4 * u + 2 * hf; a = acc_o(s, 0, 0) + 8 * u + 4 * hf
        F.add(f"v_cvt_pk_bf16_f32 v{o}, v{a}, v{a+1}", f"v_cvt_pk_bf16_f32 v{o+1}, v{a+2}, v{a+3}")
    def sto(s, u):
        o = 160 + 16 * (s & 1) + 4 * u
        F.add(f"s_mov_b32 {sT0}, {s*STG + u*16384}", f"buffer_store_dwordx4 {vr(o,4)}, v248, {SP}, {sT0} offen sc1", tag=('S', s))
    def publish(r):
        F.add((('S', r),), "s_mov_b64 exec, 1", f"global_store_dword v249, v254, s[100:101] offset:{128*r} sc1", "s_mov_b64 exec, -1", tag='fl')
    nrm = [t for g in range(2, 16) for t in onorm(g)]
    def start():
        for ee in range(4): e(f"v_add_u32 v{200+ee}, {3*SLOT}, v{192+ee}")
        e("v_mov_b32 v249, 0"); e("v_mov_b32 v254, 1"); e("v_add_u32 v204, s85, v248"); e("v_add_u32 v205, s90, v248")
        for t in onorm(0) + onorm(1): e(t)
        e("v_readfirstlane_b32 s7, v215")
        e(f"s_andn2_b32 s7, s7, {sMODE}"); e("s_cbranch_scc1 L_maxpass")
        stamp(P, cfg, 6)
        if cfg.hack & 32: stamp(P, cfg, 1)
        if cfg.hack & 64: stamp(P, cfg, 12, True)
    def gap(i, k):
        s, r = divmod(i, 32)
        if k: return
        for _ in range(6):
            if nrm: e(nrm.pop(0))
        if s >= 1:
            u, z = divmod(r, cfg.ssp)
            if u < 4:
                if z == 0: cv(s - 1, u, 0)
                if z == 1: cv(s - 1, u, 1)
                if z == 2: sto(s - 1, u)
        if s >= 2 and r == cfg.pubr and not cfg.fmode & 1: publish(s - 2)
        if i == cfg.xat: e('s_barrier')
        F.flush()
    stream(P, items, [216 + 4 * i for i in range(8)], 7, gap, group=4, start=start)
    if cfg.hack & 32: e('s_memtime s[62:63]'); e('s_waitcnt lgkmcnt(0)'); dump_stamps(P); e('s_endpgm')
    st = (lambda i: None) if cfg.hack & 16 else (lambda i: stamp(P, cfg, i, bool(cfg.hack & 64)))
    st(13)
    for u in range(4): cv(6, u, 0); cv(6, u, 1); sto(6, u)
    F.flush()
    if cfg.xat >= 224: e("s_barrier")
    st(14)
    for k, r0 in enumerate((192, 196, 244, 250)): e(f"ds_read_b128 {vr(r0,4)}, v205 offset:{k*1024}")
    for h in range(16): e(f"ds_read_b128 {vr(64+4*h,4)}, v204 offset:{h*1024}")
    if not cfg.fmode & 1: publish(5); F.flush()
    msum(P, 200, 64)
    st(15)
    if cfg.fmode & 1:
        e("v_lshlrev_b32 v249, 3, v248"); P.waitvm(('S', 6))
        e("s_mov_b64 exec, 0x7f"); e("global_store_dword v249, v254, s[100:101] sc1"); e("s_mov_b64 exec, -1")
    else: publish(6); F.flush()
    if cfg.hack & 64: stamp(P, cfg, 9, True)
    e(f"s_cmp_eq_u32 {sSUB}, 3"); e("s_cbranch_scc1 L_cdone")
    cslow = []
    fetch(P, cfg, 1, 0, "v248", lambda: silu8(P, 200))
    fin(P, cfg, 1, 0, 244)
    e("L_cdone:")
    if cfg.stamps:
        stamp(P, cfg, 7); e("s_waitcnt vmcnt(0)"); stamp(P, cfg, 8); stamp(P, cfg, 11, True); dump_stamps(P)
    e("s_endpgm")
    post = [x for x in P.since(m1) if not any(x is y for y in cslow)]
    m2 = P.mark()
    e("L_maxpass:")
    e("s_waitcnt vmcnt(0) lgkmcnt(0)")
    e("v_and_b32 v0, 15, v210"); e("v_lshlrev_b32 v0, 9, v0"); e("v_and_b32 v1, 1, v211"); e("v_lshl_add_u32 v0, v1, 5, v0")
    e("v_lshrrev_b32 v1, 1, v211"); e("v_lshl_add_u32 v0, v1, 4, v0")
    e(f"v_mov_b32 v{NEGM}, 0xff800000"); e(f"v_mov_b32 v{NEGM+4}, 0xff800000")
    e(f"s_mov_b32 {sT0}, 0")
    e("L_mp_loop:")
    for kk in range(8): e(f"buffer_load_dwordx4 {vr(16+4*kk,4)}, v0, {SK}, {sT0} offen offset:{kk*64}")
    e("s_waitcnt vmcnt(0)")
    for kk in range(8):
        for qt in range(2): e(f"{MF} {vr(8+4*qt,4)}, {vr(16+4*kk,4)}, {vr(128+(kk*2+qt)*4,4)}, {'0' if kk == 0 else vr(8+4*qt,4)}")
    e("s_nop 15")
    for qt in range(2):
        m = NEGM + 4 * qt; a = 8 + 4 * qt
        e(f"v_max3_f32 v{m}, v{m}, v{a}, v{a+1}"); e(f"v_max3_f32 v{m}, v{m}, v{a+2}, v{a+3}")
    e(f"s_add_u32 {sT0}, {sT0}, 8192"); e(f"s_cmp_lt_u32 {sT0}, {1<<20}"); e("s_cbranch_scc1 L_mp_loop")
    xgroup(P, "v_max_f32", f"v{NEGM}", f"v{NEGM+1}"); xgroup(P, "v_max_f32", f"v{NEGM+4}", f"v{NEGM+5}")
    for q in range(2):
        m = NEGM + 4 * q
        for i in (1, 2, 3, 0): e(f"v_sub_f32 v{m+i}, {f2u(-float(cfg.toff)) if cfg.toff else 0:#x}, v{m}")
    e("L_again:")
    e("s_waitcnt vmcnt(0) lgkmcnt(0)")
    e("v_mbcnt_lo_u32_b32 v0, -1, 0"); e("v_mbcnt_hi_u32_b32 v0, -1, v0"); e(f"s_lshl_b32 s7, {sWV}, 6"); e("v_add_u32 v0, s7, v0")
    e(f"s_mov_b32 {sMODE}, 1"); e("s_setprio 0")
    e("s_barrier")
    e("s_branch L_restart")
    mp = P.since(m2)
    body = its[0] + its[1] + its[2] + its[3]
    trace = pro + body * 2 + its[0] + its[1] + its[2] + post
    skip = set(id(x) for x in minit)
    trace2 = [x for x in pro if id(x) not in skip] + body
    extra = []
    if itb:
        bb = itb[0] + itb[1] + itb[2] + itb[3]
        extra = [pro + bb * 2 + itb[0] + itb[1] + itb[2] + post]
    return [trace, trace2] + extra, [mp, cslow]

def poll(P, name, load, cmp, pre_issued=False):
    e = P.e
    if not pre_issued: e(load)
    e(cmp); e("s_cmp_eq_u64 vcc, -1"); e(f"s_cbranch_scc1 {name}_ok")
    m = P.mark()
    e(f"s_mov_b32 s7, {SPIN}")
    e(f"{name}_lp:")
    e(f"s_sleep {CFG.slp}")
    e(load, tag='opt'); e("s_waitcnt vmcnt(0)")
    e(cmp); e("s_cmp_eq_u64 vcc, -1"); e(f"s_cbranch_scc1 {name}_ok")
    e("s_sub_u32 s7, s7, 1"); e(f"s_cbranch_scc0 {name}_lp")
    slow = P.since(m)
    e(f"{name}_ok:")
    return slow

def rnd8(P, r, t):
    for d in range(4): P.e(f"v_cvt_pk_bf16_f32 v{t+d}, v{r+2*d}, v{r+2*d+1}")
    for d in range(4): P.e(f"v_lshlrev_b32 v{r+2*d}, 16, v{t+d}"); P.e(f"v_and_b32 v{r+2*d+1}, {sHI}, v{t+d}")

def gen_helper(P, cfg, FH):
    e = P.e
    m0 = P.mark()
    e("L_helper:")
    e("s_setprio 2")
    F = gen_qproj(P, cfg, True, FH)
    dma_kv(F, 'V', 1, 5); dma_kv(F, 'K', 3, 3); dma_kv(F, 'V', 2, 6); F.flush()
    e(f"s_mov_b32 s73, {f2u(-LOG2E):#x}")
    lo, hi = cfg.plo, cfg.phi
    if lo != 2: e(f"s_setprio {lo}")
    P.waitvm(('V', 0), ('K', 2))
    e("s_barrier")
    GU0 = 3; ACT0 = GU0 + 28; NACT = cfg.nact; DN0 = ACT0 + NACT
    GPUB = [DN0 + 10, DN0 + 16]; GPOLL = [DN0 + 12, DN0 + 21]; GSRC = [112, 0]; GSET = DN0 + 2; GSET2 = DN0 + 15
    slows = []
    ntr = [cfg.ktr]
    def acc_g(m, ee, mat, qt): return 112 + 32 * (m & 1) + (ee * 2 + qt) * 8 + mat * 4
    def act(m):
        L = []
        for ee in range(2):
            regs = [acc_g(m, ee, 0, qt) + i for qt in range(2) for i in range(4)]
            for r in regs: L.append(f"v_mul_f32 v{r}, s73, v{r}")
            for r in regs: L.append(f"v_exp_f32 v{r}, v{r}")
            for r in regs: L.append(f"v_add_f32 v{r}, 1.0, v{r}")
            for r in regs: L.append(f"v_rcp_f32 v{r}, v{r}")
            for r in regs: L.append(f"v_mul_f32 v{r}, v{r}, v{r+4}")
            for qt in range(2):
                a = acc_g(m, ee, 0, qt); d = 208 + (m * 2 + qt) * 4 + ee * 2
                L.append(f"v_cvt_pk_bf16_f32 v{d}, v{a}, v{a+1}"); L.append(f"v_cvt_pk_bf16_f32 v{d+1}, v{a+2}, v{a+3}")
        return L
    def split(L, n):
        cost = [2 if t.startswith(('v_exp', 'v_rcp')) else 1 for t in L]; tot = sum(cost); parts = [[] for _ in range(n)]; acc = 0
        for t, c in zip(L, cost):
            parts[min(n - 1, acc * n // tot)].append(t); acc += c
        return parts
    def acc_d(nt, ee, qt): return 48 + 16 * (nt & 1) + (qt * 2 + ee) * 4
    def out_cv(nt):
        o = 80 + 8 * (nt & 1)
        return [f"v_cvt_pk_bf16_f32 v{o+4*qt+i}, v{acc_d(nt, 0, qt)+2*i}, v{acc_d(nt, 0, qt)+2*i+1}" for qt in range(2) for i in range(4)]
    def out_st(nt):
        o = 80 + 8 * (nt & 1)
        e(f"s_mov_b32 {sT3}, {(nt>>1)*STG + (nt&1)*32768}"); e(f"buffer_store_dwordx4 {vr(o,4)}, v249, {SP}, {sT3} offen sc1", tag=('st', nt // 8))
        e(f"s_addk_i32 {sT3}, 16384"); e(f"buffer_store_dwordx4 {vr(o+4,4)}, v249, {SP}, {sT3} offen sc1", tag=('st', nt // 8))
    def chunk_mf(c, i):
        b, ee = i >> 1, i & 1
        if c < 28:
            m, s = divmod(c, 7); T = 2 * s + (b >> 1)
            return [(acc_g(m, ee, b & 1, qt), (2 * T + qt) * 4, T == 0) for qt in range(2)]
        return [(acc_d(c - 28, ee, qt), 208 + (b * 2 + qt) * 4, b == 0) for qt in range(2)]
    def rd(c, i):
        imm = (c % 3) * GLUS + (i >> 1) * 2048
        e(f"{TR} {vr(176+4*i,2)}, v{246+(i&1)} offset:{imm}"); e(f"{TR} {vr(178+4*i,2)}, v{246+(i&1)} offset:{imm+1024}")
    small_only = []; big_only = []
    def burst(c, nxt, fill, skip_from=8):
        fill = list(fill)
        if hi != lo: e(f"s_setprio {hi}")
        for i in range(8):
            if i == skip_from:
                for t in fill: e(t)
                fill = []
                e("s_cmp_lg_u32 s99, 0"); e(f"s_cbranch_scc1 L_bs{c}"); mk = P.mark()
            for k, (acc, bb, z) in enumerate(chunk_mf(c, i)[::-1] if (cfg.snake & 4 and i & 1) else chunk_mf(c, i)):
                e(f"{MF} {vr(acc,4)}, {vr(176+4*i,4)}, {vr(bb,4)}, {'0' if z else vr(acc,4)}")
                if k == 0:
                    room = 2
                    while fill and room > 0:
                        cst = 2 if fill[0].startswith(('v_exp', 'v_rcp')) else 1
                        if cst > room: break
                        e(fill.pop(0)); room -= cst
            if nxt is not None: rd(nxt, i)
        if skip_from < 8:
            big_only.extend(P.since(mk)); e(f"L_bs{c}:")
        if hi != lo: e(f"s_setprio {lo}")
        for t in fill: e(t)
    for j in range(64):
        if j in (3, ACT0, DN0, DN0 + 14, 62): stamp(P, cfg, {3: 4, ACT0: 5, DN0: 6, DN0 + 14: 7, 62: 8}[j])
        if j in (3, ACT0) and not cfg.hack & 16: stamp(P, cfg, {3: 1, ACT0: 2}[j], True)
        if j == GSET + 1: e("global_load_dword v253, v252, s[68:69] sc1")
        if j in GPOLL: e(f"buffer_load_dword v253, v252, {SF}, s84 offen offset:{128*GPOLL.index(j)} sc1")
        if j + 4 < 64 and not cfg.x & 1: dma_kv(F, 'K', j + 4, j & 3)
        if j == 21: F.add('s_cmp_lg_u32 s99, 0', f's_cselect_b32 s{srd(5)+2}, 0, s{srd(5)+2}')
        if j < 28: dma_gu(F, j)
        if 0 <= j + 3 - DN0 < 14: dma_wd(F, 28 + j + 3 - DN0, j + 3 - DN0)
        if j + 3 < 64 and not (cfg.x & 1 and j): dma_kv(F, 'V', j + 3, 4 + ((j + 3) & 3))
        for nt in {59: [0], 60: [1], 61: [2, 3], 62: [4, 5], 63: [6, 7]}.get(j, []): dma_wo(F, nt, WO_SLOT[nt])
        if cfg.touch:
            if cfg.ltouch and j % cfg.tper == 0 and ntr[0] < min(16, j // 4 + cfg.klead + 1):
                ntr[0] += 1
                F.add(f"s_add_u32 {sT3}, s89, {(ntr[0]-1)*65536}", f"buffer_load_dword v244, v243, {ST}, {sT3} offen", tag='touch')
            if j == 10:
                F.add(f"s_mul_i32 {sT3}, {sSH}, 7168", f"s_add_u32 {sT3}, {sT3}, s88", f"s_lshl_b32 {sT3}, {sT3}, {cfg.hx-1}", f"buffer_load_dword v244, v243, {SWD}, {sT3} offen", tag='touch')
            if j in (cfg.wot, cfg.wot + 2, cfg.wot2, cfg.wot2 + 2):
                F.add(f"s_mul_i32 {sT3}, {sSH}, 14336", f"s_add_u32 {sT3}, {sT3}, s88", f"s_add_u32 {sT3}, {sT3}, {0 if j in (cfg.wot, cfg.wot2) else 8192}", f"s_lshl_b32 {sT3}, {sT3}, {cfg.hx-1}", f"buffer_load_dword v244, v243, {SWO}, {sT3} offen", tag='touch')
        if j == GU0 - 1:
            for i in range(8): rd(0, i)
        if GU0 <= j < ACT0:
            c = j - GU0; m, s = divmod(c, 7)
            fill = split(act(m - 1), 7)[s] if m else []
            if m == 3:
                e("s_cmp_lg_u32 s99, 0"); e(f"s_cbranch_scc0 L_bg{c}")
                mk = P.mark()
                for t in fill: e(t)
                e(f"s_branch L_be{c}")
                small_only.extend(P.since(mk))
                e(f"L_bg{c}:"); mk = P.mark()
            burst(c, c + 1 if c < 27 else None, fill)
            if m == 3: big_only.extend(P.since(mk)); e(f"L_be{c}:")
        if DN0 <= j < DN0 + 14:
            nt = j - DN0
            burst(28 + nt, 29 + nt if nt < 13 else None, out_cv(nt - 1) if nt else [], skip_from=6)
        if j == DN0 + 14:
            for t in out_cv(13): e(t)
        if ACT0 <= j < DN0:
            F.flush()
            e("s_cmp_lg_u32 s99, 0"); e(f"s_cbranch_scc1 L_as{j}"); mk = P.mark()
            for t in split(act(3), NACT)[j - ACT0]: e(t)
            big_only.extend(P.since(mk)); e(f"L_as{j}:")
            if j == DN0 - 1:
                for i in range(8): rd(28, i)
        if j == GSET:
            for t in final_salu(): e(t)
            e(f"s_lshl_b32 s7, {sQB}, 4"); e("v_mov_b32 v252, s7")
        if j == GSET2:
            F.emit(4)
            e("v_and_b32 v176, 15, v255"); e("v_lshrrev_b32 v177, 4, v255")
            e("v_mul_u32_u24 v251, 896, v176"); e("v_lshl_add_u32 v251, v177, 4, v251")
            e("v_lshrrev_b32 v178, 3, v255"); e("v_lshlrev_b32 v179, 1, v177"); e("v_and_b32 v180, 7, v255"); e("v_xor_b32 v179, v179, v180")
            e("v_mul_u32_u24 v248, 896, v178"); e("v_lshl_add_u32 v248, v179, 4, v248")
            e("v_bfe_u32 v178, v176, 2, 1"); e("v_lshlrev_b32 v178, 3, v178")
            e("v_lshrrev_b32 v179, 3, v176"); e("v_lshl_add_u32 v178, v179, 1, v178")
            e("v_bfe_u32 v179, v176, 1, 1"); e("v_add_u32 v178, v178, v179")
            e("v_lshlrev_b32 v179, 2, v177"); e("v_sub_u32 v178, v178, v179")
            e("v_and_b32 v179, 1, v176"); e("v_lshlrev_b32 v179, 4, v179"); e("v_mov_b32 v180, 0x3f80"); e("v_lshlrev_b32 v179, v179, v180")
            for ee in range(2):
                for i in range(4):
                    e(f"v_cmp_eq_u32 vcc, {i - 4 * ee}, v178"); e(f"v_cndmask_b32 v{192+4*ee+i}, 0, v179, vcc")
        F.flush()
        if DN0 + 1 <= j <= DN0 + 14: out_st(j - DN0 - 1)
        if j == GSET2 + 2:
            for r in range(2): e(f"buffer_load_dwordx4 {vr(216+4*r,4)}, v251, {SX}, s86 offen offset:{r*512}")
            if cfg.otouch: e(f"buffer_load_dword v244, off, {SO}, s86", tag='touch')
        if j in GPUB:
            r = GPUB.index(j)
            e("v_mov_b32 v96, 0"); e(f"v_mov_b32 v97, 1"); P.waitvm(('st', r))
            e("s_mov_b64 exec, 1"); e(f"global_store_dword v96, v97, s[100:101] offset:{128*r} sc1", tag='fl'); e("s_mov_b64 exec, -1")
        if j == GSET + 1:
            slows.append(poll(P, "L_pa", "global_load_dword v253, v252, s[68:69] sc1", "v_cmp_le_u32 vcc, 16, v253", True))
            e("v_and_b32 v252, 15, v255"); e("v_lshlrev_b32 v252, 2, v252")
        if j in GPOLL:
            r = GPOLL.index(j)
            slows.append(poll(P, f"L_pg{r}", f"buffer_load_dword v253, v252, {SF}, s84 offen offset:{128*r} sc1", "v_cmp_le_u32 vcc, 1, v253", True))
        for r in range(2):
            k = j - GPOLL[r] - 1
            if 0 <= k < 8:
                for h in (2 * k, 2 * k + 1):
                    e(f"s_mov_b32 {sT3}, {GP_OFF + h*1024 + r*4*STG}")
                    e(f"buffer_load_dwordx4 {vr(GSRC[r]+4*h,4)}, v249, {SR}, {sT3} offen sc1")
        if j == cfg.pe: stamp(P, cfg, 13)
        if j < 63:
            need = [('K', j + 3), ('V', j + 1), ('G', j - 1)]
            if 0 <= j + 2 - DN0 < 14: need.append(('G', 28 + j + 2 - DN0))
        else:
            need = [('WO', 0), ('WO', 1)]
            e(f"v_mov_b32 v176, {FLAG}")
        P.waitvm(*need)
        if GU0 - 1 <= j < DN0 + 13: e("s_waitcnt lgkmcnt(0)")
        if j == cfg.pe: stamp(P, cfg, 14)
        e("s_barrier")
        if j == cfg.pe - 1: stamp(P, cfg, 9)
        if j == cfg.pe: stamp(P, cfg, 15)
    e("ds_read_b32 v177, v176")
    for k in range(6):
        if cfg.hack & 32 and k >= 2: stamp(P, cfg, 1 + 3 * (k - 2))
        dma_wo(F, 8 + k, WO_SLOT[8 + k]); F.flush()
        if cfg.hack & 32 and k >= 2: stamp(P, cfg, 2 + 3 * (k - 2))
        if k == 0:
            e("v_readfirstlane_b32 s7, v177")
            e(f"s_andn2_b32 s7, s7, {sMODE}"); e("s_cbranch_scc1 L_again")
        P.waitvm(*[('WO', t) for t in ([k + 2] if k < 4 else range(6, cfg.lastb) if k == 4 else range(cfg.lastb, 14))])
        if cfg.hack & 32 and k >= 2: stamp(P, cfg, 3 + 3 * (k - 2))
        e("s_barrier")
    if cfg.hack & 32: stamp(P, cfg, 13); dump_stamps(P); e("s_endpgm")
    e(f"s_setprio {cfg.pep}")
    if cfg.hack & 4: e("s_branch L_hdone")
    e(f"s_cmp_eq_u32 {sSUB}, 3"); e("s_cbranch_scc1 L_hskip")
    for t in xch_salu(): e(t)
    e("v_add_u32 v176, s85, v249"); e("v_add_u32 v177, s90, v249"); e("v_mov_b32 v250, v249")
    for h in range(16): e(f"ds_write_b128 v176, {vr(4*h,4)} offset:{h*1024}")
    for k, r0 in enumerate((192, 196, 220, 250)): e(f"ds_write_b128 v177, {vr(r0,4)} offset:{k*1024}")
    e("L_hskip:")
    e("s_waitcnt vmcnt(0) lgkmcnt(0)")
    e("s_barrier")
    fetch(P, cfg, 0, 0, "v249", lambda: (msum(P, 200, 112), silu8(P, 200)))
    fin(P, cfg, 0, 0, 216)
    e("L_hdone:")
    if cfg.stamps:
        e("s_waitcnt vmcnt(0)"); stamp(P, cfg, 11, True); dump_stamps(P)
    e("s_endpgm")
    sk = set(id(x) for s in slows for x in s)
    allh = [x for x in P.since(m0) if id(x) not in sk]
    so = set(map(id, small_only)); bo = set(map(id, big_only))
    return [[x for x in allh if id(x) not in so], [x for x in allh if id(x) not in bo]], slows

def kd(name, vgpr, ydim=False):
    return "\n".join([f".amdhsa_kernel {name}", f"  .amdhsa_next_free_vgpr {vgpr}", "  .amdhsa_next_free_sgpr 102",
        f"  .amdhsa_accum_offset {vgpr}", "  .amdhsa_group_segment_fixed_size 0", "  .amdhsa_kernarg_size 96",
        "  .amdhsa_user_sgpr_count 2", "  .amdhsa_user_sgpr_kernarg_segment_ptr 1", "  .amdhsa_system_sgpr_workgroup_id_x 1"]
        + (["  .amdhsa_system_sgpr_workgroup_id_y 1"] if ydim else []) + [".end_amdhsa_kernel"])

def generate(cfg=None):
    cfg = cfg or Cfg()
    global FIXED, WAITS, PLACE, CFG
    CFG = cfg
    FIXED, WAITS, PLACE = sched.plan(wait_group=cfg.wg)
    P = Prog()
    K1 = NAME + "_kernel"
    P.e(".p2align 8"); P.e(f"{K1}:")
    m = P.mark(); gen_entry(P, cfg); entry = P.since(m)
    m = P.mark(); FC = gen_setup(P, cfg, False); P.e("s_branch L_ln"); cs = P.since(m)
    P.e("L_hs:")
    m = P.mark(); FH = gen_setup(P, cfg, True); hs = P.since(m)
    P.e("L_ln:")
    m = P.mark(); gen_ln(P, cfg); ln = P.since(m)
    ctraces, other = gen_compute(P, cfg, FC)
    htrace, hother = gen_helper(P, cfg, FH)
    ctraces = [cs + ln + t for t in ctraces]; htrace = [hs + ln + t for t in htrace]
    P.e("L_end:"); P.e("s_endpgm")
    P.e("L_code_end:")
    full = [entry + t for t in ctraces] + [entry + t for t in htrace]
    resolve(full + [[x for x in t if x.tag != 'opt'] for t in full] + other + hother)
    nb = lambda t: sum(1 for x in t if x.kind != 'none' and x.op == 's_barrier')
    print("barriers compute", nb(ctraces[0]) + 13 * 4, "helper", nb(htrace[0]), nb(htrace[1]))
    if cfg.hack & 2:
        for I in P.L:
            if I.text.startswith("buffer_store_dwordx4"): I.text = I.text.replace(" sc1", "")
    if cfg.hack & 8:
        for I in P.L:
            if I.text.startswith("buffer_store_dwordx4"): I.text = I.text.replace(" sc1", " sc0 sc1")
    if cfg.dflag:
        fl = {1: "nt", 2: "sc1", 3: "sc0", 4: "sc0 sc1", 5: "sc0 nt", 6: "sc1 nt"}[cfg.dflag]
        for I in P.L:
            if I.text.endswith(" lds") and I.tag and I.tag[0] in ('K', 'V', 'G', 'WQ', 'WO'): I.text = I.text[:-4] + f" {fl} lds"
    out = expand(P.L)
    mis = align8(out) if cfg.al else -1
    head = [f"; @launch grid=(256,1,1) block=(512,1,1) lds={LDS_BYTES}",
            '.amdgcn_target "amdgcn-amd-amdhsa--gfx950"', ".text",
            f".globl {K1}", f".type {K1},@function"]
    span = 0
    for I in out:
        if I.text == "L_code_end:": break
        if I.text.startswith(".p2align"):
            a = 1 << int(I.text.split()[1]); span = -(-span // a) * a
        span += I.size()
    body = [I.text.replace("CODE_SPAN", str((span - 128) & ~3)) for I in out]
    print("code bytes K1", span)
    tail = ['.section .rodata,"a"', ".p2align 6", kd(K1, 256)]
    return "\n".join(head + body + tail) + "\n", mis

if __name__ == "__main__":
    cfg = Cfg()
    for a in sys.argv[2:]:
        k, v = a.split('='); setattr(cfg, k, float(v) if k == 'thr' else int(v))
    s, mis = generate(cfg)
    open(sys.argv[1], "w").write(s)
    print("bytes", len(s), "lines", s.count("\n"), "misaligned", mis)
```

```python
import struct, sys
from asmlib import *
import sched

NAME = "recurrent_scan__mha_block_cached__glu_gated_glu__prompt"
def f2u(x): return struct.unpack('<I', struct.pack('<f', x))[0]
LOG2E = 1.4426950408889634
SLOT = 16896
GLUB = 8 * SLOT
GLUS = 8192
FLAG = GLUB - 32
LDS_BYTES = 163840
GP_OFF = 0x2000000
STG = 262144
FL_OFF = 0x4000000
SPIN = 400000

sHEAD, sQB, sWV, sSUB = 's3', 's4', 's5', 's6'
SX, SK, SV, SWQ, SWO, SWG, SWU, SWD, SP, ST = [f"s[{8+4*i}:{11+4*i}]" for i in range(10)]
sC = 's72'; sHI = 's74'; sTRIP = 's75'
sLK, sLV, sL1K = 's76', 's77', 's78'
sMODE = 's79'
sSH = 's91'
sT0, sT1, sT2, sT3 = 's80', 's81', 's82', 's83'
sKO, sVO = 's96', 's97'
def srd(i): return 8 + 4 * i
def vr(a, n): return f"v[{a}:{a+n-1}]"
MF = "v_mfma_f32_16x16x32_bf16"
TR = "ds_read_b64_tr_b16"

class Cfg:
    glu = 1
    touch = 1
    prio = 2
    stamps = 0
    thr = 2.0 ** 64
    wq_at = 33
    xpar = 0
    pe = 20
    hack = 0
    plo = 0
    hx = 1
    t_at = 28
    ktr = 3
    klead = 16
    gtouch = 1
    tq0 = 8
    phi = 2
    nact = 2
    flip = 0
    x = 0
    snake = 7
    lnpk = 3
    pre2 = 0
    xrot = 1
    stouch = 0
    tlb = 0
    q0e = 4
    qprio = 2
    al = 1
    fmode = 0
    pn = 0
    toff = 0
    obias = 0
    wot2 = 27
    wsoff = 0
    tper = 2
    oflag = 1
    otouch = 0
    dflag = 0
    vbit = -1
    bara = 15
    barb = 15
    pep = 0
    pd = 2
    lastb = 9
    pubr = 13
    ctop = 1
    xat = 224
    ssp = 4
    fo = 1
    sn = -1
    wot = 57
    pl = 4
    slp = 8
    wg = 3
    ltouch = 1
    etouch = 1

def stream(P, items, bufs, lead, gapfill=None, group=2, start=None):
    n = len(items)
    buf = [bufs[i % len(bufs)] for i in range(n)]
    def reads(i):
        it = items[i]
        if it.get('hook'): it['hook']()
        for (op, addr, imm, sub, w) in it['reads']:
            P.e(f"{op} {vr(buf[i]+sub, w)}, {addr} offset:{imm}")
    for i in range(min(lead, n)): reads(i)
    if start: start()
    for i in range(n):
        it = items[i]
        for k, (acc, b, c) in enumerate(it['mf'][::-1] if (CFG.snake & 4 and i & 1) else it['mf']):
            extra = set()
            if group and k == len(it['mf']) - 1 and (i + 1) % group == 0:
                for z in range(1, group + 1):
                    if i + z < n: extra |= regs_of(vr(buf[i+z], 4))
            P.e(f"{MF} {vr(acc,4)}, {vr(buf[i],4)}, {vr(b,4)}, {c if c is not None else vr(acc,4)}", extra_rd=extra)
            if k == len(it['mf']) - 1 and i + lead < n: reads(i + lead)
            elif gapfill: gapfill(i, k)

def tr_reads(addr, imm0, imm1): return [(TR, addr, imm0, 0, 2), (TR, addr, imm1, 2, 2)]

class Filler:
    def __init__(self, P): self.P = P; self.q = []
    def add(self, *texts, **kw): self.q.append((texts, kw))
    def emit(self, k=1):
        for _ in range(k):
            if not self.q: return
            texts, kw = self.q.pop(0)
            for t in texts:
                if isinstance(t, tuple): self.P.waitvm(*t)
                elif t.startswith(('buffer_', 'global_')): self.P.e(t, **kw)
                else: self.P.e(t)
    def flush(self): self.emit(len(self.q))
    def wait(self, *tags):
        assert not any(kw.get('tag') in tags for _, kw in self.q), tags
        self.P.waitvm(*tags)

def dma_kv(F, which, tile, slot):
    sr, sl, so = (SK, sLK, sKO) if which == 'K' else (SV, sLV, sVO)
    ld = lambda off: f"buffer_load_dwordx4 v240, {sr}, {so} offen" + (f" offset:{off}" if off else "") + " lds"
    tag = (which, tile)
    F.add(f"s_add_u32 m0, {sl}, {slot*SLOT}", f"s_addk_i32 {so}, 8192", ld(0), tag=tag)
    F.add("s_addk_i32 m0, 32", ld(1024), tag=tag)
    F.add(f"s_addk_i32 m0, {8448-32}", f"s_addk_i32 {so}, 8192", ld(0), tag=tag)
    F.add("s_addk_i32 m0, 32", ld(1024), tag=tag)
def dma_wq(F, tile, slot):
    ld = f"buffer_load_dwordx4 v245, {SWQ}, {sT0} offen lds"
    tag = ('WQ', tile)
    F.add(f"s_add_u32 m0, {sLV}, {slot*SLOT}", f"s_mov_b32 {sT0}, {32*tile*8192}", ld, tag=tag)
    for d in (1056, 7392, 1056):
        F.add(f"s_addk_i32 m0, {d}", f"s_addk_i32 {sT0}, 16384", ld, tag=tag)
def dma_wo(F, t, slot):
    ld = f"buffer_load_dwordx4 v248, {SWO}, {sT0} offen lds"
    tag = ('WO', t)
    F.add(f"s_add_u32 m0, {sL1K}, {slot*SLOT}", f"s_add_u32 {sT0}, s87, {(t & 1)*128*896 + (t >> 1)*128}", ld, tag=tag)
    for p in range(3): F.add("s_addk_i32 m0, 1024", f"s_addk_i32 {sT0}, {8*896}", ld, tag=tag)
def dma_gu(F, c):
    base = GLUB + (c % 3) * GLUS; m, s = divmod(c, 7)
    ld = f"buffer_load_dwordx4 v241, {SWG}, {sT2} offen lds"
    F.add(f"s_add_u32 m0, s88, {base}", f"s_mov_b32 {sT2}, {64*s*3584 + m*64}", ld, tag=('G', c))
    F.add("s_addk_i32 m0, 1024", f"s_addk_i32 {sT2}, {4*3584}", ld, tag=('G', c))
def dma_wd(F, c, nt):
    base = GLUB + (c % 3) * GLUS
    ld = f"buffer_load_dwordx4 v242, {SWD}, {sT2} offen lds"
    F.add(f"s_add_u32 m0, s88, {base}", f"s_add_u32 {sT2}, s87, {nt*64}", ld, tag=('G', c))
    F.add("s_addk_i32 m0, 1024", f"s_addk_i32 {sT2}, 14336", ld, tag=('G', c))

WQ_SLOT = {0: 7, 1: 8, 2: 5, 3: 3, 4: 6, 5: 4, 6: 0, 7: 1, 8: 2, 9: 7, 10: 8, 11: 5, 12: 3, 13: 6}
WO_SLOT = {0: 8, 1: 0, 2: 1, 3: 4, 4: 2, 5: 5, 6: 3, 7: 6, 8: 7, 9: 8, 10: 0, 11: 1, 12: 4, 13: 2}

def streg(idx): return {0: 's94', 10: 's95'}.get(idx, f"s{48+idx}") if not H32 else f"s{48+idx}"
H32 = False
NLAB = 0
def stamp(P, cfg, idx, real=False):
    if not cfg.stamps: return
    P.e(f"{'s_memrealtime' if real else 's_memtime'} s[64:65]"); P.e("s_waitcnt lgkmcnt(0)")
    P.e(f"s_mov_b32 {streg(idx)}, s64")
def dump_stamps(P):
    e = P.e
    global H32
    H32 = bool(CFG.hack & (32 | 256))
    if CFG.hack & 128:
        global NLAB
        NLAB += 1
        e("s_mov_b64 exec, 1")
        e("v_mov_b32 v0, 0"); e(f"v_mov_b32 v1, {streg(11)}"); e(f"s_not_b32 s7, {streg(10)}"); e("v_mov_b32 v2, s7")
        e("global_atomic_umax v0, v1, s[68:69] offset:4"); e("global_atomic_umax v0, v2, s[68:69] offset:8")
        e(f"s_lshl_b32 s7, s2, 3"); e(f"s_add_u32 s7, s7, {sWV}"); e(f"s_cmp_lg_u32 s7, {37*8}"); e(f"s_cbranch_scc1 L_nd{NLAB}")
        for w, (x, y) in zip((3, 5, 6, 7, 9, 10, 11, 13, 14), ((1, 0), (2, 1), (3, 2), (4, 3), (5, 4), (6, 5), (13, 6), (8, 13), (11, 10))):
            e(f"s_sub_u32 s7, {streg(x)}, {streg(y)}"); e(f"v_mov_b32 v{w+4}, s7"); e(f"global_store_dword v0, v{w+4}, s[68:69] offset:{4*w}")
        e(f"L_nd{NLAB}:")
        return
    for i in range(16): e(f"v_writelane_b32 v254, {streg(i)}, {i}")
    e(f"s_lshl_b32 s7, s2, 3"); e(f"s_add_u32 s7, s7, {sWV}"); e("s_lshl_b32 s7, s7, 8"); e("s_add_u32 s7, s7, 0x8000000")
    e("s_add_u32 s96, s70, s7"); e("s_addc_u32 s97, s71, 0")
    e("v_mbcnt_lo_u32_b32 v255, -1, 0"); e("v_mbcnt_hi_u32_b32 v255, -1, v255"); e("v_lshlrev_b32 v255, 2, v255")
    e("global_store_dword v255, v254, s[96:97]")

def mad(P, dst, src, mul, acc=None):
    P.e(f"s_movk_i32 s7, {mul}" if mul < 32768 else f"s_mov_b32 s7, {mul}")
    if acc is None: P.e(f"v_mul_u32_u24 {dst}, s7, {src}")
    else: P.e(f"v_mad_u32_u24 {dst}, {src}, s7, {acc}")

def gen_entry(P, cfg):
    e = P.e
    e("s_cmp_ge_u32 s2, 256"); e("s_cbranch_scc1 L_end")
    e(f"s_mov_b32 {sMODE}, 0")
    e("L_restart:")
    stamp(P, cfg, 0); stamp(P, cfg, 10, True)
    e("s_load_dwordx16 s[48:63], s[0:1], 0"); e("s_load_dwordx8 s[64:71], s[0:1], 64")
    e("s_getpc_b64 s[96:97]")
    if cfg.ctop:
        e("s_lshr_b32 s7, s2, 3"); e("s_lshl_b32 s7, s7, 12"); e("v_lshl_add_u32 v189, v0, 3, s7"); e("v_min_u32 v189, CODE_SPAN, v189")
        e("global_load_dword v251, v189, s[96:97]", tag='touch')
    e("v_lshrrev_b32 v1, 6, v0")
    e("v_and_b32 v255, 63, v0")
    e(f"v_readfirstlane_b32 {sWV}, v1")
    hx = cfg.hx; lm = hx - 1; M = 1 << lm
    e(f"s_and_b32 {sHEAD}, s2, {(16 >> hx) - 1}"); e(f"s_lshl_b32 {sHEAD}, {sHEAD}, {hx}"); e(f"s_bfe_u32 s7, s2, {(hx << 16) | 3:#x}"); e(f"s_add_u32 {sHEAD}, {sHEAD}, s7")
    e(f"s_lshr_b32 {sSH}, s2, {3 + hx}")
    if hx > 1: e(f"s_bfe_u32 s7, s2, {(lm << 16) | (4 - hx):#x}"); e(f"s_lshl_b32 s7, s7, {5 - hx}"); e(f"s_add_u32 {sQB}, {sSH}, s7")
    else: e(f"s_mov_b32 {sQB}, {sSH}")
    e(f"s_and_b32 {sSUB}, {sWV}, 3")
    e("s_mov_b32 s11, 0x20000"); e(f"s_mov_b32 s10, {2048*896}")
    e("v_lshrrev_b32 v186, 3, v255"); e("v_and_b32 v185, 7, v255"); e("v_lshlrev_b32 v184, 4, v185"); mad(P, 'v184', 'v186', 896, 'v184')
    if cfg.xrot: e(f"s_add_u32 s84, {sWV}, s2"); e("s_and_b32 s84, s84, 7"); e(f"s_and_b32 {sTRIP}, s2, {cfg.xrot & 1}")
    else: e(f"s_mov_b32 s84, {sWV}"); e(f"s_mov_b32 {sTRIP}, 0")
    e(f"s_lshl_b32 s7, {sQB}, 3"); e("s_add_u32 s7, s7, s84"); e(f"s_mul_i32 {sT0}, s7, {16*896}")
    def mk(i, plo, mul, total, exact=None, idx=sHEAD):
        b = srd(i)
        e(f"s_mul_i32 s7, {idx}, {mul}")
        e(f"s_add_u32 s{b}, s{plo}, s7"); e(f"s_addc_u32 s{b+1}, s{plo+1}, 0")
        if exact is not None: e(f"s_mov_b32 s{b+2}, {exact}")
        else: e(f"s_sub_u32 s{b+2}, {total}, s7")
    e(f"v_lshrrev_b32 v250, {4-lm}, v0"); e("v_lshlrev_b32 v250, 13, v250"); e(f"v_and_b32 v2, {(16>>lm)-1}, v0"); e(f"v_lshl_add_u32 v250, v2, {5+lm}, v250")
    e(f"s_mul_i32 s90, {sSH}, {28*M*8192}")
    for i in range(1, 10): e(f"s_mov_b32 s{srd(i)+3}, 0x20000")
    e(f"s_mul_i32 s7, {sTRIP}, {8*896}"); e(f"s_add_u32 {sT1}, {sT0}, {8*896}"); e(f"s_add_u32 {sT0}, {sT0}, s7"); e(f"s_sub_u32 {sT1}, {sT1}, s7")
    e("s_waitcnt lgkmcnt(0)")
    if cfg.hack & 16: e("s_memtime s[86:87]")
    e("s_mov_b32 s8, s48"); e("s_mov_b32 s9, s49")
    if cfg.t_at == -2:
        mk(3, 54, 512, 448 * 8192); e(f"buffer_load_dword v251, v250, {SWQ}, s90 offen", tag='touch')
    for kp in range(7): e(f"buffer_load_dwordx4 {vr(128+4*kp,4)}, v184, {SX}, {sT0} offen offset:{kp*128}")
    if cfg.t_at != -2: mk(3, 54, 512, 448 * 8192)
    if cfg.t_at == -1: e(f"buffer_load_dword v251, v250, {SWQ}, s90 offen", tag='touch')
    if cfg.tlb & 1:
        e(f"s_load_dword s92, s[{srd(3)}:{srd(3)+1}], 0"); e(f"s_add_u32 s96, s{srd(3)}, {447*8192}"); e(f"s_addc_u32 s97, s{srd(3)+1}, 0"); e("s_load_dword s92, s[96:97], 0")
    if cfg.stouch:
        e(f"s_cmp_eq_u32 {sWV}, 7"); e("s_cbranch_scc1 L_nost")
        e(f"s_lshl_b32 s7, {sWV}, 15"); e("s_add_u32 s7, s7, s90"); e(f"s_add_u32 s96, s{srd(3)}, s7"); e(f"s_addc_u32 s97, s{srd(3)+1}, 0")
        for r in range(4):
            for l in range(4 * cfg.stouch): e(f"s_load_dword s92, s[96:97], {r*8192 + l*(128//cfg.stouch)}")
        e("L_nost:")
    if cfg.wsoff: e(f"s_add_u32 s70, s70, {cfg.wsoff << 20}"); e("s_addc_u32 s71, s71, 0")
    mk(1, 50, 1 << 20, 0, 1 << 20)
    mk(2, 52, 1 << 20, 0, 1 << 20)
    mk(4, 56, 256 * 896, 0, 256 * 896)
    assert hx == 1
    e("s_and_b32 s98, s2, 6"); e("s_bfe_u32 s7, s2, 0x10003"); e("s_add_u32 s98, s98, s7"); e("s_mul_i32 s98, s98, 7")
    e("s_and_b32 s99, s2, 1")
    if cfg.flip: e("s_mul_i32 s7, s99, 3"); e("s_xor_b32 s99, s99, 1")
    else: e("s_lshl_b32 s7, s99, 2")
    e("s_add_u32 s98, s98, s7")
    mk(5, 60, 64, 448 * 3584, idx='s98')
    mk(6, 62, 64, 448 * 3584, idx='s98')
    mk(7, 64, 32 * 896, 0, 128 * 896, idx='s98')
    e(f"s_mul_i32 s7, s99, {32*896}"); e(f"s_sub_u32 s{srd(7)+2}, s{srd(7)+2}, s7")
    e(f"s_mul_i32 s7, {sQB}, {7*STG}"); e(f"s_lshl_b32 {sT2}, {sSUB}, 16"); e(f"s_add_u32 s7, s7, {sT2}"); e(f"s_lshl_b32 {sT2}, {sHEAD}, 10"); e(f"s_add_u32 s7, s7, {sT2}")
    e(f"s_lshr_b32 {sT2}, {sWV}, 2"); e(f"s_mul_i32 {sT2}, {sT2}, {GP_OFF}"); e(f"s_add_u32 s7, s7, {sT2}")
    e(f"s_add_u32 s{srd(8)}, s70, s7"); e(f"s_addc_u32 s{srd(8)+1}, s71, 0"); e(f"s_mov_b32 s{srd(8)+2}, {7*STG}")
    e(f"s_lshl_b32 s7, {sQB}, 2"); e(f"s_add_u32 s7, s7, {sSUB}"); e("s_lshl_b32 s7, s7, 8"); e(f"s_add_u32 s7, s7, {sHEAD}"); e("s_lshl_b32 s7, s7, 2")
    e(f"s_lshr_b32 {sT2}, {sWV}, 2"); e(f"s_lshl_b32 {sT2}, {sT2}, 16"); e(f"s_add_u32 s7, s7, {sT2}"); e(f"s_add_u32 s7, s7, {FL_OFF}")
    e("s_add_u32 s100, s70, s7"); e("s_addc_u32 s101, s71, 0")
    if cfg.tlb & 2:
        for i in (1, 2, 4, 5, 6, 7, 8): e(f"s_load_dword s92, s[{srd(i)}:{srd(i)+1}], 0")
        for p in ("100:101", "66:67", "68:69"): e(f"s_load_dword s92, s[{p}], 0")
    e(f"s_cmp_lt_u32 {sSUB}, 2")
    e(f"s_cselect_b32 s{srd(9)}, s{srd(1)}, s{srd(2)}"); e(f"s_cselect_b32 s{srd(9)+1}, s{srd(1)+1}, s{srd(2)+1}"); e(f"s_mov_b32 s{srd(9)+2}, {1<<20}")
    e(f"s_lshl_b32 s89, {sSH}, {12+lm}"); e(f"s_and_b32 s7, {sSUB}, 1"); e(f"s_lshl_b32 s7, s7, {11+lm}"); e("s_add_u32 s89, s89, s7")
    e(f"s_mov_b32 {sC}, {f2u(LOG2E/16):#x}"); e(f"s_mov_b32 {sHI}, 0xffff0000")
    e("v_lshrrev_b32 v112, 4, v255"); e("v_bfe_u32 v114, v255, 2, 2"); e("v_and_b32 v115, 3, v255")
    e("v_lshrrev_b32 v116, 1, v114"); e("v_lshl_add_u32 v116, v112, 1, v116"); e("v_lshlrev_b32 v224, 3, v115"); mad(P, 'v224', 'v116', 1056, 'v224')
    e("v_and_b32 v116, 1, v114"); e("v_lshl_add_u32 v224, v116, 7, v224")
    e("v_bfe_u32 v117, v255, 2, 1"); e("v_lshl_add_u32 v116, v115, 1, v117"); e("v_xor_b32 v116, v116, v186"); e("v_lshlrev_b32 v187, 4, v116")
    e("v_lshl_add_u32 v187, v115, 8, v187"); e("v_xor_b32 v117, 1, v117"); e("v_lshl_add_u32 v187, v117, 13, v187")
    e("s_lshl_b32 s7, s84, 3"); e(f"s_add_u32 s7, s7, {sTRIP}"); e("s_lshl_b32 s7, s7, 7"); e("v_add_u32 v187, s7, v187"); e("v_add_u32 v188, 0x10000, v187")
    e("v_lshlrev_b32 v116, 1, v112"); e("v_and_b32 v117, 15, v255"); e("v_xor_b32 v116, v116, v117"); e("v_lshlrev_b32 v227, 4, v116"); e("v_lshl_add_u32 v227, v112, 8, v227")
    e(f"s_lshl_b32 s7, {sSUB}, 11"); e("v_add_u32 v227, s7, v227"); e("v_add_u32 v228, 0x10000, v227")
    e("v_xor_b32 v229, 16, v227"); e("v_xor_b32 v230, 16, v228")
    e("v_lshrrev_b32 v185, 2, v255")
    if cfg.hack & 16: e("s_waitcnt lgkmcnt(0)"); e("s_mov_b32 s57, s86"); cfg.pe = -5
    e("v_lshlrev_b32 v240, 7, v112")
    e("v_and_b32 v116, 7, v255"); e("v_lshl_add_u32 v240, v116, 4, v240")
    e("v_bfe_u32 v116, v255, 3, 1")
    e("v_lshl_add_u32 v245, v116, 13, v240")
    e("v_lshl_add_u32 v240, v116, 9, v240")
    e(f"s_lshl_b32 s7, {sSUB}, 16"); e("v_add_u32 v245, s7, v245")
    e(f"s_mul_i32 {sLV}, {sSUB}, 2112")
    e(f"s_cmp_ge_u32 {sWV}, 4"); e("s_cbranch_scc1 L_hs")

def wdo_read_bases(P, d0, d1, G, r, c, tmp, add=0):
    e = P.e
    e(f"v_lshlrev_b32 {d0}, 3, {c}"); e(f"v_lshl_add_u32 {d0}, {G}, 8, {d0}"); e(f"v_lshl_add_u32 {d0}, {r}, 6, {d0}")
    e(f"v_and_b32 {tmp}, 1, {G}"); e(f"v_lshl_add_u32 {d0}, {tmp}, 5, {d0}")
    if add: e(f"v_add_u32 {d0}, {add}, {d0}")
    e(f"v_xor_b32 {d1}, 32, {d0}")

def final_salu():
    R = []; e = R.append
    e(f"s_lshr_b32 s7, {sHEAD}, 2"); e(f"s_mul_i32 {sT3}, {sQB}, {7*STG}"); e(f"s_lshl_b32 {sT2}, {sHEAD}, 14"); e(f"s_add_u32 {sT3}, {sT3}, {sT2}")
    e(f"s_lshl_b32 {sT2}, {sSUB}, 18"); e(f"s_add_u32 {sT3}, {sT3}, {sT2}")
    e(f"s_add_u32 s{srd(3)}, s70, {sT3}"); e(f"s_addc_u32 s{srd(3)+1}, s71, 0"); e(f"s_cmp_eq_u32 {sSUB}, 3"); e(f"s_cselect_b32 s{srd(3)+2}, 0, {4*STG}"); e(f"s_add_u32 s{srd(3)+2}, s{srd(3)+2}, {GP_OFF + STG}")
    e(f"s_mov_b32 s{srd(5)}, s66"); e(f"s_mov_b32 s{srd(5)+1}, s67"); e(f"s_mov_b32 s{srd(5)+2}, {2048*896}")
    e(f"s_lshl_b32 {sT2}, {sQB}, 2"); e(f"s_add_u32 s7, s7, {sT2}")
    e(f"s_lshl_b32 {sT2}, s7, 10"); e(f"s_add_u32 {sT2}, {sT2}, {FL_OFF}")
    e(f"s_add_u32 s{srd(6)}, s70, {sT2}"); e(f"s_addc_u32 s{srd(6)+1}, s71, 0"); e(f"s_mov_b32 s{srd(6)+2}, 0x10400"); e("s_mov_b32 s84, 0x10000")
    e("s_lshl_b32 s7, s7, 1"); e(f"s_and_b32 {sT2}, {sHEAD}, 1"); e(f"s_add_u32 s7, s7, {sT2}"); e(f"s_mul_i32 s86, s7, {16*896}")
    e(f"s_lshl_b32 {sT2}, {sSUB}, 7"); e(f"s_add_u32 s86, s86, {sT2}"); e(f"s_bfe_u32 {sT2}, {sHEAD}, 0x10001"); e(f"s_lshl_b32 {sT2}, {sT2}, 6"); e(f"s_add_u32 s86, s86, {sT2}")
    return R

def xch_salu():
    return [f"s_lshl_b32 s7, {sSUB}, 2", "s_lshr_b32 s7, 0x635, s7", "s_and_b32 s7, s7, 15", f"s_mul_i32 s85, s7, {SLOT}",
            f"s_lshl_b32 s90, {sSUB}, 12", f"s_add_u32 s90, s90, {GLUB + 16384}"]

def xa(kk, lo, hi, add=0):
    o = (13 - kk) * 8192
    return f"{hi if o >= 65536 else lo} offset:{(o & 0xffff) + add}"
XR = [f"ds_read_b128 {vr((2*kk+qt)*4,4)}, {xa(kk, *(('v229', 'v230') if kk & 1 else ('v227', 'v228')), qt*1024)}" for kk in range(14) for qt in range(2)]

def gen_setup(P, cfg, helper):
    e = P.e
    F = Filler(P)
    lm = cfg.hx - 1; M = 1 << lm
    e(f"s_mov_b32 s93, {int(helper)}")
    if helper:
        e(f"s_lshl_b32 s88, {sSUB}, 11"); e("v_add_u32 v240, s88, v240")
        e(f"s_lshl_b32 s7, {sSUB}, 3"); e(f"s_lshr_b32 {sLK}, 0xc0703000, s7"); e(f"s_and_b32 {sLK}, {sLK}, 0xff"); e(f"s_add_u32 {sLK}, {sLK}, s88")
        e(f"s_lshl_b32 {sL1K}, {sSUB}, 12")
        e(f"s_movk_i32 {sKO}, -8192"); e(f"s_movk_i32 {sVO}, -8192")
        e("v_and_b32 v116, 1, v112"); e("v_lshlrev_b32 v116, 1, v116"); e("v_xor_b32 v116, v116, v115"); e("v_lshlrev_b32 v242, 4, v116")
        mad(P, 'v242', 'v185', 896, 'v242')
        e("v_lshl_add_u32 v117, v112, 3, v114"); e("v_lshlrev_b32 v241, 4, v116"); mad(P, 'v241', 'v117', 3584, 'v241')
        e(f"s_lshr_b32 s7, {sSUB}, 1"); e(f"s_mul_i32 s7, s7, {32*3584}"); e("v_add_u32 v241, s7, v241")
        e(f"s_bitcmp1_b32 {sSUB}, 0"); e(f"s_cselect_b32 s{srd(5)}, s{srd(6)}, s{srd(5)}"); e(f"s_cselect_b32 s{srd(5)+1}, s{srd(6)+1}, s{srd(5)+1}")
        e(f"v_lshlrev_b32 v243, {5+lm}, v255")
        e("v_lshlrev_b32 v249, 4, v255")
        e(f"s_mul_i32 s87, {sSUB}, {2*14336}")
        wdo_read_bases(P, 'v246', 'v247', 'v112', 'v114', 'v115', 'v116', GLUB)
        e("v_add_u32 v224, 512, v224")
    else:
        e(f"v_lshlrev_b32 v252, {5+lm}, v255")
        if cfg.touch:
            for tr in range(cfg.ktr):
                F.add(f"s_add_u32 {sT3}, s89, {tr*65536}", f"buffer_load_dword v251, v252, {ST}, {sT3} offen", tag='touch')
            e("v_mul_u32_u24 v253, 84, v115"); mad(P, 'v253', 'v185', 3584, 'v253')
        if cfg.touch and cfg.gtouch:
            F.add(f"s_lshl_b32 s7, {sSH}, 1", f"s_and_b32 {sT2}, {sSUB}, 1", f"s_add_u32 s7, s7, {sT2}", f"s_mul_i32 {sT3}, s7, {14*M*3584}",
                  f"s_cmp_lt_u32 {sSUB}, 2", f"s_cselect_b32 s{srd(9)}, s{srd(5)}, s{srd(6)}", f"s_cselect_b32 s{srd(9)+1}, s{srd(5)+1}, s{srd(6)+1}",
                  f"s_mov_b32 s{srd(9)+2}, s{srd(5)+2}", f"buffer_load_dword v251, v253, {ST}, {sT3} offen", tag='touch')
            for _ in range(M - 1): F.add(f"s_add_u32 {sT3}, {sT3}, {14*3584}", f"buffer_load_dword v251, v253, {ST}, {sT3} offen", tag='touch')
        F.add(*final_salu()); F.add(f"s_mov_b32 s73, {f2u(-LOG2E):#x}", *xch_salu())
        e("v_bfe_u32 v116, v255, 1, 3"); e("v_lshlrev_b32 v117, 2, v116"); e("s_mov_b32 s7, 0xec975320"); e("v_bfe_u32 v117, s7, v117, 4")
        e("v_lshlrev_b32 v248, 10, v116"); e("v_lshl_add_u32 v248, v117, 4, v248")
        e("v_and_b32 v116, 1, v255"); e("v_lshl_add_u32 v248, v116, 7, v248")
        e("v_and_b32 v116, 1, v112"); e("v_lshl_add_u32 v248, v116, 5, v248"); e("v_lshrrev_b32 v116, 1, v112"); e("v_lshl_add_u32 v248, v116, 4, v248")
        e(f"v_add_u32 v249, {4*SLOT}, v224")
        e(f"v_mov_b32 v116, {FLAG}"); e("v_mov_b32 v117, 0"); e("ds_write_b32 v116, v117")
    return F

def gen_ln(P, cfg):
    e = P.e
    F = Filler(P)
    e(f"v_add_u32 v225, {3*SLOT}, v224"); e(f"v_add_u32 v226, {6*SLOT}, v224")
    ld = f"buffer_load_dwordx4 v245, {SWQ}, {sT0} offen lds"
    F.add(f"s_lshr_b32 s7, {sWV}, 2", f"s_lshl_b32 {sT0}, s7, 18", f"s_mul_i32 s7, s7, {SLOT}", f"s_add_u32 s7, s7, {sLV}", f"s_add_u32 m0, s7, {7*SLOT}", ld, tag='W01')
    for d in (1056, 7392, 1056): F.add(f"s_addk_i32 m0, {d}", f"s_addk_i32 {sT0}, 16384", ld, tag='W01')
    if cfg.hack & 16: stamp(P, cfg, 13)
    for kp in range(cfg.pre2): e(f"buffer_load_dwordx4 {vr(156+4*kp,4)}, v184, {SX}, {sT1} offen offset:{kp*128}")
    if cfg.hack & 16: stamp(P, cfg, 14)
    for hh in range(2):
        m, t, v, u = "v118", "v119", "v120", "v121"
        for d in range(28 * hh, 28 * hh + 28):
            kp = d // 4 + cfg.pre2
            if hh == 0 and d % 4 == 0 and kp < 7:
                e(f"buffer_load_dwordx4 {vr(156+4*kp,4)}, v184, {SX}, {sT1} offen offset:{kp*128}", extra_rd=regs_of(f"v{128+d}"))
            e(f"v_lshlrev_b32 v{2*d}, 16, v{128+d}"); e(f"v_and_b32 v{2*d+1}, {sHI}, v{128+d}")
            pr = vr(2 * d, 2)
            if cfg.lnpk & 1:
                if d % 28 == 0: e(f"v_mov_b64 v[118:119], {pr}"); e(f"v_pk_mul_f32 v[120:121], {pr}, {pr}")
                else: e(f"v_pk_add_f32 v[118:119], v[118:119], {pr}"); e(f"v_pk_fma_f32 v[120:121], {pr}, {pr}, v[120:121]")
            elif d % 28 == 0:
                e(f"v_mov_b32 {m}, v{2*d}"); e(f"v_mov_b32 {t}, v{2*d+1}"); e(f"v_mul_f32 {v}, v{2*d}, v{2*d}"); e(f"v_mul_f32 {u}, v{2*d+1}, v{2*d+1}")
            else:
                e(f"v_add_f32 {m}, {m}, v{2*d}"); e(f"v_add_f32 {t}, {t}, v{2*d+1}")
                e(f"v_fmac_f32 {v}, v{2*d}, v{2*d}"); e(f"v_fmac_f32 {u}, v{2*d+1}, v{2*d+1}")
            if d == cfg.t_at and cfg.touch:
                e(f"buffer_load_dword v251, v250, {SWQ}, s90 offen", tag='touch')
            if d >= cfg.wq_at and d % 4 == 1: F.emit()
        if hh == 1: stamp(P, cfg, 1)
        e(f"v_add_f32 {m}, {m}, {t}"); e(f"v_add_f32 {v}, {v}, {u}")
        for qp in ("quad_perm:[1,0,3,2]", "quad_perm:[2,3,0,1]", "row_half_mirror"):
            e(f"v_add_f32_dpp {m}, {m}, {m} {qp} row_mask:0xf bank_mask:0xf")
            e(f"v_add_f32_dpp {v}, {v}, {v} {qp} row_mask:0xf bank_mask:0xf")
        e(f"s_mov_b32 s7, {f2u(1.0/448):#x}")
        e(f"v_mul_f32 {m}, s7, {m}")
        e(f"v_mul_f32 {t}, {m}, {m}")
        e(f"v_fma_f32 {v}, {v}, s7, -{t}")
        e(f"v_max_f32 {v}, 0, {v}")
        e(f"v_cvt_pk_bf16_f32 {t}, {m}, {v}")
        e(f"v_lshlrev_b32 {m}, 16, {t}")
        e(f"v_and_b32 {v}, {sHI}, {t}")
        e(f"v_add_f32 {v}, {f2u(1e-5):#x}, {v}")
        e(f"v_cvt_pk_bf16_f32 {v}, {v}, {v}"); e(f"v_and_b32 {v}, {sHI}, {v}")
        e(f"v_sqrt_f32 {v}, {v}")
        e(f"v_cvt_pk_bf16_f32 {v}, {v}, {v}"); e(f"v_and_b32 {v}, {sHI}, {v}")
        e(f"v_rcp_f32 {v}, {v}")
        e(f"v_mul_f32 {m}, {m}, {v}")
        if not cfg.lnpk & 2: e(f"v_mov_b32 {t}, {m}"); e(f"v_mov_b32 {u}, {v}")
        for kp in range(7):
            z = 7 * hh + kp
            for d in range(4 * z, 4 * z + 4):
                if cfg.lnpk & 2: e(f"v_pk_fma_f32 {vr(2*d,2)}, {vr(2*d,2)}, v[120:121], v[118:119] op_sel_hi:[1,0,0] neg_lo:[0,0,1] neg_hi:[0,0,1]")
                else: e(f"v_fma_f32 v{2*d}, v{2*d}, {u}, -{t}"); e(f"v_fma_f32 v{2*d+1}, v{2*d+1}, {v}, -{m}")
            for d in range(4 * z, 4 * z + 4):
                e(f"v_cvt_pk_bf16_f32 v{128+d}, v{2*d}, v{2*d+1}")
            ad = xa(2 * kp + 1, 'v187', 'v188').split()
            e(f"ds_write_b128 {ad[0]}, {vr(128+4*z,4)} {ad[1]}")
            if hh == 1: F.emit(2)
        if hh == 0:
            if cfg.hack & 16: stamp(P, cfg, 15)
            e("v_xor_b32 v187, 0x80, v187"); e("v_xor_b32 v188, 0x80, v188")
            e("v_mov_b32 v122, 0"); e("v_lshlrev_b32 v123, 7, v255")
            e(f"s_cmp_lg_u32 {sMODE}, 0"); e(f"s_cbranch_scc1 L_norst")
            e(f"s_mov_b64 exec, 0x7f"); e("global_store_dword v123, v122, s[100:101] sc1", tag='opt'); e("s_mov_b64 exec, -1")
            e(f"L_norst:")
    F.wait('W01')
    e("s_waitcnt lgkmcnt(0)")
    stamp(P, cfg, 12)
    e("s_barrier")
    for t in XR[:16]: e(t)
    e("s_cmp_eq_u32 s93, 1"); e("s_cbranch_scc1 L_helper")

def gen_qproj(P, cfg, helper, F):
    e = P.e
    xr = XR[16:]
    def start():
        e("s_barrier", extra_rd=regs_of("v[0:63]"))
        if helper:
            for T in range(2, 6): dma_wq(F, T, WQ_SLOT[T])
            F.emit(cfg.q0e)
        stamp(P, cfg, 2 if not cfg.hack & 256 else 1)
    items = []
    after = {1: [('WQ', 6), ('WQ', 7), ('WQ', 8), ('WQ', 9)], 2: [('WQ', 10), ('WQ', 11)], 3: [('WQ', 12), ('WQ', 13)], 4: [('K', 0), ('V', 0)], 5: [('K', 1), ('K', 2)], 6: []}
    def mkhook(k):
        def hook():
            if helper:
                F.wait(('WQ', 2*k), ('WQ', 2*k+1), *([('K', 0)] if k == 6 else []))
            if k == 1: P.waitvm('opt')
            if cfg.hack & 256: e(f"s_memtime s[{48+2*k}:{49+2*k}]")
            e("s_barrier", extra_rd=regs_of("v[64:111]") if k == 1 else None)
            if helper:
                for (w, t) in after.get(k, []):
                    if w == 'WQ': dma_wq(F, t, WQ_SLOT[t])
                    else: dma_kv(F, w, t, (t & 3) + (4 if w == 'V' else 0))
            elif k == 1:
                e(f"s_or_b32 s7, {sMODE}, {sSUB}"); e("s_cbranch_scc1 L_noarr")
                e(f"s_lshl_b32 s7, {sQB}, 4"); e("v_mov_b32 v228, s7"); e("v_mov_b32 v229, 1")
                e("s_mov_b64 exec, 1"); e("global_atomic_add v228, v229, s[68:69] sc1", tag='opt'); e("s_mov_b64 exec, -1")
                e("L_noarr:")
        return hook
    for T in range(14):
        sl = WQ_SLOT[T]; base = f"v{224 + sl // 3}"; so = (sl % 3) * SLOT
        for t in range(8):
            imm = so + (t >> 2) * 256 + (t & 3) * 32
            mf = [(128 + ((t >> 1) * 2 + qt) * 8 + (t & 1) * 4, (2 * T + qt) * 4, '0' if T == 0 else None) for qt in range(2)]
            items.append(dict(mf=mf, reads=tr_reads(base, imm, imm + 8448), hook=mkhook(T // 2) if (T % 2 == 0 and T > 0 and t == 0) else None))
    def gap(i, k):
        T, t = divmod(i, 8)
        for _ in range(2):
            if xr: e(xr.pop(0))
        if helper: F.emit()
        else:
            if T >= 1 and t < 4: e(f"v_mov_b64 {vr(8*(T-1)+2*t,2)}, 0")
            elif 1 <= T < 5 and t in (4, 5): e(f"v_mov_b64 {vr(112+4*(T-1)+2*(t-4),2)}, 0")
            elif t == 6 and T >= cfg.tq0: F.emit()
    stream(P, items, [192 + 4 * i for i in range(6)], 6, gap, group=3, start=start)
    assert not F.q or not helper
    F.flush()
    if cfg.hack & 256: e('s_memtime s[62:63]'); e('s_waitcnt lgkmcnt(0)'); dump_stamps(P); e('s_endpgm')
    e(f"s_lshr_b32 s7, {sSUB}, 1"); e(f"s_mul_i32 s7, s7, {SLOT}"); e(f"s_and_b32 {sT3}, {sSUB}, 1"); e(f"s_lshl_b32 {sT3}, {sT3}, 13")
    e(f"s_add_u32 s7, s7, {sT3}"); e(f"s_add_u32 s7, s7, {7*SLOT}")
    e("v_lshlrev_b32 v254, 4, v255"); e("v_add_u32 v254, s7, v254")
    if helper:
        for g in range(8):
            for t in qfin(g): e(t)
            if g: e(f"ds_write_b128 v254, {vr(128+4*(g-1),4)} offset:{(g-1)*1024}")
        e(f"ds_write_b128 v254, {vr(156,4)} offset:{7*1024}")
        P.waitvm(('K', 1))
        e("s_waitcnt lgkmcnt(0)")
        stamp(P, cfg, 3)
        e("s_barrier")
    return F

def qfin(g):
    r = [f"v_mul_f32 v{128+8*g+i}, {sC}, v{128+8*g+i}" for i in range(8)]
    r += [f"v_cvt_pk_bf16_f32 v{128+4*g+i}, v{128+8*g+2*i}, v{129+8*g+2*i}" for i in (0, 2, 1, 3)] if g else \
         [f"v_cvt_pk_bf16_f32 v{128+i}, v{128+2*i}, v{129+2*i}" for i in range(4)]
    r += [f"v_permlane16_swap_b32 v{128+4*g}, v{130+4*g}", f"v_permlane16_swap_b32 v{129+4*g}, v{131+4*g}"]
    return r

BUFS = [224, 228, 232, 236, 240, 244, 252]
PAT = list(range(7)) + list(range(6)) + list(range(6)) + list(range(7)) + list(range(6))
LEAD = sched.LEAD
SA = [192, 200]; SB = 208; NEGM = 216; LR = [250, 251]
def fbuf(f): return BUFS[PAT[f % 32]]
def oacc(t, qt): return ((t >> 1) * 2 + qt) * 8 + (t & 1) * 4
def k_imm(f): return (f >> 3) * 8448 + ((f & 7) >> 1) * 256 + (f & 1) * 64
def k_read(P, f, slot): P.e(f"ds_read_b128 {vr(fbuf(f),4)}, v248 offset:{slot*SLOT + k_imm(f)}")
def v_read(P, f, slot):
    t = f - 16
    imm = slot * SLOT + (t >> 2) * 256 + (t & 3) * 32
    P.e(f"{TR} {vr(fbuf(f),2)}, v249 offset:{imm}")
    P.e(f"{TR} {vr(fbuf(f)+2,2)}, v249 offset:{imm + 8448}")

def sm_text(task, sa):
    if task[0] in ('exp', 'add'):
        _, blk, q, i = task
        r = (sa if blk == 'a' else SB) + 4 * q + i
        return f"v_exp_f32 v{r}, v{r}" if task[0] == 'exp' else f"v_add_f32 v{LR[q]}, v{LR[q]}, v{r}"
    _, q, k = task
    src = (sa if k < 2 else SB) + 4 * q + 2 * (k & 1)
    return f"v_cvt_pk_bf16_f32 v{sa+4*q+k}, v{src}, v{src+1}"

FIXED = WAITS = PLACE = None

def gen_iter(P, j, ctl=False, bar=16, lab='L_loop'):
    e = P.e
    cur = SA[j & 1]; nxt = SA[(j + 1) & 1]
    for g in range(64):
        f, qt = g >> 1, g & 1
        if CFG.snake & (1 if f < 16 else 2): qt ^= f & 1
        extra = set()
        for z in WAITS.get(g, []): extra |= regs_of(vr(fbuf(z), 4))
        if f < 16:
            acc = (nxt if f < 8 else SB) + 4 * qt
            c = (vr(NEGM + 4 * qt, 4) if not CFG.x & 16 else '0') if (f & 7) == 0 else vr(acc, 4)
            e(f"{MF} {vr(acc,4)}, {vr(fbuf(f),4)}, {vr(128 + ((f&7)*2+qt)*4,4)}, {c}", extra_rd=extra)
        else:
            a = oacc(f - 16, qt)
            e(f"{MF} {vr(a,4)}, {vr(fbuf(f),4)}, {vr(cur+4*qt,4)}, {vr(a,4)}", extra_rd=extra)
        if CFG.x & 32 and g in (41, 53): e(f"{MF} v[220:223], v[216:219], {vr(cur+4*qt,4)}, v[220:223]")
        late = []
        for it in FIXED[g]:
            if it[0] == 'read':
                n = it[1]
                if CFG.x & 4 and n % 2: continue
                if n < 16: k_read(P, n, (j + 1) & 3)
                elif n < 32: v_read(P, n, j & 3)
                else: k_read(P, n - 32, (j + 2) & 3)
            elif it[0] == 'ctl' and ctl: late.append(f"s_sub_u32 {sTRIP}, {sTRIP}, 1")
            elif it[0] == 'branch' and ctl: late.append(f"s_cbranch_scc0 {lab}")
        if g == bar: late.append("s_barrier")
        for t in PLACE.get(g + 64, []):
            if not (CFG.x & 2 and t[0] != 'cvt') and not (CFG.x & 8 and t[0] == 'add'): e(sm_text(t, cur))
        for t in PLACE.get(g, []):
            if not (CFG.x & 2 and t[0] != 'cvt') and not (CFG.x & 8 and t[0] == 'add'): e(sm_text(t, nxt))
        for t in late: e(t)

def xgroup(P, op, r, t):
    e = P.e
    e(f"v_mov_b32 {t}, {r}"); e(f"v_permlane16_swap_b32 {r}, {t}"); e(f"{op} {r}, {r}, {t}")
    e(f"v_mov_b32 {t}, {r}"); e(f"v_permlane32_swap_b32 {r}, {t}"); e(f"{op} {r}, {r}, {t}")

SR, SO, SF = SWQ, SWG, SWU
def msum(Q, acc, src):
    for h in range(16):
        for ee in range(2): Q.e(f"{MF} {vr(acc+4*ee,4)}, {vr(192+4*ee,4)}, {vr(src+4*h,4)}, {'0' if h == 0 else vr(acc+4*ee,4)}")
def silu8(Q, a):
    rnd8(Q, a, 224)
    for i in range(8): Q.e(f"v_mul_f32 v{224+i}, s73, v{a+i}")
    for i in range(8): Q.e(f"v_exp_f32 v{224+i}, v{224+i}")
    for i in range(8): Q.e(f"v_add_f32 v{224+i}, 1.0, v{224+i}")
    for i in range(8): Q.e(f"v_rcp_f32 v{224+i}, v{224+i}")
    for i in range(8): Q.e(f"v_mul_f32 v{a+i}, v{a+i}, v{224+i}")
    rnd8(Q, a, 224)
def fetch(P, cfg, r, dst, voff, between):
    e = P.e
    e(f"s_lshl_b32 s84, {sSUB}, 7"); e(f"s_mov_b32 {sT1}, 0"); e(f"s_mov_b32 {sTRIP}, {SPIN}")
    if cfg.hack & 64: stamp(P, cfg, 1, True)
    def onepass(nm):
        e(f"buffer_load_dword v253, v252, {SF}, s84 offen offset:{512*r} sc1"); e("s_waitcnt vmcnt(0)")
        e("v_cmp_le_u32 vcc, 1, v253")
        if cfg.fmode & 2: e("s_cmp_eq_u32 vcc_lo, -1"); e("s_cselect_b32 vcc_lo, -1, 0")
        e(f"s_andn2_b32 {sT2}, vcc_lo, {sT1}"); e(f"s_or_b32 {sT1}, {sT1}, vcc_lo")
        for h in range(16):
            e(f"s_bitcmp1_b32 {sT2}, {h}"); e(f"s_cbranch_scc0 {nm}_{h}")
            e(f"s_mov_b32 {sT3}, {h*1024 + r*4*STG}")
            e(f"buffer_load_dwordx4 {vr(dst+4*h,4)}, {voff}, {SR}, {sT3} offen sc1", tag='touch')
            if r == 0 and nm.startswith("L_fa") and h < cfg.pn: e(f"s_waitcnt vmcnt({cfg.pl})")
            e(f"{nm}_{h}:")
    onepass(f"L_fa{r}")
    if cfg.hack & 64: stamp(P, cfg, 2, True)
    between()
    e(f"s_cmp_eq_u32 {sT1}, -1"); e(f"s_cbranch_scc1 L_fd{r}")
    e(f"L_fl{r}:")
    onepass(f"L_fb{r}")
    e(f"s_cmp_eq_u32 {sT1}, -1"); e(f"s_cbranch_scc1 L_fd{r}")
    e(f"s_sleep {cfg.slp}")
    e(f"s_sub_u32 {sTRIP}, {sTRIP}, 1"); e(f"s_cbranch_scc0 L_fl{r}")
    e(f"L_fd{r}:")
    if cfg.hack & 64: stamp(P, cfg, 3, True)
def fin(P, cfg, r, src, xr):
    e = P.e; a = 208
    for d in range(4): e(f"v_lshlrev_b32 v{232+2*d}, 16, v{xr+d}"); e(f"v_and_b32 v{233+2*d}, {sHI}, v{xr+d}")
    e("s_waitcnt vmcnt(0)")
    if cfg.hack & 64: stamp(P, cfg, 4, True)
    msum(P, a, src)
    rnd8(P, a, 224)
    for i in range(8): e(f"v_mul_f32 v{a+i}, v{a+i}, v{200+i}")
    rnd8(P, a, 224)
    for i in range(8): e(f"v_add_f32 v{a+i}, v{a+i}, v{232+i}")
    for d in range(4): e(f"v_cvt_pk_bf16_f32 v{240+d}, v{a+2*d}, v{a+2*d+1}")
    e(f"buffer_store_dwordx4 v[240:243], v251, {SO}, s86 offen offset:{r*512}" + ["", " sc1", " nt", " sc0 sc1"][cfg.oflag])

def gen_compute(P, cfg, FC):
    e = P.e
    m0 = P.mark()
    gen_qproj(P, cfg, False, FC)
    stamp(P, cfg, 3)
    order = [f for kk in range(8) for f in (kk, 8 + kk)]
    items = [dict(mf=[((SA[0] if f < 8 else SB) + 4 * qt, 128 + ((f & 7) * 2 + qt) * 4, '0' if (f & 7) == 0 else None) for qt in range(2)],
                  reads=[("ds_read_b128", "v248", k_imm(f), 0, 4)]) for f in order]
    def start():
        for t in range(4): e(f"v_mov_b64 {vr(104+2*t,2)}, 0")
        for t in qfin(0) + qfin(1): e(t)
    def gap0(i, k):
        if i < 6:
            for t in qfin(i + 2): e(t)
            if i == 2: e("s_barrier")
            if i >= 2:
                for z in (2 * (i - 2), 2 * (i - 2) + 1): e(f"ds_read_b128 {vr(160+4*z,4)}, v254 offset:{z*1024}")
    stream(P, items, BUFS[:6], 6, gap0, group=2, start=start)
    e("s_waitcnt vmcnt(0)")
    for f in range(LEAD): k_read(P, f, 1)
    e(f"s_cmp_lg_u32 {sMODE}, 0"); e("s_cbranch_scc1 L_havem")
    mm = P.mark()
    for q in range(2):
        a, b, m = SA[0] + 4 * q, SB + 4 * q, NEGM + 4 * q
        e(f"v_max3_f32 v{m}, v{a}, v{a+1}, v{a+2}"); e(f"v_max3_f32 v{m}, v{m}, v{a+3}, v{b}"); e(f"v_max3_f32 v{m}, v{m}, v{b+1}, v{b+2}"); e(f"v_max_f32 v{m}, v{m}, v{b+3}")
    xgroup(P, "v_max_f32", f"v{NEGM}", f"v{NEGM+1}"); xgroup(P, "v_max_f32", f"v{NEGM+4}", f"v{NEGM+5}")
    for q in range(2):
        m = NEGM + 4 * q
        for i in (1, 2, 3, 0): e(f"v_sub_f32 v{m+i}, {f2u(-float(cfg.toff)) if cfg.toff else 0:#x}, v{m}")
    minit = P.since(mm)
    e("L_havem:")
    for q in range(2):
        for i in range(4):
            e(f"v_add_f32 v{SA[0]+4*q+i}, v{SA[0]+4*q+i}, v{NEGM+4*q}"); e(f"v_add_f32 v{SB+4*q+i}, v{SB+4*q+i}, v{NEGM+4*q}")
    e(f"v_mov_b32 v{LR[0]}, 0"); e(f"v_mov_b32 v{LR[1]}, 0")
    for g in range(18, 64):
        for t in PLACE[g]: e(sm_text(t, SA[0]))
    e(f"s_mov_b32 {sTRIP}, 15")
    if cfg.obias:
        for i in range(128): e(f"v_mov_b32 v{i}, {f2u(2.0 ** (cfg.obias - cfg.toff)):#x}")
    if cfg.x & 32:
        e("v_mbcnt_lo_u32_b32 v220, -1, 0"); e("v_mbcnt_hi_u32_b32 v220, -1, v220"); e("v_and_b32 v220, 15, v220"); e("v_mov_b32 v221, 0x3f803f80")
        e(f"v_cmp_gt_u32 vcc, {16 if cfg.x & 64 else 1}, v220")
        for i in range(4): e(f"v_cndmask_b32 v{216+i}, 0, v221, vcc")
        for i in range(4): e(f"v_mov_b32 v{220+i}, 0")
    stamp(P, cfg, 4)
    e("s_waitcnt lgkmcnt(0)")
    if cfg.vbit >= 0: e(f"s_bitcmp1_b32 {sSUB}, {cfg.vbit}"); e("s_cbranch_scc1 L_itb0")
    e("s_branch L_it0")
    pro = P.since(m0)
    itb = {}
    if cfg.vbit >= 0:
        e(".p2align 6")
        e("L_loopb:")
        for j in (3, 0, 1, 2):
            if j == 0: e("L_itb0:")
            m = P.mark(); gen_iter(P, j, ctl=(j == 2), bar=cfg.barb, lab='L_loopb'); itb[j] = P.since(m)
        e("s_branch L_tail")
    e(".p2align 6")
    e("L_loop:")
    its = {}
    for j in (3, 0, 1, 2):
        if j == 0: e("L_it0:")
        m = P.mark(); gen_iter(P, j, ctl=(j == 2), bar=cfg.bara); its[j] = P.since(m)
    m1 = P.mark()
    e('L_tail:')
    stamp(P, cfg, 5)
    cur = SA[1]
    e("s_barrier")
    for f in range(16, 16 + LEAD): v_read(P, f, 3)
    for g in range(64, 82):
        for t in PLACE[g]: e(sm_text(t, cur))
    post_ops = []
    Q = Prog()
    xgroup(Q, "v_add_f32", f"v{LR[0]}", "v208"); xgroup(Q, "v_add_f32", f"v{LR[1]}", "v209")
    Q.e(f"v_max_f32 v208, v{LR[0]}, v{LR[1]}"); Q.e(f"v_add_f32 v209, v{LR[0]}, v{LR[1]}")
    Q.e(f"v_rcp_f32 v{LR[0]}, v{LR[0]}"); Q.e(f"v_rcp_f32 v{LR[1]}, v{LR[1]}")
    Q.e("v_mbcnt_lo_u32_b32 v210, -1, 0"); Q.e("v_mbcnt_hi_u32_b32 v210, -1, v210")
    Q.e("v_lshrrev_b32 v211, 4, v210"); Q.e("v_bfe_u32 v212, v210, 2, 2"); Q.e("v_and_b32 v213, 3, v210")
    Q.e("v_lshrrev_b32 v212, 2, v210"); Q.e("v_lshlrev_b32 v192, 7, v212"); Q.e("v_lshl_add_u32 v192, v213, 3, v192")
    Q.e("v_bfe_u32 v212, v210, 3, 2"); Q.e("v_lshl_add_u32 v192, v212, 5, v192")
    for ee in (1, 2, 3): Q.e(f"v_xor_b32 v{192+ee}, {32*ee}, v192")
    for ee in range(4): Q.e(f"v_add_u32 v{196+ee}, {6*SLOT}, v{192+ee}")
    Q.e("v_lshlrev_b32 v248, 4, v210")
    Q.e(f"v_mov_b32 v214, {FLAG}"); Q.e("v_mov_b32 v215, 1")
    rest = Q.L
    for g in range(32, 64):
        f, qt = g >> 1, g & 1
        extra = set()
        for z in WAITS.get(g, []):
            if 16 <= z < 32: extra |= regs_of(vr(fbuf(z), 4))
        a = oacc(f - 16, qt)
        e(f"{MF} {vr(a,4)}, {vr(fbuf(f),4)}, {vr(cur+4*qt,4)}, {vr(a,4)}", extra_rd=extra)
        if qt == 1 and f + LEAD < 32: v_read(P, f + LEAD, 3)
        else:
            for _ in range(2):
                if rest: P.L.append(rest.pop(0))
    P.L.extend(rest)
    e(f"v_cmp_ngt_f32 vcc, {f2u(cfg.thr):#x}, v209")
    e("s_cbranch_vccz L_noflag")
    e("ds_write_b32 v214, v215")
    e("s_waitcnt lgkmcnt(0)")
    e("L_noflag:")
    e("s_barrier")
    e("ds_read_b32 v215, v214")
    def onorm(g):
        return [f"v_mul_f32 v{8*g+i}, v{8*g+i}, v{LR[g & 1]}" for i in range(8)] + [f"v_cvt_pk_bf16_f32 v{4*g+i}, v{8*g+2*i}, v{8*g+2*i+1}" for i in range(4)]
    items = []
    F = Filler(P)
    def ehook(t):
        def h():
            if cfg.hack & 32 and t % 2 == 0: e(f"s_memtime s[{48+t}:{49+t}]")
            if t in (2, 3, 4, 5, 6, cfg.lastb): e("s_barrier")
        return h
    def acc_o(s, ee, qt): return (64 if s & 1 else 128) + ((ee >> 1) * 2 + qt) * 8 + (ee & 1) * 4
    for t in range(14):
        sl = WO_SLOT[t]; so = (sl % 3) * SLOT; s, hf = t >> 1, t & 1
        for k4 in range(4):
            for ee in range(4):
                base = f"v{[192, 200, 196][sl // 3] + ee}"
                imm = so + k4 * 4096; kk = 4 * hf + k4
                items.append(dict(mf=[(acc_o(s, ee, qt), (kk * 2 + qt) * 4, '0' if kk == 0 else None) for qt in range(2)],
                                  reads=tr_reads(base, imm, imm + 2048),
                                  hook=ehook(t) if (t > 0 and k4 == 0 and ee == 0) else None))
    def cv(s, u, hf):
        o = 160 + 16 * (s & 1) + 4 * u + 2 * hf; a = acc_o(s, 0, 0) + 8 * u + 4 * hf
        F.add(f"v_cvt_pk_bf16_f32 v{o}, v{a}, v{a+1}", f"v_cvt_pk_bf16_f32 v{o+1}, v{a+2}, v{a+3}")
    def sto(s, u):
        o = 160 + 16 * (s & 1) + 4 * u
        F.add(f"s_mov_b32 {sT0}, {s*STG + u*16384}", f"buffer_store_dwordx4 {vr(o,4)}, v248, {SP}, {sT0} offen sc1", tag=('S', s))
    def publish(r):
        F.add((('S', r),), "s_mov_b64 exec, 1", f"global_store_dword v249, v254, s[100:101] offset:{128*r} sc1", "s_mov_b64 exec, -1", tag='fl')
    nrm = [t for g in range(2, 16) for t in onorm(g)]
    def start():
        for ee in range(4): e(f"v_add_u32 v{200+ee}, {3*SLOT}, v{192+ee}")
        e("v_mov_b32 v249, 0"); e("v_mov_b32 v254, 1"); e("v_add_u32 v204, s85, v248"); e("v_add_u32 v205, s90, v248")
        for t in onorm(0) + onorm(1): e(t)
        e("v_readfirstlane_b32 s7, v215")
        e(f"s_andn2_b32 s7, s7, {sMODE}"); e("s_cbranch_scc1 L_maxpass")
        stamp(P, cfg, 6)
        if cfg.hack & 32: stamp(P, cfg, 1)
        if cfg.hack & 64: stamp(P, cfg, 12, True)
    def gap(i, k):
        s, r = divmod(i, 32)
        if k: return
        for _ in range(6):
            if nrm: e(nrm.pop(0))
        if s >= 1:
            u, z = divmod(r, cfg.ssp)
            if u < 4:
                if z == 0: cv(s - 1, u, 0)
                if z == 1: cv(s - 1, u, 1)
                if z == 2: sto(s - 1, u)
        if s >= 2 and r == cfg.pubr and not cfg.fmode & 1: publish(s - 2)
        if i == cfg.xat: e('s_barrier')
        F.flush()
    stream(P, items, [216 + 4 * i for i in range(8)], 7, gap, group=4, start=start)
    if cfg.hack & 32: e('s_memtime s[62:63]'); e('s_waitcnt lgkmcnt(0)'); dump_stamps(P); e('s_endpgm')
    st = (lambda i: None) if cfg.hack & 16 else (lambda i: stamp(P, cfg, i, bool(cfg.hack & 64)))
    st(13)
    for u in range(4): cv(6, u, 0); cv(6, u, 1); sto(6, u)
    F.flush()
    if cfg.xat >= 224: e("s_barrier")
    st(14)
    for k, r0 in enumerate((192, 196, 244, 250)): e(f"ds_read_b128 {vr(r0,4)}, v205 offset:{k*1024}")
    for h in range(16): e(f"ds_read_b128 {vr(64+4*h,4)}, v204 offset:{h*1024}")
    if not cfg.fmode & 1: publish(5); F.flush()
    msum(P, 200, 64)
    st(15)
    if cfg.fmode & 1:
        e("v_lshlrev_b32 v249, 3, v248"); P.waitvm(('S', 6))
        e("s_mov_b64 exec, 0x7f"); e("global_store_dword v249, v254, s[100:101] sc1"); e("s_mov_b64 exec, -1")
    else: publish(6); F.flush()
    if cfg.hack & 64: stamp(P, cfg, 9, True)
    e(f"s_cmp_eq_u32 {sSUB}, 3"); e("s_cbranch_scc1 L_cdone")
    cslow = []
    fetch(P, cfg, 1, 0, "v248", lambda: silu8(P, 200))
    fin(P, cfg, 1, 0, 244)
    e("L_cdone:")
    if cfg.stamps:
        stamp(P, cfg, 7); e("s_waitcnt vmcnt(0)"); stamp(P, cfg, 8); stamp(P, cfg, 11, True); dump_stamps(P)
    e("s_endpgm")
    post = [x for x in P.since(m1) if not any(x is y for y in cslow)]
    m2 = P.mark()
    e("L_maxpass:")
    e("s_waitcnt vmcnt(0) lgkmcnt(0)")
    e("v_and_b32 v0, 15, v210"); e("v_lshlrev_b32 v0, 9, v0"); e("v_and_b32 v1, 1, v211"); e("v_lshl_add_u32 v0, v1, 5, v0")
    e("v_lshrrev_b32 v1, 1, v211"); e("v_lshl_add_u32 v0, v1, 4, v0")
    e(f"v_mov_b32 v{NEGM}, 0xff800000"); e(f"v_mov_b32 v{NEGM+4}, 0xff800000")
    e(f"s_mov_b32 {sT0}, 0")
    e("L_mp_loop:")
    for kk in range(8): e(f"buffer_load_dwordx4 {vr(16+4*kk,4)}, v0, {SK}, {sT0} offen offset:{kk*64}")
    e("s_waitcnt vmcnt(0)")
    for kk in range(8):
        for qt in range(2): e(f"{MF} {vr(8+4*qt,4)}, {vr(16+4*kk,4)}, {vr(128+(kk*2+qt)*4,4)}, {'0' if kk == 0 else vr(8+4*qt,4)}")
    e("s_nop 15")
    for qt in range(2):
        m = NEGM + 4 * qt; a = 8 + 4 * qt
        e(f"v_max3_f32 v{m}, v{m}, v{a}, v{a+1}"); e(f"v_max3_f32 v{m}, v{m}, v{a+2}, v{a+3}")
    e(f"s_add_u32 {sT0}, {sT0}, 8192"); e(f"s_cmp_lt_u32 {sT0}, {1<<20}"); e("s_cbranch_scc1 L_mp_loop")
    xgroup(P, "v_max_f32", f"v{NEGM}", f"v{NEGM+1}"); xgroup(P, "v_max_f32", f"v{NEGM+4}", f"v{NEGM+5}")
    for q in range(2):
        m = NEGM + 4 * q
        for i in (1, 2, 3, 0): e(f"v_sub_f32 v{m+i}, {f2u(-float(cfg.toff)) if cfg.toff else 0:#x}, v{m}")
    e("L_again:")
    e("s_waitcnt vmcnt(0) lgkmcnt(0)")
    e("v_mbcnt_lo_u32_b32 v0, -1, 0"); e("v_mbcnt_hi_u32_b32 v0, -1, v0"); e(f"s_lshl_b32 s7, {sWV}, 6"); e("v_add_u32 v0, s7, v0")
    e(f"s_mov_b32 {sMODE}, 1"); e("s_setprio 0")
    e("s_barrier")
    e("s_branch L_restart")
    mp = P.since(m2)
    body = its[0] + its[1] + its[2] + its[3]
    trace = pro + body * 2 + its[0] + its[1] + its[2] + post
    skip = set(id(x) for x in minit)
    trace2 = [x for x in pro if id(x) not in skip] + body
    extra = []
    if itb:
        bb = itb[0] + itb[1] + itb[2] + itb[3]
        extra = [pro + bb * 2 + itb[0] + itb[1] + itb[2] + post]
    return [trace, trace2] + extra, [mp, cslow]

def poll(P, name, load, cmp, pre_issued=False):
    e = P.e
    if not pre_issued: e(load)
    e(cmp); e("s_cmp_eq_u64 vcc, -1"); e(f"s_cbranch_scc1 {name}_ok")
    m = P.mark()
    e(f"s_mov_b32 s7, {SPIN}")
    e(f"{name}_lp:")
    e(f"s_sleep {CFG.slp}")
    e(load, tag='opt'); e("s_waitcnt vmcnt(0)")
    e(cmp); e("s_cmp_eq_u64 vcc, -1"); e(f"s_cbranch_scc1 {name}_ok")
    e("s_sub_u32 s7, s7, 1"); e(f"s_cbranch_scc0 {name}_lp")
    slow = P.since(m)
    e(f"{name}_ok:")
    return slow

def rnd8(P, r, t):
    for d in range(4): P.e(f"v_cvt_pk_bf16_f32 v{t+d}, v{r+2*d}, v{r+2*d+1}")
    for d in range(4): P.e(f"v_lshlrev_b32 v{r+2*d}, 16, v{t+d}"); P.e(f"v_and_b32 v{r+2*d+1}, {sHI}, v{t+d}")

def gen_helper(P, cfg, FH):
    e = P.e
    m0 = P.mark()
    e("L_helper:")
    e(f"s_setprio {cfg.qprio}")
    F = gen_qproj(P, cfg, True, FH)
    dma_kv(F, 'V', 1, 5); dma_kv(F, 'K', 3, 3); dma_kv(F, 'V', 2, 6); F.flush()
    e(f"s_mov_b32 s73, {f2u(-LOG2E):#x}")
    lo, hi = cfg.plo, cfg.phi
    if lo != 2: e(f"s_setprio {lo}")
    P.waitvm(('V', 0), ('K', 2))
    e("s_barrier")
    GU0 = 3; ACT0 = GU0 + 28; NACT = cfg.nact; DN0 = ACT0 + NACT
    GPUB = [DN0 + 10, DN0 + 16]; GPOLL = [DN0 + 12, DN0 + 21]; GSRC = [112, 0]; GSET = DN0 + 2; GSET2 = DN0 + 15
    slows = []
    ntr = [cfg.ktr]
    def acc_g(m, ee, mat, qt): return 112 + 32 * (m & 1) + (ee * 2 + qt) * 8 + mat * 4
    def act(m):
        L = []
        for ee in range(2):
            regs = [acc_g(m, ee, 0, qt) + i for qt in range(2) for i in range(4)]
            for r in regs: L.append(f"v_mul_f32 v{r}, s73, v{r}")
            for r in regs: L.append(f"v_exp_f32 v{r}, v{r}")
            for r in regs: L.append(f"v_add_f32 v{r}, 1.0, v{r}")
            for r in regs: L.append(f"v_rcp_f32 v{r}, v{r}")
            for r in regs: L.append(f"v_mul_f32 v{r}, v{r}, v{r+4}")
            for qt in range(2):
                a = acc_g(m, ee, 0, qt); d = 208 + (m * 2 + qt) * 4 + ee * 2
                L.append(f"v_cvt_pk_bf16_f32 v{d}, v{a}, v{a+1}"); L.append(f"v_cvt_pk_bf16_f32 v{d+1}, v{a+2}, v{a+3}")
        return L
    def split(L, n):
        cost = [2 if t.startswith(('v_exp', 'v_rcp')) else 1 for t in L]; tot = sum(cost); parts = [[] for _ in range(n)]; acc = 0
        for t, c in zip(L, cost):
            parts[min(n - 1, acc * n // tot)].append(t); acc += c
        return parts
    def acc_d(nt, ee, qt): return 48 + 16 * (nt & 1) + (qt * 2 + ee) * 4
    def out_cv(nt):
        o = 80 + 8 * (nt & 1)
        return [f"v_cvt_pk_bf16_f32 v{o+4*qt+i}, v{acc_d(nt, 0, qt)+2*i}, v{acc_d(nt, 0, qt)+2*i+1}" for qt in range(2) for i in range(4)]
    def out_st(nt):
        o = 80 + 8 * (nt & 1)
        e(f"s_mov_b32 {sT3}, {(nt>>1)*STG + (nt&1)*32768}"); e(f"buffer_store_dwordx4 {vr(o,4)}, v249, {SP}, {sT3} offen sc1", tag=('st', nt // 8))
        e(f"s_addk_i32 {sT3}, 16384"); e(f"buffer_store_dwordx4 {vr(o+4,4)}, v249, {SP}, {sT3} offen sc1", tag=('st', nt // 8))
    def chunk_mf(c, i):
        b, ee = i >> 1, i & 1
        if c < 28:
            m, s = divmod(c, 7); T = 2 * s + (b >> 1)
            return [(acc_g(m, ee, b & 1, qt), (2 * T + qt) * 4, T == 0) for qt in range(2)]
        return [(acc_d(c - 28, ee, qt), 208 + (b * 2 + qt) * 4, b == 0) for qt in range(2)]
    def rd(c, i):
        imm = (c % 3) * GLUS + (i >> 1) * 2048
        e(f"{TR} {vr(176+4*i,2)}, v{246+(i&1)} offset:{imm}"); e(f"{TR} {vr(178+4*i,2)}, v{246+(i&1)} offset:{imm+1024}")
    small_only = []; big_only = []
    def burst(c, nxt, fill, skip_from=8):
        fill = list(fill)
        if hi != lo: e(f"s_setprio {hi}")
        for i in range(8):
            if i == skip_from:
                for t in fill: e(t)
                fill = []
                e("s_cmp_lg_u32 s99, 0"); e(f"s_cbranch_scc1 L_bs{c}"); mk = P.mark()
            for k, (acc, bb, z) in enumerate(chunk_mf(c, i)[::-1] if (cfg.snake & 4 and i & 1) else chunk_mf(c, i)):
                e(f"{MF} {vr(acc,4)}, {vr(176+4*i,4)}, {vr(bb,4)}, {'0' if z else vr(acc,4)}")
                if k == 0:
                    room = 2
                    while fill and room > 0:
                        cst = 2 if fill[0].startswith(('v_exp', 'v_rcp')) else 1
                        if cst > room: break
                        e(fill.pop(0)); room -= cst
            if nxt is not None: rd(nxt, i)
        if skip_from < 8:
            big_only.extend(P.since(mk)); e(f"L_bs{c}:")
        if hi != lo: e(f"s_setprio {lo}")
        for t in fill: e(t)
    for j in range(64):
        if j in (3, ACT0, DN0, DN0 + 14, 62): stamp(P, cfg, {3: 4, ACT0: 5, DN0: 6, DN0 + 14: 7, 62: 8}[j])
        if j in (3, ACT0) and not cfg.hack & 16: stamp(P, cfg, {3: 1, ACT0: 2}[j], True)
        if j == GSET + 1: e("global_load_dword v253, v252, s[68:69] sc1")
        if j in GPOLL: e(f"buffer_load_dword v253, v252, {SF}, s84 offen offset:{128*GPOLL.index(j)} sc1")
        if j + 4 < 64 and not cfg.x & 1: dma_kv(F, 'K', j + 4, j & 3)
        if j == 21: F.add('s_cmp_lg_u32 s99, 0', f's_cselect_b32 s{srd(5)+2}, 0, s{srd(5)+2}')
        if j < 28: dma_gu(F, j)
        if 0 <= j + 3 - DN0 < 14: dma_wd(F, 28 + j + 3 - DN0, j + 3 - DN0)
        if j + 3 < 64 and not (cfg.x & 1 and j): dma_kv(F, 'V', j + 3, 4 + ((j + 3) & 3))
        for nt in {59: [0], 60: [1], 61: [2, 3], 62: [4, 5], 63: [6, 7]}.get(j, []): dma_wo(F, nt, WO_SLOT[nt])
        if cfg.touch:
            if cfg.ltouch and j % cfg.tper == 0 and ntr[0] < min(16, j // 4 + cfg.klead + 1):
                ntr[0] += 1
                F.add(f"s_add_u32 {sT3}, s89, {(ntr[0]-1)*65536}", f"buffer_load_dword v244, v243, {ST}, {sT3} offen", tag='touch')
            if j == 10:
                F.add(f"s_mul_i32 {sT3}, {sSH}, 7168", f"s_add_u32 {sT3}, {sT3}, s88", f"s_lshl_b32 {sT3}, {sT3}, {cfg.hx-1}", f"buffer_load_dword v244, v243, {SWD}, {sT3} offen", tag='touch')
            if j in (cfg.wot, cfg.wot + 2, cfg.wot2, cfg.wot2 + 2):
                F.add(f"s_mul_i32 {sT3}, {sSH}, 14336", f"s_add_u32 {sT3}, {sT3}, s88", f"s_add_u32 {sT3}, {sT3}, {0 if j in (cfg.wot, cfg.wot2) else 8192}", f"s_lshl_b32 {sT3}, {sT3}, {cfg.hx-1}", f"buffer_load_dword v244, v243, {SWO}, {sT3} offen", tag='touch')
        if j == GU0 - 1:
            for i in range(8): rd(0, i)
        if GU0 <= j < ACT0:
            c = j - GU0; m, s = divmod(c, 7)
            fill = split(act(m - 1), 7)[s] if m else []
            if m == 3:
                e("s_cmp_lg_u32 s99, 0"); e(f"s_cbranch_scc0 L_bg{c}")
                mk = P.mark()
                for t in fill: e(t)
                e(f"s_branch L_be{c}")
                small_only.extend(P.since(mk))
                e(f"L_bg{c}:"); mk = P.mark()
            burst(c, c + 1 if c < 27 else None, fill)
            if m == 3: big_only.extend(P.since(mk)); e(f"L_be{c}:")
        if DN0 <= j < DN0 + 14:
            nt = j - DN0
            burst(28 + nt, 29 + nt if nt < 13 else None, out_cv(nt - 1) if nt else [], skip_from=6)
        if j == DN0 + 14:
            for t in out_cv(13): e(t)
        if ACT0 <= j < DN0:
            F.flush()
            e("s_cmp_lg_u32 s99, 0"); e(f"s_cbranch_scc1 L_as{j}"); mk = P.mark()
            for t in split(act(3), NACT)[j - ACT0]: e(t)
            big_only.extend(P.since(mk)); e(f"L_as{j}:")
            if j == DN0 - 1:
                for i in range(8): rd(28, i)
        if j == GSET:
            for t in final_salu(): e(t)
            e(f"s_lshl_b32 s7, {sQB}, 4"); e("v_mov_b32 v252, s7")
        if j == GSET2:
            F.emit(4)
            e("v_and_b32 v176, 15, v255"); e("v_lshrrev_b32 v177, 4, v255")
            e("v_mul_u32_u24 v251, 896, v176"); e("v_lshl_add_u32 v251, v177, 4, v251")
            e("v_lshrrev_b32 v178, 3, v255"); e("v_lshlrev_b32 v179, 1, v177"); e("v_and_b32 v180, 7, v255"); e("v_xor_b32 v179, v179, v180")
            e("v_mul_u32_u24 v248, 896, v178"); e("v_lshl_add_u32 v248, v179, 4, v248")
            e("v_bfe_u32 v178, v176, 2, 1"); e("v_lshlrev_b32 v178, 3, v178")
            e("v_lshrrev_b32 v179, 3, v176"); e("v_lshl_add_u32 v178, v179, 1, v178")
            e("v_bfe_u32 v179, v176, 1, 1"); e("v_add_u32 v178, v178, v179")
            e("v_lshlrev_b32 v179, 2, v177"); e("v_sub_u32 v178, v178, v179")
            e("v_and_b32 v179, 1, v176"); e("v_lshlrev_b32 v179, 4, v179"); e("v_mov_b32 v180, 0x3f80"); e("v_lshlrev_b32 v179, v179, v180")
            for ee in range(2):
                for i in range(4):
                    e(f"v_cmp_eq_u32 vcc, {i - 4 * ee}, v178"); e(f"v_cndmask_b32 v{192+4*ee+i}, 0, v179, vcc")
        F.flush()
        if DN0 + 1 <= j <= DN0 + 14: out_st(j - DN0 - 1)
        if j == GSET2 + 2:
            for r in range(2): e(f"buffer_load_dwordx4 {vr(216+4*r,4)}, v251, {SX}, s86 offen offset:{r*512}")
            if cfg.otouch: e(f"buffer_load_dword v244, off, {SO}, s86", tag='touch')
        if j in GPUB:
            r = GPUB.index(j)
            e("v_mov_b32 v96, 0"); e(f"v_mov_b32 v97, 1"); P.waitvm(('st', r))
            e("s_mov_b64 exec, 1"); e(f"global_store_dword v96, v97, s[100:101] offset:{128*r} sc1", tag='fl'); e("s_mov_b64 exec, -1")
        if j == GSET + 1:
            slows.append(poll(P, "L_pa", "global_load_dword v253, v252, s[68:69] sc1", "v_cmp_le_u32 vcc, 16, v253", True))
            e("v_and_b32 v252, 15, v255"); e("v_lshlrev_b32 v252, 2, v252")
        if j in GPOLL:
            r = GPOLL.index(j)
            slows.append(poll(P, f"L_pg{r}", f"buffer_load_dword v253, v252, {SF}, s84 offen offset:{128*r} sc1", "v_cmp_le_u32 vcc, 1, v253", True))
        for r in range(2):
            k = j - GPOLL[r] - 1
            if 0 <= k < 8:
                for h in (2 * k, 2 * k + 1):
                    e(f"s_mov_b32 {sT3}, {GP_OFF + h*1024 + r*4*STG}")
                    e(f"buffer_load_dwordx4 {vr(GSRC[r]+4*h,4)}, v249, {SR}, {sT3} offen sc1")
        if j == cfg.pe: stamp(P, cfg, 13)
        if j < 63:
            need = [('K', j + 3), ('V', j + 1), ('G', j - 1)]
            if 0 <= j + 2 - DN0 < 14: need.append(('G', 28 + j + 2 - DN0))
        else:
            need = [('WO', 0), ('WO', 1)]
            e(f"v_mov_b32 v176, {FLAG}")
        P.waitvm(*need)
        if GU0 - 1 <= j < DN0 + 13: e("s_waitcnt lgkmcnt(0)")
        if j == cfg.pe: stamp(P, cfg, 14)
        e("s_barrier")
        if j == cfg.pe - 1: stamp(P, cfg, 9)
        if j == cfg.pe: stamp(P, cfg, 15)
    e("ds_read_b32 v177, v176")
    for k in range(6):
        if cfg.hack & 32 and k >= 2: stamp(P, cfg, 1 + 3 * (k - 2))
        dma_wo(F, 8 + k, WO_SLOT[8 + k]); F.flush()
        if cfg.hack & 32 and k >= 2: stamp(P, cfg, 2 + 3 * (k - 2))
        if k == 0:
            e("v_readfirstlane_b32 s7, v177")
            e(f"s_andn2_b32 s7, s7, {sMODE}"); e("s_cbranch_scc1 L_again")
        P.waitvm(*[('WO', t) for t in ([k + 2] if k < 4 else range(6, cfg.lastb) if k == 4 else range(cfg.lastb, 14))])
        if cfg.hack & 32 and k >= 2: stamp(P, cfg, 3 + 3 * (k - 2))
        e("s_barrier")
    if cfg.hack & 32: stamp(P, cfg, 13); dump_stamps(P); e("s_endpgm")
    e(f"s_setprio {cfg.pep}")
    if cfg.hack & 4: e("s_branch L_hdone")
    e(f"s_cmp_eq_u32 {sSUB}, 3"); e("s_cbranch_scc1 L_hskip")
    for t in xch_salu(): e(t)
    e("v_add_u32 v176, s85, v249"); e("v_add_u32 v177, s90, v249"); e("v_mov_b32 v250, v249")
    for h in range(16): e(f"ds_write_b128 v176, {vr(4*h,4)} offset:{h*1024}")
    for k, r0 in enumerate((192, 196, 220, 250)): e(f"ds_write_b128 v177, {vr(r0,4)} offset:{k*1024}")
    e("L_hskip:")
    e("s_waitcnt vmcnt(0) lgkmcnt(0)")
    e("s_barrier")
    fetch(P, cfg, 0, 0, "v249", lambda: (msum(P, 200, 112), silu8(P, 200)))
    fin(P, cfg, 0, 0, 216)
    e("L_hdone:")
    if cfg.stamps:
        e("s_waitcnt vmcnt(0)"); stamp(P, cfg, 11, True); dump_stamps(P)
    e("s_endpgm")
    sk = set(id(x) for s in slows for x in s)
    allh = [x for x in P.since(m0) if id(x) not in sk]
    so = set(map(id, small_only)); bo = set(map(id, big_only))
    return [[x for x in allh if id(x) not in so], [x for x in allh if id(x) not in bo]], slows

def kd(name, vgpr, ydim=False):
    return "\n".join([f".amdhsa_kernel {name}", f"  .amdhsa_next_free_vgpr {vgpr}", "  .amdhsa_next_free_sgpr 102",
        f"  .amdhsa_accum_offset {vgpr}", "  .amdhsa_group_segment_fixed_size 0", "  .amdhsa_kernarg_size 96",
        "  .amdhsa_user_sgpr_count 2", "  .amdhsa_user_sgpr_kernarg_segment_ptr 1", "  .amdhsa_system_sgpr_workgroup_id_x 1"]
        + (["  .amdhsa_system_sgpr_workgroup_id_y 1"] if ydim else []) + [".end_amdhsa_kernel"])

HEADER = """
; waves 4-7 stream K/V/weights into LDS (LDS-DMA rings) and run this workgroup's slice of the GLU branch.
; Per-head partial results go through d_ws (write-through stores, per-wave flags reset at start, arrival count in d_debug)
"""
def generate(cfg=None):
    cfg = cfg or Cfg()
    global FIXED, WAITS, PLACE, CFG
    CFG = cfg
    FIXED, WAITS, PLACE = sched.plan(wait_group=cfg.wg)
    P = Prog()
    K1 = NAME + "_kernel"
    P.e(".p2align 8"); P.e(f"{K1}:")
    m = P.mark(); gen_entry(P, cfg); entry = P.since(m)
    m = P.mark(); FC = gen_setup(P, cfg, False); P.e("s_branch L_ln"); cs = P.since(m)
    P.e("L_hs:")
    m = P.mark(); FH = gen_setup(P, cfg, True); hs = P.since(m)
    P.e("L_ln:")
    m = P.mark(); gen_ln(P, cfg); ln = P.since(m)
    ctraces, other = gen_compute(P, cfg, FC)
    htrace, hother = gen_helper(P, cfg, FH)
    ctraces = [cs + ln + t for t in ctraces]; htrace = [hs + ln + t for t in htrace]
    P.e("L_end:"); P.e("s_endpgm")
    P.e("L_code_end:")
    full = [entry + t for t in ctraces] + [entry + t for t in htrace]
    resolve(full + [[x for x in t if x.tag != 'opt'] for t in full] + other + hother)
    nb = lambda t: sum(1 for x in t if x.kind != 'none' and x.op == 's_barrier')
    print("barriers compute", nb(ctraces[0]) + 13 * 4, "helper", nb(htrace[0]), nb(htrace[1]))
    if cfg.hack & 2:
        for I in P.L:
            if I.text.startswith("buffer_store_dwordx4"): I.text = I.text.replace(" sc1", "")
    if cfg.hack & 8:
        for I in P.L:
            if I.text.startswith("buffer_store_dwordx4"): I.text = I.text.replace(" sc1", " sc0 sc1")
    if cfg.dflag:
        fl = {1: "nt", 2: "sc1", 3: "sc0", 4: "sc0 sc1", 5: "sc0 nt", 6: "sc1 nt"}[cfg.dflag]
        for I in P.L:
            if I.text.endswith(" lds") and I.tag and I.tag[0] in ('K', 'V', 'G', 'WQ', 'WO'): I.text = I.text[:-4] + f" {fl} lds"
    out = expand(P.L)
    mis = align8(out) if cfg.al else -1
    head = HEADER.strip().splitlines() + [f"; @launch grid=(256,1,1) block=(512,1,1) lds={LDS_BYTES}",
            '.amdgcn_target "amdgcn-amd-amdhsa--gfx950"', ".text",
            f".globl {K1}", f".type {K1},@function"]
    span = 0
    for I in out:
        if I.text == "L_code_end:": break
        if I.text.startswith(".p2align"):
            a = 1 << int(I.text.split()[1]); span = -(-span // a) * a
        span += I.size()
    body = [I.text.replace("CODE_SPAN", str((span - 128) & ~3)) for I in out]
    print("code bytes K1", span)
    tail = ['.section .rodata,"a"', ".p2align 6", kd(K1, 256)]
    return "\n".join(head + body + tail) + "\n", mis

if __name__ == "__main__":
    cfg = Cfg()
    for a in sys.argv[2:]:
        k, v = a.split('='); setattr(cfg, k, float(v) if k == 'thr' else int(v))
    s, mis = generate(cfg)
    open(sys.argv[1], "w").write(s)
    print("bytes", len(s), "lines", s.count("\n"), "misaligned", mis)
```

```python
import struct, sys
from asmlib import *
import sched

NAME = "recurrent_scan__mha_block_cached__glu_gated_glu__prompt"
def f2u(x): return struct.unpack('<I', struct.pack('<f', x))[0]
LOG2E = 1.4426950408889634
SLOT = 16896
GLUB = 8 * SLOT
GLUS = 8192
FLAG = GLUB - 32
LDS_BYTES = 163840
GP_OFF = 0x2000000
STG = 262144
FL_OFF = 0x4000000
SPIN = 400000

sHEAD, sQB, sWV, sSUB = 's3', 's4', 's5', 's6'
SX, SK, SV, SWQ, SWO, SWG, SWU, SWD, SP, ST = [f"s[{8+4*i}:{11+4*i}]" for i in range(10)]
sC = 's72'; sHI = 's74'; sTRIP = 's75'
sLK, sLV, sL1K = 's76', 's77', 's78'
sMODE = 's79'
sSH = 's91'
sT0, sT1, sT2, sT3 = 's80', 's81', 's82', 's83'
sKO, sVO = 's96', 's97'
def srd(i): return 8 + 4 * i
def vr(a, n): return f"v[{a}:{a+n-1}]"
MF = "v_mfma_f32_16x16x32_bf16"
TR = "ds_read_b64_tr_b16"

class Cfg:
    glu = 1
    touch = 1
    prio = 2
    stamps = 0
    thr = 2.0 ** 64
    wq_at = 33
    xpar = 0
    pe = 20
    hack = 0
    plo = 0
    hx = 1
    t_at = 28
    ktr = 3
    klead = 16
    gtouch = 1
    tq0 = 8
    phi = 2
    nact = 2
    flip = 0
    x = 0
    snake = 7
    lnpk = 3
    pre2 = 0
    xrot = 1
    stouch = 0
    tlb = 0
    ltd = 1
    q0e = 4
    qprio = 2
    al = 1
    fmode = 0
    pn = 0
    toff = 0
    obias = 0
    wot2 = 27
    wsoff = 0
    tper = 2
    oflag = 1
    otouch = 0
    dflag = 0
    vbit = -1
    bara = 15
    barb = 15
    pep = 0
    pd = 2
    lastb = 9
    pubr = 13
    ctop = 1
    xat = 224
    ssp = 4
    fo = 1
    sn = -1
    wot = 57
    pl = 4
    slp = 8
    wg = 3
    ltouch = 1
    etouch = 1

def stream(P, items, bufs, lead, gapfill=None, group=2, start=None):
    n = len(items)
    buf = [bufs[i % len(bufs)] for i in range(n)]
    def reads(i):
        it = items[i]
        if it.get('hook'): it['hook']()
        for (op, addr, imm, sub, w) in it['reads']:
            P.e(f"{op} {vr(buf[i]+sub, w)}, {addr} offset:{imm}")
    for i in range(min(lead, n)): reads(i)
    if start: start()
    for i in range(n):
        it = items[i]
        for k, (acc, b, c) in enumerate(it['mf'][::-1] if (CFG.snake & 4 and i & 1) else it['mf']):
            extra = set()
            if group and k == len(it['mf']) - 1 and (i + 1) % group == 0:
                for z in range(1, group + 1):
                    if i + z < n: extra |= regs_of(vr(buf[i+z], 4))
            P.e(f"{MF} {vr(acc,4)}, {vr(buf[i],4)}, {vr(b,4)}, {c if c is not None else vr(acc,4)}", extra_rd=extra)
            if k == len(it['mf']) - 1 and i + lead < n: reads(i + lead)
            elif gapfill: gapfill(i, k)

def tr_reads(addr, imm0, imm1): return [(TR, addr, imm0, 0, 2), (TR, addr, imm1, 2, 2)]

class Filler:
    def __init__(self, P): self.P = P; self.q = []
    def add(self, *texts, **kw): self.q.append((texts, kw))
    def emit(self, k=1):
        for _ in range(k):
            if not self.q: return
            texts, kw = self.q.pop(0)
            for t in texts:
                if isinstance(t, tuple): self.P.waitvm(*t)
                elif t.startswith(('buffer_', 'global_')): self.P.e(t, **kw)
                else: self.P.e(t)
    def flush(self): self.emit(len(self.q))
    def wait(self, *tags):
        assert not any(kw.get('tag') in tags for _, kw in self.q), tags
        self.P.waitvm(*tags)

def dma_kv(F, which, tile, slot):
    sr, sl, so = (SK, sLK, sKO) if which == 'K' else (SV, sLV, sVO)
    ld = lambda off: f"buffer_load_dwordx4 v240, {sr}, {so} offen" + (f" offset:{off}" if off else "") + " lds"
    tag = (which, tile)
    F.add(f"s_add_u32 m0, {sl}, {slot*SLOT}", f"s_addk_i32 {so}, 8192", ld(0), tag=tag)
    F.add("s_addk_i32 m0, 32", ld(1024), tag=tag)
    F.add(f"s_addk_i32 m0, {8448-32}", f"s_addk_i32 {so}, 8192", ld(0), tag=tag)
    F.add("s_addk_i32 m0, 32", ld(1024), tag=tag)
def dma_wq(F, tile, slot):
    ld = f"buffer_load_dwordx4 v245, {SWQ}, {sT0} offen lds"
    tag = ('WQ', tile)
    F.add(f"s_add_u32 m0, {sLV}, {slot*SLOT}", f"s_mov_b32 {sT0}, {32*tile*8192}", ld, tag=tag)
    for d in (1056, 7392, 1056):
        F.add(f"s_addk_i32 m0, {d}", f"s_addk_i32 {sT0}, 16384", ld, tag=tag)
def dma_wo(F, t, slot):
    ld = f"buffer_load_dwordx4 v248, {SWO}, {sT0} offen lds"
    tag = ('WO', t)
    F.add(f"s_add_u32 m0, {sL1K}, {slot*SLOT}", f"s_add_u32 {sT0}, s87, {(t & 1)*128*896 + (t >> 1)*128}", ld, tag=tag)
    for p in range(3): F.add("s_addk_i32 m0, 1024", f"s_addk_i32 {sT0}, {8*896}", ld, tag=tag)
def dma_gu(F, c):
    base = GLUB + (c % 3) * GLUS; m, s = divmod(c, 7)
    ld = f"buffer_load_dwordx4 v241, {SWG}, {sT2} offen lds"
    F.add(f"s_add_u32 m0, s88, {base}", f"s_mov_b32 {sT2}, {64*s*3584 + m*64}", ld, tag=('G', c))
    F.add("s_addk_i32 m0, 1024", f"s_addk_i32 {sT2}, {4*3584}", ld, tag=('G', c))
def dma_wd(F, c, nt):
    base = GLUB + (c % 3) * GLUS
    ld = f"buffer_load_dwordx4 v242, {SWD}, {sT2} offen lds"
    F.add(f"s_add_u32 m0, s88, {base}", f"s_add_u32 {sT2}, s87, {nt*64}", ld, tag=('G', c))
    F.add("s_addk_i32 m0, 1024", f"s_addk_i32 {sT2}, 14336", ld, tag=('G', c))

WQ_SLOT = {0: 7, 1: 8, 2: 5, 3: 3, 4: 6, 5: 4, 6: 0, 7: 1, 8: 2, 9: 7, 10: 8, 11: 5, 12: 3, 13: 6}
WO_SLOT = {0: 8, 1: 0, 2: 1, 3: 4, 4: 2, 5: 5, 6: 3, 7: 6, 8: 7, 9: 8, 10: 0, 11: 1, 12: 4, 13: 2}

def streg(idx): return {0: 's94', 10: 's95'}.get(idx, f"s{48+idx}") if not H32 else f"s{48+idx}"
H32 = False
NLAB = 0
def stamp(P, cfg, idx, real=False):
    if not cfg.stamps: return
    P.e(f"{'s_memrealtime' if real else 's_memtime'} s[64:65]"); P.e("s_waitcnt lgkmcnt(0)")
    P.e(f"s_mov_b32 {streg(idx)}, s64")
def dump_stamps(P):
    e = P.e
    global H32
    H32 = bool(CFG.hack & (32 | 256))
    if CFG.hack & 128:
        global NLAB
        NLAB += 1
        e("s_mov_b64 exec, 1")
        e("v_mov_b32 v0, 0"); e(f"v_mov_b32 v1, {streg(11)}"); e(f"s_not_b32 s7, {streg(10)}"); e("v_mov_b32 v2, s7")
        e("global_atomic_umax v0, v1, s[68:69] offset:4"); e("global_atomic_umax v0, v2, s[68:69] offset:8")
        e(f"s_lshl_b32 s7, s2, 3"); e(f"s_add_u32 s7, s7, {sWV}"); e(f"s_cmp_lg_u32 s7, {37*8}"); e(f"s_cbranch_scc1 L_nd{NLAB}")
        for w, (x, y) in zip((3, 5, 6, 7, 9, 10, 11, 13, 14), ((1, 0), (2, 1), (3, 2), (4, 3), (5, 4), (6, 5), (13, 6), (8, 13), (11, 10))):
            e(f"s_sub_u32 s7, {streg(x)}, {streg(y)}"); e(f"v_mov_b32 v{w+4}, s7"); e(f"global_store_dword v0, v{w+4}, s[68:69] offset:{4*w}")
        e(f"L_nd{NLAB}:")
        return
    for i in range(16): e(f"v_writelane_b32 v254, {streg(i)}, {i}")
    e(f"s_lshl_b32 s7, s2, 3"); e(f"s_add_u32 s7, s7, {sWV}"); e("s_lshl_b32 s7, s7, 8"); e("s_add_u32 s7, s7, 0x8000000")
    e("s_add_u32 s96, s70, s7"); e("s_addc_u32 s97, s71, 0")
    e("v_mbcnt_lo_u32_b32 v255, -1, 0"); e("v_mbcnt_hi_u32_b32 v255, -1, v255"); e("v_lshlrev_b32 v255, 2, v255")
    e("global_store_dword v255, v254, s[96:97]")

def mad(P, dst, src, mul, acc=None):
    P.e(f"s_movk_i32 s7, {mul}" if mul < 32768 else f"s_mov_b32 s7, {mul}")
    if acc is None: P.e(f"v_mul_u32_u24 {dst}, s7, {src}")
    else: P.e(f"v_mad_u32_u24 {dst}, {src}, s7, {acc}")

def gen_entry(P, cfg):
    e = P.e
    e("s_cmp_ge_u32 s2, 256"); e("s_cbranch_scc1 L_end")
    e(f"s_mov_b32 {sMODE}, 0")
    e("L_restart:")
    stamp(P, cfg, 0); stamp(P, cfg, 10, True)
    e("s_load_dwordx16 s[48:63], s[0:1], 0"); e("s_load_dwordx8 s[64:71], s[0:1], 64")
    e("s_getpc_b64 s[96:97]")
    if cfg.ctop:
        e("s_lshr_b32 s7, s2, 3"); e("s_lshl_b32 s7, s7, 12"); e("v_lshl_add_u32 v189, v0, 3, s7"); e("v_min_u32 v189, CODE_SPAN, v189")
        e("global_load_dword v251, v189, s[96:97]", tag='touch')
    e("v_lshrrev_b32 v1, 6, v0")
    e("v_and_b32 v255, 63, v0")
    e(f"v_readfirstlane_b32 {sWV}, v1")
    hx = cfg.hx; lm = hx - 1; M = 1 << lm
    e(f"s_and_b32 {sHEAD}, s2, {(16 >> hx) - 1}"); e(f"s_lshl_b32 {sHEAD}, {sHEAD}, {hx}"); e(f"s_bfe_u32 s7, s2, {(hx << 16) | 3:#x}"); e(f"s_add_u32 {sHEAD}, {sHEAD}, s7")
    e(f"s_lshr_b32 {sSH}, s2, {3 + hx}")
    if hx > 1: e(f"s_bfe_u32 s7, s2, {(lm << 16) | (4 - hx):#x}"); e(f"s_lshl_b32 s7, s7, {5 - hx}"); e(f"s_add_u32 {sQB}, {sSH}, s7")
    else: e(f"s_mov_b32 {sQB}, {sSH}")
    e(f"s_and_b32 {sSUB}, {sWV}, 3")
    e("s_mov_b32 s11, 0x20000"); e(f"s_mov_b32 s10, {2048*896}")
    e("v_lshrrev_b32 v186, 3, v255"); e("v_and_b32 v185, 7, v255"); e("v_lshlrev_b32 v184, 4, v185"); mad(P, 'v184', 'v186', 896, 'v184')
    if cfg.xrot: e(f"s_add_u32 s84, {sWV}, s2"); e("s_and_b32 s84, s84, 7"); e(f"s_and_b32 {sTRIP}, s2, {cfg.xrot & 1}")
    else: e(f"s_mov_b32 s84, {sWV}"); e(f"s_mov_b32 {sTRIP}, 0")
    e(f"s_lshl_b32 s7, {sQB}, 3"); e("s_add_u32 s7, s7, s84"); e(f"s_mul_i32 {sT0}, s7, {16*896}")
    def mk(i, plo, mul, total, exact=None, idx=sHEAD):
        b = srd(i)
        e(f"s_mul_i32 s7, {idx}, {mul}")
        e(f"s_add_u32 s{b}, s{plo}, s7"); e(f"s_addc_u32 s{b+1}, s{plo+1}, 0")
        if exact is not None: e(f"s_mov_b32 s{b+2}, {exact}")
        else: e(f"s_sub_u32 s{b+2}, {total}, s7")
    e(f"v_lshrrev_b32 v250, {4-lm}, v0"); e("v_lshlrev_b32 v250, 13, v250"); e(f"v_and_b32 v2, {(16>>lm)-1}, v0"); e(f"v_lshl_add_u32 v250, v2, {5+lm}, v250")
    e(f"s_mul_i32 s90, {sSH}, {28*M*8192}")
    for i in range(1, 10): e(f"s_mov_b32 s{srd(i)+3}, 0x20000")
    e(f"s_mul_i32 s7, {sTRIP}, {8*896}"); e(f"s_add_u32 {sT1}, {sT0}, {8*896}"); e(f"s_add_u32 {sT0}, {sT0}, s7"); e(f"s_sub_u32 {sT1}, {sT1}, s7")
    e("s_waitcnt lgkmcnt(0)")
    if cfg.hack & 16: e("s_memtime s[86:87]")
    e("s_mov_b32 s8, s48"); e("s_mov_b32 s9, s49")
    if cfg.t_at == -2:
        mk(3, 54, 512, 448 * 8192); e(f"buffer_load_dword v251, v250, {SWQ}, s90 offen", tag='touch')
    for kp in range(7): e(f"buffer_load_dwordx4 {vr(128+4*kp,4)}, v184, {SX}, {sT0} offen offset:{kp*128}")
    if cfg.t_at != -2: mk(3, 54, 512, 448 * 8192)
    if cfg.t_at == -1: e(f"buffer_load_dword v251, v250, {SWQ}, s90 offen", tag='touch')
    if cfg.tlb & 1:
        e(f"s_load_dword s92, s[{srd(3)}:{srd(3)+1}], 0"); e(f"s_add_u32 s96, s{srd(3)}, {447*8192}"); e(f"s_addc_u32 s97, s{srd(3)+1}, 0"); e("s_load_dword s92, s[96:97], 0")
    if cfg.stouch:
        e(f"s_cmp_eq_u32 {sWV}, 7"); e("s_cbranch_scc1 L_nost")
        e(f"s_lshl_b32 s7, {sWV}, 15"); e("s_add_u32 s7, s7, s90"); e(f"s_add_u32 s96, s{srd(3)}, s7"); e(f"s_addc_u32 s97, s{srd(3)+1}, 0")
        for r in range(4):
            for l in range(4 * cfg.stouch): e(f"s_load_dword s92, s[96:97], {r*8192 + l*(128//cfg.stouch)}")
        e("L_nost:")
    if cfg.wsoff: e(f"s_add_u32 s70, s70, {cfg.wsoff << 20}"); e("s_addc_u32 s71, s71, 0")
    mk(1, 50, 1 << 20, 0, 1 << 20)
    mk(2, 52, 1 << 20, 0, 1 << 20)
    mk(4, 56, 256 * 896, 0, 256 * 896)
    assert hx == 1
    e("s_and_b32 s98, s2, 6"); e("s_bfe_u32 s7, s2, 0x10003"); e("s_add_u32 s98, s98, s7"); e("s_mul_i32 s98, s98, 7")
    e("s_and_b32 s99, s2, 1")
    if cfg.flip: e("s_mul_i32 s7, s99, 3"); e("s_xor_b32 s99, s99, 1")
    else: e("s_lshl_b32 s7, s99, 2")
    e("s_add_u32 s98, s98, s7")
    mk(5, 60, 64, 448 * 3584, idx='s98')
    mk(6, 62, 64, 448 * 3584, idx='s98')
    mk(7, 64, 32 * 896, 0, 128 * 896, idx='s98')
    e(f"s_mul_i32 s7, s99, {32*896}"); e(f"s_sub_u32 s{srd(7)+2}, s{srd(7)+2}, s7")
    e(f"s_mul_i32 s7, {sQB}, {7*STG}"); e(f"s_lshl_b32 {sT2}, {sSUB}, 16"); e(f"s_add_u32 s7, s7, {sT2}"); e(f"s_lshl_b32 {sT2}, {sHEAD}, 10"); e(f"s_add_u32 s7, s7, {sT2}")
    e(f"s_lshr_b32 {sT2}, {sWV}, 2"); e(f"s_mul_i32 {sT2}, {sT2}, {GP_OFF}"); e(f"s_add_u32 s7, s7, {sT2}")
    e(f"s_add_u32 s{srd(8)}, s70, s7"); e(f"s_addc_u32 s{srd(8)+1}, s71, 0"); e(f"s_mov_b32 s{srd(8)+2}, {7*STG}")
    e(f"s_lshl_b32 s7, {sQB}, 2"); e(f"s_add_u32 s7, s7, {sSUB}"); e("s_lshl_b32 s7, s7, 8"); e(f"s_add_u32 s7, s7, {sHEAD}"); e("s_lshl_b32 s7, s7, 2")
    e(f"s_lshr_b32 {sT2}, {sWV}, 2"); e(f"s_lshl_b32 {sT2}, {sT2}, 16"); e(f"s_add_u32 s7, s7, {sT2}"); e(f"s_add_u32 s7, s7, {FL_OFF}")
    e("s_add_u32 s100, s70, s7"); e("s_addc_u32 s101, s71, 0")
    if cfg.tlb & 2:
        for i in (1, 2, 4, 5, 6, 7, 8): e(f"s_load_dword s92, s[{srd(i)}:{srd(i)+1}], 0")
        for p in ("100:101", "66:67", "68:69"): e(f"s_load_dword s92, s[{p}], 0")
    e(f"s_cmp_lt_u32 {sSUB}, 2")
    e(f"s_cselect_b32 s{srd(9)}, s{srd(1)}, s{srd(2)}"); e(f"s_cselect_b32 s{srd(9)+1}, s{srd(1)+1}, s{srd(2)+1}"); e(f"s_mov_b32 s{srd(9)+2}, {1<<20}")
    e(f"s_lshl_b32 s89, {sSH}, {12+lm}"); e(f"s_and_b32 s7, {sSUB}, 1"); e(f"s_lshl_b32 s7, s7, {11+lm}"); e("s_add_u32 s89, s89, s7")
    e(f"s_mov_b32 {sC}, {f2u(LOG2E/16):#x}"); e(f"s_mov_b32 {sHI}, 0xffff0000")
    e("v_lshrrev_b32 v112, 4, v255"); e("v_bfe_u32 v114, v255, 2, 2"); e("v_and_b32 v115, 3, v255")
    e("v_lshrrev_b32 v116, 1, v114"); e("v_lshl_add_u32 v116, v112, 1, v116"); e("v_lshlrev_b32 v224, 3, v115"); mad(P, 'v224', 'v116', 1056, 'v224')
    e("v_and_b32 v116, 1, v114"); e("v_lshl_add_u32 v224, v116, 7, v224")
    e("v_bfe_u32 v117, v255, 2, 1"); e("v_lshl_add_u32 v116, v115, 1, v117"); e("v_xor_b32 v116, v116, v186"); e("v_lshlrev_b32 v187, 4, v116")
    e("v_lshl_add_u32 v187, v115, 8, v187"); e("v_xor_b32 v117, 1, v117"); e("v_lshl_add_u32 v187, v117, 13, v187")
    e("s_lshl_b32 s7, s84, 3"); e(f"s_add_u32 s7, s7, {sTRIP}"); e("s_lshl_b32 s7, s7, 7"); e("v_add_u32 v187, s7, v187"); e("v_add_u32 v188, 0x10000, v187")
    e("v_lshlrev_b32 v116, 1, v112"); e("v_and_b32 v117, 15, v255"); e("v_xor_b32 v116, v116, v117"); e("v_lshlrev_b32 v227, 4, v116"); e("v_lshl_add_u32 v227, v112, 8, v227")
    e(f"s_lshl_b32 s7, {sSUB}, 11"); e("v_add_u32 v227, s7, v227"); e("v_add_u32 v228, 0x10000, v227")
    e("v_xor_b32 v229, 16, v227"); e("v_xor_b32 v230, 16, v228")
    e("v_lshrrev_b32 v185, 2, v255")
    if cfg.hack & 16: e("s_waitcnt lgkmcnt(0)"); e("s_mov_b32 s57, s86"); cfg.pe = -5
    e("v_lshlrev_b32 v240, 7, v112")
    e("v_and_b32 v116, 7, v255"); e("v_lshl_add_u32 v240, v116, 4, v240")
    e("v_bfe_u32 v116, v255, 3, 1")
    e("v_lshl_add_u32 v245, v116, 13, v240")
    e("v_lshl_add_u32 v240, v116, 9, v240")
    e(f"s_lshl_b32 s7, {sSUB}, 16"); e("v_add_u32 v245, s7, v245")
    e(f"s_mul_i32 {sLV}, {sSUB}, 2112")
    e(f"s_cmp_ge_u32 {sWV}, 4"); e("s_cbranch_scc1 L_hs")

def wdo_read_bases(P, d0, d1, G, r, c, tmp, add=0):
    e = P.e
    e(f"v_lshlrev_b32 {d0}, 3, {c}"); e(f"v_lshl_add_u32 {d0}, {G}, 8, {d0}"); e(f"v_lshl_add_u32 {d0}, {r}, 6, {d0}")
    e(f"v_and_b32 {tmp}, 1, {G}"); e(f"v_lshl_add_u32 {d0}, {tmp}, 5, {d0}")
    if add: e(f"v_add_u32 {d0}, {add}, {d0}")
    e(f"v_xor_b32 {d1}, 32, {d0}")

def final_salu():
    R = []; e = R.append
    e(f"s_lshr_b32 s7, {sHEAD}, 2"); e(f"s_mul_i32 {sT3}, {sQB}, {7*STG}"); e(f"s_lshl_b32 {sT2}, {sHEAD}, 14"); e(f"s_add_u32 {sT3}, {sT3}, {sT2}")
    e(f"s_lshl_b32 {sT2}, {sSUB}, 18"); e(f"s_add_u32 {sT3}, {sT3}, {sT2}")
    e(f"s_add_u32 s{srd(3)}, s70, {sT3}"); e(f"s_addc_u32 s{srd(3)+1}, s71, 0"); e(f"s_cmp_eq_u32 {sSUB}, 3"); e(f"s_cselect_b32 s{srd(3)+2}, 0, {4*STG}"); e(f"s_add_u32 s{srd(3)+2}, s{srd(3)+2}, {GP_OFF + STG}")
    e(f"s_mov_b32 s{srd(5)}, s66"); e(f"s_mov_b32 s{srd(5)+1}, s67"); e(f"s_mov_b32 s{srd(5)+2}, {2048*896}")
    e(f"s_lshl_b32 {sT2}, {sQB}, 2"); e(f"s_add_u32 s7, s7, {sT2}")
    e(f"s_lshl_b32 {sT2}, s7, 10"); e(f"s_add_u32 {sT2}, {sT2}, {FL_OFF}")
    e(f"s_add_u32 s{srd(6)}, s70, {sT2}"); e(f"s_addc_u32 s{srd(6)+1}, s71, 0"); e(f"s_mov_b32 s{srd(6)+2}, 0x10400"); e("s_mov_b32 s84, 0x10000")
    e("s_lshl_b32 s7, s7, 1"); e(f"s_and_b32 {sT2}, {sHEAD}, 1"); e(f"s_add_u32 s7, s7, {sT2}"); e(f"s_mul_i32 s86, s7, {16*896}")
    e(f"s_lshl_b32 {sT2}, {sSUB}, 7"); e(f"s_add_u32 s86, s86, {sT2}"); e(f"s_bfe_u32 {sT2}, {sHEAD}, 0x10001"); e(f"s_lshl_b32 {sT2}, {sT2}, 6"); e(f"s_add_u32 s86, s86, {sT2}")
    return R

def xch_salu():
    return [f"s_lshl_b32 s7, {sSUB}, 2", "s_lshr_b32 s7, 0x635, s7", "s_and_b32 s7, s7, 15", f"s_mul_i32 s85, s7, {SLOT}",
            f"s_lshl_b32 s90, {sSUB}, 12", f"s_add_u32 s90, s90, {GLUB + 16384}"]

def xa(kk, lo, hi, add=0):
    o = (13 - kk) * 8192
    return f"{hi if o >= 65536 else lo} offset:{(o & 0xffff) + add}"
XR = [f"ds_read_b128 {vr((2*kk+qt)*4,4)}, {xa(kk, *(('v229', 'v230') if kk & 1 else ('v227', 'v228')), qt*1024)}" for kk in range(14) for qt in range(2)]

def gen_setup(P, cfg, helper):
    e = P.e
    F = Filler(P)
    lm = cfg.hx - 1; M = 1 << lm
    e(f"s_mov_b32 s93, {int(helper)}")
    if helper:
        e(f"s_lshl_b32 s88, {sSUB}, 11"); e("v_add_u32 v240, s88, v240")
        e(f"s_lshl_b32 s7, {sSUB}, 3"); e(f"s_lshr_b32 {sLK}, 0xc0703000, s7"); e(f"s_and_b32 {sLK}, {sLK}, 0xff"); e(f"s_add_u32 {sLK}, {sLK}, s88")
        e(f"s_lshl_b32 {sL1K}, {sSUB}, 12")
        e(f"s_movk_i32 {sKO}, -8192"); e(f"s_movk_i32 {sVO}, -8192")
        e("v_and_b32 v116, 1, v112"); e("v_lshlrev_b32 v116, 1, v116"); e("v_xor_b32 v116, v116, v115"); e("v_lshlrev_b32 v242, 4, v116")
        mad(P, 'v242', 'v185', 896, 'v242')
        e("v_lshl_add_u32 v117, v112, 3, v114"); e("v_lshlrev_b32 v241, 4, v116"); mad(P, 'v241', 'v117', 3584, 'v241')
        e(f"s_lshr_b32 s7, {sSUB}, 1"); e(f"s_mul_i32 s7, s7, {32*3584}"); e("v_add_u32 v241, s7, v241")
        e(f"s_bitcmp1_b32 {sSUB}, 0"); e(f"s_cselect_b32 s{srd(5)}, s{srd(6)}, s{srd(5)}"); e(f"s_cselect_b32 s{srd(5)+1}, s{srd(6)+1}, s{srd(5)+1}")
        e(f"v_lshlrev_b32 v243, {5+lm}, v255")
        e("v_lshlrev_b32 v249, 4, v255")
        e(f"s_mul_i32 s87, {sSUB}, {2*14336}")
        wdo_read_bases(P, 'v246', 'v247', 'v112', 'v114', 'v115', 'v116', GLUB)
        e("v_add_u32 v224, 512, v224")
    else:
        e(f"v_lshlrev_b32 v252, {5+lm}, v255")
        if cfg.touch:
            for tr in range(cfg.ktr):
                F.add(f"s_mov_b32 m0, {GLUB + 24576}", f"s_add_u32 {sT3}, s89, {tr*65536}", f"buffer_load_dword v252, {ST}, {sT3} offen lds" if cfg.ltd else f"buffer_load_dword v251, v252, {ST}, {sT3} offen", tag='touch')
            e("v_mul_u32_u24 v253, 84, v115"); mad(P, 'v253', 'v185', 3584, 'v253')
        if cfg.touch and cfg.gtouch:
            F.add(f"s_lshl_b32 s7, {sSH}, 1", f"s_and_b32 {sT2}, {sSUB}, 1", f"s_add_u32 s7, s7, {sT2}", f"s_mul_i32 {sT3}, s7, {14*M*3584}",
                  f"s_cmp_lt_u32 {sSUB}, 2", f"s_cselect_b32 s{srd(9)}, s{srd(5)}, s{srd(6)}", f"s_cselect_b32 s{srd(9)+1}, s{srd(5)+1}, s{srd(6)+1}",
                  f"s_mov_b32 s{srd(9)+2}, s{srd(5)+2}", f"buffer_load_dword v253, {ST}, {sT3} offen lds" if cfg.ltd else f"buffer_load_dword v251, v253, {ST}, {sT3} offen", tag='touch')
            for _ in range(M - 1): F.add(f"s_add_u32 {sT3}, {sT3}, {14*3584}", f"buffer_load_dword v251, v253, {ST}, {sT3} offen", tag='touch')
        F.add(*final_salu()); F.add(f"s_mov_b32 s73, {f2u(-LOG2E):#x}", *xch_salu())
        e("v_bfe_u32 v116, v255, 1, 3"); e("v_lshlrev_b32 v117, 2, v116"); e("s_mov_b32 s7, 0xec975320"); e("v_bfe_u32 v117, s7, v117, 4")
        e("v_lshlrev_b32 v248, 10, v116"); e("v_lshl_add_u32 v248, v117, 4, v248")
        e("v_and_b32 v116, 1, v255"); e("v_lshl_add_u32 v248, v116, 7, v248")
        e("v_and_b32 v116, 1, v112"); e("v_lshl_add_u32 v248, v116, 5, v248"); e("v_lshrrev_b32 v116, 1, v112"); e("v_lshl_add_u32 v248, v116, 4, v248")
        e(f"v_add_u32 v249, {4*SLOT}, v224")
        e(f"v_mov_b32 v116, {FLAG}"); e("v_mov_b32 v117, 0"); e("ds_write_b32 v116, v117")
    return F

def gen_ln(P, cfg):
    e = P.e
    F = Filler(P)
    e(f"v_add_u32 v225, {3*SLOT}, v224"); e(f"v_add_u32 v226, {6*SLOT}, v224")
    ld = f"buffer_load_dwordx4 v245, {SWQ}, {sT0} offen lds"
    F.add(f"s_lshr_b32 s7, {sWV}, 2", f"s_lshl_b32 {sT0}, s7, 18", f"s_mul_i32 s7, s7, {SLOT}", f"s_add_u32 s7, s7, {sLV}", f"s_add_u32 m0, s7, {7*SLOT}", ld, tag='W01')
    for d in (1056, 7392, 1056): F.add(f"s_addk_i32 m0, {d}", f"s_addk_i32 {sT0}, 16384", ld, tag='W01')
    if cfg.hack & 16: stamp(P, cfg, 13)
    for kp in range(cfg.pre2): e(f"buffer_load_dwordx4 {vr(156+4*kp,4)}, v184, {SX}, {sT1} offen offset:{kp*128}")
    if cfg.hack & 16: stamp(P, cfg, 14)
    for hh in range(2):
        m, t, v, u = "v118", "v119", "v120", "v121"
        for d in range(28 * hh, 28 * hh + 28):
            kp = d // 4 + cfg.pre2
            if hh == 0 and d % 4 == 0 and kp < 7:
                e(f"buffer_load_dwordx4 {vr(156+4*kp,4)}, v184, {SX}, {sT1} offen offset:{kp*128}", extra_rd=regs_of(f"v{128+d}"))
            e(f"v_lshlrev_b32 v{2*d}, 16, v{128+d}"); e(f"v_and_b32 v{2*d+1}, {sHI}, v{128+d}")
            pr = vr(2 * d, 2)
            if cfg.lnpk & 1:
                if d % 28 == 0: e(f"v_mov_b64 v[118:119], {pr}"); e(f"v_pk_mul_f32 v[120:121], {pr}, {pr}")
                else: e(f"v_pk_add_f32 v[118:119], v[118:119], {pr}"); e(f"v_pk_fma_f32 v[120:121], {pr}, {pr}, v[120:121]")
            elif d % 28 == 0:
                e(f"v_mov_b32 {m}, v{2*d}"); e(f"v_mov_b32 {t}, v{2*d+1}"); e(f"v_mul_f32 {v}, v{2*d}, v{2*d}"); e(f"v_mul_f32 {u}, v{2*d+1}, v{2*d+1}")
            else:
                e(f"v_add_f32 {m}, {m}, v{2*d}"); e(f"v_add_f32 {t}, {t}, v{2*d+1}")
                e(f"v_fmac_f32 {v}, v{2*d}, v{2*d}"); e(f"v_fmac_f32 {u}, v{2*d+1}, v{2*d+1}")
            if d == cfg.t_at and cfg.touch:
                e(f"buffer_load_dword v251, v250, {SWQ}, s90 offen", tag='touch')
            if d >= cfg.wq_at and d % 4 == 1: F.emit()
        if hh == 1: stamp(P, cfg, 1)
        e(f"v_add_f32 {m}, {m}, {t}"); e(f"v_add_f32 {v}, {v}, {u}")
        for qp in ("quad_perm:[1,0,3,2]", "quad_perm:[2,3,0,1]", "row_half_mirror"):
            e(f"v_add_f32_dpp {m}, {m}, {m} {qp} row_mask:0xf bank_mask:0xf")
            e(f"v_add_f32_dpp {v}, {v}, {v} {qp} row_mask:0xf bank_mask:0xf")
        e(f"s_mov_b32 s7, {f2u(1.0/448):#x}")
        e(f"v_mul_f32 {m}, s7, {m}")
        e(f"v_mul_f32 {t}, {m}, {m}")
        e(f"v_fma_f32 {v}, {v}, s7, -{t}")
        e(f"v_max_f32 {v}, 0, {v}")
        e(f"v_cvt_pk_bf16_f32 {t}, {m}, {v}")
        e(f"v_lshlrev_b32 {m}, 16, {t}")
        e(f"v_and_b32 {v}, {sHI}, {t}")
        e(f"v_add_f32 {v}, {f2u(1e-5):#x}, {v}")
        e(f"v_cvt_pk_bf16_f32 {v}, {v}, {v}"); e(f"v_and_b32 {v}, {sHI}, {v}")
        e(f"v_sqrt_f32 {v}, {v}")
        e(f"v_cvt_pk_bf16_f32 {v}, {v}, {v}"); e(f"v_and_b32 {v}, {sHI}, {v}")
        e(f"v_rcp_f32 {v}, {v}")
        e(f"v_mul_f32 {m}, {m}, {v}")
        if not cfg.lnpk & 2: e(f"v_mov_b32 {t}, {m}"); e(f"v_mov_b32 {u}, {v}")
        for kp in range(7):
            z = 7 * hh + kp
            for d in range(4 * z, 4 * z + 4):
                if cfg.lnpk & 2: e(f"v_pk_fma_f32 {vr(2*d,2)}, {vr(2*d,2)}, v[120:121], v[118:119] op_sel_hi:[1,0,0] neg_lo:[0,0,1] neg_hi:[0,0,1]")
                else: e(f"v_fma_f32 v{2*d}, v{2*d}, {u}, -{t}"); e(f"v_fma_f32 v{2*d+1}, v{2*d+1}, {v}, -{m}")
            for d in range(4 * z, 4 * z + 4):
                e(f"v_cvt_pk_bf16_f32 v{128+d}, v{2*d}, v{2*d+1}")
            ad = xa(2 * kp + 1, 'v187', 'v188').split()
            e(f"ds_write_b128 {ad[0]}, {vr(128+4*z,4)} {ad[1]}")
            if hh == 1: F.emit(2)
        if hh == 0:
            if cfg.hack & 16: stamp(P, cfg, 15)
            e("v_xor_b32 v187, 0x80, v187"); e("v_xor_b32 v188, 0x80, v188")
            e("v_mov_b32 v122, 0"); e("v_lshlrev_b32 v123, 7, v255")
            e(f"s_cmp_lg_u32 {sMODE}, 0"); e(f"s_cbranch_scc1 L_norst")
            e(f"s_mov_b64 exec, 0x7f"); e("global_store_dword v123, v122, s[100:101] sc1", tag='opt'); e("s_mov_b64 exec, -1")
            e(f"L_norst:")
    F.wait('W01')
    e("s_waitcnt lgkmcnt(0)")
    stamp(P, cfg, 12)
    e("s_barrier")
    for t in XR[:16]: e(t)
    e("s_cmp_eq_u32 s93, 1"); e("s_cbranch_scc1 L_helper")

def gen_qproj(P, cfg, helper, F):
    e = P.e
    xr = XR[16:]
    def start():
        e("s_barrier", extra_rd=regs_of("v[0:63]"))
        if helper:
            for T in range(2, 6): dma_wq(F, T, WQ_SLOT[T])
            F.emit(cfg.q0e)
        stamp(P, cfg, 2 if not cfg.hack & 256 else 1)
    items = []
    after = {1: [('WQ', 6), ('WQ', 7), ('WQ', 8), ('WQ', 9)], 2: [('WQ', 10), ('WQ', 11)], 3: [('WQ', 12), ('WQ', 13)], 4: [('K', 0), ('V', 0)], 5: [('K', 1), ('K', 2)], 6: []}
    def mkhook(k):
        def hook():
            if helper:
                F.wait(('WQ', 2*k), ('WQ', 2*k+1), *([('K', 0)] if k == 6 else []))
            if k == 1: P.waitvm('opt')
            if cfg.hack & 256: e(f"s_memtime s[{48+2*k}:{49+2*k}]")
            e("s_barrier", extra_rd=regs_of("v[64:111]") if k == 1 else None)
            if helper:
                for (w, t) in after.get(k, []):
                    if w == 'WQ': dma_wq(F, t, WQ_SLOT[t])
                    else: dma_kv(F, w, t, (t & 3) + (4 if w == 'V' else 0))
            elif k == 1:
                e(f"s_or_b32 s7, {sMODE}, {sSUB}"); e("s_cbranch_scc1 L_noarr")
                e(f"s_lshl_b32 s7, {sQB}, 4"); e("v_mov_b32 v228, s7"); e("v_mov_b32 v229, 1")
                e("s_mov_b64 exec, 1"); e("global_atomic_add v228, v229, s[68:69] sc1", tag='opt'); e("s_mov_b64 exec, -1")
                e("L_noarr:")
        return hook
    for T in range(14):
        sl = WQ_SLOT[T]; base = f"v{224 + sl // 3}"; so = (sl % 3) * SLOT
        for t in range(8):
            imm = so + (t >> 2) * 256 + (t & 3) * 32
            mf = [(128 + ((t >> 1) * 2 + qt) * 8 + (t & 1) * 4, (2 * T + qt) * 4, '0' if T == 0 else None) for qt in range(2)]
            items.append(dict(mf=mf, reads=tr_reads(base, imm, imm + 8448), hook=mkhook(T // 2) if (T % 2 == 0 and T > 0 and t == 0) else None))
    def gap(i, k):
        T, t = divmod(i, 8)
        for _ in range(2):
            if xr: e(xr.pop(0))
        if helper: F.emit()
        else:
            if T >= 1 and t < 4: e(f"v_mov_b64 {vr(8*(T-1)+2*t,2)}, 0")
            elif 1 <= T < 5 and t in (4, 5): e(f"v_mov_b64 {vr(112+4*(T-1)+2*(t-4),2)}, 0")
            elif t == 6 and T >= cfg.tq0: F.emit()
    stream(P, items, [192 + 4 * i for i in range(6)], 6, gap, group=3, start=start)
    assert not F.q or not helper
    F.flush()
    if cfg.hack & 256: e('s_memtime s[62:63]'); e('s_waitcnt lgkmcnt(0)'); dump_stamps(P); e('s_endpgm')
    e(f"s_lshr_b32 s7, {sSUB}, 1"); e(f"s_mul_i32 s7, s7, {SLOT}"); e(f"s_and_b32 {sT3}, {sSUB}, 1"); e(f"s_lshl_b32 {sT3}, {sT3}, 13")
    e(f"s_add_u32 s7, s7, {sT3}"); e(f"s_add_u32 s7, s7, {7*SLOT}")
    e("v_lshlrev_b32 v254, 4, v255"); e("v_add_u32 v254, s7, v254")
    if helper:
        for g in range(8):
            for t in qfin(g): e(t)
            if g: e(f"ds_write_b128 v254, {vr(128+4*(g-1),4)} offset:{(g-1)*1024}")
        e(f"ds_write_b128 v254, {vr(156,4)} offset:{7*1024}")
        P.waitvm(('K', 1))
        e("s_waitcnt lgkmcnt(0)")
        stamp(P, cfg, 3)
        e("s_barrier")
    return F

def qfin(g):
    r = [f"v_mul_f32 v{128+8*g+i}, {sC}, v{128+8*g+i}" for i in range(8)]
    r += [f"v_cvt_pk_bf16_f32 v{128+4*g+i}, v{128+8*g+2*i}, v{129+8*g+2*i}" for i in (0, 2, 1, 3)] if g else \
         [f"v_cvt_pk_bf16_f32 v{128+i}, v{128+2*i}, v{129+2*i}" for i in range(4)]
    r += [f"v_permlane16_swap_b32 v{128+4*g}, v{130+4*g}", f"v_permlane16_swap_b32 v{129+4*g}, v{131+4*g}"]
    return r

BUFS = [224, 228, 232, 236, 240, 244, 252]
PAT = list(range(7)) + list(range(6)) + list(range(6)) + list(range(7)) + list(range(6))
LEAD = sched.LEAD
SA = [192, 200]; SB = 208; NEGM = 216; LR = [250, 251]
def fbuf(f): return BUFS[PAT[f % 32]]
def oacc(t, qt): return ((t >> 1) * 2 + qt) * 8 + (t & 1) * 4
def k_imm(f): return (f >> 3) * 8448 + ((f & 7) >> 1) * 256 + (f & 1) * 64
def k_read(P, f, slot): P.e(f"ds_read_b128 {vr(fbuf(f),4)}, v248 offset:{slot*SLOT + k_imm(f)}")
def v_read(P, f, slot):
    t = f - 16
    imm = slot * SLOT + (t >> 2) * 256 + (t & 3) * 32
    P.e(f"{TR} {vr(fbuf(f),2)}, v249 offset:{imm}")
    P.e(f"{TR} {vr(fbuf(f)+2,2)}, v249 offset:{imm + 8448}")

def sm_text(task, sa):
    if task[0] in ('exp', 'add'):
        _, blk, q, i = task
        r = (sa if blk == 'a' else SB) + 4 * q + i
        return f"v_exp_f32 v{r}, v{r}" if task[0] == 'exp' else f"v_add_f32 v{LR[q]}, v{LR[q]}, v{r}"
    _, q, k = task
    src = (sa if k < 2 else SB) + 4 * q + 2 * (k & 1)
    return f"v_cvt_pk_bf16_f32 v{sa+4*q+k}, v{src}, v{src+1}"

FIXED = WAITS = PLACE = None

def gen_iter(P, j, ctl=False, bar=16, lab='L_loop'):
    e = P.e
    cur = SA[j & 1]; nxt = SA[(j + 1) & 1]
    for g in range(64):
        f, qt = g >> 1, g & 1
        if CFG.snake & (1 if f < 16 else 2): qt ^= f & 1
        extra = set()
        for z in WAITS.get(g, []): extra |= regs_of(vr(fbuf(z), 4))
        if f < 16:
            acc = (nxt if f < 8 else SB) + 4 * qt
            c = (vr(NEGM + 4 * qt, 4) if not CFG.x & 16 else '0') if (f & 7) == 0 else vr(acc, 4)
            e(f"{MF} {vr(acc,4)}, {vr(fbuf(f),4)}, {vr(128 + ((f&7)*2+qt)*4,4)}, {c}", extra_rd=extra)
        else:
            a = oacc(f - 16, qt)
            e(f"{MF} {vr(a,4)}, {vr(fbuf(f),4)}, {vr(cur+4*qt,4)}, {vr(a,4)}", extra_rd=extra)
        if CFG.x & 32 and g in (41, 53): e(f"{MF} v[220:223], v[216:219], {vr(cur+4*qt,4)}, v[220:223]")
        late = []
        for it in FIXED[g]:
            if it[0] == 'read':
                n = it[1]
                if CFG.x & 4 and n % 2: continue
                if n < 16: k_read(P, n, (j + 1) & 3)
                elif n < 32: v_read(P, n, j & 3)
                else: k_read(P, n - 32, (j + 2) & 3)
            elif it[0] == 'ctl' and ctl: late.append(f"s_sub_u32 {sTRIP}, {sTRIP}, 1")
            elif it[0] == 'branch' and ctl: late.append(f"s_cbranch_scc0 {lab}")
        if g == bar: late.append("s_barrier")
        for t in PLACE.get(g + 64, []):
            if not (CFG.x & 2 and t[0] != 'cvt') and not (CFG.x & 8 and t[0] == 'add'): e(sm_text(t, cur))
        for t in PLACE.get(g, []):
            if not (CFG.x & 2 and t[0] != 'cvt') and not (CFG.x & 8 and t[0] == 'add'): e(sm_text(t, nxt))
        for t in late: e(t)

def xgroup(P, op, r, t):
    e = P.e
    e(f"v_mov_b32 {t}, {r}"); e(f"v_permlane16_swap_b32 {r}, {t}"); e(f"{op} {r}, {r}, {t}")
    e(f"v_mov_b32 {t}, {r}"); e(f"v_permlane32_swap_b32 {r}, {t}"); e(f"{op} {r}, {r}, {t}")

SR, SO, SF = SWQ, SWG, SWU
def msum(Q, acc, src):
    for h in range(16):
        for ee in range(2): Q.e(f"{MF} {vr(acc+4*ee,4)}, {vr(192+4*ee,4)}, {vr(src+4*h,4)}, {'0' if h == 0 else vr(acc+4*ee,4)}")
def silu8(Q, a):
    rnd8(Q, a, 224)
    for i in range(8): Q.e(f"v_mul_f32 v{224+i}, s73, v{a+i}")
    for i in range(8): Q.e(f"v_exp_f32 v{224+i}, v{224+i}")
    for i in range(8): Q.e(f"v_add_f32 v{224+i}, 1.0, v{224+i}")
    for i in range(8): Q.e(f"v_rcp_f32 v{224+i}, v{224+i}")
    for i in range(8): Q.e(f"v_mul_f32 v{a+i}, v{a+i}, v{224+i}")
    rnd8(Q, a, 224)
def fetch(P, cfg, r, dst, voff, between):
    e = P.e
    e(f"s_lshl_b32 s84, {sSUB}, 7"); e(f"s_mov_b32 {sT1}, 0"); e(f"s_mov_b32 {sTRIP}, {SPIN}")
    if cfg.hack & 64: stamp(P, cfg, 1, True)
    def onepass(nm):
        e(f"buffer_load_dword v253, v252, {SF}, s84 offen offset:{512*r} sc1"); e("s_waitcnt vmcnt(0)")
        e("v_cmp_le_u32 vcc, 1, v253")
        if cfg.fmode & 2: e("s_cmp_eq_u32 vcc_lo, -1"); e("s_cselect_b32 vcc_lo, -1, 0")
        e(f"s_andn2_b32 {sT2}, vcc_lo, {sT1}"); e(f"s_or_b32 {sT1}, {sT1}, vcc_lo")
        for h in range(16):
            e(f"s_bitcmp1_b32 {sT2}, {h}"); e(f"s_cbranch_scc0 {nm}_{h}")
            e(f"s_mov_b32 {sT3}, {h*1024 + r*4*STG}")
            e(f"buffer_load_dwordx4 {vr(dst+4*h,4)}, {voff}, {SR}, {sT3} offen sc1", tag='touch')
            if r == 0 and nm.startswith("L_fa") and h < cfg.pn: e(f"s_waitcnt vmcnt({cfg.pl})")
            e(f"{nm}_{h}:")
    onepass(f"L_fa{r}")
    if cfg.hack & 64: stamp(P, cfg, 2, True)
    between()
    e(f"s_cmp_eq_u32 {sT1}, -1"); e(f"s_cbranch_scc1 L_fd{r}")
    e(f"L_fl{r}:")
    onepass(f"L_fb{r}")
    e(f"s_cmp_eq_u32 {sT1}, -1"); e(f"s_cbranch_scc1 L_fd{r}")
    e(f"s_sleep {cfg.slp}")
    e(f"s_sub_u32 {sTRIP}, {sTRIP}, 1"); e(f"s_cbranch_scc0 L_fl{r}")
    e(f"L_fd{r}:")
    if cfg.hack & 64: stamp(P, cfg, 3, True)
def fin(P, cfg, r, src, xr):
    e = P.e; a = 208
    for d in range(4): e(f"v_lshlrev_b32 v{232+2*d}, 16, v{xr+d}"); e(f"v_and_b32 v{233+2*d}, {sHI}, v{xr+d}")
    e("s_waitcnt vmcnt(0)")
    if cfg.hack & 64: stamp(P, cfg, 4, True)
    msum(P, a, src)
    rnd8(P, a, 224)
    for i in range(8): e(f"v_mul_f32 v{a+i}, v{a+i}, v{200+i}")
    rnd8(P, a, 224)
    for i in range(8): e(f"v_add_f32 v{a+i}, v{a+i}, v{232+i}")
    for d in range(4): e(f"v_cvt_pk_bf16_f32 v{240+d}, v{a+2*d}, v{a+2*d+1}")
    e(f"buffer_store_dwordx4 v[240:243], v251, {SO}, s86 offen offset:{r*512}" + ["", " sc1", " nt", " sc0 sc1"][cfg.oflag])

def gen_compute(P, cfg, FC):
    e = P.e
    m0 = P.mark()
    gen_qproj(P, cfg, False, FC)
    stamp(P, cfg, 3)
    order = [f for kk in range(8) for f in (kk, 8 + kk)]
    items = [dict(mf=[((SA[0] if f < 8 else SB) + 4 * qt, 128 + ((f & 7) * 2 + qt) * 4, '0' if (f & 7) == 0 else None) for qt in range(2)],
                  reads=[("ds_read_b128", "v248", k_imm(f), 0, 4)]) for f in order]
    def start():
        for t in range(4): e(f"v_mov_b64 {vr(104+2*t,2)}, 0")
        for t in qfin(0) + qfin(1): e(t)
    def gap0(i, k):
        if i < 6:
            for t in qfin(i + 2): e(t)
            if i == 2: e("s_barrier")
            if i >= 2:
                for z in (2 * (i - 2), 2 * (i - 2) + 1): e(f"ds_read_b128 {vr(160+4*z,4)}, v254 offset:{z*1024}")
    stream(P, items, BUFS[:6], 6, gap0, group=2, start=start)
    if not cfg.ltd: e("s_waitcnt vmcnt(0)")
    for f in range(LEAD): k_read(P, f, 1)
    e(f"s_cmp_lg_u32 {sMODE}, 0"); e("s_cbranch_scc1 L_havem")
    mm = P.mark()
    for q in range(2):
        a, b, m = SA[0] + 4 * q, SB + 4 * q, NEGM + 4 * q
        e(f"v_max3_f32 v{m}, v{a}, v{a+1}, v{a+2}"); e(f"v_max3_f32 v{m}, v{m}, v{a+3}, v{b}"); e(f"v_max3_f32 v{m}, v{m}, v{b+1}, v{b+2}"); e(f"v_max_f32 v{m}, v{m}, v{b+3}")
    xgroup(P, "v_max_f32", f"v{NEGM}", f"v{NEGM+1}"); xgroup(P, "v_max_f32", f"v{NEGM+4}", f"v{NEGM+5}")
    for q in range(2):
        m = NEGM + 4 * q
        for i in (1, 2, 3, 0): e(f"v_sub_f32 v{m+i}, {f2u(-float(cfg.toff)) if cfg.toff else 0:#x}, v{m}")
    minit = P.since(mm)
    e("L_havem:")
    for q in range(2):
        for i in range(4):
            e(f"v_add_f32 v{SA[0]+4*q+i}, v{SA[0]+4*q+i}, v{NEGM+4*q}"); e(f"v_add_f32 v{SB+4*q+i}, v{SB+4*q+i}, v{NEGM+4*q}")
    e(f"v_mov_b32 v{LR[0]}, 0"); e(f"v_mov_b32 v{LR[1]}, 0")
    for g in range(18, 64):
        for t in PLACE[g]: e(sm_text(t, SA[0]))
    e(f"s_mov_b32 {sTRIP}, 15")
    if cfg.obias:
        for i in range(128): e(f"v_mov_b32 v{i}, {f2u(2.0 ** (cfg.obias - cfg.toff)):#x}")
    if cfg.x & 32:
        e("v_mbcnt_lo_u32_b32 v220, -1, 0"); e("v_mbcnt_hi_u32_b32 v220, -1, v220"); e("v_and_b32 v220, 15, v220"); e("v_mov_b32 v221, 0x3f803f80")
        e(f"v_cmp_gt_u32 vcc, {16 if cfg.x & 64 else 1}, v220")
        for i in range(4): e(f"v_cndmask_b32 v{216+i}, 0, v221, vcc")
        for i in range(4): e(f"v_mov_b32 v{220+i}, 0")
    stamp(P, cfg, 4)
    e("s_waitcnt lgkmcnt(0)")
    if cfg.vbit >= 0: e(f"s_bitcmp1_b32 {sSUB}, {cfg.vbit}"); e("s_cbranch_scc1 L_itb0")
    e("s_branch L_it0")
    pro = P.since(m0)
    itb = {}
    if cfg.vbit >= 0:
        e(".p2align 6")
        e("L_loopb:")
        for j in (3, 0, 1, 2):
            if j == 0: e("L_itb0:")
            m = P.mark(); gen_iter(P, j, ctl=(j == 2), bar=cfg.barb, lab='L_loopb'); itb[j] = P.since(m)
        e("s_branch L_tail")
    e(".p2align 6")
    e("L_loop:")
    its = {}
    for j in (3, 0, 1, 2):
        if j == 0: e("L_it0:")
        m = P.mark(); gen_iter(P, j, ctl=(j == 2), bar=cfg.bara); its[j] = P.since(m)
    m1 = P.mark()
    e('L_tail:')
    stamp(P, cfg, 5)
    cur = SA[1]
    e("s_barrier")
    for f in range(16, 16 + LEAD): v_read(P, f, 3)
    for g in range(64, 82):
        for t in PLACE[g]: e(sm_text(t, cur))
    post_ops = []
    Q = Prog()
    xgroup(Q, "v_add_f32", f"v{LR[0]}", "v208"); xgroup(Q, "v_add_f32", f"v{LR[1]}", "v209")
    Q.e(f"v_max_f32 v208, v{LR[0]}, v{LR[1]}"); Q.e(f"v_add_f32 v209, v{LR[0]}, v{LR[1]}")
    Q.e(f"v_rcp_f32 v{LR[0]}, v{LR[0]}"); Q.e(f"v_rcp_f32 v{LR[1]}, v{LR[1]}")
    Q.e("v_mbcnt_lo_u32_b32 v210, -1, 0"); Q.e("v_mbcnt_hi_u32_b32 v210, -1, v210")
    Q.e("v_lshrrev_b32 v211, 4, v210"); Q.e("v_bfe_u32 v212, v210, 2, 2"); Q.e("v_and_b32 v213, 3, v210")
    Q.e("v_lshrrev_b32 v212, 2, v210"); Q.e("v_lshlrev_b32 v192, 7, v212"); Q.e("v_lshl_add_u32 v192, v213, 3, v192")
    Q.e("v_bfe_u32 v212, v210, 3, 2"); Q.e("v_lshl_add_u32 v192, v212, 5, v192")
    for ee in (1, 2, 3): Q.e(f"v_xor_b32 v{192+ee}, {32*ee}, v192")
    for ee in range(4): Q.e(f"v_add_u32 v{196+ee}, {6*SLOT}, v{192+ee}")
    Q.e("v_lshlrev_b32 v248, 4, v210")
    Q.e(f"v_mov_b32 v214, {FLAG}"); Q.e("v_mov_b32 v215, 1")
    rest = Q.L
    for g in range(32, 64):
        f, qt = g >> 1, g & 1
        extra = set()
        for z in WAITS.get(g, []):
            if 16 <= z < 32: extra |= regs_of(vr(fbuf(z), 4))
        a = oacc(f - 16, qt)
        e(f"{MF} {vr(a,4)}, {vr(fbuf(f),4)}, {vr(cur+4*qt,4)}, {vr(a,4)}", extra_rd=extra)
        if qt == 1 and f + LEAD < 32: v_read(P, f + LEAD, 3)
        else:
            for _ in range(2):
                if rest: P.L.append(rest.pop(0))
    P.L.extend(rest)
    e(f"v_cmp_ngt_f32 vcc, {f2u(cfg.thr):#x}, v209")
    e("s_cbranch_vccz L_noflag")
    e("ds_write_b32 v214, v215")
    e("s_waitcnt lgkmcnt(0)")
    e("L_noflag:")
    e("s_barrier")
    e("ds_read_b32 v215, v214")
    def onorm(g):
        return [f"v_mul_f32 v{8*g+i}, v{8*g+i}, v{LR[g & 1]}" for i in range(8)] + [f"v_cvt_pk_bf16_f32 v{4*g+i}, v{8*g+2*i}, v{8*g+2*i+1}" for i in range(4)]
    items = []
    F = Filler(P)
    def ehook(t):
        def h():
            if cfg.hack & 32 and t % 2 == 0: e(f"s_memtime s[{48+t}:{49+t}]")
            if t in (2, 3, 4, 5, 6, cfg.lastb): e("s_barrier")
        return h
    def acc_o(s, ee, qt): return (64 if s & 1 else 128) + ((ee >> 1) * 2 + qt) * 8 + (ee & 1) * 4
    for t in range(14):
        sl = WO_SLOT[t]; so = (sl % 3) * SLOT; s, hf = t >> 1, t & 1
        for k4 in range(4):
            for ee in range(4):
                base = f"v{[192, 200, 196][sl // 3] + ee}"
                imm = so + k4 * 4096; kk = 4 * hf + k4
                items.append(dict(mf=[(acc_o(s, ee, qt), (kk * 2 + qt) * 4, '0' if kk == 0 else None) for qt in range(2)],
                                  reads=tr_reads(base, imm, imm + 2048),
                                  hook=ehook(t) if (t > 0 and k4 == 0 and ee == 0) else None))
    def cv(s, u, hf):
        o = 160 + 16 * (s & 1) + 4 * u + 2 * hf; a = acc_o(s, 0, 0) + 8 * u + 4 * hf
        F.add(f"v_cvt_pk_bf16_f32 v{o}, v{a}, v{a+1}", f"v_cvt_pk_bf16_f32 v{o+1}, v{a+2}, v{a+3}")
    def sto(s, u):
        o = 160 + 16 * (s & 1) + 4 * u
        F.add(f"s_mov_b32 {sT0}, {s*STG + u*16384}", f"buffer_store_dwordx4 {vr(o,4)}, v248, {SP}, {sT0} offen sc1", tag=('S', s))
    def publish(r):
        F.add((('S', r),), "s_mov_b64 exec, 1", f"global_store_dword v249, v254, s[100:101] offset:{128*r} sc1", "s_mov_b64 exec, -1", tag='fl')
    nrm = [t for g in range(2, 16) for t in onorm(g)]
    def start():
        for ee in range(4): e(f"v_add_u32 v{200+ee}, {3*SLOT}, v{192+ee}")
        e("v_mov_b32 v249, 0"); e("v_mov_b32 v254, 1"); e("v_add_u32 v204, s85, v248"); e("v_add_u32 v205, s90, v248")
        for t in onorm(0) + onorm(1): e(t)
        e("v_readfirstlane_b32 s7, v215")
        e(f"s_andn2_b32 s7, s7, {sMODE}"); e("s_cbranch_scc1 L_maxpass")
        stamp(P, cfg, 6)
        if cfg.hack & 32: stamp(P, cfg, 1)
        if cfg.hack & 64: stamp(P, cfg, 12, True)
    def gap(i, k):
        s, r = divmod(i, 32)
        if k: return
        for _ in range(6):
            if nrm: e(nrm.pop(0))
        if s >= 1:
            u, z = divmod(r, cfg.ssp)
            if u < 4:
                if z == 0: cv(s - 1, u, 0)
                if z == 1: cv(s - 1, u, 1)
                if z == 2: sto(s - 1, u)
        if s >= 2 and r == cfg.pubr and not cfg.fmode & 1: publish(s - 2)
        if i == cfg.xat: e('s_barrier')
        F.flush()
    stream(P, items, [216 + 4 * i for i in range(8)], 7, gap, group=4, start=start)
    if cfg.hack & 32: e('s_memtime s[62:63]'); e('s_waitcnt lgkmcnt(0)'); dump_stamps(P); e('s_endpgm')
    st = (lambda i: None) if cfg.hack & 16 else (lambda i: stamp(P, cfg, i, bool(cfg.hack & 64)))
    st(13)
    for u in range(4): cv(6, u, 0); cv(6, u, 1); sto(6, u)
    F.flush()
    if cfg.xat >= 224: e("s_barrier")
    st(14)
    for k, r0 in enumerate((192, 196, 244, 250)): e(f"ds_read_b128 {vr(r0,4)}, v205 offset:{k*1024}")
    for h in range(16): e(f"ds_read_b128 {vr(64+4*h,4)}, v204 offset:{h*1024}")
    if not cfg.fmode & 1: publish(5); F.flush()
    msum(P, 200, 64)
    st(15)
    if cfg.fmode & 1:
        e("v_lshlrev_b32 v249, 3, v248"); P.waitvm(('S', 6))
        e("s_mov_b64 exec, 0x7f"); e("global_store_dword v249, v254, s[100:101] sc1"); e("s_mov_b64 exec, -1")
    else: publish(6); F.flush()
    if cfg.hack & 64: stamp(P, cfg, 9, True)
    e(f"s_cmp_eq_u32 {sSUB}, 3"); e("s_cbranch_scc1 L_cdone")
    cslow = []
    fetch(P, cfg, 1, 0, "v248", lambda: silu8(P, 200))
    fin(P, cfg, 1, 0, 244)
    e("L_cdone:")
    if cfg.stamps:
        stamp(P, cfg, 7); e("s_waitcnt vmcnt(0)"); stamp(P, cfg, 8); stamp(P, cfg, 11, True); dump_stamps(P)
    e("s_endpgm")
    post = [x for x in P.since(m1) if not any(x is y for y in cslow)]
    m2 = P.mark()
    e("L_maxpass:")
    e("s_waitcnt vmcnt(0) lgkmcnt(0)")
    e("v_and_b32 v0, 15, v210"); e("v_lshlrev_b32 v0, 9, v0"); e("v_and_b32 v1, 1, v211"); e("v_lshl_add_u32 v0, v1, 5, v0")
    e("v_lshrrev_b32 v1, 1, v211"); e("v_lshl_add_u32 v0, v1, 4, v0")
    e(f"v_mov_b32 v{NEGM}, 0xff800000"); e(f"v_mov_b32 v{NEGM+4}, 0xff800000")
    e(f"s_mov_b32 {sT0}, 0")
    e("L_mp_loop:")
    for kk in range(8): e(f"buffer_load_dwordx4 {vr(16+4*kk,4)}, v0, {SK}, {sT0} offen offset:{kk*64}")
    e("s_waitcnt vmcnt(0)")
    for kk in range(8):
        for qt in range(2): e(f"{MF} {vr(8+4*qt,4)}, {vr(16+4*kk,4)}, {vr(128+(kk*2+qt)*4,4)}, {'0' if kk == 0 else vr(8+4*qt,4)}")
    e("s_nop 15")
    for qt in range(2):
        m = NEGM + 4 * qt; a = 8 + 4 * qt
        e(f"v_max3_f32 v{m}, v{m}, v{a}, v{a+1}"); e(f"v_max3_f32 v{m}, v{m}, v{a+2}, v{a+3}")
    e(f"s_add_u32 {sT0}, {sT0}, 8192"); e(f"s_cmp_lt_u32 {sT0}, {1<<20}"); e("s_cbranch_scc1 L_mp_loop")
    xgroup(P, "v_max_f32", f"v{NEGM}", f"v{NEGM+1}"); xgroup(P, "v_max_f32", f"v{NEGM+4}", f"v{NEGM+5}")
    for q in range(2):
        m = NEGM + 4 * q
        for i in (1, 2, 3, 0): e(f"v_sub_f32 v{m+i}, {f2u(-float(cfg.toff)) if cfg.toff else 0:#x}, v{m}")
    e("L_again:")
    e("s_waitcnt vmcnt(0) lgkmcnt(0)")
    e("v_mbcnt_lo_u32_b32 v0, -1, 0"); e("v_mbcnt_hi_u32_b32 v0, -1, v0"); e(f"s_lshl_b32 s7, {sWV}, 6"); e("v_add_u32 v0, s7, v0")
    e(f"s_mov_b32 {sMODE}, 1"); e("s_setprio 0")
    e("s_barrier")
    e("s_branch L_restart")
    mp = P.since(m2)
    body = its[0] + its[1] + its[2] + its[3]
    trace = pro + body * 2 + its[0] + its[1] + its[2] + post
    skip = set(id(x) for x in minit)
    trace2 = [x for x in pro if id(x) not in skip] + body
    extra = []
    if itb:
        bb = itb[0] + itb[1] + itb[2] + itb[3]
        extra = [pro + bb * 2 + itb[0] + itb[1] + itb[2] + post]
    return [trace, trace2] + extra, [mp, cslow]

def poll(P, name, load, cmp, pre_issued=False):
    e = P.e
    if not pre_issued: e(load)
    e(cmp); e("s_cmp_eq_u64 vcc, -1"); e(f"s_cbranch_scc1 {name}_ok")
    m = P.mark()
    e(f"s_mov_b32 s7, {SPIN}")
    e(f"{name}_lp:")
    e(f"s_sleep {CFG.slp}")
    e(load, tag='opt'); e("s_waitcnt vmcnt(0)")
    e(cmp); e("s_cmp_eq_u64 vcc, -1"); e(f"s_cbranch_scc1 {name}_ok")
    e("s_sub_u32 s7, s7, 1"); e(f"s_cbranch_scc0 {name}_lp")
    slow = P.since(m)
    e(f"{name}_ok:")
    return slow

def rnd8(P, r, t):
    for d in range(4): P.e(f"v_cvt_pk_bf16_f32 v{t+d}, v{r+2*d}, v{r+2*d+1}")
    for d in range(4): P.e(f"v_lshlrev_b32 v{r+2*d}, 16, v{t+d}"); P.e(f"v_and_b32 v{r+2*d+1}, {sHI}, v{t+d}")

def gen_helper(P, cfg, FH):
    e = P.e
    m0 = P.mark()
    e("L_helper:")
    e(f"s_setprio {cfg.qprio}")
    F = gen_qproj(P, cfg, True, FH)
    dma_kv(F, 'V', 1, 5); dma_kv(F, 'K', 3, 3); dma_kv(F, 'V', 2, 6); F.flush()
    e(f"s_mov_b32 s73, {f2u(-LOG2E):#x}")
    lo, hi = cfg.plo, cfg.phi
    if lo != 2: e(f"s_setprio {lo}")
    P.waitvm(('V', 0), ('K', 2))
    e("s_barrier")
    GU0 = 3; ACT0 = GU0 + 28; NACT = cfg.nact; DN0 = ACT0 + NACT
    GPUB = [DN0 + 10, DN0 + 16]; GPOLL = [DN0 + 12, DN0 + 21]; GSRC = [112, 0]; GSET = DN0 + 2; GSET2 = DN0 + 15
    slows = []
    ntr = [cfg.ktr]
    def acc_g(m, ee, mat, qt): return 112 + 32 * (m & 1) + (ee * 2 + qt) * 8 + mat * 4
    def act(m):
        L = []
        for ee in range(2):
            regs = [acc_g(m, ee, 0, qt) + i for qt in range(2) for i in range(4)]
            for r in regs: L.append(f"v_mul_f32 v{r}, s73, v{r}")
            for r in regs: L.append(f"v_exp_f32 v{r}, v{r}")
            for r in regs: L.append(f"v_add_f32 v{r}, 1.0, v{r}")
            for r in regs: L.append(f"v_rcp_f32 v{r}, v{r}")
            for r in regs: L.append(f"v_mul_f32 v{r}, v{r}, v{r+4}")
            for qt in range(2):
                a = acc_g(m, ee, 0, qt); d = 208 + (m * 2 + qt) * 4 + ee * 2
                L.append(f"v_cvt_pk_bf16_f32 v{d}, v{a}, v{a+1}"); L.append(f"v_cvt_pk_bf16_f32 v{d+1}, v{a+2}, v{a+3}")
        return L
    def split(L, n):
        cost = [2 if t.startswith(('v_exp', 'v_rcp')) else 1 for t in L]; tot = sum(cost); parts = [[] for _ in range(n)]; acc = 0
        for t, c in zip(L, cost):
            parts[min(n - 1, acc * n // tot)].append(t); acc += c
        return parts
    def acc_d(nt, ee, qt): return 48 + 16 * (nt & 1) + (qt * 2 + ee) * 4
    def out_cv(nt):
        o = 80 + 8 * (nt & 1)
        return [f"v_cvt_pk_bf16_f32 v{o+4*qt+i}, v{acc_d(nt, 0, qt)+2*i}, v{acc_d(nt, 0, qt)+2*i+1}" for qt in range(2) for i in range(4)]
    def out_st(nt):
        o = 80 + 8 * (nt & 1)
        e(f"s_mov_b32 {sT3}, {(nt>>1)*STG + (nt&1)*32768}"); e(f"buffer_store_dwordx4 {vr(o,4)}, v249, {SP}, {sT3} offen sc1", tag=('st', nt // 8))
        e(f"s_addk_i32 {sT3}, 16384"); e(f"buffer_store_dwordx4 {vr(o+4,4)}, v249, {SP}, {sT3} offen sc1", tag=('st', nt // 8))
    def chunk_mf(c, i):
        b, ee = i >> 1, i & 1
        if c < 28:
            m, s = divmod(c, 7); T = 2 * s + (b >> 1)
            return [(acc_g(m, ee, b & 1, qt), (2 * T + qt) * 4, T == 0) for qt in range(2)]
        return [(acc_d(c - 28, ee, qt), 208 + (b * 2 + qt) * 4, b == 0) for qt in range(2)]
    def rd(c, i):
        imm = (c % 3) * GLUS + (i >> 1) * 2048
        e(f"{TR} {vr(176+4*i,2)}, v{246+(i&1)} offset:{imm}"); e(f"{TR} {vr(178+4*i,2)}, v{246+(i&1)} offset:{imm+1024}")
    small_only = []; big_only = []
    def burst(c, nxt, fill, skip_from=8):
        fill = list(fill)
        if hi != lo: e(f"s_setprio {hi}")
        for i in range(8):
            if i == skip_from:
                for t in fill: e(t)
                fill = []
                e("s_cmp_lg_u32 s99, 0"); e(f"s_cbranch_scc1 L_bs{c}"); mk = P.mark()
            for k, (acc, bb, z) in enumerate(chunk_mf(c, i)[::-1] if (cfg.snake & 4 and i & 1) else chunk_mf(c, i)):
                e(f"{MF} {vr(acc,4)}, {vr(176+4*i,4)}, {vr(bb,4)}, {'0' if z else vr(acc,4)}")
                if k == 0:
                    room = 2
                    while fill and room > 0:
                        cst = 2 if fill[0].startswith(('v_exp', 'v_rcp')) else 1
                        if cst > room: break
                        e(fill.pop(0)); room -= cst
            if nxt is not None: rd(nxt, i)
        if skip_from < 8:
            big_only.extend(P.since(mk)); e(f"L_bs{c}:")
        if hi != lo: e(f"s_setprio {lo}")
        for t in fill: e(t)
    for j in range(64):
        if j in (3, ACT0, DN0, DN0 + 14, 62): stamp(P, cfg, {3: 4, ACT0: 5, DN0: 6, DN0 + 14: 7, 62: 8}[j])
        if j in (3, ACT0) and not cfg.hack & 16: stamp(P, cfg, {3: 1, ACT0: 2}[j], True)
        if j == GSET + 1: e("global_load_dword v253, v252, s[68:69] sc1")
        if j in GPOLL: e(f"buffer_load_dword v253, v252, {SF}, s84 offen offset:{128*GPOLL.index(j)} sc1")
        if j + 4 < 64 and not cfg.x & 1: dma_kv(F, 'K', j + 4, j & 3)
        if j == 21: F.add('s_cmp_lg_u32 s99, 0', f's_cselect_b32 s{srd(5)+2}, 0, s{srd(5)+2}')
        if j < 28: dma_gu(F, j)
        if 0 <= j + 3 - DN0 < 14: dma_wd(F, 28 + j + 3 - DN0, j + 3 - DN0)
        if j + 3 < 64 and not (cfg.x & 1 and j): dma_kv(F, 'V', j + 3, 4 + ((j + 3) & 3))
        for nt in {59: [0], 60: [1], 61: [2, 3], 62: [4, 5], 63: [6, 7]}.get(j, []): dma_wo(F, nt, WO_SLOT[nt])
        if cfg.touch:
            if cfg.ltouch and j % cfg.tper == 0 and ntr[0] < min(16, j // 4 + cfg.klead + 1):
                ntr[0] += 1
                F.add(f"s_add_u32 {sT3}, s89, {(ntr[0]-1)*65536}", f"buffer_load_dword v244, v243, {ST}, {sT3} offen", tag='touch')
            if j == 10:
                F.add(f"s_mul_i32 {sT3}, {sSH}, 7168", f"s_add_u32 {sT3}, {sT3}, s88", f"s_lshl_b32 {sT3}, {sT3}, {cfg.hx-1}", f"buffer_load_dword v244, v243, {SWD}, {sT3} offen", tag='touch')
            if j in (cfg.wot, cfg.wot + 2, cfg.wot2, cfg.wot2 + 2):
                F.add(f"s_mul_i32 {sT3}, {sSH}, 14336", f"s_add_u32 {sT3}, {sT3}, s88", f"s_add_u32 {sT3}, {sT3}, {0 if j in (cfg.wot, cfg.wot2) else 8192}", f"s_lshl_b32 {sT3}, {sT3}, {cfg.hx-1}", f"buffer_load_dword v244, v243, {SWO}, {sT3} offen", tag='touch')
        if j == GU0 - 1:
            for i in range(8): rd(0, i)
        if GU0 <= j < ACT0:
            c = j - GU0; m, s = divmod(c, 7)
            fill = split(act(m - 1), 7)[s] if m else []
            if m == 3:
                e("s_cmp_lg_u32 s99, 0"); e(f"s_cbranch_scc0 L_bg{c}")
                mk = P.mark()
                for t in fill: e(t)
                e(f"s_branch L_be{c}")
                small_only.extend(P.since(mk))
                e(f"L_bg{c}:"); mk = P.mark()
            burst(c, c + 1 if c < 27 else None, fill)
            if m == 3: big_only.extend(P.since(mk)); e(f"L_be{c}:")
        if DN0 <= j < DN0 + 14:
            nt = j - DN0
            burst(28 + nt, 29 + nt if nt < 13 else None, out_cv(nt - 1) if nt else [], skip_from=6)
        if j == DN0 + 14:
            for t in out_cv(13): e(t)
        if ACT0 <= j < DN0:
            F.flush()
            e("s_cmp_lg_u32 s99, 0"); e(f"s_cbranch_scc1 L_as{j}"); mk = P.mark()
            for t in split(act(3), NACT)[j - ACT0]: e(t)
            big_only.extend(P.since(mk)); e(f"L_as{j}:")
            if j == DN0 - 1:
                for i in range(8): rd(28, i)
        if j == GSET:
            for t in final_salu(): e(t)
            e(f"s_lshl_b32 s7, {sQB}, 4"); e("v_mov_b32 v252, s7")
        if j == GSET2:
            F.emit(4)
            e("v_and_b32 v176, 15, v255"); e("v_lshrrev_b32 v177, 4, v255")
            e("v_mul_u32_u24 v251, 896, v176"); e("v_lshl_add_u32 v251, v177, 4, v251")
            e("v_lshrrev_b32 v178, 3, v255"); e("v_lshlrev_b32 v179, 1, v177"); e("v_and_b32 v180, 7, v255"); e("v_xor_b32 v179, v179, v180")
            e("v_mul_u32_u24 v248, 896, v178"); e("v_lshl_add_u32 v248, v179, 4, v248")
            e("v_bfe_u32 v178, v176, 2, 1"); e("v_lshlrev_b32 v178, 3, v178")
            e("v_lshrrev_b32 v179, 3, v176"); e("v_lshl_add_u32 v178, v179, 1, v178")
            e("v_bfe_u32 v179, v176, 1, 1"); e("v_add_u32 v178, v178, v179")
            e("v_lshlrev_b32 v179, 2, v177"); e("v_sub_u32 v178, v178, v179")
            e("v_and_b32 v179, 1, v176"); e("v_lshlrev_b32 v179, 4, v179"); e("v_mov_b32 v180, 0x3f80"); e("v_lshlrev_b32 v179, v179, v180")
            for ee in range(2):
                for i in range(4):
                    e(f"v_cmp_eq_u32 vcc, {i - 4 * ee}, v178"); e(f"v_cndmask_b32 v{192+4*ee+i}, 0, v179, vcc")
        F.flush()
        if DN0 + 1 <= j <= DN0 + 14: out_st(j - DN0 - 1)
        if j == GSET2 + 2:
            for r in range(2): e(f"buffer_load_dwordx4 {vr(216+4*r,4)}, v251, {SX}, s86 offen offset:{r*512}")
            if cfg.otouch: e(f"buffer_load_dword v244, off, {SO}, s86", tag='touch')
        if j in GPUB:
            r = GPUB.index(j)
            e("v_mov_b32 v96, 0"); e(f"v_mov_b32 v97, 1"); P.waitvm(('st', r))
            e("s_mov_b64 exec, 1"); e(f"global_store_dword v96, v97, s[100:101] offset:{128*r} sc1", tag='fl'); e("s_mov_b64 exec, -1")
        if j == GSET + 1:
            slows.append(poll(P, "L_pa", "global_load_dword v253, v252, s[68:69] sc1", "v_cmp_le_u32 vcc, 16, v253", True))
            e("v_and_b32 v252, 15, v255"); e("v_lshlrev_b32 v252, 2, v252")
        if j in GPOLL:
            r = GPOLL.index(j)
            slows.append(poll(P, f"L_pg{r}", f"buffer_load_dword v253, v252, {SF}, s84 offen offset:{128*r} sc1", "v_cmp_le_u32 vcc, 1, v253", True))
        for r in range(2):
            k = j - GPOLL[r] - 1
            if 0 <= k < 8:
                for h in (2 * k, 2 * k + 1):
                    e(f"s_mov_b32 {sT3}, {GP_OFF + h*1024 + r*4*STG}")
                    e(f"buffer_load_dwordx4 {vr(GSRC[r]+4*h,4)}, v249, {SR}, {sT3} offen sc1")
        if j == cfg.pe: stamp(P, cfg, 13)
        if j < 63:
            need = [('K', j + 3), ('V', j + 1), ('G', j - 1)]
            if 0 <= j + 2 - DN0 < 14: need.append(('G', 28 + j + 2 - DN0))
        else:
            need = [('WO', 0), ('WO', 1)]
            e(f"v_mov_b32 v176, {FLAG}")
        P.waitvm(*need)
        if GU0 - 1 <= j < DN0 + 13: e("s_waitcnt lgkmcnt(0)")
        if j == cfg.pe: stamp(P, cfg, 14)
        e("s_barrier")
        if j == cfg.pe - 1: stamp(P, cfg, 9)
        if j == cfg.pe: stamp(P, cfg, 15)
    e("ds_read_b32 v177, v176")
    for k in range(6):
        if cfg.hack & 32 and k >= 2: stamp(P, cfg, 1 + 3 * (k - 2))
        dma_wo(F, 8 + k, WO_SLOT[8 + k]); F.flush()
        if cfg.hack & 32 and k >= 2: stamp(P, cfg, 2 + 3 * (k - 2))
        if k == 0:
            e("v_readfirstlane_b32 s7, v177")
            e(f"s_andn2_b32 s7, s7, {sMODE}"); e("s_cbranch_scc1 L_again")
        P.waitvm(*[('WO', t) for t in ([k + 2] if k < 4 else range(6, cfg.lastb) if k == 4 else range(cfg.lastb, 14))])
        if cfg.hack & 32 and k >= 2: stamp(P, cfg, 3 + 3 * (k - 2))
        e("s_barrier")
    if cfg.hack & 32: stamp(P, cfg, 13); dump_stamps(P); e("s_endpgm")
    e(f"s_setprio {cfg.pep}")
    if cfg.hack & 4: e("s_branch L_hdone")
    e(f"s_cmp_eq_u32 {sSUB}, 3"); e("s_cbranch_scc1 L_hskip")
    for t in xch_salu(): e(t)
    e("v_add_u32 v176, s85, v249"); e("v_add_u32 v177, s90, v249"); e("v_mov_b32 v250, v249")
    for h in range(16): e(f"ds_write_b128 v176, {vr(4*h,4)} offset:{h*1024}")
    for k, r0 in enumerate((192, 196, 220, 250)): e(f"ds_write_b128 v177, {vr(r0,4)} offset:{k*1024}")
    e("L_hskip:")
    e("s_waitcnt vmcnt(0) lgkmcnt(0)")
    e("s_barrier")
    fetch(P, cfg, 0, 0, "v249", lambda: (msum(P, 200, 112), silu8(P, 200)))
    fin(P, cfg, 0, 0, 216)
    e("L_hdone:")
    if cfg.stamps:
        e("s_waitcnt vmcnt(0)"); stamp(P, cfg, 11, True); dump_stamps(P)
    e("s_endpgm")
    sk = set(id(x) for s in slows for x in s)
    allh = [x for x in P.since(m0) if id(x) not in sk]
    so = set(map(id, small_only)); bo = set(map(id, big_only))
    return [[x for x in allh if id(x) not in so], [x for x in allh if id(x) not in bo]], slows

def kd(name, vgpr, ydim=False):
    return "\n".join([f".amdhsa_kernel {name}", f"  .amdhsa_next_free_vgpr {vgpr}", "  .amdhsa_next_free_sgpr 102",
        f"  .amdhsa_accum_offset {vgpr}", "  .amdhsa_group_segment_fixed_size 0", "  .amdhsa_kernarg_size 96",
        "  .amdhsa_user_sgpr_count 2", "  .amdhsa_user_sgpr_kernarg_segment_ptr 1", "  .amdhsa_system_sgpr_workgroup_id_x 1"]
        + (["  .amdhsa_system_sgpr_workgroup_id_y 1"] if ydim else []) + [".end_amdhsa_kernel"])

HEADER = """
; waves 4-7 stream K/V/weights into LDS (LDS-DMA rings) and run this workgroup's slice of the GLU branch.
; Per-head partial results go through d_ws (write-through stores, per-wave flags reset at start, arrival count in d_debug)
"""
def generate(cfg=None):
    cfg = cfg or Cfg()
    global FIXED, WAITS, PLACE, CFG
    CFG = cfg
    FIXED, WAITS, PLACE = sched.plan(wait_group=cfg.wg)
    P = Prog()
    K1 = NAME + "_kernel"
    P.e(".p2align 8"); P.e(f"{K1}:")
    m = P.mark(); gen_entry(P, cfg); entry = P.since(m)
    m = P.mark(); FC = gen_setup(P, cfg, False); P.e("s_branch L_ln"); cs = P.since(m)
    P.e("L_hs:")
    m = P.mark(); FH = gen_setup(P, cfg, True); hs = P.since(m)
    P.e("L_ln:")
    m = P.mark(); gen_ln(P, cfg); ln = P.since(m)
    ctraces, other = gen_compute(P, cfg, FC)
    htrace, hother = gen_helper(P, cfg, FH)
    ctraces = [cs + ln + t for t in ctraces]; htrace = [hs + ln + t for t in htrace]
    P.e("L_end:"); P.e("s_endpgm")
    P.e("L_code_end:")
    full = [entry + t for t in ctraces] + [entry + t for t in htrace]
    resolve(full + [[x for x in t if x.tag != 'opt'] for t in full] + other + hother)
    nb = lambda t: sum(1 for x in t if x.kind != 'none' and x.op == 's_barrier')
    print("barriers compute", nb(ctraces[0]) + 13 * 4, "helper", nb(htrace[0]), nb(htrace[1]))
    if cfg.hack & 2:
        for I in P.L:
            if I.text.startswith("buffer_store_dwordx4"): I.text = I.text.replace(" sc1", "")
    if cfg.hack & 8:
        for I in P.L:
            if I.text.startswith("buffer_store_dwordx4"): I.text = I.text.replace(" sc1", " sc0 sc1")
    if cfg.dflag:
        fl = {1: "nt", 2: "sc1", 3: "sc0", 4: "sc0 sc1", 5: "sc0 nt", 6: "sc1 nt"}[cfg.dflag]
        for I in P.L:
            if I.text.endswith(" lds") and I.tag and I.tag[0] in ('K', 'V', 'G', 'WQ', 'WO'): I.text = I.text[:-4] + f" {fl} lds"
    out = expand(P.L)
    mis = align8(out) if cfg.al else -1
    head = HEADER.strip().splitlines() + [f"; @launch grid=(256,1,1) block=(512,1,1) lds={LDS_BYTES}",
            '.amdgcn_target "amdgcn-amd-amdhsa--gfx950"', ".text",
            f".globl {K1}", f".type {K1},@function"]
    span = 0
    for I in out:
        if I.text == "L_code_end:": break
        if I.text.startswith(".p2align"):
            a = 1 << int(I.text.split()[1]); span = -(-span // a) * a
        span += I.size()
    body = [I.text.replace("CODE_SPAN", str((span - 128) & ~3)) for I in out]
    print("code bytes K1", span)
    tail = ['.section .rodata,"a"', ".p2align 6", kd(K1, 256)]
    return "\n".join(head + body + tail) + "\n", mis

if __name__ == "__main__":
    cfg = Cfg()
    for a in sys.argv[2:]:
        k, v = a.split('='); setattr(cfg, k, float(v) if k == 'thr' else int(v))
    s, mis = generate(cfg)
    open(sys.argv[1], "w").write(s)
    print("bytes", len(s), "lines", s.count("\n"), "misaligned", mis)
```

```python
import struct, sys
from asmlib import *
import sched

NAME = "recurrent_scan__mha_block_cached__glu_gated_glu__prompt"
def f2u(x): return struct.unpack('<I', struct.pack('<f', x))[0]
LOG2E = 1.4426950408889634
SLOT = 16896
GLUB = 8 * SLOT
GLUS = 8192
FLAG = GLUB - 32
LDS_BYTES = 163840
GP_OFF = 0x2000000
STG = 262144
FL_OFF = 0x4000000
SPIN = 400000

sHEAD, sQB, sWV, sSUB = 's3', 's4', 's5', 's6'
SX, SK, SV, SWQ, SWO, SWG, SWU, SWD, SP, ST = [f"s[{8+4*i}:{11+4*i}]" for i in range(10)]
sC = 's72'; sHI = 's74'; sTRIP = 's75'
sLK, sLV, sL1K = 's76', 's77', 's78'
sMODE = 's79'
sSH = 's91'
sT0, sT1, sT2, sT3 = 's80', 's81', 's82', 's83'
sKO, sVO = 's96', 's97'
def srd(i): return 8 + 4 * i
def vr(a, n): return f"v[{a}:{a+n-1}]"
MF = "v_mfma_f32_16x16x32_bf16"
TR = "ds_read_b64_tr_b16"

class Cfg:
    glu = 1
    touch = 1
    prio = 2
    stamps = 0
    thr = 2.0 ** 64
    wq_at = 33
    xpar = 0
    pe = 20
    hack = 0
    plo = 0
    hx = 1
    t_at = 28
    ktr = 3
    klead = 16
    gtouch = 1
    tq0 = 8
    phi = 2
    nact = 2
    flip = 0
    x = 0
    snake = 7
    lnpk = 3
    pre2 = 0
    xrot = 1
    stouch = 0
    tlb = 0
    ltd = 0
    q0e = 4
    qprio = 2
    al = 1
    fmode = 0
    pn = 0
    toff = 0
    obias = 0
    wot2 = 27
    wsoff = 0
    tper = 2
    oflag = 1
    otouch = 0
    dflag = 0
    vbit = -1
    bara = 15
    barb = 15
    pep = 0
    pd = 2
    lastb = 9
    pubr = 13
    ctop = 1
    xat = 224
    ssp = 4
    fo = 1
    sn = -1
    wot = 57
    pl = 4
    slp = 8
    wg = 3
    ltouch = 1
    etouch = 1

def stream(P, items, bufs, lead, gapfill=None, group=2, start=None):
    n = len(items)
    buf = [bufs[i % len(bufs)] for i in range(n)]
    def reads(i):
        it = items[i]
        if it.get('hook'): it['hook']()
        for (op, addr, imm, sub, w) in it['reads']:
            P.e(f"{op} {vr(buf[i]+sub, w)}, {addr} offset:{imm}")
    for i in range(min(lead, n)): reads(i)
    if start: start()
    for i in range(n):
        it = items[i]
        for k, (acc, b, c) in enumerate(it['mf'][::-1] if (CFG.snake & 4 and i & 1) else it['mf']):
            extra = set()
            if group and k == len(it['mf']) - 1 and (i + 1) % group == 0:
                for z in range(1, group + 1):
                    if i + z < n: extra |= regs_of(vr(buf[i+z], 4))
            P.e(f"{MF} {vr(acc,4)}, {vr(buf[i],4)}, {vr(b,4)}, {c if c is not None else vr(acc,4)}", extra_rd=extra)
            if k == len(it['mf']) - 1 and i + lead < n: reads(i + lead)
            elif gapfill: gapfill(i, k)

def tr_reads(addr, imm0, imm1): return [(TR, addr, imm0, 0, 2), (TR, addr, imm1, 2, 2)]

class Filler:
    def __init__(self, P): self.P = P; self.q = []
    def add(self, *texts, **kw): self.q.append((texts, kw))
    def emit(self, k=1):
        for _ in range(k):
            if not self.q: return
            texts, kw = self.q.pop(0)
            for t in texts:
                if isinstance(t, tuple): self.P.waitvm(*t)
                elif t.startswith(('buffer_', 'global_')): self.P.e(t, **kw)
                else: self.P.e(t)
    def flush(self): self.emit(len(self.q))
    def wait(self, *tags):
        assert not any(kw.get('tag') in tags for _, kw in self.q), tags
        self.P.waitvm(*tags)

def dma_kv(F, which, tile, slot):
    sr, sl, so = (SK, sLK, sKO) if which == 'K' else (SV, sLV, sVO)
    ld = lambda off: f"buffer_load_dwordx4 v240, {sr}, {so} offen" + (f" offset:{off}" if off else "") + " lds"
    tag = (which, tile)
    F.add(f"s_add_u32 m0, {sl}, {slot*SLOT}", f"s_addk_i32 {so}, 8192", ld(0), tag=tag)
    F.add("s_addk_i32 m0, 32", ld(1024), tag=tag)
    F.add(f"s_addk_i32 m0, {8448-32}", f"s_addk_i32 {so}, 8192", ld(0), tag=tag)
    F.add("s_addk_i32 m0, 32", ld(1024), tag=tag)
def dma_wq(F, tile, slot):
    ld = f"buffer_load_dwordx4 v245, {SWQ}, {sT0} offen lds"
    tag = ('WQ', tile)
    F.add(f"s_add_u32 m0, {sLV}, {slot*SLOT}", f"s_mov_b32 {sT0}, {32*tile*8192}", ld, tag=tag)
    for d in (1056, 7392, 1056):
        F.add(f"s_addk_i32 m0, {d}", f"s_addk_i32 {sT0}, 16384", ld, tag=tag)
def dma_wo(F, t, slot):
    ld = f"buffer_load_dwordx4 v248, {SWO}, {sT0} offen lds"
    tag = ('WO', t)
    F.add(f"s_add_u32 m0, {sL1K}, {slot*SLOT}", f"s_add_u32 {sT0}, s87, {(t & 1)*128*896 + (t >> 1)*128}", ld, tag=tag)
    for p in range(3): F.add("s_addk_i32 m0, 1024", f"s_addk_i32 {sT0}, {8*896}", ld, tag=tag)
def dma_gu(F, c):
    base = GLUB + (c % 3) * GLUS; m, s = divmod(c, 7)
    ld = f"buffer_load_dwordx4 v241, {SWG}, {sT2} offen lds"
    F.add(f"s_add_u32 m0, s88, {base}", f"s_mov_b32 {sT2}, {64*s*3584 + m*64}", ld, tag=('G', c))
    F.add("s_addk_i32 m0, 1024", f"s_addk_i32 {sT2}, {4*3584}", ld, tag=('G', c))
def dma_wd(F, c, nt):
    base = GLUB + (c % 3) * GLUS
    ld = f"buffer_load_dwordx4 v242, {SWD}, {sT2} offen lds"
    F.add(f"s_add_u32 m0, s88, {base}", f"s_add_u32 {sT2}, s87, {nt*64}", ld, tag=('G', c))
    F.add("s_addk_i32 m0, 1024", f"s_addk_i32 {sT2}, 14336", ld, tag=('G', c))

WQ_SLOT = {0: 7, 1: 8, 2: 5, 3: 3, 4: 6, 5: 4, 6: 0, 7: 1, 8: 2, 9: 7, 10: 8, 11: 5, 12: 3, 13: 6}
WO_SLOT = {0: 8, 1: 0, 2: 1, 3: 4, 4: 2, 5: 5, 6: 3, 7: 6, 8: 7, 9: 8, 10: 0, 11: 1, 12: 4, 13: 2}

def streg(idx): return {0: 's94', 10: 's95'}.get(idx, f"s{48+idx}") if not H32 else f"s{48+idx}"
H32 = False
NLAB = 0
def stamp(P, cfg, idx, real=False):
    if not cfg.stamps: return
    P.e(f"{'s_memrealtime' if real else 's_memtime'} s[64:65]"); P.e("s_waitcnt lgkmcnt(0)")
    P.e(f"s_mov_b32 {streg(idx)}, s64")
def dump_stamps(P):
    e = P.e
    global H32
    H32 = bool(CFG.hack & (32 | 256))
    if CFG.hack & 128:
        global NLAB
        NLAB += 1
        e("s_mov_b64 exec, 1")
        e("v_mov_b32 v0, 0"); e(f"v_mov_b32 v1, {streg(11)}"); e(f"s_not_b32 s7, {streg(10)}"); e("v_mov_b32 v2, s7")
        e("global_atomic_umax v0, v1, s[68:69] offset:4"); e("global_atomic_umax v0, v2, s[68:69] offset:8")
        e(f"s_lshl_b32 s7, s2, 3"); e(f"s_add_u32 s7, s7, {sWV}"); e(f"s_cmp_lg_u32 s7, {37*8}"); e(f"s_cbranch_scc1 L_nd{NLAB}")
        for w, (x, y) in zip((3, 5, 6, 7, 9, 10, 11, 13, 14), ((1, 0), (2, 1), (3, 2), (4, 3), (5, 4), (6, 5), (13, 6), (8, 13), (11, 10))):
            e(f"s_sub_u32 s7, {streg(x)}, {streg(y)}"); e(f"v_mov_b32 v{w+4}, s7"); e(f"global_store_dword v0, v{w+4}, s[68:69] offset:{4*w}")
        e(f"L_nd{NLAB}:")
        return
    for i in range(16): e(f"v_writelane_b32 v254, {streg(i)}, {i}")
    e(f"s_lshl_b32 s7, s2, 3"); e(f"s_add_u32 s7, s7, {sWV}"); e("s_lshl_b32 s7, s7, 8"); e("s_add_u32 s7, s7, 0x8000000")
    e("s_add_u32 s96, s70, s7"); e("s_addc_u32 s97, s71, 0")
    e("v_mbcnt_lo_u32_b32 v255, -1, 0"); e("v_mbcnt_hi_u32_b32 v255, -1, v255"); e("v_lshlrev_b32 v255, 2, v255")
    e("global_store_dword v255, v254, s[96:97]")

def mad(P, dst, src, mul, acc=None):
    P.e(f"s_movk_i32 s7, {mul}" if mul < 32768 else f"s_mov_b32 s7, {mul}")
    if acc is None: P.e(f"v_mul_u32_u24 {dst}, s7, {src}")
    else: P.e(f"v_mad_u32_u24 {dst}, {src}, s7, {acc}")

def gen_entry(P, cfg):
    e = P.e
    e("s_cmp_ge_u32 s2, 256"); e("s_cbranch_scc1 L_end")
    e(f"s_mov_b32 {sMODE}, 0")
    e("L_restart:")
    stamp(P, cfg, 0); stamp(P, cfg, 10, True)
    e("s_load_dwordx16 s[48:63], s[0:1], 0"); e("s_load_dwordx8 s[64:71], s[0:1], 64")
    e("s_getpc_b64 s[96:97]")
    if cfg.ctop:
        e("s_lshr_b32 s7, s2, 3"); e("s_lshl_b32 s7, s7, 12"); e("v_lshl_add_u32 v189, v0, 3, s7"); e("v_min_u32 v189, CODE_SPAN, v189")
        e("global_load_dword v251, v189, s[96:97]", tag='touch')
    e("v_lshrrev_b32 v1, 6, v0")
    e("v_and_b32 v255, 63, v0")
    e(f"v_readfirstlane_b32 {sWV}, v1")
    hx = cfg.hx; lm = hx - 1; M = 1 << lm
    e(f"s_and_b32 {sHEAD}, s2, {(16 >> hx) - 1}"); e(f"s_lshl_b32 {sHEAD}, {sHEAD}, {hx}"); e(f"s_bfe_u32 s7, s2, {(hx << 16) | 3:#x}"); e(f"s_add_u32 {sHEAD}, {sHEAD}, s7")
    e(f"s_lshr_b32 {sSH}, s2, {3 + hx}")
    if hx > 1: e(f"s_bfe_u32 s7, s2, {(lm << 16) | (4 - hx):#x}"); e(f"s_lshl_b32 s7, s7, {5 - hx}"); e(f"s_add_u32 {sQB}, {sSH}, s7")
    else: e(f"s_mov_b32 {sQB}, {sSH}")
    e(f"s_and_b32 {sSUB}, {sWV}, 3")
    e("s_mov_b32 s11, 0x20000"); e(f"s_mov_b32 s10, {2048*896}")
    e("v_lshrrev_b32 v186, 3, v255"); e("v_and_b32 v185, 7, v255"); e("v_lshlrev_b32 v184, 4, v185"); mad(P, 'v184', 'v186', 896, 'v184')
    if cfg.xrot: e(f"s_add_u32 s84, {sWV}, s2"); e("s_and_b32 s84, s84, 7"); e(f"s_and_b32 {sTRIP}, s2, {cfg.xrot & 1}")
    else: e(f"s_mov_b32 s84, {sWV}"); e(f"s_mov_b32 {sTRIP}, 0")
    e(f"s_lshl_b32 s7, {sQB}, 3"); e("s_add_u32 s7, s7, s84"); e(f"s_mul_i32 {sT0}, s7, {16*896}")
    def mk(i, plo, mul, total, exact=None, idx=sHEAD):
        b = srd(i)
        e(f"s_mul_i32 s7, {idx}, {mul}")
        e(f"s_add_u32 s{b}, s{plo}, s7"); e(f"s_addc_u32 s{b+1}, s{plo+1}, 0")
        if exact is not None: e(f"s_mov_b32 s{b+2}, {exact}")
        else: e(f"s_sub_u32 s{b+2}, {total}, s7")
    e(f"v_lshrrev_b32 v250, {4-lm}, v0"); e("v_lshlrev_b32 v250, 13, v250"); e(f"v_and_b32 v2, {(16>>lm)-1}, v0"); e(f"v_lshl_add_u32 v250, v2, {5+lm}, v250")
    e(f"s_mul_i32 s90, {sSH}, {28*M*8192}")
    for i in range(1, 10): e(f"s_mov_b32 s{srd(i)+3}, 0x20000")
    e(f"s_mul_i32 s7, {sTRIP}, {8*896}"); e(f"s_add_u32 {sT1}, {sT0}, {8*896}"); e(f"s_add_u32 {sT0}, {sT0}, s7"); e(f"s_sub_u32 {sT1}, {sT1}, s7")
    e("s_waitcnt lgkmcnt(0)")
    if cfg.hack & 16: e("s_memtime s[86:87]")
    e("s_mov_b32 s8, s48"); e("s_mov_b32 s9, s49")
    if cfg.t_at == -2:
        mk(3, 54, 512, 448 * 8192); e(f"buffer_load_dword v251, v250, {SWQ}, s90 offen", tag='touch')
    for kp in range(7): e(f"buffer_load_dwordx4 {vr(128+4*kp,4)}, v184, {SX}, {sT0} offen offset:{kp*128}")
    if cfg.t_at != -2: mk(3, 54, 512, 448 * 8192)
    if cfg.t_at == -1: e(f"buffer_load_dword v251, v250, {SWQ}, s90 offen", tag='touch')
    if cfg.tlb & 1:
        e(f"s_load_dword s92, s[{srd(3)}:{srd(3)+1}], 0"); e(f"s_add_u32 s96, s{srd(3)}, {447*8192}"); e(f"s_addc_u32 s97, s{srd(3)+1}, 0"); e("s_load_dword s92, s[96:97], 0")
    if cfg.stouch:
        e(f"s_cmp_eq_u32 {sWV}, 7"); e("s_cbranch_scc1 L_nost")
        e(f"s_lshl_b32 s7, {sWV}, 15"); e("s_add_u32 s7, s7, s90"); e(f"s_add_u32 s96, s{srd(3)}, s7"); e(f"s_addc_u32 s97, s{srd(3)+1}, 0")
        for r in range(4):
            for l in range(4 * cfg.stouch): e(f"s_load_dword s92, s[96:97], {r*8192 + l*(128//cfg.stouch)}")
        e("L_nost:")
    if cfg.wsoff: e(f"s_add_u32 s70, s70, {cfg.wsoff << 20}"); e("s_addc_u32 s71, s71, 0")
    mk(1, 50, 1 << 20, 0, 1 << 20)
    mk(2, 52, 1 << 20, 0, 1 << 20)
    mk(4, 56, 256 * 896, 0, 256 * 896)
    assert hx == 1
    e("s_and_b32 s98, s2, 6"); e("s_bfe_u32 s7, s2, 0x10003"); e("s_add_u32 s98, s98, s7"); e("s_mul_i32 s98, s98, 7")
    e("s_and_b32 s99, s2, 1")
    if cfg.flip: e("s_mul_i32 s7, s99, 3"); e("s_xor_b32 s99, s99, 1")
    else: e("s_lshl_b32 s7, s99, 2")
    e("s_add_u32 s98, s98, s7")
    mk(5, 60, 64, 448 * 3584, idx='s98')
    mk(6, 62, 64, 448 * 3584, idx='s98')
    mk(7, 64, 32 * 896, 0, 128 * 896, idx='s98')
    e(f"s_mul_i32 s7, s99, {32*896}"); e(f"s_sub_u32 s{srd(7)+2}, s{srd(7)+2}, s7")
    e(f"s_mul_i32 s7, {sQB}, {7*STG}"); e(f"s_lshl_b32 {sT2}, {sSUB}, 16"); e(f"s_add_u32 s7, s7, {sT2}"); e(f"s_lshl_b32 {sT2}, {sHEAD}, 10"); e(f"s_add_u32 s7, s7, {sT2}")
    e(f"s_lshr_b32 {sT2}, {sWV}, 2"); e(f"s_mul_i32 {sT2}, {sT2}, {GP_OFF}"); e(f"s_add_u32 s7, s7, {sT2}")
    e(f"s_add_u32 s{srd(8)}, s70, s7"); e(f"s_addc_u32 s{srd(8)+1}, s71, 0"); e(f"s_mov_b32 s{srd(8)+2}, {7*STG}")
    e(f"s_lshl_b32 s7, {sQB}, 2"); e(f"s_add_u32 s7, s7, {sSUB}"); e("s_lshl_b32 s7, s7, 8"); e(f"s_add_u32 s7, s7, {sHEAD}"); e("s_lshl_b32 s7, s7, 2")
    e(f"s_lshr_b32 {sT2}, {sWV}, 2"); e(f"s_lshl_b32 {sT2}, {sT2}, 16"); e(f"s_add_u32 s7, s7, {sT2}"); e(f"s_add_u32 s7, s7, {FL_OFF}")
    e("s_add_u32 s100, s70, s7"); e("s_addc_u32 s101, s71, 0")
    if cfg.tlb & 2:
        for i in (1, 2, 4, 5, 6, 7, 8): e(f"s_load_dword s92, s[{srd(i)}:{srd(i)+1}], 0")
        for p in ("100:101", "66:67", "68:69"): e(f"s_load_dword s92, s[{p}], 0")
    e(f"s_cmp_lt_u32 {sSUB}, 2")
    e(f"s_cselect_b32 s{srd(9)}, s{srd(1)}, s{srd(2)}"); e(f"s_cselect_b32 s{srd(9)+1}, s{srd(1)+1}, s{srd(2)+1}"); e(f"s_mov_b32 s{srd(9)+2}, {1<<20}")
    e(f"s_lshl_b32 s89, {sSH}, {12+lm}"); e(f"s_and_b32 s7, {sSUB}, 1"); e(f"s_lshl_b32 s7, s7, {11+lm}"); e("s_add_u32 s89, s89, s7")
    e(f"s_mov_b32 {sC}, {f2u(LOG2E/16):#x}"); e(f"s_mov_b32 {sHI}, 0xffff0000")
    e("v_lshrrev_b32 v112, 4, v255"); e("v_bfe_u32 v114, v255, 2, 2"); e("v_and_b32 v115, 3, v255")
    e("v_lshrrev_b32 v116, 1, v114"); e("v_lshl_add_u32 v116, v112, 1, v116"); e("v_lshlrev_b32 v224, 3, v115"); mad(P, 'v224', 'v116', 1056, 'v224')
    e("v_and_b32 v116, 1, v114"); e("v_lshl_add_u32 v224, v116, 7, v224")
    e("v_bfe_u32 v117, v255, 2, 1"); e("v_lshl_add_u32 v116, v115, 1, v117"); e("v_xor_b32 v116, v116, v186"); e("v_lshlrev_b32 v187, 4, v116")
    e("v_lshl_add_u32 v187, v115, 8, v187"); e("v_xor_b32 v117, 1, v117"); e("v_lshl_add_u32 v187, v117, 13, v187")
    e("s_lshl_b32 s7, s84, 3"); e(f"s_add_u32 s7, s7, {sTRIP}"); e("s_lshl_b32 s7, s7, 7"); e("v_add_u32 v187, s7, v187"); e("v_add_u32 v188, 0x10000, v187")
    e("v_lshlrev_b32 v116, 1, v112"); e("v_and_b32 v117, 15, v255"); e("v_xor_b32 v116, v116, v117"); e("v_lshlrev_b32 v227, 4, v116"); e("v_lshl_add_u32 v227, v112, 8, v227")
    e(f"s_lshl_b32 s7, {sSUB}, 11"); e("v_add_u32 v227, s7, v227"); e("v_add_u32 v228, 0x10000, v227")
    e("v_xor_b32 v229, 16, v227"); e("v_xor_b32 v230, 16, v228")
    e("v_lshrrev_b32 v185, 2, v255")
    if cfg.hack & 16: e("s_waitcnt lgkmcnt(0)"); e("s_mov_b32 s57, s86"); cfg.pe = -5
    e("v_lshlrev_b32 v240, 7, v112")
    e("v_and_b32 v116, 7, v255"); e("v_lshl_add_u32 v240, v116, 4, v240")
    e("v_bfe_u32 v116, v255, 3, 1")
    e("v_lshl_add_u32 v245, v116, 13, v240")
    e("v_lshl_add_u32 v240, v116, 9, v240")
    e(f"s_lshl_b32 s7, {sSUB}, 16"); e("v_add_u32 v245, s7, v245")
    e(f"s_mul_i32 {sLV}, {sSUB}, 2112")
    e(f"s_cmp_ge_u32 {sWV}, 4"); e("s_cbranch_scc1 L_hs")

def wdo_read_bases(P, d0, d1, G, r, c, tmp, add=0):
    e = P.e
    e(f"v_lshlrev_b32 {d0}, 3, {c}"); e(f"v_lshl_add_u32 {d0}, {G}, 8, {d0}"); e(f"v_lshl_add_u32 {d0}, {r}, 6, {d0}")
    e(f"v_and_b32 {tmp}, 1, {G}"); e(f"v_lshl_add_u32 {d0}, {tmp}, 5, {d0}")
    if add: e(f"v_add_u32 {d0}, {add}, {d0}")
    e(f"v_xor_b32 {d1}, 32, {d0}")

def final_salu():
    R = []; e = R.append
    e(f"s_lshr_b32 s7, {sHEAD}, 2"); e(f"s_mul_i32 {sT3}, {sQB}, {7*STG}"); e(f"s_lshl_b32 {sT2}, {sHEAD}, 14"); e(f"s_add_u32 {sT3}, {sT3}, {sT2}")
    e(f"s_lshl_b32 {sT2}, {sSUB}, 18"); e(f"s_add_u32 {sT3}, {sT3}, {sT2}")
    e(f"s_add_u32 s{srd(3)}, s70, {sT3}"); e(f"s_addc_u32 s{srd(3)+1}, s71, 0"); e(f"s_cmp_eq_u32 {sSUB}, 3"); e(f"s_cselect_b32 s{srd(3)+2}, 0, {4*STG}"); e(f"s_add_u32 s{srd(3)+2}, s{srd(3)+2}, {GP_OFF + STG}")
    e(f"s_mov_b32 s{srd(5)}, s66"); e(f"s_mov_b32 s{srd(5)+1}, s67"); e(f"s_mov_b32 s{srd(5)+2}, {2048*896}")
    e(f"s_lshl_b32 {sT2}, {sQB}, 2"); e(f"s_add_u32 s7, s7, {sT2}")
    e(f"s_lshl_b32 {sT2}, s7, 10"); e(f"s_add_u32 {sT2}, {sT2}, {FL_OFF}")
    e(f"s_add_u32 s{srd(6)}, s70, {sT2}"); e(f"s_addc_u32 s{srd(6)+1}, s71, 0"); e(f"s_mov_b32 s{srd(6)+2}, 0x10400"); e("s_mov_b32 s84, 0x10000")
    e("s_lshl_b32 s7, s7, 1"); e(f"s_and_b32 {sT2}, {sHEAD}, 1"); e(f"s_add_u32 s7, s7, {sT2}"); e(f"s_mul_i32 s86, s7, {16*896}")
    e(f"s_lshl_b32 {sT2}, {sSUB}, 7"); e(f"s_add_u32 s86, s86, {sT2}"); e(f"s_bfe_u32 {sT2}, {sHEAD}, 0x10001"); e(f"s_lshl_b32 {sT2}, {sT2}, 6"); e(f"s_add_u32 s86, s86, {sT2}")
    return R

def xch_salu():
    return [f"s_lshl_b32 s7, {sSUB}, 2", "s_lshr_b32 s7, 0x635, s7", "s_and_b32 s7, s7, 15", f"s_mul_i32 s85, s7, {SLOT}",
            f"s_lshl_b32 s90, {sSUB}, 12", f"s_add_u32 s90, s90, {GLUB + 16384}"]

def xa(kk, lo, hi, add=0):
    o = (13 - kk) * 8192
    return f"{hi if o >= 65536 else lo} offset:{(o & 0xffff) + add}"
XR = [f"ds_read_b128 {vr((2*kk+qt)*4,4)}, {xa(kk, *(('v229', 'v230') if kk & 1 else ('v227', 'v228')), qt*1024)}" for kk in range(14) for qt in range(2)]

def gen_setup(P, cfg, helper):
    e = P.e
    F = Filler(P)
    lm = cfg.hx - 1; M = 1 << lm
    e(f"s_mov_b32 s93, {int(helper)}")
    if helper:
        e(f"s_lshl_b32 s88, {sSUB}, 11"); e("v_add_u32 v240, s88, v240")
        e(f"s_lshl_b32 s7, {sSUB}, 3"); e(f"s_lshr_b32 {sLK}, 0xc0703000, s7"); e(f"s_and_b32 {sLK}, {sLK}, 0xff"); e(f"s_add_u32 {sLK}, {sLK}, s88")
        e(f"s_lshl_b32 {sL1K}, {sSUB}, 12")
        e(f"s_movk_i32 {sKO}, -8192"); e(f"s_movk_i32 {sVO}, -8192")
        e("v_and_b32 v116, 1, v112"); e("v_lshlrev_b32 v116, 1, v116"); e("v_xor_b32 v116, v116, v115"); e("v_lshlrev_b32 v242, 4, v116")
        mad(P, 'v242', 'v185', 896, 'v242')
        e("v_lshl_add_u32 v117, v112, 3, v114"); e("v_lshlrev_b32 v241, 4, v116"); mad(P, 'v241', 'v117', 3584, 'v241')
        e(f"s_lshr_b32 s7, {sSUB}, 1"); e(f"s_mul_i32 s7, s7, {32*3584}"); e("v_add_u32 v241, s7, v241")
        e(f"s_bitcmp1_b32 {sSUB}, 0"); e(f"s_cselect_b32 s{srd(5)}, s{srd(6)}, s{srd(5)}"); e(f"s_cselect_b32 s{srd(5)+1}, s{srd(6)+1}, s{srd(5)+1}")
        e(f"v_lshlrev_b32 v243, {5+lm}, v255")
        e("v_lshlrev_b32 v249, 4, v255")
        e(f"s_mul_i32 s87, {sSUB}, {2*14336}")
        wdo_read_bases(P, 'v246', 'v247', 'v112', 'v114', 'v115', 'v116', GLUB)
        e("v_add_u32 v224, 512, v224")
    else:
        e(f"v_lshlrev_b32 v252, {5+lm}, v255")
        if cfg.touch:
            for tr in range(cfg.ktr):
                F.add(*([f"s_mov_b32 m0, {GLUB + 24576}"] if cfg.ltd else []), f"s_add_u32 {sT3}, s89, {tr*65536}", f"buffer_load_dword v252, {ST}, {sT3} offen lds" if cfg.ltd else f"buffer_load_dword v251, v252, {ST}, {sT3} offen", tag='touch')
            e("v_mul_u32_u24 v253, 84, v115"); mad(P, 'v253', 'v185', 3584, 'v253')
        if cfg.touch and cfg.gtouch:
            F.add(f"s_lshl_b32 s7, {sSH}, 1", f"s_and_b32 {sT2}, {sSUB}, 1", f"s_add_u32 s7, s7, {sT2}", f"s_mul_i32 {sT3}, s7, {14*M*3584}",
                  f"s_cmp_lt_u32 {sSUB}, 2", f"s_cselect_b32 s{srd(9)}, s{srd(5)}, s{srd(6)}", f"s_cselect_b32 s{srd(9)+1}, s{srd(5)+1}, s{srd(6)+1}",
                  f"s_mov_b32 s{srd(9)+2}, s{srd(5)+2}", f"buffer_load_dword v253, {ST}, {sT3} offen lds" if cfg.ltd else f"buffer_load_dword v251, v253, {ST}, {sT3} offen", tag='touch')
            for _ in range(M - 1): F.add(f"s_add_u32 {sT3}, {sT3}, {14*3584}", f"buffer_load_dword v251, v253, {ST}, {sT3} offen", tag='touch')
        F.add(*final_salu()); F.add(f"s_mov_b32 s73, {f2u(-LOG2E):#x}", *xch_salu())
        e("v_bfe_u32 v116, v255, 1, 3"); e("v_lshlrev_b32 v117, 2, v116"); e("s_mov_b32 s7, 0xec975320"); e("v_bfe_u32 v117, s7, v117, 4")
        e("v_lshlrev_b32 v248, 10, v116"); e("v_lshl_add_u32 v248, v117, 4, v248")
        e("v_and_b32 v116, 1, v255"); e("v_lshl_add_u32 v248, v116, 7, v248")
        e("v_and_b32 v116, 1, v112"); e("v_lshl_add_u32 v248, v116, 5, v248"); e("v_lshrrev_b32 v116, 1, v112"); e("v_lshl_add_u32 v248, v116, 4, v248")
        e(f"v_add_u32 v249, {4*SLOT}, v224")
        e(f"v_mov_b32 v116, {FLAG}"); e("v_mov_b32 v117, 0"); e("ds_write_b32 v116, v117")
    return F

def gen_ln(P, cfg):
    e = P.e
    F = Filler(P)
    e(f"v_add_u32 v225, {3*SLOT}, v224"); e(f"v_add_u32 v226, {6*SLOT}, v224")
    ld = f"buffer_load_dwordx4 v245, {SWQ}, {sT0} offen lds"
    F.add(f"s_lshr_b32 s7, {sWV}, 2", f"s_lshl_b32 {sT0}, s7, 18", f"s_mul_i32 s7, s7, {SLOT}", f"s_add_u32 s7, s7, {sLV}", f"s_add_u32 m0, s7, {7*SLOT}", ld, tag='W01')
    for d in (1056, 7392, 1056): F.add(f"s_addk_i32 m0, {d}", f"s_addk_i32 {sT0}, 16384", ld, tag='W01')
    if cfg.hack & 16: stamp(P, cfg, 13)
    for kp in range(cfg.pre2): e(f"buffer_load_dwordx4 {vr(156+4*kp,4)}, v184, {SX}, {sT1} offen offset:{kp*128}")
    if cfg.hack & 16: stamp(P, cfg, 14)
    for hh in range(2):
        m, t, v, u = "v118", "v119", "v120", "v121"
        for d in range(28 * hh, 28 * hh + 28):
            kp = d // 4 + cfg.pre2
            if hh == 0 and d % 4 == 0 and kp < 7:
                e(f"buffer_load_dwordx4 {vr(156+4*kp,4)}, v184, {SX}, {sT1} offen offset:{kp*128}", extra_rd=regs_of(f"v{128+d}"))
            e(f"v_lshlrev_b32 v{2*d}, 16, v{128+d}"); e(f"v_and_b32 v{2*d+1}, {sHI}, v{128+d}")
            pr = vr(2 * d, 2)
            if cfg.lnpk & 1:
                if d % 28 == 0: e(f"v_mov_b64 v[118:119], {pr}"); e(f"v_pk_mul_f32 v[120:121], {pr}, {pr}")
                else: e(f"v_pk_add_f32 v[118:119], v[118:119], {pr}"); e(f"v_pk_fma_f32 v[120:121], {pr}, {pr}, v[120:121]")
            elif d % 28 == 0:
                e(f"v_mov_b32 {m}, v{2*d}"); e(f"v_mov_b32 {t}, v{2*d+1}"); e(f"v_mul_f32 {v}, v{2*d}, v{2*d}"); e(f"v_mul_f32 {u}, v{2*d+1}, v{2*d+1}")
            else:
                e(f"v_add_f32 {m}, {m}, v{2*d}"); e(f"v_add_f32 {t}, {t}, v{2*d+1}")
                e(f"v_fmac_f32 {v}, v{2*d}, v{2*d}"); e(f"v_fmac_f32 {u}, v{2*d+1}, v{2*d+1}")
            if d == cfg.t_at and cfg.touch:
                e(f"buffer_load_dword v251, v250, {SWQ}, s90 offen", tag='touch')
            if d >= cfg.wq_at and d % 4 == 1: F.emit()
        if hh == 1: stamp(P, cfg, 1)
        e(f"v_add_f32 {m}, {m}, {t}"); e(f"v_add_f32 {v}, {v}, {u}")
        for qp in ("quad_perm:[1,0,3,2]", "quad_perm:[2,3,0,1]", "row_half_mirror"):
            e(f"v_add_f32_dpp {m}, {m}, {m} {qp} row_mask:0xf bank_mask:0xf")
            e(f"v_add_f32_dpp {v}, {v}, {v} {qp} row_mask:0xf bank_mask:0xf")
        e(f"s_mov_b32 s7, {f2u(1.0/448):#x}")
        e(f"v_mul_f32 {m}, s7, {m}")
        e(f"v_mul_f32 {t}, {m}, {m}")
        e(f"v_fma_f32 {v}, {v}, s7, -{t}")
        e(f"v_max_f32 {v}, 0, {v}")
        e(f"v_cvt_pk_bf16_f32 {t}, {m}, {v}")
        e(f"v_lshlrev_b32 {m}, 16, {t}")
        e(f"v_and_b32 {v}, {sHI}, {t}")
        e(f"v_add_f32 {v}, {f2u(1e-5):#x}, {v}")
        e(f"v_cvt_pk_bf16_f32 {v}, {v}, {v}"); e(f"v_and_b32 {v}, {sHI}, {v}")
        e(f"v_sqrt_f32 {v}, {v}")
        e(f"v_cvt_pk_bf16_f32 {v}, {v}, {v}"); e(f"v_and_b32 {v}, {sHI}, {v}")
        e(f"v_rcp_f32 {v}, {v}")
        e(f"v_mul_f32 {m}, {m}, {v}")
        if not cfg.lnpk & 2: e(f"v_mov_b32 {t}, {m}"); e(f"v_mov_b32 {u}, {v}")
        for kp in range(7):
            z = 7 * hh + kp
            for d in range(4 * z, 4 * z + 4):
                if cfg.lnpk & 2: e(f"v_pk_fma_f32 {vr(2*d,2)}, {vr(2*d,2)}, v[120:121], v[118:119] op_sel_hi:[1,0,0] neg_lo:[0,0,1] neg_hi:[0,0,1]")
                else: e(f"v_fma_f32 v{2*d}, v{2*d}, {u}, -{t}"); e(f"v_fma_f32 v{2*d+1}, v{2*d+1}, {v}, -{m}")
            for d in range(4 * z, 4 * z + 4):
                e(f"v_cvt_pk_bf16_f32 v{128+d}, v{2*d}, v{2*d+1}")
            ad = xa(2 * kp + 1, 'v187', 'v188').split()
            e(f"ds_write_b128 {ad[0]}, {vr(128+4*z,4)} {ad[1]}")
            if hh == 1: F.emit(2)
        if hh == 0:
            if cfg.hack & 16: stamp(P, cfg, 15)
            e("v_xor_b32 v187, 0x80, v187"); e("v_xor_b32 v188, 0x80, v188")
            e("v_mov_b32 v122, 0"); e("v_lshlrev_b32 v123, 7, v255")
            e(f"s_cmp_lg_u32 {sMODE}, 0"); e(f"s_cbranch_scc1 L_norst")
            e(f"s_mov_b64 exec, 0x7f"); e("global_store_dword v123, v122, s[100:101] sc1", tag='opt'); e("s_mov_b64 exec, -1")
            e(f"L_norst:")
    F.wait('W01')
    e("s_waitcnt lgkmcnt(0)")
    stamp(P, cfg, 12)
    e("s_barrier")
    for t in XR[:16]: e(t)
    e("s_cmp_eq_u32 s93, 1"); e("s_cbranch_scc1 L_helper")

def gen_qproj(P, cfg, helper, F):
    e = P.e
    xr = XR[16:]
    def start():
        e("s_barrier", extra_rd=regs_of("v[0:63]"))
        if helper:
            for T in range(2, 6): dma_wq(F, T, WQ_SLOT[T])
            F.emit(cfg.q0e)
        stamp(P, cfg, 2 if not cfg.hack & 256 else 1)
    items = []
    after = {1: [('WQ', 6), ('WQ', 7), ('WQ', 8), ('WQ', 9)], 2: [('WQ', 10), ('WQ', 11)], 3: [('WQ', 12), ('WQ', 13)], 4: [('K', 0), ('V', 0)], 5: [('K', 1), ('K', 2)], 6: []}
    def mkhook(k):
        def hook():
            if helper:
                F.wait(('WQ', 2*k), ('WQ', 2*k+1), *([('K', 0)] if k == 6 else []))
            if k == 1: P.waitvm('opt')
            if cfg.hack & 256: e(f"s_memtime s[{48+2*k}:{49+2*k}]")
            e("s_barrier", extra_rd=regs_of("v[64:111]") if k == 1 else None)
            if helper:
                for (w, t) in after.get(k, []):
                    if w == 'WQ': dma_wq(F, t, WQ_SLOT[t])
                    else: dma_kv(F, w, t, (t & 3) + (4 if w == 'V' else 0))
            elif k == 1:
                e(f"s_or_b32 s7, {sMODE}, {sSUB}"); e("s_cbranch_scc1 L_noarr")
                e(f"s_lshl_b32 s7, {sQB}, 4"); e("v_mov_b32 v228, s7"); e("v_mov_b32 v229, 1")
                e("s_mov_b64 exec, 1"); e("global_atomic_add v228, v229, s[68:69] sc1", tag='opt'); e("s_mov_b64 exec, -1")
                e("L_noarr:")
        return hook
    for T in range(14):
        sl = WQ_SLOT[T]; base = f"v{224 + sl // 3}"; so = (sl % 3) * SLOT
        for t in range(8):
            imm = so + (t >> 2) * 256 + (t & 3) * 32
            mf = [(128 + ((t >> 1) * 2 + qt) * 8 + (t & 1) * 4, (2 * T + qt) * 4, '0' if T == 0 else None) for qt in range(2)]
            items.append(dict(mf=mf, reads=tr_reads(base, imm, imm + 8448), hook=mkhook(T // 2) if (T % 2 == 0 and T > 0 and t == 0) else None))
    def gap(i, k):
        T, t = divmod(i, 8)
        for _ in range(2):
            if xr: e(xr.pop(0))
        if helper: F.emit()
        else:
            if T >= 1 and t < 4: e(f"v_mov_b64 {vr(8*(T-1)+2*t,2)}, 0")
            elif 1 <= T < 5 and t in (4, 5): e(f"v_mov_b64 {vr(112+4*(T-1)+2*(t-4),2)}, 0")
            elif t == 6 and T >= cfg.tq0: F.emit()
    stream(P, items, [192 + 4 * i for i in range(6)], 6, gap, group=3, start=start)
    assert not F.q or not helper
    F.flush()
    if cfg.hack & 256: e('s_memtime s[62:63]'); e('s_waitcnt lgkmcnt(0)'); dump_stamps(P); e('s_endpgm')
    e(f"s_lshr_b32 s7, {sSUB}, 1"); e(f"s_mul_i32 s7, s7, {SLOT}"); e(f"s_and_b32 {sT3}, {sSUB}, 1"); e(f"s_lshl_b32 {sT3}, {sT3}, 13")
    e(f"s_add_u32 s7, s7, {sT3}"); e(f"s_add_u32 s7, s7, {7*SLOT}")
    e("v_lshlrev_b32 v254, 4, v255"); e("v_add_u32 v254, s7, v254")
    if helper:
        for g in range(8):
            for t in qfin(g): e(t)
            if g: e(f"ds_write_b128 v254, {vr(128+4*(g-1),4)} offset:{(g-1)*1024}")
        e(f"ds_write_b128 v254, {vr(156,4)} offset:{7*1024}")
        P.waitvm(('K', 1))
        e("s_waitcnt lgkmcnt(0)")
        stamp(P, cfg, 3)
        e("s_barrier")
    return F

def qfin(g):
    r = [f"v_mul_f32 v{128+8*g+i}, {sC}, v{128+8*g+i}" for i in range(8)]
    r += [f"v_cvt_pk_bf16_f32 v{128+4*g+i}, v{128+8*g+2*i}, v{129+8*g+2*i}" for i in (0, 2, 1, 3)] if g else \
         [f"v_cvt_pk_bf16_f32 v{128+i}, v{128+2*i}, v{129+2*i}" for i in range(4)]
    r += [f"v_permlane16_swap_b32 v{128+4*g}, v{130+4*g}", f"v_permlane16_swap_b32 v{129+4*g}, v{131+4*g}"]
    return r

BUFS = [224, 228, 232, 236, 240, 244, 252]
PAT = list(range(7)) + list(range(6)) + list(range(6)) + list(range(7)) + list(range(6))
LEAD = sched.LEAD
SA = [192, 200]; SB = 208; NEGM = 216; LR = [250, 251]
def fbuf(f): return BUFS[PAT[f % 32]]
def oacc(t, qt): return ((t >> 1) * 2 + qt) * 8 + (t & 1) * 4
def k_imm(f): return (f >> 3) * 8448 + ((f & 7) >> 1) * 256 + (f & 1) * 64
def k_read(P, f, slot): P.e(f"ds_read_b128 {vr(fbuf(f),4)}, v248 offset:{slot*SLOT + k_imm(f)}")
def v_read(P, f, slot):
    t = f - 16
    imm = slot * SLOT + (t >> 2) * 256 + (t & 3) * 32
    P.e(f"{TR} {vr(fbuf(f),2)}, v249 offset:{imm}")
    P.e(f"{TR} {vr(fbuf(f)+2,2)}, v249 offset:{imm + 8448}")

def sm_text(task, sa):
    if task[0] in ('exp', 'add'):
        _, blk, q, i = task
        r = (sa if blk == 'a' else SB) + 4 * q + i
        return f"v_exp_f32 v{r}, v{r}" if task[0] == 'exp' else f"v_add_f32 v{LR[q]}, v{LR[q]}, v{r}"
    _, q, k = task
    src = (sa if k < 2 else SB) + 4 * q + 2 * (k & 1)
    return f"v_cvt_pk_bf16_f32 v{sa+4*q+k}, v{src}, v{src+1}"

FIXED = WAITS = PLACE = None

def gen_iter(P, j, ctl=False, bar=16, lab='L_loop'):
    e = P.e
    cur = SA[j & 1]; nxt = SA[(j + 1) & 1]
    for g in range(64):
        f, qt = g >> 1, g & 1
        if CFG.snake & (1 if f < 16 else 2): qt ^= f & 1
        extra = set()
        for z in WAITS.get(g, []): extra |= regs_of(vr(fbuf(z), 4))
        if f < 16:
            acc = (nxt if f < 8 else SB) + 4 * qt
            c = (vr(NEGM + 4 * qt, 4) if not CFG.x & 16 else '0') if (f & 7) == 0 else vr(acc, 4)
            e(f"{MF} {vr(acc,4)}, {vr(fbuf(f),4)}, {vr(128 + ((f&7)*2+qt)*4,4)}, {c}", extra_rd=extra)
        else:
            a = oacc(f - 16, qt)
            e(f"{MF} {vr(a,4)}, {vr(fbuf(f),4)}, {vr(cur+4*qt,4)}, {vr(a,4)}", extra_rd=extra)
        if CFG.x & 32 and g in (41, 53): e(f"{MF} v[220:223], v[216:219], {vr(cur+4*qt,4)}, v[220:223]")
        late = []
        for it in FIXED[g]:
            if it[0] == 'read':
                n = it[1]
                if CFG.x & 4 and n % 2: continue
                if n < 16: k_read(P, n, (j + 1) & 3)
                elif n < 32: v_read(P, n, j & 3)
                else: k_read(P, n - 32, (j + 2) & 3)
            elif it[0] == 'ctl' and ctl: late.append(f"s_sub_u32 {sTRIP}, {sTRIP}, 1")
            elif it[0] == 'branch' and ctl: late.append(f"s_cbranch_scc0 {lab}")
        if g == bar: late.append("s_barrier")
        for t in PLACE.get(g + 64, []):
            if not (CFG.x & 2 and t[0] != 'cvt') and not (CFG.x & 8 and t[0] == 'add'): e(sm_text(t, cur))
        for t in PLACE.get(g, []):
            if not (CFG.x & 2 and t[0] != 'cvt') and not (CFG.x & 8 and t[0] == 'add'): e(sm_text(t, nxt))
        for t in late: e(t)

def xgroup(P, op, r, t):
    e = P.e
    e(f"v_mov_b32 {t}, {r}"); e(f"v_permlane16_swap_b32 {r}, {t}"); e(f"{op} {r}, {r}, {t}")
    e(f"v_mov_b32 {t}, {r}"); e(f"v_permlane32_swap_b32 {r}, {t}"); e(f"{op} {r}, {r}, {t}")

SR, SO, SF = SWQ, SWG, SWU
def msum(Q, acc, src):
    for h in range(16):
        for ee in range(2): Q.e(f"{MF} {vr(acc+4*ee,4)}, {vr(192+4*ee,4)}, {vr(src+4*h,4)}, {'0' if h == 0 else vr(acc+4*ee,4)}")
def silu8(Q, a):
    rnd8(Q, a, 224)
    for i in range(8): Q.e(f"v_mul_f32 v{224+i}, s73, v{a+i}")
    for i in range(8): Q.e(f"v_exp_f32 v{224+i}, v{224+i}")
    for i in range(8): Q.e(f"v_add_f32 v{224+i}, 1.0, v{224+i}")
    for i in range(8): Q.e(f"v_rcp_f32 v{224+i}, v{224+i}")
    for i in range(8): Q.e(f"v_mul_f32 v{a+i}, v{a+i}, v{224+i}")
    rnd8(Q, a, 224)
def fetch(P, cfg, r, dst, voff, between):
    e = P.e
    e(f"s_lshl_b32 s84, {sSUB}, 7"); e(f"s_mov_b32 {sT1}, 0"); e(f"s_mov_b32 {sTRIP}, {SPIN}")
    if cfg.hack & 64: stamp(P, cfg, 1, True)
    def onepass(nm):
        e(f"buffer_load_dword v253, v252, {SF}, s84 offen offset:{512*r} sc1"); e("s_waitcnt vmcnt(0)")
        e("v_cmp_le_u32 vcc, 1, v253")
        if cfg.fmode & 2: e("s_cmp_eq_u32 vcc_lo, -1"); e("s_cselect_b32 vcc_lo, -1, 0")
        e(f"s_andn2_b32 {sT2}, vcc_lo, {sT1}"); e(f"s_or_b32 {sT1}, {sT1}, vcc_lo")
        for h in range(16):
            e(f"s_bitcmp1_b32 {sT2}, {h}"); e(f"s_cbranch_scc0 {nm}_{h}")
            e(f"s_mov_b32 {sT3}, {h*1024 + r*4*STG}")
            e(f"buffer_load_dwordx4 {vr(dst+4*h,4)}, {voff}, {SR}, {sT3} offen sc1", tag='touch')
            if r == 0 and nm.startswith("L_fa") and h < cfg.pn: e(f"s_waitcnt vmcnt({cfg.pl})")
            e(f"{nm}_{h}:")
    onepass(f"L_fa{r}")
    if cfg.hack & 64: stamp(P, cfg, 2, True)
    between()
    e(f"s_cmp_eq_u32 {sT1}, -1"); e(f"s_cbranch_scc1 L_fd{r}")
    e(f"L_fl{r}:")
    onepass(f"L_fb{r}")
    e(f"s_cmp_eq_u32 {sT1}, -1"); e(f"s_cbranch_scc1 L_fd{r}")
    e(f"s_sleep {cfg.slp}")
    e(f"s_sub_u32 {sTRIP}, {sTRIP}, 1"); e(f"s_cbranch_scc0 L_fl{r}")
    e(f"L_fd{r}:")
    if cfg.hack & 64: stamp(P, cfg, 3, True)
def fin(P, cfg, r, src, xr):
    e = P.e; a = 208
    for d in range(4): e(f"v_lshlrev_b32 v{232+2*d}, 16, v{xr+d}"); e(f"v_and_b32 v{233+2*d}, {sHI}, v{xr+d}")
    e("s_waitcnt vmcnt(0)")
    if cfg.hack & 64: stamp(P, cfg, 4, True)
    msum(P, a, src)
    rnd8(P, a, 224)
    for i in range(8): e(f"v_mul_f32 v{a+i}, v{a+i}, v{200+i}")
    rnd8(P, a, 224)
    for i in range(8): e(f"v_add_f32 v{a+i}, v{a+i}, v{232+i}")
    for d in range(4): e(f"v_cvt_pk_bf16_f32 v{240+d}, v{a+2*d}, v{a+2*d+1}")
    e(f"buffer_store_dwordx4 v[240:243], v251, {SO}, s86 offen offset:{r*512}" + ["", " sc1", " nt", " sc0 sc1"][cfg.oflag])

def gen_compute(P, cfg, FC):
    e = P.e
    m0 = P.mark()
    gen_qproj(P, cfg, False, FC)
    stamp(P, cfg, 3)
    order = [f for kk in range(8) for f in (kk, 8 + kk)]
    items = [dict(mf=[((SA[0] if f < 8 else SB) + 4 * qt, 128 + ((f & 7) * 2 + qt) * 4, '0' if (f & 7) == 0 else None) for qt in range(2)],
                  reads=[("ds_read_b128", "v248", k_imm(f), 0, 4)]) for f in order]
    def start():
        for t in range(4): e(f"v_mov_b64 {vr(104+2*t,2)}, 0")
        for t in qfin(0) + qfin(1): e(t)
    def gap0(i, k):
        if i < 6:
            for t in qfin(i + 2): e(t)
            if i == 2: e("s_barrier")
            if i >= 2:
                for z in (2 * (i - 2), 2 * (i - 2) + 1): e(f"ds_read_b128 {vr(160+4*z,4)}, v254 offset:{z*1024}")
    stream(P, items, BUFS[:6], 6, gap0, group=2, start=start)
    if not cfg.ltd: e("s_waitcnt vmcnt(0)")
    for f in range(LEAD): k_read(P, f, 1)
    e(f"s_cmp_lg_u32 {sMODE}, 0"); e("s_cbranch_scc1 L_havem")
    mm = P.mark()
    for q in range(2):
        a, b, m = SA[0] + 4 * q, SB + 4 * q, NEGM + 4 * q
        e(f"v_max3_f32 v{m}, v{a}, v{a+1}, v{a+2}"); e(f"v_max3_f32 v{m}, v{m}, v{a+3}, v{b}"); e(f"v_max3_f32 v{m}, v{m}, v{b+1}, v{b+2}"); e(f"v_max_f32 v{m}, v{m}, v{b+3}")
    xgroup(P, "v_max_f32", f"v{NEGM}", f"v{NEGM+1}"); xgroup(P, "v_max_f32", f"v{NEGM+4}", f"v{NEGM+5}")
    for q in range(2):
        m = NEGM + 4 * q
        for i in (1, 2, 3, 0): e(f"v_sub_f32 v{m+i}, {f2u(-float(cfg.toff)) if cfg.toff else 0:#x}, v{m}")
    minit = P.since(mm)
    e("L_havem:")
    for q in range(2):
        for i in range(4):
            e(f"v_add_f32 v{SA[0]+4*q+i}, v{SA[0]+4*q+i}, v{NEGM+4*q}"); e(f"v_add_f32 v{SB+4*q+i}, v{SB+4*q+i}, v{NEGM+4*q}")
    e(f"v_mov_b32 v{LR[0]}, 0"); e(f"v_mov_b32 v{LR[1]}, 0")
    for g in range(18, 64):
        for t in PLACE[g]: e(sm_text(t, SA[0]))
    e(f"s_mov_b32 {sTRIP}, 15")
    if cfg.obias:
        for i in range(128): e(f"v_mov_b32 v{i}, {f2u(2.0 ** (cfg.obias - cfg.toff)):#x}")
    if cfg.x & 32:
        e("v_mbcnt_lo_u32_b32 v220, -1, 0"); e("v_mbcnt_hi_u32_b32 v220, -1, v220"); e("v_and_b32 v220, 15, v220"); e("v_mov_b32 v221, 0x3f803f80")
        e(f"v_cmp_gt_u32 vcc, {16 if cfg.x & 64 else 1}, v220")
        for i in range(4): e(f"v_cndmask_b32 v{216+i}, 0, v221, vcc")
        for i in range(4): e(f"v_mov_b32 v{220+i}, 0")
    stamp(P, cfg, 4)
    e("s_waitcnt lgkmcnt(0)")
    if cfg.vbit >= 0: e(f"s_bitcmp1_b32 {sSUB}, {cfg.vbit}"); e("s_cbranch_scc1 L_itb0")
    e("s_branch L_it0")
    pro = P.since(m0)
    itb = {}
    if cfg.vbit >= 0:
        e(".p2align 6")
        e("L_loopb:")
        for j in (3, 0, 1, 2):
            if j == 0: e("L_itb0:")
            m = P.mark(); gen_iter(P, j, ctl=(j == 2), bar=cfg.barb, lab='L_loopb'); itb[j] = P.since(m)
        e("s_branch L_tail")
    e(".p2align 6")
    e("L_loop:")
    its = {}
    for j in (3, 0, 1, 2):
        if j == 0: e("L_it0:")
        m = P.mark(); gen_iter(P, j, ctl=(j == 2), bar=cfg.bara); its[j] = P.since(m)
    m1 = P.mark()
    e('L_tail:')
    stamp(P, cfg, 5)
    cur = SA[1]
    e("s_barrier")
    for f in range(16, 16 + LEAD): v_read(P, f, 3)
    for g in range(64, 82):
        for t in PLACE[g]: e(sm_text(t, cur))
    post_ops = []
    Q = Prog()
    xgroup(Q, "v_add_f32", f"v{LR[0]}", "v208"); xgroup(Q, "v_add_f32", f"v{LR[1]}", "v209")
    Q.e(f"v_max_f32 v208, v{LR[0]}, v{LR[1]}"); Q.e(f"v_add_f32 v209, v{LR[0]}, v{LR[1]}")
    Q.e(f"v_rcp_f32 v{LR[0]}, v{LR[0]}"); Q.e(f"v_rcp_f32 v{LR[1]}, v{LR[1]}")
    Q.e("v_mbcnt_lo_u32_b32 v210, -1, 0"); Q.e("v_mbcnt_hi_u32_b32 v210, -1, v210")
    Q.e("v_lshrrev_b32 v211, 4, v210"); Q.e("v_bfe_u32 v212, v210, 2, 2"); Q.e("v_and_b32 v213, 3, v210")
    Q.e("v_lshrrev_b32 v212, 2, v210"); Q.e("v_lshlrev_b32 v192, 7, v212"); Q.e("v_lshl_add_u32 v192, v213, 3, v192")
    Q.e("v_bfe_u32 v212, v210, 3, 2"); Q.e("v_lshl_add_u32 v192, v212, 5, v192")
    for ee in (1, 2, 3): Q.e(f"v_xor_b32 v{192+ee}, {32*ee}, v192")
    for ee in range(4): Q.e(f"v_add_u32 v{196+ee}, {6*SLOT}, v{192+ee}")
    Q.e("v_lshlrev_b32 v248, 4, v210")
    Q.e(f"v_mov_b32 v214, {FLAG}"); Q.e("v_mov_b32 v215, 1")
    rest = Q.L
    for g in range(32, 64):
        f, qt = g >> 1, g & 1
        extra = set()
        for z in WAITS.get(g, []):
            if 16 <= z < 32: extra |= regs_of(vr(fbuf(z), 4))
        a = oacc(f - 16, qt)
        e(f"{MF} {vr(a,4)}, {vr(fbuf(f),4)}, {vr(cur+4*qt,4)}, {vr(a,4)}", extra_rd=extra)
        if qt == 1 and f + LEAD < 32: v_read(P, f + LEAD, 3)
        else:
            for _ in range(2):
                if rest: P.L.append(rest.pop(0))
    P.L.extend(rest)
    e(f"v_cmp_ngt_f32 vcc, {f2u(cfg.thr):#x}, v209")
    e("s_cbranch_vccz L_noflag")
    e("ds_write_b32 v214, v215")
    e("s_waitcnt lgkmcnt(0)")
    e("L_noflag:")
    e("s_barrier")
    e("ds_read_b32 v215, v214")
    def onorm(g):
        return [f"v_mul_f32 v{8*g+i}, v{8*g+i}, v{LR[g & 1]}" for i in range(8)] + [f"v_cvt_pk_bf16_f32 v{4*g+i}, v{8*g+2*i}, v{8*g+2*i+1}" for i in range(4)]
    items = []
    F = Filler(P)
    def ehook(t):
        def h():
            if cfg.hack & 32 and t % 2 == 0: e(f"s_memtime s[{48+t}:{49+t}]")
            if t in (2, 3, 4, 5, 6, cfg.lastb): e("s_barrier")
        return h
    def acc_o(s, ee, qt): return (64 if s & 1 else 128) + ((ee >> 1) * 2 + qt) * 8 + (ee & 1) * 4
    for t in range(14):
        sl = WO_SLOT[t]; so = (sl % 3) * SLOT; s, hf = t >> 1, t & 1
        for k4 in range(4):
            for ee in range(4):
                base = f"v{[192, 200, 196][sl // 3] + ee}"
                imm = so + k4 * 4096; kk = 4 * hf + k4
                items.append(dict(mf=[(acc_o(s, ee, qt), (kk * 2 + qt) * 4, '0' if kk == 0 else None) for qt in range(2)],
                                  reads=tr_reads(base, imm, imm + 2048),
                                  hook=ehook(t) if (t > 0 and k4 == 0 and ee == 0) else None))
    def cv(s, u, hf):
        o = 160 + 16 * (s & 1) + 4 * u + 2 * hf; a = acc_o(s, 0, 0) + 8 * u + 4 * hf
        F.add(f"v_cvt_pk_bf16_f32 v{o}, v{a}, v{a+1}", f"v_cvt_pk_bf16_f32 v{o+1}, v{a+2}, v{a+3}")
    def sto(s, u):
        o = 160 + 16 * (s & 1) + 4 * u
        F.add(f"s_mov_b32 {sT0}, {s*STG + u*16384}", f"buffer_store_dwordx4 {vr(o,4)}, v248, {SP}, {sT0} offen sc1", tag=('S', s))
    def publish(r):
        F.add((('S', r),), "s_mov_b64 exec, 1", f"global_store_dword v249, v254, s[100:101] offset:{128*r} sc1", "s_mov_b64 exec, -1", tag='fl')
    nrm = [t for g in range(2, 16) for t in onorm(g)]
    def start():
        for ee in range(4): e(f"v_add_u32 v{200+ee}, {3*SLOT}, v{192+ee}")
        e("v_mov_b32 v249, 0"); e("v_mov_b32 v254, 1"); e("v_add_u32 v204, s85, v248"); e("v_add_u32 v205, s90, v248")
        for t in onorm(0) + onorm(1): e(t)
        e("v_readfirstlane_b32 s7, v215")
        e(f"s_andn2_b32 s7, s7, {sMODE}"); e("s_cbranch_scc1 L_maxpass")
        stamp(P, cfg, 6)
        if cfg.hack & 32: stamp(P, cfg, 1)
        if cfg.hack & 64: stamp(P, cfg, 12, True)
    def gap(i, k):
        s, r = divmod(i, 32)
        if k: return
        for _ in range(6):
            if nrm: e(nrm.pop(0))
        if s >= 1:
            u, z = divmod(r, cfg.ssp)
            if u < 4:
                if z == 0: cv(s - 1, u, 0)
                if z == 1: cv(s - 1, u, 1)
                if z == 2: sto(s - 1, u)
        if s >= 2 and r == cfg.pubr and not cfg.fmode & 1: publish(s - 2)
        if i == cfg.xat: e('s_barrier')
        F.flush()
    stream(P, items, [216 + 4 * i for i in range(8)], 7, gap, group=4, start=start)
    if cfg.hack & 32: e('s_memtime s[62:63]'); e('s_waitcnt lgkmcnt(0)'); dump_stamps(P); e('s_endpgm')
    st = (lambda i: None) if cfg.hack & 16 else (lambda i: stamp(P, cfg, i, bool(cfg.hack & 64)))
    st(13)
    for u in range(4): cv(6, u, 0); cv(6, u, 1); sto(6, u)
    F.flush()
    if cfg.xat >= 224: e("s_barrier")
    st(14)
    e(f"s_cmp_eq_u32 {sSUB}, 3"); e("s_cbranch_scc1 L_cs1")
    for k, r0 in enumerate((192, 196, 244, 250)): e(f"ds_read_b128 {vr(r0,4)}, v205 offset:{k*1024}")
    for h in range(16): e(f"ds_read_b128 {vr(64+4*h,4)}, v204 offset:{h*1024}")
    e("L_cs1:")
    if not cfg.fmode & 1: publish(5); F.flush()
    e("s_cbranch_scc1 L_cs2")
    msum(P, 200, 64)
    e("L_cs2:")
    st(15)
    if cfg.fmode & 1:
        e("v_lshlrev_b32 v249, 3, v248"); P.waitvm(('S', 6))
        e("s_mov_b64 exec, 0x7f"); e("global_store_dword v249, v254, s[100:101] sc1"); e("s_mov_b64 exec, -1")
    else: publish(6); F.flush()
    if cfg.hack & 64: stamp(P, cfg, 9, True)
    e(f"s_cmp_eq_u32 {sSUB}, 3"); e("s_cbranch_scc1 L_cdone")
    cslow = []
    fetch(P, cfg, 1, 0, "v248", lambda: silu8(P, 200))
    fin(P, cfg, 1, 0, 244)
    e("L_cdone:")
    if cfg.stamps:
        stamp(P, cfg, 7); e("s_waitcnt vmcnt(0)"); stamp(P, cfg, 8); stamp(P, cfg, 11, True); dump_stamps(P)
    e("s_endpgm")
    post = [x for x in P.since(m1) if not any(x is y for y in cslow)]
    m2 = P.mark()
    e("L_maxpass:")
    e("s_waitcnt vmcnt(0) lgkmcnt(0)")
    e("v_and_b32 v0, 15, v210"); e("v_lshlrev_b32 v0, 9, v0"); e("v_and_b32 v1, 1, v211"); e("v_lshl_add_u32 v0, v1, 5, v0")
    e("v_lshrrev_b32 v1, 1, v211"); e("v_lshl_add_u32 v0, v1, 4, v0")
    e(f"v_mov_b32 v{NEGM}, 0xff800000"); e(f"v_mov_b32 v{NEGM+4}, 0xff800000")
    e(f"s_mov_b32 {sT0}, 0")
    e("L_mp_loop:")
    for kk in range(8): e(f"buffer_load_dwordx4 {vr(16+4*kk,4)}, v0, {SK}, {sT0} offen offset:{kk*64}")
    e("s_waitcnt vmcnt(0)")
    for kk in range(8):
        for qt in range(2): e(f"{MF} {vr(8+4*qt,4)}, {vr(16+4*kk,4)}, {vr(128+(kk*2+qt)*4,4)}, {'0' if kk == 0 else vr(8+4*qt,4)}")
    e("s_nop 15")
    for qt in range(2):
        m = NEGM + 4 * qt; a = 8 + 4 * qt
        e(f"v_max3_f32 v{m}, v{m}, v{a}, v{a+1}"); e(f"v_max3_f32 v{m}, v{m}, v{a+2}, v{a+3}")
    e(f"s_add_u32 {sT0}, {sT0}, 8192"); e(f"s_cmp_lt_u32 {sT0}, {1<<20}"); e("s_cbranch_scc1 L_mp_loop")
    xgroup(P, "v_max_f32", f"v{NEGM}", f"v{NEGM+1}"); xgroup(P, "v_max_f32", f"v{NEGM+4}", f"v{NEGM+5}")
    for q in range(2):
        m = NEGM + 4 * q
        for i in (1, 2, 3, 0): e(f"v_sub_f32 v{m+i}, {f2u(-float(cfg.toff)) if cfg.toff else 0:#x}, v{m}")
    e("L_again:")
    e("s_waitcnt vmcnt(0) lgkmcnt(0)")
    e("v_mbcnt_lo_u32_b32 v0, -1, 0"); e("v_mbcnt_hi_u32_b32 v0, -1, v0"); e(f"s_lshl_b32 s7, {sWV}, 6"); e("v_add_u32 v0, s7, v0")
    e(f"s_mov_b32 {sMODE}, 1"); e("s_setprio 0")
    e("s_barrier")
    e("s_branch L_restart")
    mp = P.since(m2)
    body = its[0] + its[1] + its[2] + its[3]
    trace = pro + body * 2 + its[0] + its[1] + its[2] + post
    skip = set(id(x) for x in minit)
    trace2 = [x for x in pro if id(x) not in skip] + body
    extra = []
    if itb:
        bb = itb[0] + itb[1] + itb[2] + itb[3]
        extra = [pro + bb * 2 + itb[0] + itb[1] + itb[2] + post]
    return [trace, trace2] + extra, [mp, cslow]

def poll(P, name, load, cmp, pre_issued=False):
    e = P.e
    if not pre_issued: e(load)
    e(cmp); e("s_cmp_eq_u64 vcc, -1"); e(f"s_cbranch_scc1 {name}_ok")
    m = P.mark()
    e(f"s_mov_b32 s7, {SPIN}")
    e(f"{name}_lp:")
    e(f"s_sleep {CFG.slp}")
    e(load, tag='opt'); e("s_waitcnt vmcnt(0)")
    e(cmp); e("s_cmp_eq_u64 vcc, -1"); e(f"s_cbranch_scc1 {name}_ok")
    e("s_sub_u32 s7, s7, 1"); e(f"s_cbranch_scc0 {name}_lp")
    slow = P.since(m)
    e(f"{name}_ok:")
    return slow

def rnd8(P, r, t):
    for d in range(4): P.e(f"v_cvt_pk_bf16_f32 v{t+d}, v{r+2*d}, v{r+2*d+1}")
    for d in range(4): P.e(f"v_lshlrev_b32 v{r+2*d}, 16, v{t+d}"); P.e(f"v_and_b32 v{r+2*d+1}, {sHI}, v{t+d}")

def gen_helper(P, cfg, FH):
    e = P.e
    m0 = P.mark()
    e("L_helper:")
    e(f"s_setprio {cfg.qprio}")
    F = gen_qproj(P, cfg, True, FH)
    dma_kv(F, 'V', 1, 5); dma_kv(F, 'K', 3, 3); dma_kv(F, 'V', 2, 6); F.flush()
    e(f"s_mov_b32 s73, {f2u(-LOG2E):#x}")
    lo, hi = cfg.plo, cfg.phi
    if lo != 2: e(f"s_setprio {lo}")
    P.waitvm(('V', 0), ('K', 2))
    e("s_barrier")
    GU0 = 3; ACT0 = GU0 + 28; NACT = cfg.nact; DN0 = ACT0 + NACT
    GPUB = [DN0 + 10, DN0 + 16]; GPOLL = [DN0 + 12, DN0 + 21]; GSRC = [112, 0]; GSET = DN0 + 2; GSET2 = DN0 + 15
    slows = []
    ntr = [cfg.ktr]
    def acc_g(m, ee, mat, qt): return 112 + 32 * (m & 1) + (ee * 2 + qt) * 8 + mat * 4
    def act(m):
        L = []
        for ee in range(2):
            regs = [acc_g(m, ee, 0, qt) + i for qt in range(2) for i in range(4)]
            for r in regs: L.append(f"v_mul_f32 v{r}, s73, v{r}")
            for r in regs: L.append(f"v_exp_f32 v{r}, v{r}")
            for r in regs: L.append(f"v_add_f32 v{r}, 1.0, v{r}")
            for r in regs: L.append(f"v_rcp_f32 v{r}, v{r}")
            for r in regs: L.append(f"v_mul_f32 v{r}, v{r}, v{r+4}")
            for qt in range(2):
                a = acc_g(m, ee, 0, qt); d = 208 + (m * 2 + qt) * 4 + ee * 2
                L.append(f"v_cvt_pk_bf16_f32 v{d}, v{a}, v{a+1}"); L.append(f"v_cvt_pk_bf16_f32 v{d+1}, v{a+2}, v{a+3}")
        return L
    def split(L, n):
        cost = [2 if t.startswith(('v_exp', 'v_rcp')) else 1 for t in L]; tot = sum(cost); parts = [[] for _ in range(n)]; acc = 0
        for t, c in zip(L, cost):
            parts[min(n - 1, acc * n // tot)].append(t); acc += c
        return parts
    def acc_d(nt, ee, qt): return 48 + 16 * (nt & 1) + (qt * 2 + ee) * 4
    def out_cv(nt):
        o = 80 + 8 * (nt & 1)
        return [f"v_cvt_pk_bf16_f32 v{o+4*qt+i}, v{acc_d(nt, 0, qt)+2*i}, v{acc_d(nt, 0, qt)+2*i+1}" for qt in range(2) for i in range(4)]
    def out_st(nt):
        o = 80 + 8 * (nt & 1)
        e(f"s_mov_b32 {sT3}, {(nt>>1)*STG + (nt&1)*32768}"); e(f"buffer_store_dwordx4 {vr(o,4)}, v249, {SP}, {sT3} offen sc1", tag=('st', nt // 8))
        e(f"s_addk_i32 {sT3}, 16384"); e(f"buffer_store_dwordx4 {vr(o+4,4)}, v249, {SP}, {sT3} offen sc1", tag=('st', nt // 8))
    def chunk_mf(c, i):
        b, ee = i >> 1, i & 1
        if c < 28:
            m, s = divmod(c, 7); T = 2 * s + (b >> 1)
            return [(acc_g(m, ee, b & 1, qt), (2 * T + qt) * 4, T == 0) for qt in range(2)]
        return [(acc_d(c - 28, ee, qt), 208 + (b * 2 + qt) * 4, b == 0) for qt in range(2)]
    def rd(c, i):
        imm = (c % 3) * GLUS + (i >> 1) * 2048
        e(f"{TR} {vr(176+4*i,2)}, v{246+(i&1)} offset:{imm}"); e(f"{TR} {vr(178+4*i,2)}, v{246+(i&1)} offset:{imm+1024}")
    small_only = []; big_only = []
    def burst(c, nxt, fill, skip_from=8):
        fill = list(fill)
        if hi != lo: e(f"s_setprio {hi}")
        for i in range(8):
            if i == skip_from:
                for t in fill: e(t)
                fill = []
                e("s_cmp_lg_u32 s99, 0"); e(f"s_cbranch_scc1 L_bs{c}"); mk = P.mark()
            for k, (acc, bb, z) in enumerate(chunk_mf(c, i)[::-1] if (cfg.snake & 4 and i & 1) else chunk_mf(c, i)):
                e(f"{MF} {vr(acc,4)}, {vr(176+4*i,4)}, {vr(bb,4)}, {'0' if z else vr(acc,4)}")
                if k == 0:
                    room = 2
                    while fill and room > 0:
                        cst = 2 if fill[0].startswith(('v_exp', 'v_rcp')) else 1
                        if cst > room: break
                        e(fill.pop(0)); room -= cst
            if nxt is not None: rd(nxt, i)
        if skip_from < 8:
            big_only.extend(P.since(mk)); e(f"L_bs{c}:")
        if hi != lo: e(f"s_setprio {lo}")
        for t in fill: e(t)
    for j in range(64):
        if j in (3, ACT0, DN0, DN0 + 14, 62): stamp(P, cfg, {3: 4, ACT0: 5, DN0: 6, DN0 + 14: 7, 62: 8}[j])
        if j in (3, ACT0) and not cfg.hack & 16: stamp(P, cfg, {3: 1, ACT0: 2}[j], True)
        if j == GSET + 1: e("global_load_dword v253, v252, s[68:69] sc1")
        if j in GPOLL: e(f"buffer_load_dword v253, v252, {SF}, s84 offen offset:{128*GPOLL.index(j)} sc1")
        if j + 4 < 64 and not cfg.x & 1: dma_kv(F, 'K', j + 4, j & 3)
        if j == 21: F.add('s_cmp_lg_u32 s99, 0', f's_cselect_b32 s{srd(5)+2}, 0, s{srd(5)+2}')
        if j < 28: dma_gu(F, j)
        if 0 <= j + 3 - DN0 < 14: dma_wd(F, 28 + j + 3 - DN0, j + 3 - DN0)
        if j + 3 < 64 and not (cfg.x & 1 and j): dma_kv(F, 'V', j + 3, 4 + ((j + 3) & 3))
        for nt in {59: [0], 60: [1], 61: [2, 3], 62: [4, 5], 63: [6, 7]}.get(j, []): dma_wo(F, nt, WO_SLOT[nt])
        if cfg.touch:
            if cfg.ltouch and j % cfg.tper == 0 and ntr[0] < min(16, j // 4 + cfg.klead + 1):
                ntr[0] += 1
                F.add(f"s_add_u32 {sT3}, s89, {(ntr[0]-1)*65536}", f"buffer_load_dword v244, v243, {ST}, {sT3} offen", tag='touch')
            if j == 10:
                F.add(f"s_mul_i32 {sT3}, {sSH}, 7168", f"s_add_u32 {sT3}, {sT3}, s88", f"s_lshl_b32 {sT3}, {sT3}, {cfg.hx-1}", f"buffer_load_dword v244, v243, {SWD}, {sT3} offen", tag='touch')
            if j in (cfg.wot, cfg.wot + 2, cfg.wot2, cfg.wot2 + 2):
                F.add(f"s_mul_i32 {sT3}, {sSH}, 14336", f"s_add_u32 {sT3}, {sT3}, s88", f"s_add_u32 {sT3}, {sT3}, {0 if j in (cfg.wot, cfg.wot2) else 8192}", f"s_lshl_b32 {sT3}, {sT3}, {cfg.hx-1}", f"buffer_load_dword v244, v243, {SWO}, {sT3} offen", tag='touch')
        if j == GU0 - 1:
            for i in range(8): rd(0, i)
        if GU0 <= j < ACT0:
            c = j - GU0; m, s = divmod(c, 7)
            fill = split(act(m - 1), 7)[s] if m else []
            if m == 3:
                e("s_cmp_lg_u32 s99, 0"); e(f"s_cbranch_scc0 L_bg{c}")
                mk = P.mark()
                for t in fill: e(t)
                e(f"s_branch L_be{c}")
                small_only.extend(P.since(mk))
                e(f"L_bg{c}:"); mk = P.mark()
            burst(c, c + 1 if c < 27 else None, fill)
            if m == 3: big_only.extend(P.since(mk)); e(f"L_be{c}:")
        if DN0 <= j < DN0 + 14:
            nt = j - DN0
            burst(28 + nt, 29 + nt if nt < 13 else None, out_cv(nt - 1) if nt else [], skip_from=6)
        if j == DN0 + 14:
            for t in out_cv(13): e(t)
        if ACT0 <= j < DN0:
            F.flush()
            e("s_cmp_lg_u32 s99, 0"); e(f"s_cbranch_scc1 L_as{j}"); mk = P.mark()
            for t in split(act(3), NACT)[j - ACT0]: e(t)
            big_only.extend(P.since(mk)); e(f"L_as{j}:")
            if j == DN0 - 1:
                for i in range(8): rd(28, i)
        if j == GSET:
            for t in final_salu(): e(t)
            e(f"s_lshl_b32 s7, {sQB}, 4"); e("v_mov_b32 v252, s7")
        if j == GSET2:
            F.emit(4)
            e("v_and_b32 v176, 15, v255"); e("v_lshrrev_b32 v177, 4, v255")
            e("v_mul_u32_u24 v251, 896, v176"); e("v_lshl_add_u32 v251, v177, 4, v251")
            e("v_lshrrev_b32 v178, 3, v255"); e("v_lshlrev_b32 v179, 1, v177"); e("v_and_b32 v180, 7, v255"); e("v_xor_b32 v179, v179, v180")
            e("v_mul_u32_u24 v248, 896, v178"); e("v_lshl_add_u32 v248, v179, 4, v248")
            e("v_bfe_u32 v178, v176, 2, 1"); e("v_lshlrev_b32 v178, 3, v178")
            e("v_lshrrev_b32 v179, 3, v176"); e("v_lshl_add_u32 v178, v179, 1, v178")
            e("v_bfe_u32 v179, v176, 1, 1"); e("v_add_u32 v178, v178, v179")
            e("v_lshlrev_b32 v179, 2, v177"); e("v_sub_u32 v178, v178, v179")
            e("v_and_b32 v179, 1, v176"); e("v_lshlrev_b32 v179, 4, v179"); e("v_mov_b32 v180, 0x3f80"); e("v_lshlrev_b32 v179, v179, v180")
            for ee in range(2):
                for i in range(4):
                    e(f"v_cmp_eq_u32 vcc, {i - 4 * ee}, v178"); e(f"v_cndmask_b32 v{192+4*ee+i}, 0, v179, vcc")
        F.flush()
        if DN0 + 1 <= j <= DN0 + 14: out_st(j - DN0 - 1)
        if j == GSET2 + 2:
            for r in range(2): e(f"buffer_load_dwordx4 {vr(216+4*r,4)}, v251, {SX}, s86 offen offset:{r*512}")
            if cfg.otouch: e(f"buffer_load_dword v244, off, {SO}, s86", tag='touch')
        if j in GPUB:
            r = GPUB.index(j)
            e("v_mov_b32 v96, 0"); e(f"v_mov_b32 v97, 1"); P.waitvm(('st', r))
            e("s_mov_b64 exec, 1"); e(f"global_store_dword v96, v97, s[100:101] offset:{128*r} sc1", tag='fl'); e("s_mov_b64 exec, -1")
        if j == GSET + 1:
            slows.append(poll(P, "L_pa", "global_load_dword v253, v252, s[68:69] sc1", "v_cmp_le_u32 vcc, 16, v253", True))
            e("v_and_b32 v252, 15, v255"); e("v_lshlrev_b32 v252, 2, v252")
        if j in GPOLL:
            r = GPOLL.index(j)
            slows.append(poll(P, f"L_pg{r}", f"buffer_load_dword v253, v252, {SF}, s84 offen offset:{128*r} sc1", "v_cmp_le_u32 vcc, 1, v253", True))
        for r in range(2):
            k = j - GPOLL[r] - 1
            if 0 <= k < 8:
                for h in (2 * k, 2 * k + 1):
                    e(f"s_mov_b32 {sT3}, {GP_OFF + h*1024 + r*4*STG}")
                    e(f"buffer_load_dwordx4 {vr(GSRC[r]+4*h,4)}, v249, {SR}, {sT3} offen sc1")
        if j == cfg.pe: stamp(P, cfg, 13)
        if j < 63:
            need = [('K', j + 3), ('V', j + 1), ('G', j - 1)]
            if 0 <= j + 2 - DN0 < 14: need.append(('G', 28 + j + 2 - DN0))
        else:
            need = [('WO', 0), ('WO', 1)]
            e(f"v_mov_b32 v176, {FLAG}")
        P.waitvm(*need)
        if GU0 - 1 <= j < DN0 + 13: e("s_waitcnt lgkmcnt(0)")
        if j == cfg.pe: stamp(P, cfg, 14)
        e("s_barrier")
        if j == cfg.pe - 1: stamp(P, cfg, 9)
        if j == cfg.pe: stamp(P, cfg, 15)
    e("ds_read_b32 v177, v176")
    for k in range(6):
        if cfg.hack & 32 and k >= 2: stamp(P, cfg, 1 + 3 * (k - 2))
        dma_wo(F, 8 + k, WO_SLOT[8 + k]); F.flush()
        if cfg.hack & 32 and k >= 2: stamp(P, cfg, 2 + 3 * (k - 2))
        if k == 0:
            e("v_readfirstlane_b32 s7, v177")
            e(f"s_andn2_b32 s7, s7, {sMODE}"); e("s_cbranch_scc1 L_again")
        P.waitvm(*[('WO', t) for t in ([k + 2] if k < 4 else range(6, cfg.lastb) if k == 4 else range(cfg.lastb, 14))])
        if cfg.hack & 32 and k >= 2: stamp(P, cfg, 3 + 3 * (k - 2))
        e("s_barrier")
    if cfg.hack & 32: stamp(P, cfg, 13); dump_stamps(P); e("s_endpgm")
    e(f"s_setprio {cfg.pep}")
    if cfg.hack & 4: e("s_branch L_hdone")
    e(f"s_cmp_eq_u32 {sSUB}, 3"); e("s_cbranch_scc1 L_hskip")
    for t in xch_salu(): e(t)
    e("v_add_u32 v176, s85, v249"); e("v_add_u32 v177, s90, v249"); e("v_mov_b32 v250, v249")
    for h in range(16): e(f"ds_write_b128 v176, {vr(4*h,4)} offset:{h*1024}")
    for k, r0 in enumerate((192, 196, 220, 250)): e(f"ds_write_b128 v177, {vr(r0,4)} offset:{k*1024}")
    e("L_hskip:")
    e("s_waitcnt vmcnt(0) lgkmcnt(0)")
    e("s_barrier")
    fetch(P, cfg, 0, 0, "v249", lambda: (msum(P, 200, 112), silu8(P, 200)))
    fin(P, cfg, 0, 0, 216)
    e("L_hdone:")
    if cfg.stamps:
        e("s_waitcnt vmcnt(0)"); stamp(P, cfg, 11, True); dump_stamps(P)
    e("s_endpgm")
    sk = set(id(x) for s in slows for x in s)
    allh = [x for x in P.since(m0) if id(x) not in sk]
    so = set(map(id, small_only)); bo = set(map(id, big_only))
    return [[x for x in allh if id(x) not in so], [x for x in allh if id(x) not in bo]], slows

def kd(name, vgpr, ydim=False):
    return "\n".join([f".amdhsa_kernel {name}", f"  .amdhsa_next_free_vgpr {vgpr}", "  .amdhsa_next_free_sgpr 102",
        f"  .amdhsa_accum_offset {vgpr}", "  .amdhsa_group_segment_fixed_size 0", "  .amdhsa_kernarg_size 96",
        "  .amdhsa_user_sgpr_count 2", "  .amdhsa_user_sgpr_kernarg_segment_ptr 1", "  .amdhsa_system_sgpr_workgroup_id_x 1"]
        + (["  .amdhsa_system_sgpr_workgroup_id_y 1"] if ydim else []) + [".end_amdhsa_kernel"])

HEADER = """
; waves 4-7 stream K/V/weights into LDS (LDS-DMA rings) and run this workgroup's slice of the GLU branch.
; Per-head partial results go through d_ws (write-through stores, per-wave flags reset at start, arrival count in d_debug)
"""
def generate(cfg=None):
    cfg = cfg or Cfg()
    global FIXED, WAITS, PLACE, CFG
    CFG = cfg
    FIXED, WAITS, PLACE = sched.plan(wait_group=cfg.wg)
    P = Prog()
    K1 = NAME + "_kernel"
    P.e(".p2align 8"); P.e(f"{K1}:")
    m = P.mark(); gen_entry(P, cfg); entry = P.since(m)
    m = P.mark(); FC = gen_setup(P, cfg, False); P.e("s_branch L_ln"); cs = P.since(m)
    P.e("L_hs:")
    m = P.mark(); FH = gen_setup(P, cfg, True); hs = P.since(m)
    P.e("L_ln:")
    m = P.mark(); gen_ln(P, cfg); ln = P.since(m)
    ctraces, other = gen_compute(P, cfg, FC)
    htrace, hother = gen_helper(P, cfg, FH)
    ctraces = [cs + ln + t for t in ctraces]; htrace = [hs + ln + t for t in htrace]
    P.e("L_end:"); P.e("s_endpgm")
    P.e("L_code_end:")
    full = [entry + t for t in ctraces] + [entry + t for t in htrace]
    resolve(full + [[x for x in t if x.tag != 'opt'] for t in full] + other + hother)
    nb = lambda t: sum(1 for x in t if x.kind != 'none' and x.op == 's_barrier')
    print("barriers compute", nb(ctraces[0]) + 13 * 4, "helper", nb(htrace[0]), nb(htrace[1]))
    if cfg.hack & 2:
        for I in P.L:
            if I.text.startswith("buffer_store_dwordx4"): I.text = I.text.replace(" sc1", "")
    if cfg.hack & 8:
        for I in P.L:
            if I.text.startswith("buffer_store_dwordx4"): I.text = I.text.replace(" sc1", " sc0 sc1")
    if cfg.dflag:
        fl = {1: "nt", 2: "sc1", 3: "sc0", 4: "sc0 sc1", 5: "sc0 nt", 6: "sc1 nt"}[cfg.dflag]
        for I in P.L:
            if I.text.endswith(" lds") and I.tag and I.tag[0] in ('K', 'V', 'G', 'WQ', 'WO'): I.text = I.text[:-4] + f" {fl} lds"
    out = expand(P.L)
    mis = align8(out) if cfg.al else -1
    head = HEADER.strip().splitlines() + [f"; @launch grid=(256,1,1) block=(512,1,1) lds={LDS_BYTES}",
            '.amdgcn_target "amdgcn-amd-amdhsa--gfx950"', ".text",
            f".globl {K1}", f".type {K1},@function"]
    span = 0
    for I in out:
        if I.text == "L_code_end:": break
        if I.text.startswith(".p2align"):
            a = 1 << int(I.text.split()[1]); span = -(-span // a) * a
        span += I.size()
    body = [I.text.replace("CODE_SPAN", str((span - 128) & ~3)) for I in out]
    print("code bytes K1", span)
    tail = ['.section .rodata,"a"', ".p2align 6", kd(K1, 256)]
    return "\n".join(head + body + tail) + "\n", mis

if __name__ == "__main__":
    cfg = Cfg()
    for a in sys.argv[2:]:
        k, v = a.split('='); setattr(cfg, k, float(v) if k == 'thr' else int(v))
    s, mis = generate(cfg)
    open(sys.argv[1], "w").write(s)
    print("bytes", len(s), "lines", s.count("\n"), "misaligned", mis)
```

```python
import struct, sys
from asmlib import *
import sched

NAME = "recurrent_scan__mha_block_cached__glu_gated_glu__prompt"
def f2u(x): return struct.unpack('<I', struct.pack('<f', x))[0]
LOG2E = 1.4426950408889634
SLOT = 16896
GLUB = 8 * SLOT
GLUS = 8192
FLAG = GLUB - 32
LDS_BYTES = 163840
GP_OFF = 0x2000000
STG = 262144
FL_OFF = 0x4000000
SPIN = 400000

sHEAD, sQB, sWV, sSUB = 's3', 's4', 's5', 's6'
SX, SK, SV, SWQ, SWO, SWG, SWU, SWD, SP, ST = [f"s[{8+4*i}:{11+4*i}]" for i in range(10)]
sC = 's72'; sHI = 's74'; sTRIP = 's75'
sLK, sLV, sL1K = 's76', 's77', 's78'
sMODE = 's79'
sSH = 's91'
sT0, sT1, sT2, sT3 = 's80', 's81', 's82', 's83'
sKO, sVO = 's96', 's97'
def srd(i): return 8 + 4 * i
def vr(a, n): return f"v[{a}:{a+n-1}]"
MF = "v_mfma_f32_16x16x32_bf16"
TR = "ds_read_b64_tr_b16"

class Cfg:
    glu = 1
    touch = 1
    prio = 2
    stamps = 0
    thr = 2.0 ** 64
    wq_at = 33
    xpar = 0
    pe = 20
    hack = 0
    plo = 0
    hx = 1
    t_at = 28
    ktr = 3
    klead = 16
    gtouch = 1
    tq0 = 8
    phi = 2
    nact = 2
    flip = 0
    x = 0
    snake = 7
    lnpk = 3
    pre2 = 0
    xrot = 1
    stouch = 0
    tlb = 0
    gb0 = 10
    gb1 = 19
    hpar = 0
    gp = 0
    ltd = 0
    q0e = 4
    qprio = 2
    al = 1
    fmode = 0
    pn = 0
    toff = 0
    obias = 0
    wot2 = 27
    wsoff = 0
    tper = 2
    oflag = 1
    otouch = 0
    dflag = 0
    vbit = -1
    bara = 15
    barb = 15
    pep = 0
    pd = 2
    lastb = 9
    pubr = 13
    ctop = 1
    xat = 224
    ssp = 4
    fo = 1
    sn = -1
    wot = 57
    pl = 4
    slp = 8
    wg = 3
    ltouch = 1
    etouch = 1

def stream(P, items, bufs, lead, gapfill=None, group=2, start=None):
    n = len(items)
    buf = [bufs[i % len(bufs)] for i in range(n)]
    def reads(i):
        it = items[i]
        if it.get('hook'): it['hook']()
        for (op, addr, imm, sub, w) in it['reads']:
            P.e(f"{op} {vr(buf[i]+sub, w)}, {addr} offset:{imm}")
    for i in range(min(lead, n)): reads(i)
    if start: start()
    for i in range(n):
        it = items[i]
        for k, (acc, b, c) in enumerate(it['mf'][::-1] if (CFG.snake & 4 and i & 1) else it['mf']):
            extra = set()
            if group and k == len(it['mf']) - 1 and (i + 1) % group == 0:
                for z in range(1, group + 1):
                    if i + z < n: extra |= regs_of(vr(buf[i+z], 4))
            P.e(f"{MF} {vr(acc,4)}, {vr(buf[i],4)}, {vr(b,4)}, {c if c is not None else vr(acc,4)}", extra_rd=extra)
            if k == len(it['mf']) - 1 and i + lead < n: reads(i + lead)
            elif gapfill: gapfill(i, k)

def tr_reads(addr, imm0, imm1): return [(TR, addr, imm0, 0, 2), (TR, addr, imm1, 2, 2)]

class Filler:
    def __init__(self, P): self.P = P; self.q = []
    def add(self, *texts, **kw): self.q.append((texts, kw))
    def emit(self, k=1):
        for _ in range(k):
            if not self.q: return
            texts, kw = self.q.pop(0)
            for t in texts:
                if isinstance(t, tuple): self.P.waitvm(*t)
                elif t.startswith(('buffer_', 'global_')): self.P.e(t, **kw)
                else: self.P.e(t)
    def flush(self): self.emit(len(self.q))
    def wait(self, *tags):
        assert not any(kw.get('tag') in tags for _, kw in self.q), tags
        self.P.waitvm(*tags)

def dma_kv(F, which, tile, slot):
    sr, sl, so = (SK, sLK, sKO) if which == 'K' else (SV, sLV, sVO)
    ld = lambda off: f"buffer_load_dwordx4 v240, {sr}, {so} offen" + (f" offset:{off}" if off else "") + " lds"
    tag = (which, tile)
    F.add(f"s_add_u32 m0, {sl}, {slot*SLOT}", f"s_addk_i32 {so}, 8192", ld(0), tag=tag)
    F.add("s_addk_i32 m0, 32", ld(1024), tag=tag)
    F.add(f"s_addk_i32 m0, {8448-32}", f"s_addk_i32 {so}, 8192", ld(0), tag=tag)
    F.add("s_addk_i32 m0, 32", ld(1024), tag=tag)
def dma_wq(F, tile, slot):
    ld = f"buffer_load_dwordx4 v245, {SWQ}, {sT0} offen lds"
    tag = ('WQ', tile)
    F.add(f"s_add_u32 m0, {sLV}, {slot*SLOT}", f"s_mov_b32 {sT0}, {32*tile*8192}", ld, tag=tag)
    for d in (1056, 7392, 1056):
        F.add(f"s_addk_i32 m0, {d}", f"s_addk_i32 {sT0}, 16384", ld, tag=tag)
def dma_wo(F, t, slot):
    ld = f"buffer_load_dwordx4 v248, {SWO}, {sT0} offen lds"
    tag = ('WO', t)
    F.add(f"s_add_u32 m0, {sL1K}, {slot*SLOT}", f"s_add_u32 {sT0}, s87, {(t & 1)*128*896 + (t >> 1)*128}", ld, tag=tag)
    for p in range(3): F.add("s_addk_i32 m0, 1024", f"s_addk_i32 {sT0}, {8*896}", ld, tag=tag)
def dma_gu(F, c):
    base = GLUB + (c % 3) * GLUS; m, s = divmod(c, 7)
    ld = f"buffer_load_dwordx4 v241, {SWG}, {sT2} offen lds"
    F.add(f"s_add_u32 m0, s88, {base}", f"s_mov_b32 {sT2}, {64*s*3584 + m*64}", ld, tag=('G', c))
    F.add("s_addk_i32 m0, 1024", f"s_addk_i32 {sT2}, {4*3584}", ld, tag=('G', c))
def dma_wd(F, c, nt):
    base = GLUB + (c % 3) * GLUS
    ld = f"buffer_load_dwordx4 v242, {SWD}, {sT2} offen lds"
    F.add(f"s_add_u32 m0, s88, {base}", f"s_add_u32 {sT2}, s87, {nt*64}", ld, tag=('G', c))
    F.add("s_addk_i32 m0, 1024", f"s_addk_i32 {sT2}, 14336", ld, tag=('G', c))

WQ_SLOT = {0: 7, 1: 8, 2: 5, 3: 3, 4: 6, 5: 4, 6: 0, 7: 1, 8: 2, 9: 7, 10: 8, 11: 5, 12: 3, 13: 6}
WO_SLOT = {0: 8, 1: 0, 2: 1, 3: 4, 4: 2, 5: 5, 6: 3, 7: 6, 8: 7, 9: 8, 10: 0, 11: 1, 12: 4, 13: 2}

def streg(idx): return {0: 's94', 10: 's95'}.get(idx, f"s{48+idx}") if not H32 else f"s{48+idx}"
H32 = False
NLAB = 0
def stamp(P, cfg, idx, real=False):
    if not cfg.stamps: return
    P.e(f"{'s_memrealtime' if real else 's_memtime'} s[64:65]"); P.e("s_waitcnt lgkmcnt(0)")
    P.e(f"s_mov_b32 {streg(idx)}, s64")
def dump_stamps(P):
    e = P.e
    global H32
    H32 = bool(CFG.hack & (32 | 256))
    if CFG.hack & 128:
        global NLAB
        NLAB += 1
        e("s_mov_b64 exec, 1")
        e("v_mov_b32 v0, 0"); e(f"v_mov_b32 v1, {streg(11)}"); e(f"s_not_b32 s7, {streg(10)}"); e("v_mov_b32 v2, s7")
        e("global_atomic_umax v0, v1, s[68:69] offset:4"); e("global_atomic_umax v0, v2, s[68:69] offset:8")
        e(f"s_lshl_b32 s7, s2, 3"); e(f"s_add_u32 s7, s7, {sWV}"); e(f"s_cmp_lg_u32 s7, {37*8}"); e(f"s_cbranch_scc1 L_nd{NLAB}")
        for w, (x, y) in zip((3, 5, 6, 7, 9, 10, 11, 13, 14), ((1, 0), (2, 1), (3, 2), (4, 3), (5, 4), (6, 5), (13, 6), (8, 13), (11, 10))):
            e(f"s_sub_u32 s7, {streg(x)}, {streg(y)}"); e(f"v_mov_b32 v{w+4}, s7"); e(f"global_store_dword v0, v{w+4}, s[68:69] offset:{4*w}")
        e(f"L_nd{NLAB}:")
        return
    for i in range(16): e(f"v_writelane_b32 v254, {streg(i)}, {i}")
    e(f"s_lshl_b32 s7, s2, 3"); e(f"s_add_u32 s7, s7, {sWV}"); e("s_lshl_b32 s7, s7, 8"); e("s_add_u32 s7, s7, 0x8000000")
    e("s_add_u32 s96, s70, s7"); e("s_addc_u32 s97, s71, 0")
    e("v_mbcnt_lo_u32_b32 v255, -1, 0"); e("v_mbcnt_hi_u32_b32 v255, -1, v255"); e("v_lshlrev_b32 v255, 2, v255")
    e("global_store_dword v255, v254, s[96:97]")

def mad(P, dst, src, mul, acc=None):
    P.e(f"s_movk_i32 s7, {mul}" if mul < 32768 else f"s_mov_b32 s7, {mul}")
    if acc is None: P.e(f"v_mul_u32_u24 {dst}, s7, {src}")
    else: P.e(f"v_mad_u32_u24 {dst}, {src}, s7, {acc}")

def gen_entry(P, cfg):
    e = P.e
    e("s_cmp_ge_u32 s2, 256"); e("s_cbranch_scc1 L_end")
    e(f"s_mov_b32 {sMODE}, 0")
    e("L_restart:")
    stamp(P, cfg, 0); stamp(P, cfg, 10, True)
    e("s_load_dwordx16 s[48:63], s[0:1], 0"); e("s_load_dwordx8 s[64:71], s[0:1], 64")
    e("s_getpc_b64 s[96:97]")
    if cfg.ctop:
        e("s_lshr_b32 s7, s2, 3"); e("s_lshl_b32 s7, s7, 12"); e("v_lshl_add_u32 v189, v0, 3, s7"); e("v_min_u32 v189, CODE_SPAN, v189")
        e("global_load_dword v251, v189, s[96:97]", tag='touch')
    e("v_lshrrev_b32 v1, 6, v0")
    e("v_and_b32 v255, 63, v0")
    e(f"v_readfirstlane_b32 {sWV}, v1")
    hx = cfg.hx; lm = hx - 1; M = 1 << lm
    e(f"s_and_b32 {sHEAD}, s2, {(16 >> hx) - 1}"); e(f"s_lshl_b32 {sHEAD}, {sHEAD}, {hx}"); e(f"s_bfe_u32 s7, s2, {(hx << 16) | 3:#x}"); e(f"s_add_u32 {sHEAD}, {sHEAD}, s7")
    e(f"s_lshr_b32 {sSH}, s2, {3 + hx}")
    if hx > 1: e(f"s_bfe_u32 s7, s2, {(lm << 16) | (4 - hx):#x}"); e(f"s_lshl_b32 s7, s7, {5 - hx}"); e(f"s_add_u32 {sQB}, {sSH}, s7")
    else: e(f"s_mov_b32 {sQB}, {sSH}")
    e(f"s_and_b32 {sSUB}, {sWV}, 3")
    e("s_mov_b32 s11, 0x20000"); e(f"s_mov_b32 s10, {2048*896}")
    e("v_lshrrev_b32 v186, 3, v255"); e("v_and_b32 v185, 7, v255"); e("v_lshlrev_b32 v184, 4, v185"); mad(P, 'v184', 'v186', 896, 'v184')
    if cfg.xrot: e(f"s_add_u32 s84, {sWV}, s2"); e("s_and_b32 s84, s84, 7"); e(f"s_and_b32 {sTRIP}, s2, {cfg.xrot & 1}")
    else: e(f"s_mov_b32 s84, {sWV}"); e(f"s_mov_b32 {sTRIP}, 0")
    e(f"s_lshl_b32 s7, {sQB}, 3"); e("s_add_u32 s7, s7, s84"); e(f"s_mul_i32 {sT0}, s7, {16*896}")
    def mk(i, plo, mul, total, exact=None, idx=sHEAD):
        b = srd(i)
        e(f"s_mul_i32 s7, {idx}, {mul}")
        e(f"s_add_u32 s{b}, s{plo}, s7"); e(f"s_addc_u32 s{b+1}, s{plo+1}, 0")
        if exact is not None: e(f"s_mov_b32 s{b+2}, {exact}")
        else: e(f"s_sub_u32 s{b+2}, {total}, s7")
    e(f"v_lshrrev_b32 v250, {4-lm}, v0"); e("v_lshlrev_b32 v250, 13, v250"); e(f"v_and_b32 v2, {(16>>lm)-1}, v0"); e(f"v_lshl_add_u32 v250, v2, {5+lm}, v250")
    e(f"s_mul_i32 s90, {sSH}, {28*M*8192}")
    for i in range(1, 10): e(f"s_mov_b32 s{srd(i)+3}, 0x20000")
    e(f"s_mul_i32 s7, {sTRIP}, {8*896}"); e(f"s_add_u32 {sT1}, {sT0}, {8*896}"); e(f"s_add_u32 {sT0}, {sT0}, s7"); e(f"s_sub_u32 {sT1}, {sT1}, s7")
    e("s_waitcnt lgkmcnt(0)")
    if cfg.hack & 16: e("s_memtime s[86:87]")
    e("s_mov_b32 s8, s48"); e("s_mov_b32 s9, s49")
    if cfg.t_at == -2:
        mk(3, 54, 512, 448 * 8192); e(f"buffer_load_dword v251, v250, {SWQ}, s90 offen", tag='touch')
    for kp in range(7): e(f"buffer_load_dwordx4 {vr(128+4*kp,4)}, v184, {SX}, {sT0} offen offset:{kp*128}")
    if cfg.t_at != -2: mk(3, 54, 512, 448 * 8192)
    if cfg.t_at == -1: e(f"buffer_load_dword v251, v250, {SWQ}, s90 offen", tag='touch')
    if cfg.tlb & 1:
        e(f"s_load_dword s92, s[{srd(3)}:{srd(3)+1}], 0"); e(f"s_add_u32 s96, s{srd(3)}, {447*8192}"); e(f"s_addc_u32 s97, s{srd(3)+1}, 0"); e("s_load_dword s92, s[96:97], 0")
    if cfg.stouch:
        e(f"s_cmp_eq_u32 {sWV}, 7"); e("s_cbranch_scc1 L_nost")
        e(f"s_lshl_b32 s7, {sWV}, 15"); e("s_add_u32 s7, s7, s90"); e(f"s_add_u32 s96, s{srd(3)}, s7"); e(f"s_addc_u32 s97, s{srd(3)+1}, 0")
        for r in range(4):
            for l in range(4 * cfg.stouch): e(f"s_load_dword s92, s[96:97], {r*8192 + l*(128//cfg.stouch)}")
        e("L_nost:")
    if cfg.wsoff: e(f"s_add_u32 s70, s70, {cfg.wsoff << 20}"); e("s_addc_u32 s71, s71, 0")
    mk(1, 50, 1 << 20, 0, 1 << 20)
    mk(2, 52, 1 << 20, 0, 1 << 20)
    mk(4, 56, 256 * 896, 0, 256 * 896)
    assert hx == 1
    if cfg.hpar:
        e("s_and_b32 s98, s2, 7"); e("s_mul_i32 s98, s98, 7"); e("s_bfe_u32 s99, s2, 0x10003")
    else:
        e("s_and_b32 s98, s2, 6"); e("s_bfe_u32 s7, s2, 0x10003"); e("s_add_u32 s98, s98, s7"); e("s_mul_i32 s98, s98, 7")
        e("s_and_b32 s99, s2, 1")
    if cfg.flip: e("s_mul_i32 s7, s99, 3"); e("s_xor_b32 s99, s99, 1")
    else: e("s_lshl_b32 s7, s99, 2")
    e("s_add_u32 s98, s98, s7")
    mk(5, 60, 64, 448 * 3584, idx='s98')
    mk(6, 62, 64, 448 * 3584, idx='s98')
    mk(7, 64, 32 * 896, 0, 128 * 896, idx='s98')
    e(f"s_mul_i32 s7, s99, {32*896}"); e(f"s_sub_u32 s{srd(7)+2}, s{srd(7)+2}, s7")
    e(f"s_mul_i32 s7, {sQB}, {7*STG}"); e(f"s_lshl_b32 {sT2}, {sSUB}, 16"); e(f"s_add_u32 s7, s7, {sT2}"); e(f"s_lshl_b32 {sT2}, {sHEAD}, 10"); e(f"s_add_u32 s7, s7, {sT2}")
    e(f"s_lshr_b32 {sT2}, {sWV}, 2"); e(f"s_mul_i32 {sT2}, {sT2}, {GP_OFF}"); e(f"s_add_u32 s7, s7, {sT2}")
    e(f"s_add_u32 s{srd(8)}, s70, s7"); e(f"s_addc_u32 s{srd(8)+1}, s71, 0"); e(f"s_mov_b32 s{srd(8)+2}, {7*STG}")
    e(f"s_lshl_b32 s7, {sQB}, 2"); e(f"s_add_u32 s7, s7, {sSUB}"); e("s_lshl_b32 s7, s7, 8"); e(f"s_add_u32 s7, s7, {sHEAD}"); e("s_lshl_b32 s7, s7, 2")
    e(f"s_lshr_b32 {sT2}, {sWV}, 2"); e(f"s_lshl_b32 {sT2}, {sT2}, 16"); e(f"s_add_u32 s7, s7, {sT2}"); e(f"s_add_u32 s7, s7, {FL_OFF}")
    e("s_add_u32 s100, s70, s7"); e("s_addc_u32 s101, s71, 0")
    if cfg.tlb & 2:
        for i in (1, 2, 4, 5, 6, 7, 8): e(f"s_load_dword s92, s[{srd(i)}:{srd(i)+1}], 0")
        for p in ("100:101", "66:67", "68:69"): e(f"s_load_dword s92, s[{p}], 0")
    e(f"s_cmp_lt_u32 {sSUB}, 2")
    e(f"s_cselect_b32 s{srd(9)}, s{srd(1)}, s{srd(2)}"); e(f"s_cselect_b32 s{srd(9)+1}, s{srd(1)+1}, s{srd(2)+1}"); e(f"s_mov_b32 s{srd(9)+2}, {1<<20}")
    e(f"s_lshl_b32 s89, {sSH}, {12+lm}"); e(f"s_and_b32 s7, {sSUB}, 1"); e(f"s_lshl_b32 s7, s7, {11+lm}"); e("s_add_u32 s89, s89, s7")
    e(f"s_mov_b32 {sC}, {f2u(LOG2E/16):#x}"); e(f"s_mov_b32 {sHI}, 0xffff0000")
    e("v_lshrrev_b32 v112, 4, v255"); e("v_bfe_u32 v114, v255, 2, 2"); e("v_and_b32 v115, 3, v255")
    e("v_lshrrev_b32 v116, 1, v114"); e("v_lshl_add_u32 v116, v112, 1, v116"); e("v_lshlrev_b32 v224, 3, v115"); mad(P, 'v224', 'v116', 1056, 'v224')
    e("v_and_b32 v116, 1, v114"); e("v_lshl_add_u32 v224, v116, 7, v224")
    e("v_bfe_u32 v117, v255, 2, 1"); e("v_lshl_add_u32 v116, v115, 1, v117"); e("v_xor_b32 v116, v116, v186"); e("v_lshlrev_b32 v187, 4, v116")
    e("v_lshl_add_u32 v187, v115, 8, v187"); e("v_xor_b32 v117, 1, v117"); e("v_lshl_add_u32 v187, v117, 13, v187")
    e("s_lshl_b32 s7, s84, 3"); e(f"s_add_u32 s7, s7, {sTRIP}"); e("s_lshl_b32 s7, s7, 7"); e("v_add_u32 v187, s7, v187"); e("v_add_u32 v188, 0x10000, v187")
    e("v_lshlrev_b32 v116, 1, v112"); e("v_and_b32 v117, 15, v255"); e("v_xor_b32 v116, v116, v117"); e("v_lshlrev_b32 v227, 4, v116"); e("v_lshl_add_u32 v227, v112, 8, v227")
    e(f"s_lshl_b32 s7, {sSUB}, 11"); e("v_add_u32 v227, s7, v227"); e("v_add_u32 v228, 0x10000, v227")
    e("v_xor_b32 v229, 16, v227"); e("v_xor_b32 v230, 16, v228")
    e("v_lshrrev_b32 v185, 2, v255")
    if cfg.hack & 16: e("s_waitcnt lgkmcnt(0)"); e("s_mov_b32 s57, s86"); cfg.pe = -5
    e("v_lshlrev_b32 v240, 7, v112")
    e("v_and_b32 v116, 7, v255"); e("v_lshl_add_u32 v240, v116, 4, v240")
    e("v_bfe_u32 v116, v255, 3, 1")
    e("v_lshl_add_u32 v245, v116, 13, v240")
    e("v_lshl_add_u32 v240, v116, 9, v240")
    e(f"s_lshl_b32 s7, {sSUB}, 16"); e("v_add_u32 v245, s7, v245")
    e(f"s_mul_i32 {sLV}, {sSUB}, 2112")
    e(f"s_cmp_ge_u32 {sWV}, 4"); e("s_cbranch_scc1 L_hs")

def wdo_read_bases(P, d0, d1, G, r, c, tmp, add=0):
    e = P.e
    e(f"v_lshlrev_b32 {d0}, 3, {c}"); e(f"v_lshl_add_u32 {d0}, {G}, 8, {d0}"); e(f"v_lshl_add_u32 {d0}, {r}, 6, {d0}")
    e(f"v_and_b32 {tmp}, 1, {G}"); e(f"v_lshl_add_u32 {d0}, {tmp}, 5, {d0}")
    if add: e(f"v_add_u32 {d0}, {add}, {d0}")
    e(f"v_xor_b32 {d1}, 32, {d0}")

def final_salu():
    R = []; e = R.append
    e(f"s_lshr_b32 s7, {sHEAD}, 2"); e(f"s_mul_i32 {sT3}, {sQB}, {7*STG}"); e(f"s_lshl_b32 {sT2}, {sHEAD}, 14"); e(f"s_add_u32 {sT3}, {sT3}, {sT2}")
    e(f"s_lshl_b32 {sT2}, {sSUB}, 18"); e(f"s_add_u32 {sT3}, {sT3}, {sT2}")
    e(f"s_add_u32 s{srd(3)}, s70, {sT3}"); e(f"s_addc_u32 s{srd(3)+1}, s71, 0"); e(f"s_cmp_eq_u32 {sSUB}, 3"); e(f"s_cselect_b32 s{srd(3)+2}, 0, {4*STG}"); e(f"s_add_u32 s{srd(3)+2}, s{srd(3)+2}, {GP_OFF + STG}")
    e(f"s_mov_b32 s{srd(5)}, s66"); e(f"s_mov_b32 s{srd(5)+1}, s67"); e(f"s_mov_b32 s{srd(5)+2}, {2048*896}")
    e(f"s_lshl_b32 {sT2}, {sQB}, 2"); e(f"s_add_u32 s7, s7, {sT2}")
    e(f"s_lshl_b32 {sT2}, s7, 10"); e(f"s_add_u32 {sT2}, {sT2}, {FL_OFF}")
    e(f"s_add_u32 s{srd(6)}, s70, {sT2}"); e(f"s_addc_u32 s{srd(6)+1}, s71, 0"); e(f"s_mov_b32 s{srd(6)+2}, 0x10400"); e("s_mov_b32 s84, 0x10000")
    e("s_lshl_b32 s7, s7, 1"); e(f"s_and_b32 {sT2}, {sHEAD}, 1"); e(f"s_add_u32 s7, s7, {sT2}"); e(f"s_mul_i32 s86, s7, {16*896}")
    e(f"s_lshl_b32 {sT2}, {sSUB}, 7"); e(f"s_add_u32 s86, s86, {sT2}"); e(f"s_bfe_u32 {sT2}, {sHEAD}, 0x10001"); e(f"s_lshl_b32 {sT2}, {sT2}, 6"); e(f"s_add_u32 s86, s86, {sT2}")
    return R

def xch_salu():
    return [f"s_lshl_b32 s7, {sSUB}, 2", "s_lshr_b32 s7, 0x635, s7", "s_and_b32 s7, s7, 15", f"s_mul_i32 s85, s7, {SLOT}",
            f"s_lshl_b32 s90, {sSUB}, 12", f"s_add_u32 s90, s90, {GLUB + 16384}"]

def xa(kk, lo, hi, add=0):
    o = (13 - kk) * 8192
    return f"{hi if o >= 65536 else lo} offset:{(o & 0xffff) + add}"
XR = [f"ds_read_b128 {vr((2*kk+qt)*4,4)}, {xa(kk, *(('v229', 'v230') if kk & 1 else ('v227', 'v228')), qt*1024)}" for kk in range(14) for qt in range(2)]

def gen_setup(P, cfg, helper):
    e = P.e
    F = Filler(P)
    lm = cfg.hx - 1; M = 1 << lm
    e(f"s_mov_b32 s93, {int(helper)}")
    if helper:
        e(f"s_lshl_b32 s88, {sSUB}, 11"); e("v_add_u32 v240, s88, v240")
        e(f"s_lshl_b32 s7, {sSUB}, 3"); e(f"s_lshr_b32 {sLK}, 0xc0703000, s7"); e(f"s_and_b32 {sLK}, {sLK}, 0xff"); e(f"s_add_u32 {sLK}, {sLK}, s88")
        e(f"s_lshl_b32 {sL1K}, {sSUB}, 12")
        e(f"s_movk_i32 {sKO}, -8192"); e(f"s_movk_i32 {sVO}, -8192")
        e("v_and_b32 v116, 1, v112"); e("v_lshlrev_b32 v116, 1, v116"); e("v_xor_b32 v116, v116, v115"); e("v_lshlrev_b32 v242, 4, v116")
        mad(P, 'v242', 'v185', 896, 'v242')
        e("v_lshl_add_u32 v117, v112, 3, v114"); e("v_lshlrev_b32 v241, 4, v116"); mad(P, 'v241', 'v117', 3584, 'v241')
        e(f"s_lshr_b32 s7, {sSUB}, 1"); e(f"s_mul_i32 s7, s7, {32*3584}"); e("v_add_u32 v241, s7, v241")
        e(f"s_bitcmp1_b32 {sSUB}, 0"); e(f"s_cselect_b32 s{srd(5)}, s{srd(6)}, s{srd(5)}"); e(f"s_cselect_b32 s{srd(5)+1}, s{srd(6)+1}, s{srd(5)+1}")
        e(f"v_lshlrev_b32 v243, {5+lm}, v255")
        e("v_lshlrev_b32 v249, 4, v255")
        e(f"s_mul_i32 s87, {sSUB}, {2*14336}")
        wdo_read_bases(P, 'v246', 'v247', 'v112', 'v114', 'v115', 'v116', GLUB)
        e("v_add_u32 v224, 512, v224")
    else:
        e(f"v_lshlrev_b32 v252, {5+lm}, v255")
        if cfg.touch:
            for tr in range(cfg.ktr):
                F.add(*([f"s_mov_b32 m0, {GLUB + 24576}"] if cfg.ltd else []), f"s_add_u32 {sT3}, s89, {tr*65536}", f"buffer_load_dword v252, {ST}, {sT3} offen lds" if cfg.ltd else f"buffer_load_dword v251, v252, {ST}, {sT3} offen", tag='touch')
            e("v_mul_u32_u24 v253, 84, v115"); mad(P, 'v253', 'v185', 3584, 'v253')
        if cfg.touch and cfg.gtouch:
            F.add(f"s_lshl_b32 s7, {sSH}, 1", f"s_and_b32 {sT2}, {sSUB}, 1", f"s_add_u32 s7, s7, {sT2}", f"s_mul_i32 {sT3}, s7, {14*M*3584}",
                  f"s_cmp_lt_u32 {sSUB}, 2", f"s_cselect_b32 s{srd(9)}, s{srd(5)}, s{srd(6)}", f"s_cselect_b32 s{srd(9)+1}, s{srd(5)+1}, s{srd(6)+1}",
                  f"s_mov_b32 s{srd(9)+2}, s{srd(5)+2}", f"buffer_load_dword v253, {ST}, {sT3} offen lds" if cfg.ltd else f"buffer_load_dword v251, v253, {ST}, {sT3} offen", tag='touch')
            for _ in range(M - 1): F.add(f"s_add_u32 {sT3}, {sT3}, {14*3584}", f"buffer_load_dword v251, v253, {ST}, {sT3} offen", tag='touch')
        F.add(*final_salu()); F.add(f"s_mov_b32 s73, {f2u(-LOG2E):#x}", *xch_salu())
        e("v_bfe_u32 v116, v255, 1, 3"); e("v_lshlrev_b32 v117, 2, v116"); e("s_mov_b32 s7, 0xec975320"); e("v_bfe_u32 v117, s7, v117, 4")
        e("v_lshlrev_b32 v248, 10, v116"); e("v_lshl_add_u32 v248, v117, 4, v248")
        e("v_and_b32 v116, 1, v255"); e("v_lshl_add_u32 v248, v116, 7, v248")
        e("v_and_b32 v116, 1, v112"); e("v_lshl_add_u32 v248, v116, 5, v248"); e("v_lshrrev_b32 v116, 1, v112"); e("v_lshl_add_u32 v248, v116, 4, v248")
        e(f"v_add_u32 v249, {4*SLOT}, v224")
        e(f"v_mov_b32 v116, {FLAG}"); e("v_mov_b32 v117, 0"); e("ds_write_b32 v116, v117")
    return F

def gen_ln(P, cfg):
    e = P.e
    F = Filler(P)
    e(f"v_add_u32 v225, {3*SLOT}, v224"); e(f"v_add_u32 v226, {6*SLOT}, v224")
    ld = f"buffer_load_dwordx4 v245, {SWQ}, {sT0} offen lds"
    F.add(f"s_lshr_b32 s7, {sWV}, 2", f"s_lshl_b32 {sT0}, s7, 18", f"s_mul_i32 s7, s7, {SLOT}", f"s_add_u32 s7, s7, {sLV}", f"s_add_u32 m0, s7, {7*SLOT}", ld, tag='W01')
    for d in (1056, 7392, 1056): F.add(f"s_addk_i32 m0, {d}", f"s_addk_i32 {sT0}, 16384", ld, tag='W01')
    if cfg.hack & 16: stamp(P, cfg, 13)
    for kp in range(cfg.pre2): e(f"buffer_load_dwordx4 {vr(156+4*kp,4)}, v184, {SX}, {sT1} offen offset:{kp*128}")
    if cfg.hack & 16: stamp(P, cfg, 14)
    for hh in range(2):
        m, t, v, u = "v118", "v119", "v120", "v121"
        for d in range(28 * hh, 28 * hh + 28):
            kp = d // 4 + cfg.pre2
            if hh == 0 and d % 4 == 0 and kp < 7:
                e(f"buffer_load_dwordx4 {vr(156+4*kp,4)}, v184, {SX}, {sT1} offen offset:{kp*128}", extra_rd=regs_of(f"v{128+d}"))
            e(f"v_lshlrev_b32 v{2*d}, 16, v{128+d}"); e(f"v_and_b32 v{2*d+1}, {sHI}, v{128+d}")
            pr = vr(2 * d, 2)
            if cfg.lnpk & 1:
                if d % 28 == 0: e(f"v_mov_b64 v[118:119], {pr}"); e(f"v_pk_mul_f32 v[120:121], {pr}, {pr}")
                else: e(f"v_pk_add_f32 v[118:119], v[118:119], {pr}"); e(f"v_pk_fma_f32 v[120:121], {pr}, {pr}, v[120:121]")
            elif d % 28 == 0:
                e(f"v_mov_b32 {m}, v{2*d}"); e(f"v_mov_b32 {t}, v{2*d+1}"); e(f"v_mul_f32 {v}, v{2*d}, v{2*d}"); e(f"v_mul_f32 {u}, v{2*d+1}, v{2*d+1}")
            else:
                e(f"v_add_f32 {m}, {m}, v{2*d}"); e(f"v_add_f32 {t}, {t}, v{2*d+1}")
                e(f"v_fmac_f32 {v}, v{2*d}, v{2*d}"); e(f"v_fmac_f32 {u}, v{2*d+1}, v{2*d+1}")
            if d == cfg.t_at and cfg.touch:
                e(f"buffer_load_dword v251, v250, {SWQ}, s90 offen", tag='touch')
            if d >= cfg.wq_at and d % 4 == 1: F.emit()
        if hh == 1: stamp(P, cfg, 1)
        e(f"v_add_f32 {m}, {m}, {t}"); e(f"v_add_f32 {v}, {v}, {u}")
        for qp in ("quad_perm:[1,0,3,2]", "quad_perm:[2,3,0,1]", "row_half_mirror"):
            e(f"v_add_f32_dpp {m}, {m}, {m} {qp} row_mask:0xf bank_mask:0xf")
            e(f"v_add_f32_dpp {v}, {v}, {v} {qp} row_mask:0xf bank_mask:0xf")
        e(f"s_mov_b32 s7, {f2u(1.0/448):#x}")
        e(f"v_mul_f32 {m}, s7, {m}")
        e(f"v_mul_f32 {t}, {m}, {m}")
        e(f"v_fma_f32 {v}, {v}, s7, -{t}")
        e(f"v_max_f32 {v}, 0, {v}")
        e(f"v_cvt_pk_bf16_f32 {t}, {m}, {v}")
        e(f"v_lshlrev_b32 {m}, 16, {t}")
        e(f"v_and_b32 {v}, {sHI}, {t}")
        e(f"v_add_f32 {v}, {f2u(1e-5):#x}, {v}")
        e(f"v_cvt_pk_bf16_f32 {v}, {v}, {v}"); e(f"v_and_b32 {v}, {sHI}, {v}")
        e(f"v_sqrt_f32 {v}, {v}")
        e(f"v_cvt_pk_bf16_f32 {v}, {v}, {v}"); e(f"v_and_b32 {v}, {sHI}, {v}")
        e(f"v_rcp_f32 {v}, {v}")
        e(f"v_mul_f32 {m}, {m}, {v}")
        if not cfg.lnpk & 2: e(f"v_mov_b32 {t}, {m}"); e(f"v_mov_b32 {u}, {v}")
        for kp in range(7):
            z = 7 * hh + kp
            for d in range(4 * z, 4 * z + 4):
                if cfg.lnpk & 2: e(f"v_pk_fma_f32 {vr(2*d,2)}, {vr(2*d,2)}, v[120:121], v[118:119] op_sel_hi:[1,0,0] neg_lo:[0,0,1] neg_hi:[0,0,1]")
                else: e(f"v_fma_f32 v{2*d}, v{2*d}, {u}, -{t}"); e(f"v_fma_f32 v{2*d+1}, v{2*d+1}, {v}, -{m}")
            for d in range(4 * z, 4 * z + 4):
                e(f"v_cvt_pk_bf16_f32 v{128+d}, v{2*d}, v{2*d+1}")
            ad = xa(2 * kp + 1, 'v187', 'v188').split()
            e(f"ds_write_b128 {ad[0]}, {vr(128+4*z,4)} {ad[1]}")
            if hh == 1: F.emit(2)
        if hh == 0:
            if cfg.hack & 16: stamp(P, cfg, 15)
            e("v_xor_b32 v187, 0x80, v187"); e("v_xor_b32 v188, 0x80, v188")
            e("v_mov_b32 v122, 0"); e("v_lshlrev_b32 v123, 7, v255")
            e(f"s_cmp_lg_u32 {sMODE}, 0"); e(f"s_cbranch_scc1 L_norst")
            e(f"s_mov_b64 exec, 0x7f"); e("global_store_dword v123, v122, s[100:101] sc1", tag='opt'); e("s_mov_b64 exec, -1")
            e(f"L_norst:")
    F.wait('W01')
    e("s_waitcnt lgkmcnt(0)")
    stamp(P, cfg, 12)
    e("s_barrier")
    for t in XR[:16]: e(t)
    e("s_cmp_eq_u32 s93, 1"); e("s_cbranch_scc1 L_helper")

def gen_qproj(P, cfg, helper, F):
    e = P.e
    xr = XR[16:]
    def start():
        e("s_barrier", extra_rd=regs_of("v[0:63]"))
        if helper:
            for T in range(2, 6): dma_wq(F, T, WQ_SLOT[T])
            F.emit(cfg.q0e)
        stamp(P, cfg, 2 if not cfg.hack & 256 else 1)
    items = []
    after = {1: [('WQ', 6), ('WQ', 7), ('WQ', 8), ('WQ', 9)], 2: [('WQ', 10), ('WQ', 11)], 3: [('WQ', 12), ('WQ', 13)], 4: [('K', 0), ('V', 0)], 5: [('K', 1), ('K', 2)], 6: []}
    def mkhook(k):
        def hook():
            if helper:
                F.wait(('WQ', 2*k), ('WQ', 2*k+1), *([('K', 0)] if k == 6 else []))
            if k == 1: P.waitvm('opt')
            if cfg.hack & 256: e(f"s_memtime s[{48+2*k}:{49+2*k}]")
            e("s_barrier", extra_rd=regs_of("v[64:111]") if k == 1 else None)
            if helper:
                for (w, t) in after.get(k, []):
                    if w == 'WQ': dma_wq(F, t, WQ_SLOT[t])
                    else: dma_kv(F, w, t, (t & 3) + (4 if w == 'V' else 0))
            elif k == 1:
                e(f"s_or_b32 s7, {sMODE}, {sSUB}"); e("s_cbranch_scc1 L_noarr")
                e(f"s_lshl_b32 s7, {sQB}, 4"); e("v_mov_b32 v228, s7"); e("v_mov_b32 v229, 1")
                e("s_mov_b64 exec, 1"); e("global_atomic_add v228, v229, s[68:69] sc1", tag='opt'); e("s_mov_b64 exec, -1")
                e("L_noarr:")
        return hook
    for T in range(14):
        sl = WQ_SLOT[T]; base = f"v{224 + sl // 3}"; so = (sl % 3) * SLOT
        for t in range(8):
            imm = so + (t >> 2) * 256 + (t & 3) * 32
            mf = [(128 + ((t >> 1) * 2 + qt) * 8 + (t & 1) * 4, (2 * T + qt) * 4, '0' if T == 0 else None) for qt in range(2)]
            items.append(dict(mf=mf, reads=tr_reads(base, imm, imm + 8448), hook=mkhook(T // 2) if (T % 2 == 0 and T > 0 and t == 0) else None))
    def gap(i, k):
        T, t = divmod(i, 8)
        for _ in range(2):
            if xr: e(xr.pop(0))
        if helper: F.emit()
        else:
            if T >= 1 and t < 4: e(f"v_mov_b64 {vr(8*(T-1)+2*t,2)}, 0")
            elif 1 <= T < 5 and t in (4, 5): e(f"v_mov_b64 {vr(112+4*(T-1)+2*(t-4),2)}, 0")
            elif t == 6 and T >= cfg.tq0: F.emit()
    stream(P, items, [192 + 4 * i for i in range(6)], 6, gap, group=3, start=start)
    assert not F.q or not helper
    F.flush()
    if cfg.hack & 256: e('s_memtime s[62:63]'); e('s_waitcnt lgkmcnt(0)'); dump_stamps(P); e('s_endpgm')
    e(f"s_lshr_b32 s7, {sSUB}, 1"); e(f"s_mul_i32 s7, s7, {SLOT}"); e(f"s_and_b32 {sT3}, {sSUB}, 1"); e(f"s_lshl_b32 {sT3}, {sT3}, 13")
    e(f"s_add_u32 s7, s7, {sT3}"); e(f"s_add_u32 s7, s7, {7*SLOT}")
    e("v_lshlrev_b32 v254, 4, v255"); e("v_add_u32 v254, s7, v254")
    if helper:
        for g in range(8):
            for t in qfin(g): e(t)
            if g: e(f"ds_write_b128 v254, {vr(128+4*(g-1),4)} offset:{(g-1)*1024}")
        e(f"ds_write_b128 v254, {vr(156,4)} offset:{7*1024}")
        P.waitvm(('K', 1))
        e("s_waitcnt lgkmcnt(0)")
        stamp(P, cfg, 3)
        e("s_barrier")
    return F

def qfin(g):
    r = [f"v_mul_f32 v{128+8*g+i}, {sC}, v{128+8*g+i}" for i in range(8)]
    r += [f"v_cvt_pk_bf16_f32 v{128+4*g+i}, v{128+8*g+2*i}, v{129+8*g+2*i}" for i in (0, 2, 1, 3)] if g else \
         [f"v_cvt_pk_bf16_f32 v{128+i}, v{128+2*i}, v{129+2*i}" for i in range(4)]
    r += [f"v_permlane16_swap_b32 v{128+4*g}, v{130+4*g}", f"v_permlane16_swap_b32 v{129+4*g}, v{131+4*g}"]
    return r

BUFS = [224, 228, 232, 236, 240, 244, 252]
PAT = list(range(7)) + list(range(6)) + list(range(6)) + list(range(7)) + list(range(6))
LEAD = sched.LEAD
SA = [192, 200]; SB = 208; NEGM = 216; LR = [250, 251]
def fbuf(f): return BUFS[PAT[f % 32]]
def oacc(t, qt): return ((t >> 1) * 2 + qt) * 8 + (t & 1) * 4
def k_imm(f): return (f >> 3) * 8448 + ((f & 7) >> 1) * 256 + (f & 1) * 64
def k_read(P, f, slot): P.e(f"ds_read_b128 {vr(fbuf(f),4)}, v248 offset:{slot*SLOT + k_imm(f)}")
def v_read(P, f, slot):
    t = f - 16
    imm = slot * SLOT + (t >> 2) * 256 + (t & 3) * 32
    P.e(f"{TR} {vr(fbuf(f),2)}, v249 offset:{imm}")
    P.e(f"{TR} {vr(fbuf(f)+2,2)}, v249 offset:{imm + 8448}")

def sm_text(task, sa):
    if task[0] in ('exp', 'add'):
        _, blk, q, i = task
        r = (sa if blk == 'a' else SB) + 4 * q + i
        return f"v_exp_f32 v{r}, v{r}" if task[0] == 'exp' else f"v_add_f32 v{LR[q]}, v{LR[q]}, v{r}"
    _, q, k = task
    src = (sa if k < 2 else SB) + 4 * q + 2 * (k & 1)
    return f"v_cvt_pk_bf16_f32 v{sa+4*q+k}, v{src}, v{src+1}"

FIXED = WAITS = PLACE = None

def gen_iter(P, j, ctl=False, bar=16, lab='L_loop'):
    e = P.e
    cur = SA[j & 1]; nxt = SA[(j + 1) & 1]
    for g in range(64):
        f, qt = g >> 1, g & 1
        if CFG.snake & (1 if f < 16 else 2): qt ^= f & 1
        extra = set()
        for z in WAITS.get(g, []): extra |= regs_of(vr(fbuf(z), 4))
        if f < 16:
            acc = (nxt if f < 8 else SB) + 4 * qt
            c = (vr(NEGM + 4 * qt, 4) if not CFG.x & 16 else '0') if (f & 7) == 0 else vr(acc, 4)
            e(f"{MF} {vr(acc,4)}, {vr(fbuf(f),4)}, {vr(128 + ((f&7)*2+qt)*4,4)}, {c}", extra_rd=extra)
        else:
            a = oacc(f - 16, qt)
            e(f"{MF} {vr(a,4)}, {vr(fbuf(f),4)}, {vr(cur+4*qt,4)}, {vr(a,4)}", extra_rd=extra)
        if CFG.x & 32 and g in (41, 53): e(f"{MF} v[220:223], v[216:219], {vr(cur+4*qt,4)}, v[220:223]")
        late = []
        for it in FIXED[g]:
            if it[0] == 'read':
                n = it[1]
                if CFG.x & 4 and n % 2:
                    if CFG.x & 128 and n % 8 == 1: k_read(P, n % 16, (j + 1) & 3) if False else e(f"ds_read_b128 {vr(fbuf(n),4)}, v248 offset:{(j&3)*SLOT + k_imm(n%16)}")
                    if CFG.x & 128 and n % 8 == 5: e(f"ds_write_b64 v249, {vr(cur + (n>>3&1)*4 + (n>>4&1)*2, 2)} offset:{65000}")
                    continue
                if n < 16: k_read(P, n, (j + 1) & 3)
                elif n < 32: v_read(P, n, j & 3)
                else: k_read(P, n - 32, (j + 2) & 3)
            elif it[0] == 'ctl' and ctl: late.append(f"s_sub_u32 {sTRIP}, {sTRIP}, 1")
            elif it[0] == 'branch' and ctl: late.append(f"s_cbranch_scc0 {lab}")
        if g == bar: late.append("s_barrier")
        for t in PLACE.get(g + 64, []):
            if not (CFG.x & 2 and t[0] != 'cvt') and not (CFG.x & 8 and t[0] == 'add'): e(sm_text(t, cur))
        for t in PLACE.get(g, []):
            if not (CFG.x & 2 and t[0] != 'cvt') and not (CFG.x & 8 and t[0] == 'add'): e(sm_text(t, nxt))
        for t in late: e(t)

def xgroup(P, op, r, t):
    e = P.e
    e(f"v_mov_b32 {t}, {r}"); e(f"v_permlane16_swap_b32 {r}, {t}"); e(f"{op} {r}, {r}, {t}")
    e(f"v_mov_b32 {t}, {r}"); e(f"v_permlane32_swap_b32 {r}, {t}"); e(f"{op} {r}, {r}, {t}")

SR, SO, SF = SWQ, SWG, SWU
def msum(Q, acc, src):
    for h in range(16):
        for ee in range(2): Q.e(f"{MF} {vr(acc+4*ee,4)}, {vr(192+4*ee,4)}, {vr(src+4*h,4)}, {'0' if h == 0 else vr(acc+4*ee,4)}")
def silu8(Q, a):
    rnd8(Q, a, 224)
    for i in range(8): Q.e(f"v_mul_f32 v{224+i}, s73, v{a+i}")
    for i in range(8): Q.e(f"v_exp_f32 v{224+i}, v{224+i}")
    for i in range(8): Q.e(f"v_add_f32 v{224+i}, 1.0, v{224+i}")
    for i in range(8): Q.e(f"v_rcp_f32 v{224+i}, v{224+i}")
    for i in range(8): Q.e(f"v_mul_f32 v{a+i}, v{a+i}, v{224+i}")
    rnd8(Q, a, 224)
def fetch(P, cfg, r, dst, voff, between):
    e = P.e
    e(f"s_lshl_b32 s84, {sSUB}, 7"); e(f"s_mov_b32 {sT1}, 0"); e(f"s_mov_b32 {sTRIP}, {SPIN}")
    if cfg.hack & 64: stamp(P, cfg, 1, True)
    def onepass(nm):
        e(f"buffer_load_dword v253, v252, {SF}, s84 offen offset:{512*r} sc1"); e("s_waitcnt vmcnt(0)")
        e("v_cmp_le_u32 vcc, 1, v253")
        if cfg.fmode & 2: e("s_cmp_eq_u32 vcc_lo, -1"); e("s_cselect_b32 vcc_lo, -1, 0")
        e(f"s_andn2_b32 {sT2}, vcc_lo, {sT1}"); e(f"s_or_b32 {sT1}, {sT1}, vcc_lo")
        for h in range(16):
            e(f"s_bitcmp1_b32 {sT2}, {h}"); e(f"s_cbranch_scc0 {nm}_{h}")
            e(f"s_mov_b32 {sT3}, {h*1024 + r*4*STG}")
            e(f"buffer_load_dwordx4 {vr(dst+4*h,4)}, {voff}, {SR}, {sT3} offen sc1", tag='touch')
            if r == 0 and nm.startswith("L_fa") and h < cfg.pn: e(f"s_waitcnt vmcnt({cfg.pl})")
            e(f"{nm}_{h}:")
    onepass(f"L_fa{r}")
    if cfg.hack & 64: stamp(P, cfg, 2, True)
    between()
    e(f"s_cmp_eq_u32 {sT1}, -1"); e(f"s_cbranch_scc1 L_fd{r}")
    e(f"L_fl{r}:")
    onepass(f"L_fb{r}")
    e(f"s_cmp_eq_u32 {sT1}, -1"); e(f"s_cbranch_scc1 L_fd{r}")
    e(f"s_sleep {cfg.slp}")
    e(f"s_sub_u32 {sTRIP}, {sTRIP}, 1"); e(f"s_cbranch_scc0 L_fl{r}")
    e(f"L_fd{r}:")
    if cfg.hack & 64: stamp(P, cfg, 3, True)
def fin(P, cfg, r, src, xr):
    e = P.e; a = 208
    for d in range(4): e(f"v_lshlrev_b32 v{232+2*d}, 16, v{xr+d}"); e(f"v_and_b32 v{233+2*d}, {sHI}, v{xr+d}")
    e("s_waitcnt vmcnt(0)")
    if cfg.hack & 64: stamp(P, cfg, 4, True)
    msum(P, a, src)
    rnd8(P, a, 224)
    for i in range(8): e(f"v_mul_f32 v{a+i}, v{a+i}, v{200+i}")
    rnd8(P, a, 224)
    for i in range(8): e(f"v_add_f32 v{a+i}, v{a+i}, v{232+i}")
    for d in range(4): e(f"v_cvt_pk_bf16_f32 v{240+d}, v{a+2*d}, v{a+2*d+1}")
    e(f"buffer_store_dwordx4 v[240:243], v251, {SO}, s86 offen offset:{r*512}" + ["", " sc1", " nt", " sc0 sc1"][cfg.oflag])

def gen_compute(P, cfg, FC):
    e = P.e
    m0 = P.mark()
    gen_qproj(P, cfg, False, FC)
    stamp(P, cfg, 3)
    order = [f for kk in range(8) for f in (kk, 8 + kk)]
    items = [dict(mf=[((SA[0] if f < 8 else SB) + 4 * qt, 128 + ((f & 7) * 2 + qt) * 4, '0' if (f & 7) == 0 else None) for qt in range(2)],
                  reads=[("ds_read_b128", "v248", k_imm(f), 0, 4)]) for f in order]
    def start():
        for t in range(4): e(f"v_mov_b64 {vr(104+2*t,2)}, 0")
        for t in qfin(0) + qfin(1): e(t)
    def gap0(i, k):
        if i < 6:
            for t in qfin(i + 2): e(t)
            if i == 2: e("s_barrier")
            if i >= 2:
                for z in (2 * (i - 2), 2 * (i - 2) + 1): e(f"ds_read_b128 {vr(160+4*z,4)}, v254 offset:{z*1024}")
    stream(P, items, BUFS[:6], 6, gap0, group=2, start=start)
    if not cfg.ltd: e("s_waitcnt vmcnt(0)")
    for f in range(LEAD): k_read(P, f, 1)
    e(f"s_cmp_lg_u32 {sMODE}, 0"); e("s_cbranch_scc1 L_havem")
    mm = P.mark()
    for q in range(2):
        a, b, m = SA[0] + 4 * q, SB + 4 * q, NEGM + 4 * q
        e(f"v_max3_f32 v{m}, v{a}, v{a+1}, v{a+2}"); e(f"v_max3_f32 v{m}, v{m}, v{a+3}, v{b}"); e(f"v_max3_f32 v{m}, v{m}, v{b+1}, v{b+2}"); e(f"v_max_f32 v{m}, v{m}, v{b+3}")
    xgroup(P, "v_max_f32", f"v{NEGM}", f"v{NEGM+1}"); xgroup(P, "v_max_f32", f"v{NEGM+4}", f"v{NEGM+5}")
    for q in range(2):
        m = NEGM + 4 * q
        for i in (1, 2, 3, 0): e(f"v_sub_f32 v{m+i}, {f2u(-float(cfg.toff)) if cfg.toff else 0:#x}, v{m}")
    minit = P.since(mm)
    e("L_havem:")
    for q in range(2):
        for i in range(4):
            e(f"v_add_f32 v{SA[0]+4*q+i}, v{SA[0]+4*q+i}, v{NEGM+4*q}"); e(f"v_add_f32 v{SB+4*q+i}, v{SB+4*q+i}, v{NEGM+4*q}")
    e(f"v_mov_b32 v{LR[0]}, 0"); e(f"v_mov_b32 v{LR[1]}, 0")
    for g in range(18, 64):
        for t in PLACE[g]: e(sm_text(t, SA[0]))
    e(f"s_mov_b32 {sTRIP}, 15")
    if cfg.obias:
        for i in range(128): e(f"v_mov_b32 v{i}, {f2u(2.0 ** (cfg.obias - cfg.toff)):#x}")
    if cfg.x & 32:
        e("v_mbcnt_lo_u32_b32 v220, -1, 0"); e("v_mbcnt_hi_u32_b32 v220, -1, v220"); e("v_and_b32 v220, 15, v220"); e("v_mov_b32 v221, 0x3f803f80")
        e(f"v_cmp_gt_u32 vcc, {16 if cfg.x & 64 else 1}, v220")
        for i in range(4): e(f"v_cndmask_b32 v{216+i}, 0, v221, vcc")
        for i in range(4): e(f"v_mov_b32 v{220+i}, 0")
    stamp(P, cfg, 4)
    e("s_waitcnt lgkmcnt(0)")
    if cfg.vbit >= 0: e(f"s_bitcmp1_b32 {sSUB}, {cfg.vbit}"); e("s_cbranch_scc1 L_itb0")
    e("s_branch L_it0")
    pro = P.since(m0)
    itb = {}
    if cfg.vbit >= 0:
        e(".p2align 6")
        e("L_loopb:")
        for j in (3, 0, 1, 2):
            if j == 0: e("L_itb0:")
            m = P.mark(); gen_iter(P, j, ctl=(j == 2), bar=cfg.barb, lab='L_loopb'); itb[j] = P.since(m)
        e("s_branch L_tail")
    e(".p2align 6")
    e("L_loop:")
    its = {}
    for j in (3, 0, 1, 2):
        if j == 0: e("L_it0:")
        m = P.mark(); gen_iter(P, j, ctl=(j == 2), bar=cfg.bara); its[j] = P.since(m)
    m1 = P.mark()
    e('L_tail:')
    stamp(P, cfg, 5)
    cur = SA[1]
    e("s_barrier")
    for f in range(16, 16 + LEAD): v_read(P, f, 3)
    for g in range(64, 82):
        for t in PLACE[g]: e(sm_text(t, cur))
    post_ops = []
    Q = Prog()
    xgroup(Q, "v_add_f32", f"v{LR[0]}", "v208"); xgroup(Q, "v_add_f32", f"v{LR[1]}", "v209")
    Q.e(f"v_max_f32 v208, v{LR[0]}, v{LR[1]}"); Q.e(f"v_add_f32 v209, v{LR[0]}, v{LR[1]}")
    Q.e(f"v_rcp_f32 v{LR[0]}, v{LR[0]}"); Q.e(f"v_rcp_f32 v{LR[1]}, v{LR[1]}")
    Q.e("v_mbcnt_lo_u32_b32 v210, -1, 0"); Q.e("v_mbcnt_hi_u32_b32 v210, -1, v210")
    Q.e("v_lshrrev_b32 v211, 4, v210"); Q.e("v_bfe_u32 v212, v210, 2, 2"); Q.e("v_and_b32 v213, 3, v210")
    Q.e("v_lshrrev_b32 v212, 2, v210"); Q.e("v_lshlrev_b32 v192, 7, v212"); Q.e("v_lshl_add_u32 v192, v213, 3, v192")
    Q.e("v_bfe_u32 v212, v210, 3, 2"); Q.e("v_lshl_add_u32 v192, v212, 5, v192")
    for ee in (1, 2, 3): Q.e(f"v_xor_b32 v{192+ee}, {32*ee}, v192")
    for ee in range(4): Q.e(f"v_add_u32 v{196+ee}, {6*SLOT}, v{192+ee}")
    Q.e("v_lshlrev_b32 v248, 4, v210")
    Q.e(f"v_mov_b32 v214, {FLAG}"); Q.e("v_mov_b32 v215, 1")
    rest = Q.L
    for g in range(32, 64):
        f, qt = g >> 1, g & 1
        extra = set()
        for z in WAITS.get(g, []):
            if 16 <= z < 32: extra |= regs_of(vr(fbuf(z), 4))
        a = oacc(f - 16, qt)
        e(f"{MF} {vr(a,4)}, {vr(fbuf(f),4)}, {vr(cur+4*qt,4)}, {vr(a,4)}", extra_rd=extra)
        if qt == 1 and f + LEAD < 32: v_read(P, f + LEAD, 3)
        else:
            for _ in range(2):
                if rest: P.L.append(rest.pop(0))
    P.L.extend(rest)
    e(f"v_cmp_ngt_f32 vcc, {f2u(cfg.thr):#x}, v209")
    e("s_cbranch_vccz L_noflag")
    e("ds_write_b32 v214, v215")
    e("s_waitcnt lgkmcnt(0)")
    e("L_noflag:")
    e("s_barrier")
    e("ds_read_b32 v215, v214")
    def onorm(g):
        return [f"v_mul_f32 v{8*g+i}, v{8*g+i}, v{LR[g & 1]}" for i in range(8)] + [f"v_cvt_pk_bf16_f32 v{4*g+i}, v{8*g+2*i}, v{8*g+2*i+1}" for i in range(4)]
    items = []
    F = Filler(P)
    def ehook(t):
        def h():
            if cfg.hack & 32 and t % 2 == 0: e(f"s_memtime s[{48+t}:{49+t}]")
            if t in (2, 3, 4, 5, 6, cfg.lastb): e("s_barrier")
        return h
    def acc_o(s, ee, qt): return (64 if s & 1 else 128) + ((ee >> 1) * 2 + qt) * 8 + (ee & 1) * 4
    for t in range(14):
        sl = WO_SLOT[t]; so = (sl % 3) * SLOT; s, hf = t >> 1, t & 1
        for k4 in range(4):
            for ee in range(4):
                base = f"v{[192, 200, 196][sl // 3] + ee}"
                imm = so + k4 * 4096; kk = 4 * hf + k4
                items.append(dict(mf=[(acc_o(s, ee, qt), (kk * 2 + qt) * 4, '0' if kk == 0 else None) for qt in range(2)],
                                  reads=tr_reads(base, imm, imm + 2048),
                                  hook=ehook(t) if (t > 0 and k4 == 0 and ee == 0) else None))
    def cv(s, u, hf):
        o = 160 + 16 * (s & 1) + 4 * u + 2 * hf; a = acc_o(s, 0, 0) + 8 * u + 4 * hf
        F.add(f"v_cvt_pk_bf16_f32 v{o}, v{a}, v{a+1}", f"v_cvt_pk_bf16_f32 v{o+1}, v{a+2}, v{a+3}")
    def sto(s, u):
        o = 160 + 16 * (s & 1) + 4 * u
        F.add(f"s_mov_b32 {sT0}, {s*STG + u*16384}", f"buffer_store_dwordx4 {vr(o,4)}, v248, {SP}, {sT0} offen sc1", tag=('S', s))
    def publish(r):
        F.add((('S', r),), "s_mov_b64 exec, 1", f"global_store_dword v249, v254, s[100:101] offset:{128*r} sc1", "s_mov_b64 exec, -1", tag='fl')
    nrm = [t for g in range(2, 16) for t in onorm(g)]
    def start():
        for ee in range(4): e(f"v_add_u32 v{200+ee}, {3*SLOT}, v{192+ee}")
        e("v_mov_b32 v249, 0"); e("v_mov_b32 v254, 1"); e("v_add_u32 v204, s85, v248"); e("v_add_u32 v205, s90, v248")
        for t in onorm(0) + onorm(1): e(t)
        e("v_readfirstlane_b32 s7, v215")
        e(f"s_andn2_b32 s7, s7, {sMODE}"); e("s_cbranch_scc1 L_maxpass")
        stamp(P, cfg, 6)
        if cfg.hack & 32: stamp(P, cfg, 1)
        if cfg.hack & 64: stamp(P, cfg, 12, True)
    def gap(i, k):
        s, r = divmod(i, 32)
        if k: return
        for _ in range(6):
            if nrm: e(nrm.pop(0))
        if s >= 1:
            u, z = divmod(r, cfg.ssp)
            if u < 4:
                if z == 0: cv(s - 1, u, 0)
                if z == 1: cv(s - 1, u, 1)
                if z == 2: sto(s - 1, u)
        if s >= 2 and r == cfg.pubr and not cfg.fmode & 1: publish(s - 2)
        if i == cfg.xat: e('s_barrier')
        F.flush()
    stream(P, items, [216 + 4 * i for i in range(8)], 7, gap, group=4, start=start)
    if cfg.hack & 32: e('s_memtime s[62:63]'); e('s_waitcnt lgkmcnt(0)'); dump_stamps(P); e('s_endpgm')
    st = (lambda i: None) if cfg.hack & 16 else (lambda i: stamp(P, cfg, i, bool(cfg.hack & 64)))
    st(13)
    for u in range(4): cv(6, u, 0); cv(6, u, 1); sto(6, u)
    F.flush()
    if cfg.xat >= 224: e("s_barrier")
    st(14)
    e(f"s_cmp_eq_u32 {sSUB}, 3"); e("s_cbranch_scc1 L_cs1")
    for k, r0 in enumerate((192, 196, 244, 250)): e(f"ds_read_b128 {vr(r0,4)}, v205 offset:{k*1024}")
    for h in range(16): e(f"ds_read_b128 {vr(64+4*h,4)}, v204 offset:{h*1024}")
    e("L_cs1:")
    if not cfg.fmode & 1: publish(5); F.flush()
    e("s_cbranch_scc1 L_cs2")
    msum(P, 200, 64)
    e("L_cs2:")
    st(15)
    if cfg.fmode & 1:
        e("v_lshlrev_b32 v249, 3, v248"); P.waitvm(('S', 6))
        e("s_mov_b64 exec, 0x7f"); e("global_store_dword v249, v254, s[100:101] sc1"); e("s_mov_b64 exec, -1")
    else: publish(6); F.flush()
    if cfg.hack & 64: stamp(P, cfg, 9, True)
    e(f"s_cmp_eq_u32 {sSUB}, 3"); e("s_cbranch_scc1 L_cdone")
    cslow = []
    fetch(P, cfg, 1, 0, "v248", lambda: silu8(P, 200))
    fin(P, cfg, 1, 0, 244)
    e("L_cdone:")
    if cfg.stamps:
        stamp(P, cfg, 7); e("s_waitcnt vmcnt(0)"); stamp(P, cfg, 8); stamp(P, cfg, 11, True); dump_stamps(P)
    e("s_endpgm")
    post = [x for x in P.since(m1) if not any(x is y for y in cslow)]
    m2 = P.mark()
    e("L_maxpass:")
    e("s_waitcnt vmcnt(0) lgkmcnt(0)")
    e("v_and_b32 v0, 15, v210"); e("v_lshlrev_b32 v0, 9, v0"); e("v_and_b32 v1, 1, v211"); e("v_lshl_add_u32 v0, v1, 5, v0")
    e("v_lshrrev_b32 v1, 1, v211"); e("v_lshl_add_u32 v0, v1, 4, v0")
    e(f"v_mov_b32 v{NEGM}, 0xff800000"); e(f"v_mov_b32 v{NEGM+4}, 0xff800000")
    e(f"s_mov_b32 {sT0}, 0")
    e("L_mp_loop:")
    for kk in range(8): e(f"buffer_load_dwordx4 {vr(16+4*kk,4)}, v0, {SK}, {sT0} offen offset:{kk*64}")
    e("s_waitcnt vmcnt(0)")
    for kk in range(8):
        for qt in range(2): e(f"{MF} {vr(8+4*qt,4)}, {vr(16+4*kk,4)}, {vr(128+(kk*2+qt)*4,4)}, {'0' if kk == 0 else vr(8+4*qt,4)}")
    e("s_nop 15")
    for qt in range(2):
        m = NEGM + 4 * qt; a = 8 + 4 * qt
        e(f"v_max3_f32 v{m}, v{m}, v{a}, v{a+1}"); e(f"v_max3_f32 v{m}, v{m}, v{a+2}, v{a+3}")
    e(f"s_add_u32 {sT0}, {sT0}, 8192"); e(f"s_cmp_lt_u32 {sT0}, {1<<20}"); e("s_cbranch_scc1 L_mp_loop")
    xgroup(P, "v_max_f32", f"v{NEGM}", f"v{NEGM+1}"); xgroup(P, "v_max_f32", f"v{NEGM+4}", f"v{NEGM+5}")
    for q in range(2):
        m = NEGM + 4 * q
        for i in (1, 2, 3, 0): e(f"v_sub_f32 v{m+i}, {f2u(-float(cfg.toff)) if cfg.toff else 0:#x}, v{m}")
    e("L_again:")
    e("s_waitcnt vmcnt(0) lgkmcnt(0)")
    e("v_mbcnt_lo_u32_b32 v0, -1, 0"); e("v_mbcnt_hi_u32_b32 v0, -1, v0"); e(f"s_lshl_b32 s7, {sWV}, 6"); e("v_add_u32 v0, s7, v0")
    e(f"s_mov_b32 {sMODE}, 1"); e("s_setprio 0")
    e("s_barrier")
    e("s_branch L_restart")
    mp = P.since(m2)
    body = its[0] + its[1] + its[2] + its[3]
    trace = pro + body * 2 + its[0] + its[1] + its[2] + post
    skip = set(id(x) for x in minit)
    trace2 = [x for x in pro if id(x) not in skip] + body
    extra = []
    if itb:
        bb = itb[0] + itb[1] + itb[2] + itb[3]
        extra = [pro + bb * 2 + itb[0] + itb[1] + itb[2] + post]
    return [trace, trace2] + extra, [mp, cslow]

def poll(P, name, load, cmp, pre_issued=False):
    e = P.e
    if not pre_issued: e(load)
    e(cmp); e("s_cmp_eq_u64 vcc, -1"); e(f"s_cbranch_scc1 {name}_ok")
    m = P.mark()
    e(f"s_mov_b32 s7, {SPIN}")
    e(f"{name}_lp:")
    e(f"s_sleep {CFG.slp}")
    e(load, tag='opt'); e("s_waitcnt vmcnt(0)")
    e(cmp); e("s_cmp_eq_u64 vcc, -1"); e(f"s_cbranch_scc1 {name}_ok")
    e("s_sub_u32 s7, s7, 1"); e(f"s_cbranch_scc0 {name}_lp")
    slow = P.since(m)
    e(f"{name}_ok:")
    return slow

def rnd8(P, r, t):
    for d in range(4): P.e(f"v_cvt_pk_bf16_f32 v{t+d}, v{r+2*d}, v{r+2*d+1}")
    for d in range(4): P.e(f"v_lshlrev_b32 v{r+2*d}, 16, v{t+d}"); P.e(f"v_and_b32 v{r+2*d+1}, {sHI}, v{t+d}")

def gen_helper(P, cfg, FH):
    e = P.e
    m0 = P.mark()
    e("L_helper:")
    e(f"s_setprio {cfg.qprio}")
    F = gen_qproj(P, cfg, True, FH)
    dma_kv(F, 'V', 1, 5); dma_kv(F, 'K', 3, 3); dma_kv(F, 'V', 2, 6); F.flush()
    e(f"s_mov_b32 s73, {f2u(-LOG2E):#x}")
    lo, hi = cfg.plo, cfg.phi
    if lo != 2: e(f"s_setprio {lo}")
    P.waitvm(('V', 0), ('K', 2))
    e("s_barrier")
    GU0 = 3; ACT0 = GU0 + 28; NACT = cfg.nact; DN0 = ACT0 + NACT
    GPUB = [DN0 + cfg.gb0, DN0 + cfg.gb1]; GPOLL = [DN0 + 12 + cfg.gp, DN0 + 21 + min(cfg.gp, 1)]; GSRC = [112, 0]; GSET = DN0 + 2; GSET2 = DN0 + 15
    slows = []
    ntr = [cfg.ktr]
    def acc_g(m, ee, mat, qt): return 112 + 32 * (m & 1) + (ee * 2 + qt) * 8 + mat * 4
    def act(m):
        L = []
        for ee in range(2):
            regs = [acc_g(m, ee, 0, qt) + i for qt in range(2) for i in range(4)]
            for r in regs: L.append(f"v_mul_f32 v{r}, s73, v{r}")
            for r in regs: L.append(f"v_exp_f32 v{r}, v{r}")
            for r in regs: L.append(f"v_add_f32 v{r}, 1.0, v{r}")
            for r in regs: L.append(f"v_rcp_f32 v{r}, v{r}")
            for r in regs: L.append(f"v_mul_f32 v{r}, v{r}, v{r+4}")
            for qt in range(2):
                a = acc_g(m, ee, 0, qt); d = 208 + (m * 2 + qt) * 4 + ee * 2
                L.append(f"v_cvt_pk_bf16_f32 v{d}, v{a}, v{a+1}"); L.append(f"v_cvt_pk_bf16_f32 v{d+1}, v{a+2}, v{a+3}")
        return L
    def split(L, n):
        cost = [2 if t.startswith(('v_exp', 'v_rcp')) else 1 for t in L]; tot = sum(cost); parts = [[] for _ in range(n)]; acc = 0
        for t, c in zip(L, cost):
            parts[min(n - 1, acc * n // tot)].append(t); acc += c
        return parts
    def acc_d(nt, ee, qt): return 48 + 16 * (nt & 1) + (qt * 2 + ee) * 4
    def out_cv(nt):
        o = 80 + 8 * (nt & 1)
        return [f"v_cvt_pk_bf16_f32 v{o+4*qt+i}, v{acc_d(nt, 0, qt)+2*i}, v{acc_d(nt, 0, qt)+2*i+1}" for qt in range(2) for i in range(4)]
    def out_st(nt):
        o = 80 + 8 * (nt & 1)
        e(f"s_mov_b32 {sT3}, {(nt>>1)*STG + (nt&1)*32768}"); e(f"buffer_store_dwordx4 {vr(o,4)}, v249, {SP}, {sT3} offen sc1", tag=('st', nt // 8))
        e(f"s_addk_i32 {sT3}, 16384"); e(f"buffer_store_dwordx4 {vr(o+4,4)}, v249, {SP}, {sT3} offen sc1", tag=('st', nt // 8))
    def chunk_mf(c, i):
        b, ee = i >> 1, i & 1
        if c < 28:
            m, s = divmod(c, 7); T = 2 * s + (b >> 1)
            return [(acc_g(m, ee, b & 1, qt), (2 * T + qt) * 4, T == 0) for qt in range(2)]
        return [(acc_d(c - 28, ee, qt), 208 + (b * 2 + qt) * 4, b == 0) for qt in range(2)]
    def rd(c, i):
        imm = (c % 3) * GLUS + (i >> 1) * 2048
        e(f"{TR} {vr(176+4*i,2)}, v{246+(i&1)} offset:{imm}"); e(f"{TR} {vr(178+4*i,2)}, v{246+(i&1)} offset:{imm+1024}")
    small_only = []; big_only = []
    def burst(c, nxt, fill, skip_from=8):
        fill = list(fill)
        if hi != lo: e(f"s_setprio {hi}")
        for i in range(8):
            if i == skip_from:
                for t in fill: e(t)
                fill = []
                e("s_cmp_lg_u32 s99, 0"); e(f"s_cbranch_scc1 L_bs{c}"); mk = P.mark()
            for k, (acc, bb, z) in enumerate(chunk_mf(c, i)[::-1] if (cfg.snake & 4 and i & 1) else chunk_mf(c, i)):
                e(f"{MF} {vr(acc,4)}, {vr(176+4*i,4)}, {vr(bb,4)}, {'0' if z else vr(acc,4)}")
                if k == 0:
                    room = 2
                    while fill and room > 0:
                        cst = 2 if fill[0].startswith(('v_exp', 'v_rcp')) else 1
                        if cst > room: break
                        e(fill.pop(0)); room -= cst
            if nxt is not None: rd(nxt, i)
        if skip_from < 8:
            big_only.extend(P.since(mk)); e(f"L_bs{c}:")
        if hi != lo: e(f"s_setprio {lo}")
        for t in fill: e(t)
    for j in range(64):
        if j in (3, ACT0, DN0, DN0 + 14, 62): stamp(P, cfg, {3: 4, ACT0: 5, DN0: 6, DN0 + 14: 7, 62: 8}[j])
        if j in (3, ACT0) and not cfg.hack & 16: stamp(P, cfg, {3: 1, ACT0: 2}[j], True)
        if j == GSET + 1: e("global_load_dword v253, v252, s[68:69] sc1")
        if j in GPOLL: e(f"buffer_load_dword v253, v252, {SF}, s84 offen offset:{128*GPOLL.index(j)} sc1")
        if j + 4 < 64 and not cfg.x & 1: dma_kv(F, 'K', j + 4, j & 3)
        if j == 21: F.add('s_cmp_lg_u32 s99, 0', f's_cselect_b32 s{srd(5)+2}, 0, s{srd(5)+2}')
        if j < 28: dma_gu(F, j)
        if 0 <= j + 3 - DN0 < 14: dma_wd(F, 28 + j + 3 - DN0, j + 3 - DN0)
        if j + 3 < 64 and not (cfg.x & 1 and j): dma_kv(F, 'V', j + 3, 4 + ((j + 3) & 3))
        for nt in {59: [0], 60: [1], 61: [2, 3], 62: [4, 5], 63: [6, 7]}.get(j, []): dma_wo(F, nt, WO_SLOT[nt])
        if cfg.touch:
            if cfg.ltouch and j % cfg.tper == 0 and ntr[0] < min(16, j // 4 + cfg.klead + 1):
                ntr[0] += 1
                F.add(f"s_add_u32 {sT3}, s89, {(ntr[0]-1)*65536}", f"buffer_load_dword v244, v243, {ST}, {sT3} offen", tag='touch')
            if j == 10:
                F.add(f"s_mul_i32 {sT3}, {sSH}, 7168", f"s_add_u32 {sT3}, {sT3}, s88", f"s_lshl_b32 {sT3}, {sT3}, {cfg.hx-1}", f"buffer_load_dword v244, v243, {SWD}, {sT3} offen", tag='touch')
            if j in (cfg.wot, cfg.wot + 2, cfg.wot2, cfg.wot2 + 2):
                F.add(f"s_mul_i32 {sT3}, {sSH}, 14336", f"s_add_u32 {sT3}, {sT3}, s88", f"s_add_u32 {sT3}, {sT3}, {0 if j in (cfg.wot, cfg.wot2) else 8192}", f"s_lshl_b32 {sT3}, {sT3}, {cfg.hx-1}", f"buffer_load_dword v244, v243, {SWO}, {sT3} offen", tag='touch')
        if j == GU0 - 1:
            for i in range(8): rd(0, i)
        if GU0 <= j < ACT0:
            c = j - GU0; m, s = divmod(c, 7)
            fill = split(act(m - 1), 7)[s] if m else []
            if m == 3:
                e("s_cmp_lg_u32 s99, 0"); e(f"s_cbranch_scc0 L_bg{c}")
                mk = P.mark()
                for t in fill: e(t)
                e(f"s_branch L_be{c}")
                small_only.extend(P.since(mk))
                e(f"L_bg{c}:"); mk = P.mark()
            burst(c, c + 1 if c < 27 else None, fill)
            if m == 3: big_only.extend(P.since(mk)); e(f"L_be{c}:")
        if DN0 <= j < DN0 + 14:
            nt = j - DN0
            burst(28 + nt, 29 + nt if nt < 13 else None, out_cv(nt - 1) if nt else [], skip_from=6)
        if j == DN0 + 14:
            for t in out_cv(13): e(t)
        if ACT0 <= j < DN0:
            F.flush()
            e("s_cmp_lg_u32 s99, 0"); e(f"s_cbranch_scc1 L_as{j}"); mk = P.mark()
            for t in split(act(3), NACT)[j - ACT0]: e(t)
            big_only.extend(P.since(mk)); e(f"L_as{j}:")
            if j == DN0 - 1:
                for i in range(8): rd(28, i)
        if j == GSET:
            for t in final_salu(): e(t)
            e(f"s_lshl_b32 s7, {sQB}, 4"); e("v_mov_b32 v252, s7")
        if j == GSET2:
            F.emit(4)
            e("v_and_b32 v176, 15, v255"); e("v_lshrrev_b32 v177, 4, v255")
            e("v_mul_u32_u24 v251, 896, v176"); e("v_lshl_add_u32 v251, v177, 4, v251")
            e("v_lshrrev_b32 v178, 3, v255"); e("v_lshlrev_b32 v179, 1, v177"); e("v_and_b32 v180, 7, v255"); e("v_xor_b32 v179, v179, v180")
            e("v_mul_u32_u24 v248, 896, v178"); e("v_lshl_add_u32 v248, v179, 4, v248")
            e("v_bfe_u32 v178, v176, 2, 1"); e("v_lshlrev_b32 v178, 3, v178")
            e("v_lshrrev_b32 v179, 3, v176"); e("v_lshl_add_u32 v178, v179, 1, v178")
            e("v_bfe_u32 v179, v176, 1, 1"); e("v_add_u32 v178, v178, v179")
            e("v_lshlrev_b32 v179, 2, v177"); e("v_sub_u32 v178, v178, v179")
            e("v_and_b32 v179, 1, v176"); e("v_lshlrev_b32 v179, 4, v179"); e("v_mov_b32 v180, 0x3f80"); e("v_lshlrev_b32 v179, v179, v180")
            for ee in range(2):
                for i in range(4):
                    e(f"v_cmp_eq_u32 vcc, {i - 4 * ee}, v178"); e(f"v_cndmask_b32 v{192+4*ee+i}, 0, v179, vcc")
        F.flush()
        if DN0 + 1 <= j <= DN0 + 14: out_st(j - DN0 - 1)
        if j == GSET2 + 2:
            for r in range(2): e(f"buffer_load_dwordx4 {vr(216+4*r,4)}, v251, {SX}, s86 offen offset:{r*512}")
            if cfg.otouch: e(f"buffer_load_dword v244, off, {SO}, s86", tag='touch')
        if j in GPUB:
            r = GPUB.index(j)
            e("v_mov_b32 v96, 0"); e(f"v_mov_b32 v97, 1"); P.waitvm(('st', r))
            e("s_mov_b64 exec, 1"); e(f"global_store_dword v96, v97, s[100:101] offset:{128*r} sc1", tag='fl'); e("s_mov_b64 exec, -1")
        if j == GSET + 1:
            slows.append(poll(P, "L_pa", "global_load_dword v253, v252, s[68:69] sc1", "v_cmp_le_u32 vcc, 16, v253", True))
            e("v_and_b32 v252, 15, v255"); e("v_lshlrev_b32 v252, 2, v252")
        if j in GPOLL:
            r = GPOLL.index(j)
            slows.append(poll(P, f"L_pg{r}", f"buffer_load_dword v253, v252, {SF}, s84 offen offset:{128*r} sc1", "v_cmp_le_u32 vcc, 1, v253", True))
        for r in range(2):
            k = j - GPOLL[r] - 1
            if 0 <= k < 8:
                for h in (2 * k, 2 * k + 1):
                    e(f"s_mov_b32 {sT3}, {GP_OFF + h*1024 + r*4*STG}")
                    e(f"buffer_load_dwordx4 {vr(GSRC[r]+4*h,4)}, v249, {SR}, {sT3} offen sc1")
        if j == cfg.pe: stamp(P, cfg, 13)
        if j < 63:
            need = [('K', j + 3), ('V', j + 1), ('G', j - 1)]
            if 0 <= j + 2 - DN0 < 14: need.append(('G', 28 + j + 2 - DN0))
        else:
            need = [('WO', 0), ('WO', 1)]
            e(f"v_mov_b32 v176, {FLAG}")
        P.waitvm(*need)
        if GU0 - 1 <= j < DN0 + 13: e("s_waitcnt lgkmcnt(0)")
        if j == cfg.pe: stamp(P, cfg, 14)
        e("s_barrier")
        if j == cfg.pe - 1: stamp(P, cfg, 9)
        if j == cfg.pe: stamp(P, cfg, 15)
    e("ds_read_b32 v177, v176")
    for k in range(6):
        if cfg.hack & 32 and k >= 2: stamp(P, cfg, 1 + 3 * (k - 2))
        dma_wo(F, 8 + k, WO_SLOT[8 + k]); F.flush()
        if cfg.hack & 32 and k >= 2: stamp(P, cfg, 2 + 3 * (k - 2))
        if k == 0:
            e("v_readfirstlane_b32 s7, v177")
            e(f"s_andn2_b32 s7, s7, {sMODE}"); e("s_cbranch_scc1 L_again")
        P.waitvm(*[('WO', t) for t in ([k + 2] if k < 4 else range(6, cfg.lastb) if k == 4 else range(cfg.lastb, 14))])
        if cfg.hack & 32 and k >= 2: stamp(P, cfg, 3 + 3 * (k - 2))
        e("s_barrier")
    if cfg.hack & 32: stamp(P, cfg, 13); dump_stamps(P); e("s_endpgm")
    e(f"s_setprio {cfg.pep}")
    if cfg.hack & 4: e("s_branch L_hdone")
    e(f"s_cmp_eq_u32 {sSUB}, 3"); e("s_cbranch_scc1 L_hskip")
    for t in xch_salu(): e(t)
    e("v_add_u32 v176, s85, v249"); e("v_add_u32 v177, s90, v249"); e("v_mov_b32 v250, v249")
    for h in range(16): e(f"ds_write_b128 v176, {vr(4*h,4)} offset:{h*1024}")
    for k, r0 in enumerate((192, 196, 220, 250)): e(f"ds_write_b128 v177, {vr(r0,4)} offset:{k*1024}")
    e("L_hskip:")
    e("s_waitcnt vmcnt(0) lgkmcnt(0)")
    e("s_barrier")
    fetch(P, cfg, 0, 0, "v249", lambda: (msum(P, 200, 112), silu8(P, 200)))
    fin(P, cfg, 0, 0, 216)
    e("L_hdone:")
    if cfg.stamps:
        e("s_waitcnt vmcnt(0)"); stamp(P, cfg, 11, True); dump_stamps(P)
    e("s_endpgm")
    sk = set(id(x) for s in slows for x in s)
    allh = [x for x in P.since(m0) if id(x) not in sk]
    so = set(map(id, small_only)); bo = set(map(id, big_only))
    return [[x for x in allh if id(x) not in so], [x for x in allh if id(x) not in bo]], slows

def kd(name, vgpr, ydim=False):
    return "\n".join([f".amdhsa_kernel {name}", f"  .amdhsa_next_free_vgpr {vgpr}", "  .amdhsa_next_free_sgpr 102",
        f"  .amdhsa_accum_offset {vgpr}", "  .amdhsa_group_segment_fixed_size 0", "  .amdhsa_kernarg_size 96",
        "  .amdhsa_user_sgpr_count 2", "  .amdhsa_user_sgpr_kernarg_segment_ptr 1", "  .amdhsa_system_sgpr_workgroup_id_x 1"]
        + (["  .amdhsa_system_sgpr_workgroup_id_y 1"] if ydim else []) + [".end_amdhsa_kernel"])

HEADER = """
; waves 4-7 stream K/V/weights into LDS (LDS-DMA rings) and run this workgroup's slice of the GLU branch.
; Per-head partial results go through d_ws (write-through stores, per-wave flags reset at start, arrival count in d_debug)
"""
def generate(cfg=None):
    cfg = cfg or Cfg()
    global FIXED, WAITS, PLACE, CFG
    CFG = cfg
    FIXED, WAITS, PLACE = sched.plan(wait_group=cfg.wg)
    P = Prog()
    K1 = NAME + "_kernel"
    P.e(".p2align 8"); P.e(f"{K1}:")
    m = P.mark(); gen_entry(P, cfg); entry = P.since(m)
    m = P.mark(); FC = gen_setup(P, cfg, False); P.e("s_branch L_ln"); cs = P.since(m)
    P.e("L_hs:")
    m = P.mark(); FH = gen_setup(P, cfg, True); hs = P.since(m)
    P.e("L_ln:")
    m = P.mark(); gen_ln(P, cfg); ln = P.since(m)
    ctraces, other = gen_compute(P, cfg, FC)
    htrace, hother = gen_helper(P, cfg, FH)
    ctraces = [cs + ln + t for t in ctraces]; htrace = [hs + ln + t for t in htrace]
    P.e("L_end:"); P.e("s_endpgm")
    P.e("L_code_end:")
    full = [entry + t for t in ctraces] + [entry + t for t in htrace]
    resolve(full + [[x for x in t if x.tag != 'opt'] for t in full] + other + hother)
    nb = lambda t: sum(1 for x in t if x.kind != 'none' and x.op == 's_barrier')
    print("barriers compute", nb(ctraces[0]) + 13 * 4, "helper", nb(htrace[0]), nb(htrace[1]))
    if cfg.hack & 2:
        for I in P.L:
            if I.text.startswith("buffer_store_dwordx4"): I.text = I.text.replace(" sc1", "")
    if cfg.hack & 8:
        for I in P.L:
            if I.text.startswith("buffer_store_dwordx4"): I.text = I.text.replace(" sc1", " sc0 sc1")
    if cfg.dflag:
        fl = {1: "nt", 2: "sc1", 3: "sc0", 4: "sc0 sc1", 5: "sc0 nt", 6: "sc1 nt"}[cfg.dflag]
        for I in P.L:
            if I.text.endswith(" lds") and I.tag and I.tag[0] in ('K', 'V', 'G', 'WQ', 'WO'): I.text = I.text[:-4] + f" {fl} lds"
    out = expand(P.L)
    mis = align8(out) if cfg.al else -1
    head = HEADER.strip().splitlines() + [f"; @launch grid=(256,1,1) block=(512,1,1) lds={LDS_BYTES}",
            '.amdgcn_target "amdgcn-amd-amdhsa--gfx950"', ".text",
            f".globl {K1}", f".type {K1},@function"]
    span = 0
    for I in out:
        if I.text == "L_code_end:": break
        if I.text.startswith(".p2align"):
            a = 1 << int(I.text.split()[1]); span = -(-span // a) * a
        span += I.size()
    body = [I.text.replace("CODE_SPAN", str((span - 128) & ~3)) for I in out]
    print("code bytes K1", span)
    tail = ['.section .rodata,"a"', ".p2align 6", kd(K1, 256)]
    return "\n".join(head + body + tail) + "\n", mis

if __name__ == "__main__":
    cfg = Cfg()
    for a in sys.argv[2:]:
        k, v = a.split('='); setattr(cfg, k, float(v) if k == 'thr' else int(v))
    s, mis = generate(cfg)
    open(sys.argv[1], "w").write(s)
    print("bytes", len(s), "lines", s.count("\n"), "misaligned", mis)
```
